```python
import torch

def _softmax(x, axis=-1):
    return torch.softmax(x, dim=axis)
def _gelu(x):
    return torch.nn.functional.gelu(x, approximate="tanh")
def _silu(x):
    return torch.nn.functional.silu(x)
def _sigmoid(x):
    return torch.sigmoid(x)
def _layernorm(x, axis=-1, eps=1e-5):
    m = x.mean(dim=axis, keepdim=True)
    v = x.var(dim=axis, keepdim=True, unbiased=False)
    return (x - m) / torch.sqrt(v + eps)
def _scatter_add(tgt, idx, src, axis=0):
    return tgt.clone().index_add_(axis, idx, src)
def _segment_sum(src, seg, n):
    out = torch.zeros((n,) + src.shape[1:], dtype=src.dtype)
    return out.index_add_(0, seg, src)
def _pad(x, pw):
    flat = tuple(v for pair in reversed(pw) for v in pair)
    return torch.nn.functional.pad(x, flat)

kernel_name = 'parallel_sum__compressed_kv_cla__dense_activation_squared_relu__decode'

def setup_inputs():

    _w = (lambda a: (lambda t: t.to(torch.bfloat16) if t.is_floating_point() else t)(torch.as_tensor(a)))
    def _A_setup():
        B, H, Sq, Sk, D, M = 1, 32, 1, 16384, 128, 512
        Dc = 4 * D
        return {
            "x": _w((lambda *s: torch.randn(*s, dtype=torch.bfloat16) * 0.05)(B, Sq, M)),
            "c_kv": _w((lambda *s: torch.randn(*s, dtype=torch.bfloat16) * 3.2)(B, Sk, Dc)),
            "w_q": _w((lambda *s: torch.randn(*s, dtype=torch.bfloat16) * 1.6)(M, H, D) * (M ** -0.5)),
            "w_uk": _w((lambda *s: torch.randn(*s, dtype=torch.bfloat16) * 1.6)(Dc, H, D) * (Dc ** -0.5)),
            "w_uv": _w((lambda *s: torch.randn(*s, dtype=torch.bfloat16) * 3.2)(Dc, H, D) * (Dc ** -0.5)),
            "w_o": _w((lambda *s: torch.randn(*s, dtype=torch.bfloat16) * 3.2)(H, D, M) * ((H * D) ** -0.5)),
        }
    _A_in = _A_setup()

    def _B_setup():
        B, S, D, F = 1, 1, 512, 1792
        return {
            "x": _w((lambda *s: torch.randn(*s, dtype=torch.bfloat16) * 0.05)(B, S, D)),
            "w1": _w((lambda *s: torch.randn(*s, dtype=torch.bfloat16) * 0.1)(D, F)),
            "b1": _w((lambda *s: torch.randn(*s, dtype=torch.bfloat16) * 0.8)(F)),
            "w2": _w((lambda *s: torch.randn(*s, dtype=torch.bfloat16) * 0.1)(F, D)),
            "b2": _w((lambda *s: torch.randn(*s, dtype=torch.bfloat16) * 12.8)(D)),
        }
    _B_in = _B_setup()

    return {
        "A_x": _A_in["x"],
        "A_c_kv": _A_in["c_kv"],
        "A_w_q": _A_in["w_q"],
        "A_w_uk": _A_in["w_uk"],
        "A_w_uv": _A_in["w_uv"],
        "A_w_o": _A_in["w_o"],
        "B_x": _B_in["x"],
        "B_w1": _B_in["w1"],
        "B_b1": _B_in["b1"],
        "B_w2": _B_in["w2"],
        "B_b2": _B_in["b2"],
    }

def reference(A_x, A_c_kv, A_w_q, A_w_uk, A_w_uv, A_w_o, B_x, B_w1, B_b1, B_w2, B_b2):
    def _A_ref(x, c_kv, w_q, w_uk, w_uv, w_o):
        B, Sq, M = x.shape[0], x.shape[1], x.shape[2]
        Sk = c_kv.shape[1]
        H, D = w_q.shape[1], w_q.shape[2]
        q = torch.einsum("bqm,mhd->bhqd", x, w_q)
        k = torch.einsum("bkc,chd->bhkd", c_kv, w_uk)
        v = torch.einsum("bkc,chd->bhkd", c_kv, w_uv)
        scores = torch.einsum("bhqd,bhkd->bhqk", q, k) * (D ** -0.5)
        off = Sk - Sq
        qi = torch.arange(Sq)[:, None]
        kj = torch.arange(Sk)[None, :]
        cmask = kj <= (qi + off)
        scores = torch.where(cmask[None, None], scores, -1e9)
        p = _softmax(scores, axis=-1)
        ctx = torch.einsum("bhqk,bhkd->bhqd", p, v)
        return torch.einsum("bhqd,hdm->bqm", ctx, w_o)

    def _B_ref(x, w1, b1, w2, b2):
        h = torch.einsum("bsd,df->bsf", x, w1) + b1
        zero = torch.zeros_like(h)
        r = torch.where(h > zero, h, zero)
        h = r * r
        out = torch.einsum("bsf,fd->bsd", h, w2) + b2
        return out

    x = A_x
    xn = _layernorm(x, axis=-1)
    return x + _A_ref(xn, A_c_kv, A_w_q, A_w_uk, A_w_uv, A_w_o) + _B_ref(xn, B_w1, B_b1, B_w2, B_b2)
```

```python
import re
class Asm:
    def __init__(self): self.lines = []
    def __call__(self, text):
        for l in text.split("\n"):
            l = l.strip()
            if l: self.lines.append(l)
    def text(self): return "\n".join(("" if l.endswith(":") or l.startswith(".") else "    ") + l for l in self.lines) + "\n"

REG = re.compile(r"\b([vsa])(\d+)\b|\b([vsa])\[(\d+):(\d+)\]|\b(vcc|exec|m0|scc)\b|\b(vcc_lo|vcc_hi|exec_lo|exec_hi)\b")
def regs(op):
    out = set()
    for m in REG.finditer(op):
        if m.group(1): out.add(m.group(1)+m.group(2))
        elif m.group(3):
            for i in range(int(m.group(4)), int(m.group(5))+1): out.add(m.group(3)+str(i))
        elif m.group(6): out.add(m.group(6))
        elif m.group(7): out.add(m.group(7).split("_")[0])
    return out
TRANS = ("v_exp_f32","v_log_f32","v_rcp_f32","v_rsq_f32","v_sqrt_f32","v_sin_f32","v_cos_f32")
def split_ops(rest):
    ops, depth, cur = [], 0, ""
    for ch in rest:
        if ch == "[": depth += 1
        if ch == "]": depth -= 1
        if ch == "," and depth == 0: ops.append(cur.strip()); cur = ""
        else: cur += ch
    if cur.strip(): ops.append(cur.strip())
    return ops
class I:
    def __init__(self, line):
        self.line = line
        l = line.split(";")[0].strip()
        self.label = l.endswith(":") or l.startswith(".") or not l
        self.w = set(); self.r = set(); self.kind = "other"; self.states = 1
        self.srcC = set(); self.srcAB = set(); self.passes = 0; self.dpp = False; self.wide = set(); self.constr = set()
        if self.label: self.states = 0; self.mn = ""; return
        p = l.split(None, 1); mn = p[0]; self.mn = mn
        ops = split_ops(p[1]) if len(p) > 1 else []
        if mn == "s_nop": self.states = int(ops[0], 0) + 1; self.kind = "nop"; return
        if mn.startswith("v_mfma") or mn.startswith("v_smfmac"):
            self.kind = "mfma"; self.w = regs(ops[0]); self.srcAB = regs(ops[1]) | regs(ops[2])
            if mn.startswith("v_smfmac"):
                self.srcC = regs(ops[0]); self.srcAB |= regs(ops[3])
            else: self.srcC = regs(ops[3])
            self.r = self.srcAB | self.srcC
            self.passes = 8 if "32x32" in mn else 4
            pass
            return
        if mn.startswith("v_"):
            self.kind = "valu"
            self.dpp = "_dpp" in mn or "row_" in l or "quad_perm" in l
            if mn.startswith("v_cmp"):
                self.w = regs(ops[0]); self.r = set().union(*[regs(o) for o in ops[1:]])
                if mn.startswith("v_cmpx"): self.w.add("exec")
            elif "permlane" in mn and "swap" in mn:
                self.w = regs(ops[0]) | regs(ops[1]); self.r = set(self.w); self.kind = "permlane"
            elif mn.startswith("v_readfirstlane") or mn.startswith("v_readlane"):
                self.w = regs(ops[0]); self.r = set().union(*[regs(o) for o in ops[1:]]); self.kind = "readlane"
            elif "_co_" in mn:
                self.w = regs(ops[0]) | regs(ops[1]); self.r = set().union(*[regs(o) for o in ops[2:]])
            else:
                self.w = regs(ops[0]); self.r = set().union(*[regs(o) for o in ops[1:]]) if len(ops) > 1 else set()
                if mn.startswith(("v_fmac", "v_dot2c", "v_mac", "v_writelane")) or self.dpp: self.r |= self.w
                if mn.startswith("v_cndmask") and len(ops) == 3: self.r.add("vcc")
            self.trans = mn.replace("_e32","").replace("_e64","") in TRANS
            return
        if mn.startswith(("buffer_", "global_", "flat_")):
            self.kind = "vmem"
            allr = [regs(o) for o in ops]
            isl = " lds" in l or "load_lds" in mn
            if "load" in mn and not isl:
                self.w = allr[0]; self.r = set().union(*allr[1:])
            elif "atomic" in mn and "sc0" in l and mn.startswith("global"):
                self.w = allr[0]; self.r = set().union(*allr[1:])
            else:
                self.r = set().union(*allr) if allr else set()
                if "store" in mn and ("x3" in mn or "x4" in mn):
                    self.wide = allr[0] if mn.startswith("buffer") else allr[1]
            if isl: self.r.add("m0"); self.lds_dma = True
            return
        if mn.startswith("ds_"):
            self.kind = "ds"
            allr = [regs(o) for o in ops]
            if mn.startswith(("ds_read", "ds_bpermute", "ds_permute", "ds_swizzle")) or "_rtn" in mn:
                self.w = allr[0]; self.r = set().union(*allr[1:])
            else: self.r = set().union(*allr)
            return
        if mn.startswith("s_"):
            self.kind = "salu"
            if mn.startswith(("s_cmp", "s_bitcmp", "s_cbranch", "s_branch", "s_waitcnt", "s_barrier", "s_endpgm", "s_sleep", "s_setprio")):
                self.r = set().union(*[regs(o) for o in ops]) if ops else set()
            else:
                self.w = regs(ops[0]) if ops else set(); self.r = set().union(*[regs(o) for o in ops[1:]]) if len(ops) > 1 else set()
                if "saveexec" in mn: self.w.add("exec")
            return
def v(s): return {x for x in s if x[0] in "va" and x != "vcc"}
def sg(s): return {x for x in s if x[0] == "s" or x == "vcc"}
def need(p, c):
    n = 0
    isvalu = lambda x: x.kind in ("valu", "permlane", "readlane")
    if isvalu(p):
        if c.kind == "mfma" and v(p.w) & c.r: n = max(n, 2)
        if c.kind == "mfma" and "exec" in p.w: n = max(n, 4)
        if isvalu(c) and c.dpp and v(p.w) & c.r: n = max(n, 2)
        if isvalu(c) and c.dpp and "exec" in p.w: n = max(n, 5)
        if c.kind == "permlane" and v(p.w) & c.r: n = max(n, 2)
        if c.kind == "readlane" and v(p.w) & c.r: n = max(n, 1)
        if c.kind == "readlane" and sg(p.w) & c.r: n = max(n, 4)
        if isvalu(c) and sg(p.w) & c.r: n = max(n, 2)
        if c.kind == "vmem" and sg(p.w) & c.r: n = max(n, 5)
        if c.kind == "salu" and sg(p.w) & c.r: n = max(n, 1)
        if getattr(p, "trans", False) and (isvalu(c) or c.kind == "mfma") and not getattr(c, "trans", False) and v(p.w) & c.r: n = max(n, 1)
        if "exec" in p.w and c.kind in ("readlane", "permlane"): n = max(n, 4)
    if p.kind == "mfma":
        k = {4: (6, 8, 3), 8: (10, 12, 7)}[p.passes]
        if c.kind == "mfma":
            if p.w & c.srcAB: n = max(n, k[1])
            if p.w & c.srcC and not (p.w == c.srcC and p.passes == c.passes and p.mn == c.mn): n = max(n, k[0])
            if p.w & c.w and not (p.w & c.srcC): n = max(n, k[0])
        elif c.kind != "salu" and c.kind != "nop":
            if p.w & (c.r | c.w): n = max(n, k[1])
            if isvalu(c) and p.srcC & c.w: n = max(n, k[2])
    if p.kind == "salu" and "m0" in p.w and c.kind == "vmem" and "m0" in c.r: n = max(n, 1)
    if p.kind == "vmem" and p.wide and (p.wide & c.w): n = max(n, 2)
    return n
def insert_waits(lines, verbose=False):
    out = []; hist = []
    nins = 0
    for l in lines:
        c = I(l)
        if c.label:
            out.append(l); continue
        req = 0
        dist = 0
        for p in reversed(hist):
            k = need(p, c)
            if k > dist: req = max(req, k - dist)
            dist += p.states
            if dist >= 20: break
        if req > 0:
            nins += 1
            nop = I(f"s_nop {req-1}")
            out.append(f"s_nop {req-1}"); hist.append(nop)
        out.append(l); hist.append(c)
        if len(hist) > 40: hist = hist[-40:]
    return out, nins
```

```python
KNAME = "parallel_sum__compressed_kv_cla__dense_activation_squared_relu__decode_kernel"
def header(grid, block, lds, name=KNAME):
    return f"""; @launch grid=({grid},1,1) block=({block},1,1) lds={lds}
.amdgcn_target "amdgcn-amd-amdhsa--gfx950"
.text
.globl {name}
.p2align 8
.type {name},@function
{name}:
"""
def footer(vgpr=256, sgpr=102, accum=None, name=KNAME):
    if accum is None: accum = min(256, (vgpr + 3)//4*4)
    return f"""
.section .rodata,"a"
.p2align 6
.amdhsa_kernel {name}
  .amdhsa_next_free_vgpr {vgpr}
  .amdhsa_next_free_sgpr {sgpr}
  .amdhsa_accum_offset {accum}
  .amdhsa_group_segment_fixed_size 0
  .amdhsa_kernarg_size 112
  .amdhsa_user_sgpr_count 2
  .amdhsa_user_sgpr_kernarg_segment_ptr 1
  .amdhsa_system_sgpr_workgroup_id_x 1
.end_amdhsa_kernel
"""
```

```python
import sys, math, struct
from asmlib import Asm, insert_waits
from gen_common import KNAME

EP, QP, QL, LSE, DP, BP, STAMP = 0, 0x1000, 0x40000, 0x50000, 0x80000, 0x100000, 0x800000
WS_REC = 0x1000000
X = 131072
SPIN = 1 << 17

def f2u(x): return struct.unpack("<I", struct.pack("<f", x))[0]
def vr(a, n=4): return f"v[{a}:{a+n-1}]"
def sr(a, n=4): return f"s[{a}:{a+n-1}]"

SX, SC, SQ, SK, SW, SG = 40, 44, 48, 52, 56, 60
sF, sB = 20, 24
HINT = 64

DEFAULT = dict(diag=False, c_ramp=(2, 8, 2), wo_depth=3, nfin=32, qhint=1, lhint=1, bhint=4, prefetch=True, role_bit=0)

def gen(**kw):
    P = dict(DEFAULT); P.update(kw)
    diag = P["diag"]
    a = Asm()
    def stamp(k):
        if diag: a(f"s_memrealtime s[{80+2*k}:{81+2*k}]")
    def srd(base, size):
        a(f"s_mov_b32 s{base+2}, {size}\ns_mov_b32 s{base+3}, 0x20000")
    def tags(need_b=True):
        for q in range(4): a(f"s_add_u32 s{sF+q}, s35, {q+1}")
        if need_b:
            for q in range(4): a(f"s_and_b32 s{sB+q}, s{sF+q}, 3\ns_mul_i32 s{sB+q}, s{sB+q}, 0x8001")
    def allreduce(op, v, t1, t2):
        for r in (1, 2, 4, 8):
            a(f"{op}_dpp v{v}, v{v}, v{v} row_ror:{r} row_mask:0xf bank_mask:0xf")
        for sw in ("v_permlane16_swap_b32", "v_permlane32_swap_b32"):
            a(f"v_mov_b32 v{t1}, v{v}\n{sw} v{t1}, v{v}\n{op} v{v}, v{v}, v{t1}")
    def rnd_bf16(d, s):
        a(f"v_cvt_pk_bf16_f32 v{d}, v{s}, v{s}\nv_and_b32 v{d}, 0xffff0000, v{d}")
    def ln_stats(xr, f, t):
        for i in range(4):
            a(f"v_lshlrev_b32 v{f+2*i}, 16, v{xr+i}\nv_and_b32 v{f+2*i+1}, 0xffff0000, v{xr+i}")
        a(f"v_add_f32 v{t}, v{f}, v{f+1}\nv_add_f32 v{t+1}, v{f+2}, v{f+3}\nv_add_f32 v{t+2}, v{f+4}, v{f+5}\nv_add_f32 v{t+3}, v{f+6}, v{f+7}")
        a(f"v_add_f32 v{t}, v{t}, v{t+1}\nv_add_f32 v{t+2}, v{t+2}, v{t+3}\nv_add_f32 v{t}, v{t}, v{t+2}")
        allreduce("v_add_f32", t, t+2, t+3)
        a(f"v_mul_f32 v{t}, {f2u(1/512)}, v{t}")
        a(f"v_sub_f32 v{t+2}, v{f}, v{t}\nv_mul_f32 v{t+1}, v{t+2}, v{t+2}")
        for i in range(1, 8):
            a(f"v_sub_f32 v{t+2+(i&1)}, v{f+i}, v{t}\nv_fmac_f32 v{t+1}, v{t+2+(i&1)}, v{t+2+(i&1)}")
        allreduce("v_add_f32", t+1, t+2, t+3)
        a(f"v_mul_f32 v{t+1}, {f2u(1/512)}, v{t+1}")
        rnd_bf16(t, t)
        rnd_bf16(t+1, t+1)
        a(f"v_add_f32 v{t+1}, {f2u(1e-5)}, v{t+1}")
        rnd_bf16(t+1, t+1)
        a(f"v_sqrt_f32 v{t+1}, v{t+1}")
        rnd_bf16(t+1, t+1)
        a(f"v_rcp_f32 v{t+1}, v{t+1}")
    def delta_masks(m, t):
        a(f"""v_and_b32 v{t}, 1, v0
        v_lshlrev_b32 v{t}, 4, v{t}
        v_mov_b32 v{t+1}, 0xffff
        v_lshlrev_b32 v{t}, v{t}, v{t+1}
        v_bfe_u32 v{t+1}, v0, 1, 3""")
        for dw in range(4):
            a(f"v_cmp_eq_u32 vcc, {dw}, v{t+1}\nv_cndmask_b32 v{m+dw}, 0, v{t}, vcc")
    def check(acc, first, n, tagbase, start):
        for i in range(n):
            if start and i == 0: a(f"v_xor_b32 v{acc}, s{tagbase}, v{first}")
            else: a(f"v_bitop3_b32 v{acc}, v{acc}, v{first+i}, s{tagbase+(i&3)} bitop3:0xf6")
    def spin(label, cond_branch):
        a(f"""s_add_u32 s28, s28, 1
        s_cmp_gt_u32 s28, {SPIN}
        s_cbranch_scc1 L_exit
        {cond_branch} {label}""")

    stamp(0)
    a(f"""s_load_dwordx2 s[{SX}:{SX+1}], s[0:1], 0
    s_load_dwordx2 s[{SQ}:{SQ+1}], s[0:1], 16
    s_load_dwordx2 s[{SK}:{SK+1}], s[0:1], 24
    s_load_dwordx2 s[{SC}:{SC+1}], s[0:1], 8
    s_load_dwordx2 s[{SW}:{SW+1}], s[0:1], 104
    v_lshrrev_b32 v1, 6, v0
    s_cmp_ge_u32 s2, 256
    s_cbranch_scc1 L_end
    v_readfirstlane_b32 s3, v1
    v_and_b32 v0, 63, v0
    s_and_b32 s4, s2, 7""")
    if P["role_bit"] == 0:
        a("s_bfe_u32 s6, s2, 0x10003\ns_lshr_b32 s5, s2, 4")
    else:
        a("s_lshr_b32 s6, s2, 7\ns_bfe_u32 s5, s2, 0x40003")
    a(f"""s_lshr_b32 s7, s5, 2
    s_lshl2_add_u32 s7, s4, s7
    s_and_b32 s8, s5, 3
    s_mov_b32 s28, 0""")
    srd(SW, WS_REC)
    a(f"""v_and_b32 v2, 15, v0
    v_lshrrev_b32 v3, 4, v0
    s_cmp_eq_u32 s3, 4
    s_cbranch_scc1 L_A1
    s_cmp_eq_u32 s6, 1
    s_cbranch_scc1 L_ATT
    s_cmp_eq_u32 s3, 5
    s_cbranch_scc1 L_A2
    s_cmp_eq_u32 s3, 6
    s_cbranch_scc1 L_A2
    s_branch L_WGT_other""")

    a("L_A1:")
    srd(SX, 1024); srd(SQ, 4 << 20)
    a(f"""s_lshl1_add_u32 s9, s8, s6
    s_lshl_b32 s10, s9, 19
    s_lshl_b32 s11, s7, 8
    s_add_u32 s10, s10, s11
    s_lshl_b32 s11, s9, 7
    v_lshlrev_b32 v4, 4, v0
    v_lshlrev_b32 v5, 1, v0
    v_lshlrev_b32 v6, 17, v3
    v_lshl_add_u32 v6, v2, 4, v6
    s_movk_i32 s12, 0x2000
    s_waitcnt lgkmcnt(0)
    buffer_load_dwordx4 v[8:11], v4, {sr(SX)}, 0 offen
    buffer_load_ushort v12, v5, {sr(SX)}, s11 offen""")
    for t in range(16):
        a(f"buffer_load_dwordx4 {vr(64+4*t)}, v6, {sr(SQ)}, s10 offen nt")
        if t < 15: a("s_add_u32 s10, s10, s12")
    a(f"s_load_dword s35, s[{SW}:{SW+1}], {EP}")
    stamp(1)
    delta_masks(32, 36)
    a("v_mov_b32 v40, 0xff")
    a(f"""v_lshlrev_b32 v41, 5, v2
    v_lshl_add_u32 v41, v3, 4, v41
    s_lshl3_add_u32 s10, s7, s9
    s_lshl_b32 s10, s10, 9
    s_add_u32 s10, s10, {QP}
    s_waitcnt vmcnt(16)""")
    stamp(2)
    ln_stats(8, 16, 24)
    a("v_lshlrev_b32 v12, 16, v12\nv_sub_f32 v12, v12, v24")
    rnd_bf16(12, 12)
    a("v_mul_f32 v12, v12, v25\nv_cvt_pk_bf16_f32 v12, v12, v12")
    for t in range(16):
        for dw in range(4):
            a(f"v_and_b32_dpp v{128+4*t+dw}, v12, v{32+dw} row_newbcast:{t} row_mask:0xf bank_mask:0xf")
    a("s_waitcnt lgkmcnt(0)")
    tags(True)
    stamp(3)
    for t in range(16):
        a(f"s_waitcnt vmcnt({15-t})")
        a(f"v_mfma_f32_16x16x32_bf16 v[44:47], {vr(128+4*t)}, {vr(64+4*t)}, {'0' if t == 0 else 'v[44:47]'}")
    for r in range(4):
        a(f"v_bfi_b32 v{44+r}, v40, s{sF+r}, v{44+r}")
    a(f"""s_mov_b32 exec_hi, 0
    buffer_store_dwordx4 v[44:47], v41, {sr(SW)}, s10 offen sc1
    s_mov_b64 exec, -1""")
    stamp(4)
    a("s_cmp_eq_u32 s6, 1\ns_cbranch_scc1 L_ATT_help2")
    a(f"""s_lshl_b32 s10, s7, 12
    s_add_u32 s10, s10, {QP}
    v_lshrrev_b32 v5, 5, v0
    v_and_b32 v6, 31, v0
    v_lshlrev_b32 v5, 15, v5
    v_lshl_add_u32 v5, v6, 3, v5
    v_add_u32 v5, 32768, v5
    L_qp_poll:""")
    for u in range(4):
        a(f"buffer_load_dwordx4 {vr(64+4*u)}, v4, {sr(SW)}, s10 offen offset:{1024*u} sc1")
    a("s_waitcnt vmcnt(0)")
    check(13, 64, 16, sF, True)
    a("v_and_b32 v13, v40, v13\nv_cmp_ne_u32 vcc, 0, v13")
    spin("L_qp_poll", "s_cbranch_vccnz")
    for q in range(4):
        a(f"v_add_f32 v{64+q}, v{64+q}, v{68+q}\nv_add_f32 v{72+q}, v{72+q}, v{76+q}")
    for q in range(4):
        a(f"v_add_f32 v{64+q}, v{64+q}, v{72+q}\nv_mov_b32 v{68+q}, v{64+q}")
    for q in range(4):
        a(f"v_permlane32_swap_b32 v{68+q}, v{64+q}")
    for q in range(4):
        a(f"v_add_f32 v{64+q}, v{64+q}, v{68+q}")
    a("""v_cvt_pk_bf16_f32 v64, v64, v65
    v_cvt_pk_bf16_f32 v65, v66, v67
    ds_write_b64 v5, v[64:65]
    s_waitcnt lgkmcnt(0)""")
    stamp(5)
    a("s_barrier\ns_branch L_WO")

    a("L_A2:")
    srd(SK, 4 << 20)
    a(f"""s_sub_u32 s9, s3, 5
    s_lshl1_add_u32 s10, s8, s9
    s_lshl_b32 s13, s10, 7
    s_lshl_b32 s10, s10, 19
    s_lshl_b32 s11, s7, 8
    s_add_u32 s10, s10, s11
    v_lshlrev_b32 v6, 13, v2
    v_lshl_add_u32 v6, v3, 4, v6
    s_waitcnt lgkmcnt(0)""")
    for T in range(4):
        for t in range(4):
            a(f"buffer_load_dwordx4 {vr(64+16*T+4*t)}, v6, {sr(SK)}, s10 offen offset:{64*t} nt")
        if T < 3: a("s_add_u32 s10, s10, 0x20000")
    a(f"s_load_dword s35, s[{SW}:{SW+1}], {EP}")
    stamp(1)
    a(f"""s_add_u32 s11, s9, 1
    s_lshl_b32 s11, s11, 15
    v_lshl_add_u32 v5, v3, 4, s11
    s_lshl_b32 s10, s7, 10
    s_add_u32 s10, s10, s13
    s_add_u32 s10, s10, {QL}
    v_lshlrev_b32 v4, 1, v0
    v_cmp_eq_u32 s[14:15], 1, v3
    v_cmp_eq_u32 s[16:17], 2, v3
    v_cmp_eq_u32 s[18:19], 3, v3
    s_waitcnt lgkmcnt(0)""")
    tags(False)
    a(f"""v_bfe_u32 v7, v0, 1, 2
    v_add_u32 v7, s{sF}, v7
    v_and_b32 v8, 1, v0
    v_lshrrev_b32 v7, v8, v7
    v_and_b32 v7, 1, v7
    v_xor_b32 v8, 1, v7
    v_lshlrev_b32 v8, 16, v8
    s_waitcnt vmcnt(0)""")
    stamp(2)
    a("s_barrier")
    for t in range(4):
        a(f"ds_read_b128 {vr(16+4*t)}, v5 offset:{64*t}")
    for t in range(4):
        a(f"s_waitcnt lgkmcnt({3-t})")
        for T in range(4):
            a(f"v_mfma_f32_16x16x32_bf16 {vr(32+4*T)}, {vr(16+4*t)}, {vr(64+16*T+4*t)}, {'0' if t == 0 else vr(32+4*T)}")
    qs = math.log2(math.e) / math.sqrt(128.0)
    a(f"""v_cndmask_b32 v9, v32, v36, s[14:15]
    v_cndmask_b32 v9, v9, v40, s[16:17]
    v_cndmask_b32 v9, v9, v44, s[18:19]
    v_mul_f32 v9, {f2u(qs)}, v9
    v_add_u32 v9, v9, v8
    v_lshrrev_b32 v9, 17, v9
    v_lshl_or_b32 v9, v9, 1, v7
    buffer_store_short v9, v4, {sr(SW)}, s10 offen sc1""")
    stamp(3)
    a("s_branch L_WO")

    a("L_ATT:")
    a(f"""s_lshl4_add_u32 s9, s4, s5
    s_cmp_ge_u32 s3, 4
    s_cbranch_scc1 L_ATT_help""")
    srd(SC, 16 << 20)
    a(f"""s_lshl2_add_u32 s10, s9, s3
    s_lshl_b32 s10, s10, 15
    s_lshl_b32 s11, s3, 15
    v_lshl_add_u32 v4, v3, 2, 0
    v_xor_b32 v4, v4, v2
    v_lshlrev_b32 v4, 4, v4
    v_lshl_add_u32 v32, v3, 10, v4
    v_xor_b32 v33, 16, v32
    v_xor_b32 v34, 32, v32
    v_xor_b32 v35, 48, v32
    s_mov_b32 m0, s11
    s_waitcnt lgkmcnt(0)""")
    d0, dmax, inc = P["c_ramp"]
    issued = 0; landed = 0
    def c_load(n):
        cb, rg = n >> 3, n & 7
        a(f"buffer_load_dwordx4 v{32+(rg&3)}, {sr(SC)}, s10 offen nt lds")
        if n < 31:
            step = 4096 if rg < 7 else (256 - 7*4096)
            a(f"s_add_u32 m0, m0, 1024\ns_add_u32 s10, s10, {step & 0xffffffff}")
    for n in range(d0): c_load(n); issued += 1
    a(f"s_load_dword s35, s[{SW}:{SW+1}], {EP}")
    stamp(1)
    a(f"""v_and_b32 v4, 3, v0
    v_bfe_u32 v5, v0, 2, 2
    v_lshl_or_b32 v5, v4, 2, v5
    v_lshrrev_b32 v6, 5, v0
    v_xor_b32 v5, v5, v6
    v_lshlrev_b32 v5, 4, v5
    v_bfe_u32 v6, v0, 2, 3
    v_lshlrev_b32 v6, 10, v6
    v_lshl_add_u32 v6, v4, 8, v6
    v_add_u32 v6, s11, v6
    v_and_b32 v7, 31, v0
    v_lshlrev_b32 v7, 10, v7
    v_add_u32 v7, {X}, v7""")
    for x in range(8):
        a(f"v_xor_b32 v4, {32*x}, v5\nv_add_u32 v{8+x}, v6, v4\nv_add_u32 v{16+x}, v7, v4")
    a(f"""v_bfe_u32 v4, v0, 2, 2
    v_bfe_u32 v5, v0, 4, 1
    v_bfe_u32 v6, v0, 1, 1
    v_lshl_or_b32 v5, v5, 1, v6
    v_lshrrev_b32 v6, 5, v0
    v_xor_b32 v5, v5, v6
    v_lshl_or_b32 v5, v4, 2, v5
    v_lshlrev_b32 v5, 4, v5
    v_lshlrev_b32 v6, 10, v6
    v_lshl_add_u32 v6, v4, 8, v6
    v_and_b32 v4, 1, v0
    v_lshl_add_u32 v6, v4, 3, v6
    s_lshl_b32 s12, s3, 13
    v_add_u32 v6, s12, v6""")
    for n in range(4):
        for sec in range(2):
            a(f"v_xor_b32 v4, {64*n + 32*sec}, v5\nv_add_u32 v{24+2*n+sec}, v6, v4")
            if sec: a(f"v_add_u32 v{24+2*n+sec}, 2048, v{24+2*n+sec}")
    depth = d0
    while issued < 32:
        landed += 1
        a(f"s_waitcnt vmcnt({issued-landed})")
        k = inc if depth < dmax else 1
        k = min(k, 32 - issued, dmax - depth + 1)
        for _ in range(k): c_load(issued); issued += 1
        depth += k - 1
    a("s_waitcnt lgkmcnt(0)")
    tags(False)
    a(f"""v_and_b32 v1, 3, v0
    v_add_u32 v1, s{sF}, v1
    v_and_b32 v1, 3, v1
    v_mul_u32_u24 v1, 0x8001, v1
    v_mov_b32 v2, 0x10001
    v_lshrrev_b32 v3, 5, v0
    v_and_b32 v4, 31, v0
    v_lshlrev_b32 v3, 19, v3
    v_lshl_add_u32 v3, v4, 2, v3""")
    stamp(2)
    a("s_barrier")
    stamp(3)
    NB = 8
    def qk_read(t):
        sl = 128 + 8*(t % NB)
        if t % 8 == 0: a(f"s_waitcnt vmcnt({24 - t})")
        a(f"ds_read_b128 {vr(sl)}, v{8+(t&7)} offset:{8192*(t>>3)}")
        a(f"ds_read_b128 {vr(sl+4)}, v{16+(t&7)} offset:{256*(t>>3)}")
    AH = 4
    for t in range(AH): qk_read(t)
    for t in range(32):
        if t + AH < 32: qk_read(t + AH)
        out = min(AH, 31 - t)
        a(f"s_waitcnt lgkmcnt({2*out})")
        sl = 128 + 8*(t % NB)
        if t == 31:
            stamp(4)
            a("s_barrier")
        a(f"v_mfma_f32_32x32x16_bf16 {vr(64,16)}, {vr(sl)}, {vr(sl+4)}, {'0' if t == 0 else vr(64,16)}")
    for x in range(8): a(f"v_add_u32 v{8+x}, 0x10000, v{24+x}")
    a(f"""v_and_b32 v4, 31, v0
    v_lshlrev_b32 v4, 3, v4
    v_add_u32 v16, {X+8192}, v4
    s_lshl_b32 s12, s3, 8
    v_add_u32 v17, s12, v16
    v_lshlrev_b32 v18, 4, v0
    v_add_u32 v18, {X}, v18
    s_lshl_b32 s12, s3, 11
    v_add_u32 v19, s12, v18""")
    def pv_read(half, kk, nn):
        n = 2*half + nn
        w, hf = kk >> 1, kk & 1
        base = 192 - 64*half + 8*kk + 4*nn if False else 128 + 64*(1-half) + 8*kk + 4*nn
        for sec in range(2):
            ar = (24 if w < 2 else 8) + 2*n + sec
            a(f"ds_read_b64_tr_b16 {vr(base+2*sec,2)}, v{ar} offset:{32768*(w&1) + 4096*hf}")
        return base
    for kk in range(8):
        for nn in range(2): pv_read(0, kk, nn)
    a(f"""v_max3_f32 v4, v64, v65, v66
    v_max3_f32 v5, v67, v68, v69
    v_max3_f32 v6, v70, v71, v72
    v_max3_f32 v7, v73, v74, v75
    v_max3_f32 v4, v4, v76, v77
    v_max3_f32 v5, v5, v78, v79
    v_max3_f32 v4, v4, v5, v6
    v_max_f32 v4, v4, v7
    v_mov_b32 v5, v4
    v_permlane32_swap_b32 v5, v4
    v_max_f32 v20, v4, v5""")
    for r in range(16): a(f"v_sub_f32 v{64+r}, v{64+r}, v20")
    for r in range(16): a(f"v_exp_f32 v{64+r}, v{64+r}")
    a("v_add_f32 v4, v64, v65\nv_add_f32 v5, v66, v67\nv_add_f32 v6, v68, v69\nv_add_f32 v7, v70, v71")
    for r in range(8): a(f"v_add_f32 v{4+(r&3)}, v{4+(r&3)}, v{72+r}")
    a(f"""v_add_f32 v4, v4, v5
    v_add_f32 v6, v6, v7
    v_add_f32 v4, v4, v6
    v_mov_b32 v5, v4
    v_permlane32_swap_b32 v5, v4
    v_add_f32 v21, v4, v5
    ds_write_b64 v17, v[20:21]
    s_waitcnt lgkmcnt(0)
    s_barrier""")
    for w in range(4): a(f"ds_read_b64 {vr(80+2*w,2)}, v16 offset:{256*w}")
    a(f"""s_waitcnt lgkmcnt(0)
    v_max3_f32 v4, v80, v82, v84
    v_max_f32 v4, v4, v86
    v_sub_f32 v80, v80, v4
    v_sub_f32 v82, v82, v4
    v_sub_f32 v84, v84, v4
    v_sub_f32 v86, v86, v4
    v_sub_f32 v20, v20, v4
    v_exp_f32 v80, v80
    v_exp_f32 v82, v82
    v_exp_f32 v84, v84
    v_exp_f32 v86, v86
    v_exp_f32 v20, v20
    v_mul_f32 v5, v80, v81
    v_fmac_f32 v5, v82, v83
    v_fmac_f32 v5, v84, v85
    v_fmac_f32 v5, v86, v87
    v_rcp_f32 v6, v5
    v_log_f32 v7, v5
    v_mul_f32 v20, v20, v6""")
    for r in range(16): a(f"v_mul_f32 v{64+r}, v{64+r}, v20")
    for r in range(8): a(f"v_cvt_pk_bf16_f32 v{88+r}, v{64+2*r}, v{65+2*r}")
    a("ds_write_b128 v19, v[88:91]\nds_write_b128 v19, v[92:95] offset:1024")
    a(f"""s_cmp_lg_u32 s3, 0
    s_cbranch_scc1 L_nolse
    v_add_f32 v6, v4, v7
    v_mov_b32 v7, s{sF}
    v_lshlrev_b32 v5, 3, v0
    s_lshl_b32 s12, s9, 8
    s_add_u32 s12, s12, {LSE}
    s_mov_b32 exec_hi, 0
    buffer_store_dwordx2 v[6:7], v5, {sr(SW)}, s12 offen sc1
    s_mov_b64 exec, -1
    L_nolse:
    s_waitcnt lgkmcnt(0)""")
    stamp(5)
    a("s_barrier")
    for kk in range(8): a(f"ds_read_b128 {vr(32+4*kk)}, v18 offset:{1024*kk}")
    a(f"""s_lshl_b32 s12, s3, 15
    s_lshl_b32 s13, s9, 8
    s_add_u32 s12, s12, s13
    s_add_u32 s12, s12, {BP}""")
    def pv_store(half, r):
        head = (r & 3) + 8*(r >> 2)
        t0, t1 = 64 + 32*half + r, 80 + 32*half + r
        a(f"""v_cvt_pk_bf16_f32 v{t0}, v{t0}, v{t1}
        v_bfi_b32 v{t0}, v2, v1, v{t0}
        s_add_u32 s13, s12, {head*131072}
        buffer_store_dword v{t0}, v3, {sr(SW)}, s13 offen offset:{128*half} sc1""")
    for kk in range(8):
        a(f"s_waitcnt lgkmcnt({min(15, 7-kk + 4*kk)})")
        for nn in range(2):
            fb = 192 + 8*kk + 4*nn
            acc = 64 + 16*nn
            a(f"v_mfma_f32_32x32x16_bf16 {vr(acc,16)}, {vr(32+4*kk)}, {vr(fb)}, {'0' if kk == 0 else vr(acc,16)}")
            pv_read(1, kk, nn)
    for kk in range(8):
        a(f"s_waitcnt lgkmcnt({min(15, 4*(7-kk))})")
        for nn in range(2):
            fb = 128 + 8*kk + 4*nn
            acc = 96 + 16*nn
            a(f"v_mfma_f32_32x32x16_bf16 {vr(acc,16)}, {vr(32+4*kk)}, {vr(fb)}, {'0' if kk == 0 else vr(acc,16)}")
            if kk >= 1 or nn >= 1:
                pv_store(0, 2*kk + nn - 1)
    pv_store(0, 15)
    stamp(6)
    for r in range(16): pv_store(1, r)
    stamp(7)
    if diag:
        a("s_waitcnt vmcnt(0)"); stamp(8)
    a("s_branch L_exit")

    a("L_ATT_help:")
    a(f"""s_waitcnt lgkmcnt(0)
    s_load_dword s35, s[{SW}:{SW+1}], {EP}""")
    if P["prefetch"]:
        a(f"""s_cmp_lg_u32 s3, 7
        s_cbranch_scc1 L_nopf
        s_cmp_lg_u32 s5, 0
        s_cbranch_scc1 L_nopf
        s_getpc_b64 s[10:11]
        L_pc:
        s_sub_u32 s10, s10, L_pc - {KNAME}
        s_subb_u32 s11, s11, 0
        v_lshlrev_b32 v4, 7, v0
        v_add_u32 v5, 8192, v4
        v_add_u32 v6, 16384, v4
        v_min_u32 v6, L_codeend - {KNAME} - 4, v6
        global_load_dword v200, v4, s[10:11]
        global_load_dword v201, v5, s[10:11]
        global_load_dword v202, v6, s[10:11]
        L_nopf:""")
    a("s_waitcnt lgkmcnt(0)")
    tags(True)
    a("L_ATT_help2:")
    a(f"""s_lshl4_add_u32 s9, s4, s5
    s_sub_u32 s10, s3, 4
    s_lshl_b32 s11, s10, 13
    s_add_u32 s12, s11, {QL}
    s_add_u32 s13, s11, {X}
    s_and_b32 s14, s10, 1
    s_lshl_b32 s14, s14, 5
    v_lshlrev_b32 v4, 4, v0
    v_add_u32 v5, s13, v4
    v_xor_b32 v4, s14, v4
    v_mov_b32 v6, 0x10001""")
    for r in range(8):
        f = ((r & 3) << 2) | (r >> 2)
        a(f"v_xor_b32 v{8+r}, {16*f}, v4")
    nh = P["qhint"]
    if nh:
        for x in range(nh):
            a(f"s_add_u32 s{30+x}, s9, {(64*x)//nh + x}\ns_and_b32 s{30+x}, s{30+x}, 63\ns_lshl_b32 s{30+x}, s{30+x}, 7\ns_add_u32 s{30+x}, s{30+x}, s12")
        a("L_qhint:")
        for x in range(nh):
            a(f"s_load_dwordx4 {sr(HINT+4*x)}, s[{SW}:{SW+1}], s{30+x} glc")
        a("s_waitcnt lgkmcnt(0)")
        for x in range(4*nh):
            a(f"s_xor_b32 s{HINT+x}, s{HINT+x}, s{sB+(x&3)}")
            if x: a(f"s_or_b32 s{HINT}, s{HINT}, s{HINT+x}")
        a(f"""s_add_u32 s28, s28, 1
        s_cmp_gt_u32 s28, {SPIN}
        s_cbranch_scc1 L_exit
        s_and_b32 s{HINT}, s{HINT}, 0x10001
        s_cbranch_scc1 L_qhint""")
    stamp(5)
    a("L_qfetch:\ns_mov_b32 m0, s13\ns_mov_b32 s15, s12")
    for r in range(8):
        a(f"buffer_load_dwordx4 v{8+r}, {sr(SW)}, s15 offen sc1 lds")
        if r < 7: a("s_add_u32 m0, m0, 1024\ns_add_u32 s15, s15, 1024")
    for r in range(8):
        a(f"s_waitcnt vmcnt({7-r})\nds_read_b128 {vr(64+4*r)}, v5 offset:{1024*r}")
    for r in range(8):
        a(f"s_waitcnt lgkmcnt({7-r})")
        check(7, 64+4*r, 4, sB, r == 0)
    a("v_and_b32 v7, v6, v7\nv_cmp_ne_u32 vcc, 0, v7")
    spin("L_qfetch", "s_cbranch_vccnz")
    stamp(6)
    a("s_barrier\ns_barrier")
    a("s_cmp_eq_u32 s3, 5\ns_cbranch_scc1 L_MLP")
    a("s_barrier\ns_barrier")
    a("s_cmp_eq_u32 s3, 6\ns_cbranch_scc0 L_exit")

    assert P["nfin"] == 32
    a(f"""s_cmp_lt_u32 s5, 12
    s_cbranch_scc1 L_exit
    s_load_dwordx2 s[{SC}:{SC+1}], s[0:1], 80
    s_load_dwordx2 s[{SQ}:{SQ+1}], s[0:1], 88
    s_sub_u32 s10, s5, 12
    s_lshl2_add_u32 s10, s4, s10
    s_lshl_b32 s11, s10, 6
    s_lshl_b32 s16, s10, 5
    v_lshrrev_b32 v4, 2, v0
    v_and_b32 v5, 3, v0
    v_lshlrev_b32 v4, 11, v4
    v_lshl_add_u32 v4, v5, 4, v4
    v_lshlrev_b32 v5, 3, v5
    v_mov_b32 v6, 0xff""")
    srd(SX, 1024); srd(SC, 1024); srd(SQ, 1024)
    a(f"""s_waitcnt lgkmcnt(0)
    buffer_load_dwordx2 v[8:9], v5, {sr(SX)}, s16 offen
    buffer_load_dwordx2 v[10:11], v5, {sr(SC)}, s16 offen""")
    def fin_gather(label, first, n, dst):
        a(f"{label}:\ns_add_u32 s12, s11, {DP + first*2048}")
        for x in range(n):
            a(f"buffer_load_dwordx4 {vr(64+4*x)}, v4, {sr(SW)}, s12 offen sc1")
            if x < n-1: a("s_add_u32 s12, s12, 0x8000")
        for x in range(n):
            a(f"s_waitcnt vmcnt({n-1-x})")
            check(7, 64+4*x, 4, sF, x == 0)
            if x == 1:
                for q in range(4): a(f"v_add_f32 v{dst+q}, v{64+q}, v{68+q}")
            elif x > 1:
                for q in range(4): a(f"v_add_f32 v{dst+q}, v{dst+q}, v{64+4*x+q}")
        a("v_and_b32 v7, v6, v7\nv_cmp_ne_u32 vcc, 0, v7")
        spin(label, "s_cbranch_vccnz")
        for r in (4, 8):
            for q in range(4): a(f"v_add_f32_dpp v{dst+q}, v{dst+q}, v{dst+q} row_ror:{r} row_mask:0xf bank_mask:0xf")
        for sw in ("v_permlane16_swap_b32", "v_permlane32_swap_b32"):
            for q in range(4): a(f"v_mov_b32 v{64+q}, v{dst+q}")
            for q in range(4): a(f"{sw} v{64+q}, v{dst+q}")
            for q in range(4): a(f"v_add_f32 v{dst+q}, v{dst+q}, v{64+q}")
    fin_gather("L_fin_mlp", 128, 7, 16)
    stamp(7)
    a("v_cvt_pk_bf16_f32 v12, v16, v17\nv_cvt_pk_bf16_f32 v13, v18, v19")
    for i in range(2):
        a(f"""v_lshlrev_b32 v{16+2*i}, 16, v{12+i}
        v_and_b32 v{17+2*i}, 0xffff0000, v{12+i}
        v_lshlrev_b32 v{20+2*i}, 16, v{10+i}
        v_and_b32 v{21+2*i}, 0xffff0000, v{10+i}
        v_lshlrev_b32 v{24+2*i}, 16, v{8+i}
        v_and_b32 v{25+2*i}, 0xffff0000, v{8+i}""")
    for q in range(4): a(f"v_add_f32 v{16+q}, v{16+q}, v{20+q}")
    a("v_cvt_pk_bf16_f32 v12, v16, v17\nv_cvt_pk_bf16_f32 v13, v18, v19")
    for i in range(2):
        a(f"v_lshlrev_b32 v{16+2*i}, 16, v{12+i}\nv_and_b32 v{17+2*i}, 0xffff0000, v{12+i}")
    fin_gather("L_fin_att", 0, 8, 20)
    stamp(8)
    a("v_cvt_pk_bf16_f32 v12, v20, v21\nv_cvt_pk_bf16_f32 v13, v22, v23")
    for i in range(2):
        a(f"v_lshlrev_b32 v{20+2*i}, 16, v{12+i}\nv_and_b32 v{21+2*i}, 0xffff0000, v{12+i}")
    for q in range(4): a(f"v_add_f32 v{20+q}, v{20+q}, v{24+q}")
    a("v_cvt_pk_bf16_f32 v12, v20, v21\nv_cvt_pk_bf16_f32 v13, v22, v23")
    for i in range(2):
        a(f"v_lshlrev_b32 v{20+2*i}, 16, v{12+i}\nv_and_b32 v{21+2*i}, 0xffff0000, v{12+i}")
    for q in range(4): a(f"v_add_f32 v{20+q}, v{20+q}, v{16+q}")
    a(f"""v_cvt_pk_bf16_f32 v12, v20, v21
    v_cvt_pk_bf16_f32 v13, v22, v23
    s_mov_b64 exec, 15
    buffer_store_dwordx2 v[12:13], v5, {sr(SQ)}, s16 offen sc1
    s_cmp_lg_u32 s10, 0
    s_cbranch_scc1 L_fin_done
    s_mov_b64 exec, 1
    v_mov_b32 v14, s{sF}
    buffer_store_dword v14, v5, {sr(SW)}, 0 offen offset:{EP} sc1
    L_fin_done:
    s_mov_b64 exec, -1""")
    if diag:
        a("s_waitcnt vmcnt(0)"); stamp(9)
    a("s_branch L_exit")

    a("L_MLP:")
    a(f"""s_cmp_ge_u32 s5, 14
    s_cbranch_scc1 L_exit
    s_load_dwordx2 s[{SC}:{SC+1}], s[0:1], 56
    s_load_dwordx2 s[{SQ}:{SQ+1}], s[0:1], 72
    s_load_dwordx2 s[{SK}:{SK+1}], s[0:1], 64
    s_mul_i32 s10, s4, 14
    s_add_u32 s10, s10, s5
    s_lshl_b32 s11, s10, 5
    s_lshl_b32 s12, s10, 14
    s_mov_b32 s13, s11
    v_lshrrev_b32 v4, 1, v0
    v_mul_u32_u24 v4, 3584, v4
    v_and_b32 v5, 1, v0
    v_lshl_add_u32 v4, v5, 4, v4
    v_lshlrev_b32 v5, 12, v3
    v_lshl_add_u32 v5, v2, 4, v5
    v_lshlrev_b32 v6, 4, v0
    v_lshlrev_b32 v7, 1, v2""")
    srd(SX, 1024); srd(SC, 512*1792*2); srd(SQ, 1792*512*2); srd(SK, 1792*2)
    a(f"s_barrier\ns_barrier")
    a(f"""s_mov_b32 m0, {X+16384}
    s_waitcnt lgkmcnt(0)
    buffer_load_dwordx4 v[8:11], v6, {sr(SX)}, 0 offen
    buffer_load_ushort v12, v7, {sr(SK)}, s11 offen""")
    for q in range(16):
        a(f"buffer_load_dwordx4 v4, {sr(SC)}, s13 offen nt lds")
        if q < 15: a(f"s_add_u32 m0, m0, 1024\ns_add_u32 s13, s13, {32*3584}")
    for rq in range(4):
        for cb in range(4):
            a(f"buffer_load_dwordx4 {vr(192+16*rq+4*cb)}, v5, {sr(SQ)}, s12 offen offset:{1024*rq + 256*cb} nt")
    delta_masks(32, 36)
    a("s_waitcnt vmcnt(33)")
    ln_stats(8, 16, 24)
    for i in range(8): a(f"v_sub_f32 v{16+i}, v{16+i}, v24")
    for i in range(4): a(f"v_cvt_pk_bf16_f32 v{8+i}, v{16+2*i}, v{17+2*i}")
    for i in range(4):
        a(f"v_lshlrev_b32 v{16+2*i}, 16, v{8+i}\nv_and_b32 v{17+2*i}, 0xffff0000, v{8+i}")
    for i in range(8): a(f"v_mul_f32 v{16+i}, v{16+i}, v25")
    for i in range(4): a(f"v_cvt_pk_bf16_f32 v{8+i}, v{16+2*i}, v{17+2*i}")
    a(f"""v_add_u32 v6, {X+9216}, v6
    ds_write_b128 v6, v[8:11]
    v_lshlrev_b32 v6, 4, v3
    v_add_u32 v6, {X+9216}, v6
    v_lshlrev_b32 v7, 8, v3
    v_lshl_add_u32 v7, v2, 3, v7
    v_add_u32 v7, {X+16384}, v7
    s_waitcnt lgkmcnt(0)""")
    for t in range(16): a(f"ds_read_b128 {vr(64+4*t)}, v6 offset:{64*t}")
    a("s_waitcnt vmcnt(16)")
    for t in range(16):
        a(f"ds_read_b64_tr_b16 {vr(128+4*t,2)}, v7 offset:{1024*t}\nds_read_b64_tr_b16 {vr(130+4*t,2)}, v7 offset:{1024*t+128}")
    a("s_waitcnt lgkmcnt(0)")
    for t in range(16):
        a(f"v_mfma_f32_16x16x32_bf16 v[40:43], {vr(64+4*t)}, {vr(128+4*t)}, {'0' if t == 0 else 'v[40:43]'}")
    rnd_bf16(13, 40)
    a("v_lshlrev_b32 v12, 16, v12\nv_add_f32 v13, v13, v12")
    rnd_bf16(13, 13)
    a("""v_max_f32 v13, 0, v13
    v_mul_f32 v13, v13, v13
    v_cvt_pk_bf16_f32 v13, v13, v13
    v_lshl_add_u32 v14, v3, 2, v2
    v_and_b32 v14, 15, v14
    v_lshlrev_b32 v14, 2, v14
    ds_bpermute_b32 v15, v14, v13
    s_waitcnt lgkmcnt(0)""")
    for rq in range(4):
        for dw in range(4):
            a(f"v_and_b32_dpp v{64+4*rq+dw}, v15, v{32+dw} row_newbcast:{rq} row_mask:0xf bank_mask:0xf")
    a(f"""v_mov_b32 v40, 0xff
    v_lshlrev_b32 v41, 5, v2
    v_lshl_add_u32 v41, v3, 4, v41
    s_lshl_b32 s12, s10, 11
    s_add_u32 s12, s12, {DP + 128*2048}
    s_waitcnt vmcnt(0)""")
    for rq in range(4):
        for cb in range(4):
            a(f"v_mfma_f32_16x16x32_bf16 {vr(96+4*cb)}, {vr(64+4*rq)}, {vr(192+16*rq+4*cb)}, {'0' if rq == 0 else vr(96+4*cb)}")
    for cb in range(4):
        for r in range(4): a(f"v_bfi_b32 v{96+4*cb+r}, v40, s{sF+r}, v{96+4*cb+r}")
    a("s_mov_b32 exec_hi, 0")
    for cb in range(4):
        a(f"buffer_store_dwordx4 {vr(96+4*cb)}, v41, {sr(SW)}, s12 offen offset:{512*cb} sc1")
    a("s_mov_b64 exec, -1")
    stamp(7)
    a("s_branch L_exit")

    a("L_WGT_other:")
    a(f"""s_waitcnt lgkmcnt(0)
    s_load_dword s35, s[{SW}:{SW+1}], {EP}
    s_load_dwordx2 s[{SG}:{SG+1}], s[0:1], 32
    s_cmp_eq_u32 s3, 7
    s_cbranch_scc0 L_S1
    s_waitcnt lgkmcnt(0)""")
    tags(False)
    a("s_barrier\ns_branch L_WO2")
    a("L_S1:")
    srd(SG, 4 << 20)
    delta_masks(32, 36)
    a(f"""v_lshrrev_b32 v5, 5, v0
    v_bfe_u32 v6, v0, 2, 1
    v_bfe_u32 v7, v0, 3, 2
    v_lshl_add_u32 v7, v6, 5, v7
    v_lshl_add_u32 v7, v5, 2, v7
    v_lshlrev_b32 v7, 13, v7
    v_and_b32 v6, 3, v0
    v_lshlrev_b32 v5, 1, v5
    v_xor_b32 v6, v6, v5
    v_lshl_add_u32 v4, v6, 4, v7
    s_lshl_b32 s10, s8, 20
    s_lshl_b32 s11, s7, 8
    s_add_u32 s10, s10, s11
    s_lshl_b32 s11, s3, 6
    s_add_u32 s10, s10, s11
    s_lshl_b32 s11, s3, 13
    s_add_u32 s11, s11, {X}""")
    a(f"""v_bfe_u32 v5, v0, 2, 2
    v_lshl_add_u32 v5, v3, 3, v5
    v_lshlrev_b32 v5, 6, v5
    v_and_b32 v6, 1, v0
    v_lshl_add_u32 v5, v6, 3, v5
    v_add_u32 v5, s11, v5
    v_bfe_u32 v6, v0, 1, 1
    v_bfe_u32 v7, v0, 4, 1
    v_lshl_or_b32 v6, v7, 1, v6
    v_lshl_add_u32 v8, v6, 4, v5
    v_xor_b32 v9, 32, v8""")
    a(f"""v_and_b32 v5, 7, v0
    v_lshl_add_u32 v5, v5, 2, v3
    v_lshlrev_b32 v10, 8, v5
    v_lshlrev_b32 v11, 4, v0
    v_lshlrev_b32 v5, 4, v2
    v_lshl_add_u32 v5, v3, 3, v5
    s_lshl_b32 s12, s3, 6
    s_add_u32 s13, s12, s11
    v_add_u32 v12, s13, v5
    v_and_b32 v5, 3, v0
    v_mul_u32_u24 v5, {8192+64}, v5
    v_lshl_add_u32 v5, v3, 4, v5
    v_add_u32 v13, {X}, v5
    v_and_b32 v5, 31, v0
    s_add_u32 s13, s12, {X+2048}
    v_lshl_add_u32 v14, v5, 1, s13
    v_mov_b32 v15, s11
    v_mov_b32 v31, {X}
    v_mov_b32 v30, 0x10001
    v_bfe_u32 v5, v0, 4, 1
    v_cmp_eq_u32 s[18:19], 1, v5
    s_mov_b32 m0, s11
    s_waitcnt lgkmcnt(0)""")
    tags(True)
    a("s_barrier")
    stamp(1)
    for q in range(8):
        a(f"buffer_load_dwordx4 v4, {sr(SG)}, s10 offen nt lds")
        if q < 7:
            step = 8*8192 if (q & 3) < 3 else (64 - 24)*8192
            a(f"s_add_u32 m0, m0, 1024\ns_add_u32 s10, s10, {step}")
    a(f"""s_lshl_b32 s12, s3, 13
    s_lshl2_add_u32 s13, s7, s8
    s_lshl_b32 s13, s13, 15
    s_add_u32 s13, s13, s12
    s_add_u32 s13, s13, {BP}
    s_lshl3_add_u32 s12, s7, s12
    s_add_u32 s12, s12, {LSE}
    s_waitcnt vmcnt(0)""")
    for n in range(2):
        for t in range(4):
            for sec in range(2):
                a(f"ds_read_b64_tr_b16 {vr(160+16*n+4*t+2*sec,2)}, v{8+n} offset:{2048*t + 256*sec}")
    a("s_waitcnt lgkmcnt(0)")
    stamp(2)
    nh = P["lhint"]
    if nh:
        a("s_lshl2_add_u32 s16, s7, s8")
        for x in range(nh):
            a(f"s_add_u32 s{30+x}, s16, {(32*x)//nh}\ns_and_b32 s{30+x}, s{30+x}, 31\ns_lshl_b32 s{30+x}, s{30+x}, 8\ns_add_u32 s{30+x}, s{30+x}, s12")
        a("L_lhint:")
        for x in range(nh):
            a(f"s_load_dwordx2 {sr(HINT+2*x,2)}, s[{SW}:{SW+1}], s{30+x} glc")
        a("s_waitcnt lgkmcnt(0)")
        for x in range(nh):
            a(f"s_xor_b32 s{HINT+2*x+1}, s{HINT+2*x+1}, s{sF}")
            if x: a(f"s_or_b32 s{HINT+1}, s{HINT+1}, s{HINT+2*x+1}")
        a(f"""s_add_u32 s28, s28, 1
        s_cmp_gt_u32 s28, {SPIN}
        s_cbranch_scc1 L_exit
        s_cmp_lg_u32 s{HINT+1}, 0
        s_cbranch_scc1 L_lhint""")
    stamp(3)
    a(f"""L_lse_poll:
    buffer_load_dwordx2 v[16:17], v10, {sr(SW)}, s12 offen sc1
    s_waitcnt vmcnt(0)
    v_cmp_ne_u32 vcc, s{sF}, v17""")
    spin("L_lse_poll", "s_cbranch_vccnz")
    stamp(4)
    a("v_mov_b32 v18, v16")
    allreduce("v_max_f32", 18, 20, 21)
    a("""v_sub_f32 v16, v16, v18
    v_exp_f32 v16, v16
    v_cvt_pk_bf16_f32 v16, v16, v16
    v_and_b32 v19, 0xffff0000, v16""")
    allreduce("v_add_f32", 19, 20, 21)
    a("v_mul_f32 v19, 0.5, v19\nds_write_b64 v15, v[18:19] offset:1024")
    for t in range(8):
        for dw in range(4):
            a(f"v_and_b32_dpp v{128+4*t+dw}, v16, v{32+dw} row_newbcast:{t} row_mask:0xf bank_mask:0xf")
    nh = P["bhint"]
    if nh:
        a("L_bhint:")
        for x in range(nh):
            a(f"s_add_u32 s15, s13, {(32*x//nh + 3)*256 + 128}\ns_load_dwordx4 {sr(HINT+4*x)}, s[{SW}:{SW+1}], s15 glc")
        a("s_waitcnt lgkmcnt(0)")
        for x in range(4*nh):
            a(f"s_xor_b32 s{HINT+x}, s{HINT+x}, s{sB+(x&3)}")
            if x: a(f"s_or_b32 s{HINT}, s{HINT}, s{HINT+x}")
        a(f"""s_add_u32 s28, s28, 1
        s_cmp_gt_u32 s28, {SPIN}
        s_cbranch_scc1 L_exit
        s_and_b32 s{HINT}, s{HINT}, 0x10001
        s_cbranch_scc1 L_bhint""")
    stamp(5)
    a("L_bfetch:\ns_add_u32 s14, s13, 4096")
    for t in range(8):
        a(f"buffer_load_dwordx4 {vr(64+4*t)}, v11, {sr(SW)}, s{13 + (t>>2)} offen offset:{1024*(t&3)} sc1")
    for t in range(8):
        a(f"s_waitcnt vmcnt({7-t})")
        a(f"v_mfma_f32_16x16x32_bf16 v[40:43], {vr(128+4*t)}, {vr(64+4*t)}, {'0' if t == 0 else 'v[40:43]'}")
        check(7, 64+4*t, 4, sB, t == 0)
    a("v_and_b32 v7, v30, v7\nv_cmp_ne_u32 vcc, 0, v7")
    spin("L_bfetch", "s_cbranch_vccnz")
    stamp(6)
    a("""v_cvt_pk_bf16_f32 v44, v40, v41
    v_cvt_pk_bf16_f32 v45, v42, v43
    s_mov_b32 exec_hi, 0
    ds_write_b64 v12, v[44:45]
    s_mov_b64 exec, -1
    s_waitcnt lgkmcnt(0)
    s_barrier""")
    for t in range(4): a(f"ds_read_b128 {vr(64+4*t)}, v13 offset:{64*t}")
    for u in range(4): a(f"ds_read_b64 {vr(80+2*u,2)}, v31 offset:{8192*u + 1024}")
    for t in range(4):
        a(f"s_waitcnt lgkmcnt({7-t})")
        for n in range(2):
            a(f"v_mfma_f32_16x16x32_bf16 {vr(40+4*n)}, {vr(64+4*t)}, {vr(160+16*n+4*t)}, {'0' if t == 0 else vr(40+4*n)}")
    a(f"""s_waitcnt lgkmcnt(0)
    v_max3_f32 v4, v80, v82, v84
    v_max_f32 v4, v4, v86
    v_sub_f32 v80, v80, v4
    v_sub_f32 v82, v82, v4
    v_sub_f32 v84, v84, v4
    v_sub_f32 v86, v86, v4
    v_exp_f32 v80, v80
    v_exp_f32 v82, v82
    v_exp_f32 v84, v84
    v_exp_f32 v86, v86
    v_mul_f32 v5, v80, v81
    v_fmac_f32 v5, v82, v83
    v_fmac_f32 v5, v84, v85
    v_fmac_f32 v5, v86, v87
    v_rcp_f32 v5, v5""")
    for r in range(4): a(f"v_cndmask_b32 v{40+r}, v{40+r}, v{44+r}, s[18:19]")
    a("""v_mul_f32 v6, v40, v80
    v_fmac_f32 v6, v41, v82
    v_fmac_f32 v6, v42, v84
    v_fmac_f32 v6, v43, v86
    v_mul_f32 v6, v6, v5
    v_cvt_pk_bf16_f32 v6, v6, v6
    ds_write_b16 v14, v6
    s_waitcnt lgkmcnt(0)""")
    stamp(7)
    a("s_barrier\ns_branch L_exit")

    a("L_WO:\nL_WO2:")
    a(f"s_load_dwordx2 s[{SG}:{SG+1}], s[0:1], 40")
    srd(SG, 4 << 20)
    a(f"""s_sub_u32 s9, s3, 4
    s_lshl_b32 s10, s7, 17
    s_lshl_b32 s11, s9, 8
    s_add_u32 s10, s10, s11
    s_lshl_b32 s11, s9, 15
    v_lshlrev_b32 v4, 2, v3
    v_xor_b32 v4, v4, v2
    v_lshlrev_b32 v4, 4, v4
    v_lshl_add_u32 v4, v3, 10, v4
    v_xor_b32 v5, 32, v4
    s_mov_b32 m0, s11""")
    a(f"""v_bfe_u32 v6, v0, 2, 2
    v_bfe_u32 v7, v0, 4, 1
    v_bfe_u32 v16, v0, 1, 1
    v_lshl_or_b32 v7, v7, 1, v16
    v_lshl_or_b32 v7, v6, 2, v7
    v_lshlrev_b32 v7, 4, v7
    v_lshlrev_b32 v6, 8, v6
    v_lshl_add_u32 v6, v3, 11, v6
    v_and_b32 v16, 1, v0
    v_lshl_add_u32 v6, v16, 3, v6
    v_add_u32 v6, s11, v6""")
    for n in range(8):
        a(f"v_xor_b32 v16, {32*n}, v7\nv_add_u32 v{8+n}, v6, v16")
    a(f"""v_lshlrev_b32 v16, 4, v3
    v_add_u32 v16, {X+2048}, v16
    v_lshlrev_b32 v17, 6, v2
    v_lshl_add_u32 v17, v3, 4, v17
    v_mov_b32 v18, 0xff
    s_lshl2_add_u32 s12, s7, s8
    s_lshl_b32 s12, s12, 11
    s_lshl_b32 s13, s9, 9
    s_add_u32 s12, s12, s13
    s_add_u32 s12, s12, {DP}""")
    for n in range(1, 8):
        a(f"s_mov_b32 s{40+2*n}, {0x01010101 << n}\ns_mov_b32 s{41+2*n}, {0x01010101 << n}")
    a("s_waitcnt lgkmcnt(0)")
    wd = P["wo_depth"]
    def wo_read(t):
        for n in range(8):
            for sec in range(2):
                a(f"ds_read_b64_tr_b16 {vr(128+32*t+4*n+2*sec,2)}, v{8+n} offset:{8192*t + 1024*sec}")
    nxt = 0
    for rg in range(32):
        if rg >= wd:
            a(f"s_waitcnt vmcnt({wd-1})")
            landed = rg - wd + 1
            if landed >= 8*(nxt+1): wo_read(nxt); nxt += 1
        a(f"buffer_load_dwordx4 v{4+((rg>>1)&1)}, {sr(SG)}, s10 offen nt lds")
        if rg < 31: a("s_add_u32 m0, m0, 1024\ns_add_u32 s10, s10, 4096")
    a("s_waitcnt vmcnt(0)")
    while nxt < 4: wo_read(nxt); nxt += 1
    stamp(6)
    a("s_barrier\ns_barrier")
    stamp(7)
    for t in range(4): a(f"ds_read_b128 {vr(20+4*t)}, v16 offset:{64*t}")
    a("s_waitcnt lgkmcnt(0)")
    for n in range(8):
        for t in range(4):
            a(f"v_mfma_f32_16x16x32_bf16 {vr(64+4*n)}, {vr(128+32*t+4*n)}, {vr(20+4*t)}, {'0' if t == 0 else vr(64+4*n)}")
            if n >= 3:
                m = n - 2
                a(f"v_cndmask_b32 v{64+t}, v{64+t}, v{64+4*m+t}, s[{40+2*m}:{41+2*m}]")
    for m in (6, 7):
        for t in range(4): a(f"v_cndmask_b32 v{64+t}, v{64+t}, v{64+4*m+t}, s[{40+2*m}:{41+2*m}]")
    for r in range(4): a(f"v_bfi_b32 v{64+r}, v18, s{sF+r}, v{64+r}")
    a(f"""s_mov_b32 exec_lo, 0x00ff00ff
    s_mov_b32 exec_hi, 0x00ff00ff
    buffer_store_dwordx4 v[64:67], v17, {sr(SW)}, s12 offen sc1
    s_mov_b64 exec, -1""")
    stamp(8)
    if diag:
        a("s_waitcnt vmcnt(0)"); stamp(9)

    a("L_exit:")
    if diag:
        a(f"""s_mov_b64 exec, -1
        s_waitcnt lgkmcnt(0)
        s_lshl3_add_u32 s10, s2, s3
        s_lshl_b32 s10, s10, 7
        s_add_u32 s10, s10, {STAMP}
        v_mov_b32 v4, 0""")
        for k in range(10):
            a(f"v_mov_b32 v5, s{80+2*k}\nbuffer_store_dword v5, v4, {sr(SW)}, s10 offen offset:{4*k}")
        a(f"v_mov_b32 v5, s28\nbuffer_store_dword v5, v4, {sr(SW)}, s10 offen offset:40")
    a("L_end:\ns_endpgm\nL_codeend:")

    lines = a.lines
    if diag:
        pre = [f"s_mov_b32 s{80+2*k}, 0" for k in range(1, 10)]
        lines = lines[:1] + pre + lines[1:]
    lines, nins = insert_waits(lines)
    b = Asm(); b.lines = lines
    hdr = open("parallel_sum__compressed_kv_cla__dense_activation_squared_relu__decode.s.ref").read() if False else ""
    head = f"""; fused MLA decode attention (absorbed form) + squared-relu MLP, one persistent launch, 256 workgroups
; @launch grid=(256,1,1) block=(512,1,1) lds=163840
.amdgcn_target "amdgcn-amd-amdhsa--gfx950"
.text
.globl {KNAME}
.p2align 8
.type {KNAME},@function
{KNAME}:
"""
    foot = f"""
.section .rodata,"a"
.p2align 6
.amdhsa_kernel {KNAME}
  .amdhsa_next_free_vgpr 256
  .amdhsa_next_free_sgpr 102
  .amdhsa_accum_offset 256
  .amdhsa_group_segment_fixed_size 0
  .amdhsa_kernarg_size 112
  .amdhsa_user_sgpr_count 2
  .amdhsa_user_sgpr_kernarg_segment_ptr 1
  .amdhsa_system_sgpr_workgroup_id_x 1
  .amdhsa_float_denorm_mode_32 3
.end_amdhsa_kernel
"""
    return head + b.text() + foot

if __name__ == "__main__":
    import json
    kw = json.loads(sys.argv[2]) if len(sys.argv) > 2 else {}
    open(sys.argv[1], "w").write(gen(**kw))
```

```python
import sys, math, struct
from asmlib import Asm, insert_waits
from gen_common import KNAME

EP, QP, QL, GO, ST, HP, DP, BP, STAMP = 0, 0x1000, 0x40000, 0x48000, 0x50000, 0x60000, 0x80000, 0x100000, 0x800000
WS_REC = 0x1000000
X = 131072
SPIN = 1 << 17

def f2u(x): return struct.unpack("<I", struct.pack("<f", x))[0]
def vr(a, n=4): return f"v[{a}:{a+n-1}]"
def sr(a, n=4): return f"s[{a}:{a+n-1}]"

SX, SC, SQ, SK, SW, SG = 40, 44, 48, 52, 56, 60
sF, sB = 20, 24
HINT = 64
DPPM = "row_mask:0xf bank_mask:0xf"

DEFAULT = dict(diag=False, c_ramp=((0,1),(1,4),(3,8)), wo_depth=8, wo_early=0, wo_edepth=2, wuv_depth=2, prio=True,
               go_at=28, out_pol="sc1", fhint=2, qhint=2, lhint=1, bhint=4, hhint=2, prefetch=True, role_bit=0,
               wo_pol="nt", x_pol="", mlp_late=False, q_at=31, hsleep=0, pretouch=True, st_poll=False)

def gen(**kw):
    P = dict(DEFAULT); P.update(kw)
    diag = P["diag"]
    a = Asm()
    def stamp(k):
        if diag: a(f"s_memrealtime s[{80+2*k}:{81+2*k}]")
    def srd(base, size):
        a(f"s_mov_b32 s{base+2}, {size}\ns_mov_b32 s{base+3}, 0x20000")
    def ep_load(): a(f"s_load_dword s35, s[{SW}:{SW+1}], {EP}")
    def tags(need_b=True):
        for q in range(4): a(f"s_add_u32 s{sF+q}, s35, {q+1}")
        if need_b:
            for q in range(4): a(f"s_and_b32 s{sB+q}, s{sF+q}, 3\ns_mul_i32 s{sB+q}, s{sB+q}, 0x8001")
    def allreduce(op, v, t1):
        for r in (1, 2, 4, 8):
            a(f"{op}_dpp v{v}, v{v}, v{v} row_ror:{r} {DPPM}")
        for sw in ("v_permlane16_swap_b32", "v_permlane32_swap_b32"):
            a(f"v_mov_b32 v{t1}, v{v}\n{sw} v{t1}, v{v}\n{op} v{v}, v{v}, v{t1}")
    def rnd_bf16(d, s):
        a(f"v_cvt_pk_bf16_f32 v{d}, v{s}, v{s}\nv_and_b32 v{d}, 0xffff0000, v{d}")
    def unpack2(d, s):
        a(f"v_lshlrev_b32 v{d}, 16, v{s}\nv_and_b32 v{d+1}, 0xffff0000, v{s}")
    def ln_stats(xr, f, t):
        for i in range(4): unpack2(f+2*i, xr+i)
        a(f"v_add_f32 v{t}, v{f}, v{f+1}\nv_add_f32 v{t+1}, v{f+2}, v{f+3}\nv_add_f32 v{t+2}, v{f+4}, v{f+5}\nv_add_f32 v{t+3}, v{f+6}, v{f+7}")
        a(f"v_add_f32 v{t}, v{t}, v{t+1}\nv_add_f32 v{t+2}, v{t+2}, v{t+3}\nv_add_f32 v{t}, v{t}, v{t+2}")
        allreduce("v_add_f32", t, t+2)
        a(f"v_mul_f32 v{t}, {f2u(1/512)}, v{t}")
        a(f"v_sub_f32 v{t+2}, v{f}, v{t}\nv_mul_f32 v{t+1}, v{t+2}, v{t+2}")
        for i in range(1, 8):
            a(f"v_sub_f32 v{t+2+(i&1)}, v{f+i}, v{t}\nv_fmac_f32 v{t+1}, v{t+2+(i&1)}, v{t+2+(i&1)}")
        allreduce("v_add_f32", t+1, t+2)
        a(f"v_mul_f32 v{t+1}, {f2u(1/512)}, v{t+1}")
        rnd_bf16(t, t)
        rnd_bf16(t+1, t+1)
        a(f"v_add_f32 v{t+1}, {f2u(1e-5)}, v{t+1}")
        rnd_bf16(t+1, t+1)
        a(f"v_sqrt_f32 v{t+1}, v{t+1}")
        rnd_bf16(t+1, t+1)
        a(f"v_rcp_f32 v{t+1}, v{t+1}")
    def delta_masks(m, t):
        a(f"""v_and_b32 v{t}, 1, v0
        v_lshlrev_b32 v{t}, 4, v{t}
        v_mov_b32 v{t+1}, 0xffff
        v_lshlrev_b32 v{t}, v{t}, v{t+1}
        v_bfe_u32 v{t+1}, v0, 1, 3""")
        for dw in range(4):
            a(f"v_cmp_eq_u32 vcc, {dw}, v{t+1}\nv_cndmask_b32 v{m+dw}, 0, v{t}, vcc")
    def check(acc, first, n, tagbase, start):
        for i in range(n):
            if start and i == 0: a(f"v_xor_b32 v{acc}, s{tagbase}, v{first}")
            else: a(f"v_bitop3_b32 v{acc}, v{acc}, v{first+i}, s{tagbase+(i&3)} bitop3:0xf6")
    def spin(label, cond_branch, pre=""):
        a(f"""s_add_u32 s28, s28, 1
        s_cmp_gt_u32 s28, {SPIN}
        s_cbranch_scc1 L_exit
        {pre}
        {cond_branch} {label}""")
    def shint(label, offs, kind):
        if not offs: return
        a(f"{label}:")
        if P["hsleep"]: a(f"s_sleep {P['hsleep']}")
        n = len(offs)
        if kind == 't':
            for x, o in enumerate(offs): a(f"s_load_dwordx2 {sr(HINT+2*x,2)}, s[{SW}:{SW+1}], s{o} glc")
            a("s_waitcnt lgkmcnt(0)")
            for x in range(n):
                a(f"s_xor_b32 s{HINT+2*x+1}, s{HINT+2*x+1}, s{sF}")
                if x: a(f"s_or_b32 s{HINT+1}, s{HINT+1}, s{HINT+2*x+1}")
            fin = f"s_cmp_lg_u32 s{HINT+1}, 0"
        else:
            tb, mask = (sB, 0x10001) if kind == 'b' else (sF, 0xff)
            for x, o in enumerate(offs): a(f"s_load_dwordx4 {sr(HINT+4*x)}, s[{SW}:{SW+1}], s{o} glc")
            a("s_waitcnt lgkmcnt(0)")
            for x in range(4*n):
                a(f"s_xor_b32 s{HINT+x}, s{HINT+x}, s{tb+(x&3)}")
                if x: a(f"s_or_b32 s{HINT}, s{HINT}, s{HINT+x}")
            fin = f"s_and_b32 s{HINT}, s{HINT}, {mask}"
        spin(label, "s_cbranch_scc1", fin)
    def hint_offs(n, seed, modmask, shift, base, spread):
        for x in range(n):
            a(f"s_add_u32 s{30+x}, s{seed}, {x*spread}\ns_and_b32 s{30+x}, s{30+x}, {modmask}\ns_lshl_b32 s{30+x}, s{30+x}, {shift}\ns_add_u32 s{30+x}, s{30+x}, s{base}")
        return [30+x for x in range(n)]

    stamp(0)
    a(f"""s_load_dwordx2 s[{SX}:{SX+1}], s[0:1], 0
    s_load_dwordx2 s[{SQ}:{SQ+1}], s[0:1], 16
    s_load_dwordx2 s[{SK}:{SK+1}], s[0:1], 24
    s_load_dwordx2 s[{SC}:{SC+1}], s[0:1], 8
    s_load_dwordx2 s[{SW}:{SW+1}], s[0:1], 104
    v_lshrrev_b32 v1, 6, v0
    s_cmp_ge_u32 s2, 256
    s_cbranch_scc1 L_end
    v_readfirstlane_b32 s3, v1
    v_and_b32 v0, 63, v0
    s_and_b32 s4, s2, 7""")
    if P["role_bit"] == 0:
        a("s_bfe_u32 s6, s2, 0x10003\ns_lshr_b32 s5, s2, 4")
    else:
        a("s_lshr_b32 s6, s2, 7\ns_bfe_u32 s5, s2, 0x40003")
    a(f"""s_lshr_b32 s7, s5, 2
    s_lshl2_add_u32 s7, s4, s7
    s_and_b32 s8, s5, 3
    s_mov_b32 s28, 0""")
    srd(SW, WS_REC)
    a(f"""v_and_b32 v2, 15, v0
    v_lshrrev_b32 v3, 4, v0
    v_lshlrev_b32 v41, 5, v2
    v_lshl_add_u32 v41, v3, 4, v41
    s_cmp_eq_u32 s6, 0
    s_cbranch_scc1 L_WGT
    s_and_b32 s9, s3, 6
    s_cmp_eq_u32 s9, 4
    s_cbranch_scc0 L_ATT""")

    a("L_A1:")
    if P["prio"]: a("s_setprio 3")
    srd(SX, 1024); srd(SQ, 4 << 20)
    a(f"""s_bfe_u32 s9, s5, 0x10002
    s_xor_b32 s9, s9, s3
    s_and_b32 s9, s9, 1
    s_lshl1_add_u32 s29, s8, s9
    s_lshl_b32 s10, s29, 19
    s_lshl_b32 s11, s7, 8
    s_add_u32 s10, s10, s11
    s_lshl_b32 s11, s29, 7
    v_lshlrev_b32 v4, 4, v0
    v_lshlrev_b32 v5, 1, v0
    v_lshlrev_b32 v6, 17, v3
    v_lshl_add_u32 v6, v2, 4, v6
    s_movk_i32 s12, 0x2000
    s_waitcnt lgkmcnt(0)
    buffer_load_dwordx4 v[8:11], v4, {sr(SX)}, 0 offen {P['x_pol']}
    buffer_load_ushort v12, v5, {sr(SX)}, s11 offen {P['x_pol']}""")
    for t in range(16):
        a(f"buffer_load_dwordx4 {vr(64+4*t)}, v6, {sr(SQ)}, s10 offen nt")
        if t < 15: a("s_add_u32 s10, s10, s12")
    a("s_barrier")
    ep_load()
    stamp(1)
    delta_masks(32, 36)
    a(f"""v_mov_b32 v40, 0xff
    s_lshl3_add_u32 s10, s7, s29
    s_lshl_b32 s10, s10, 9
    s_add_u32 s10, s10, {QP}
    s_waitcnt vmcnt(16)""")
    stamp(2)
    ln_stats(8, 16, 24)
    a("v_lshlrev_b32 v12, 16, v12\nv_sub_f32 v12, v12, v24")
    rnd_bf16(12, 12)
    a("v_mul_f32 v12, v12, v25\nv_cvt_pk_bf16_f32 v12, v12, v12")
    for t in range(16):
        for dw in range(4):
            a(f"v_and_b32_dpp v{128+4*t+dw}, v12, v{32+dw} row_newbcast:{t} {DPPM}")
    a("s_waitcnt lgkmcnt(0)")
    tags(True)
    stamp(3)
    def delta_gemv16():
        for t in range(16):
            a(f"s_waitcnt vmcnt({15-t})")
            a(f"v_mfma_f32_16x16x32_bf16 v[44:47], {vr(128+4*t)}, {vr(64+4*t)}, {'0' if t == 0 else 'v[44:47]'}")
        for r in range(4):
            a(f"v_bfi_b32 v{44+r}, v40, s{sF+r}, v{44+r}")
        a(f"""s_mov_b32 exec_hi, 0
        buffer_store_dwordx4 v[44:47], v41, {sr(SW)}, s10 offen sc1
        s_mov_b64 exec, -1""")
    delta_gemv16()
    stamp(4)
    a("s_branch L_ATT_help2")
    a("""L_WGT:
    s_cmp_eq_u32 s3, 5
    s_cbranch_scc1 L_A2
    s_cmp_eq_u32 s3, 6
    s_cbranch_scc1 L_A2
    s_cmp_eq_u32 s3, 4
    s_cbranch_scc0 L_WGT_other""")
    a(f"""s_lshl_b32 s10, s7, 12
    s_add_u32 s10, s10, {QP}
    v_lshlrev_b32 v4, 4, v0
    s_waitcnt lgkmcnt(0)""")
    if P["pretouch"]:
        for u in range(4):
            a(f"buffer_load_dwordx4 {vr(64+4*u)}, v4, {sr(SW)}, s10 offen offset:{1024*u} sc1")
    ep_load()
    a(f"""v_lshrrev_b32 v5, 5, v0
    v_and_b32 v6, 31, v0
    v_lshlrev_b32 v5, 15, v5
    v_lshl_add_u32 v5, v6, 3, v5
    v_add_u32 v5, 32768, v5
    v_mov_b32 v40, 0xff
    s_waitcnt vmcnt(0) lgkmcnt(0)""")
    tags(False)
    stamp(1)
    a("L_qp_poll:")
    for u in range(4):
        a(f"buffer_load_dwordx4 {vr(64+4*u)}, v4, {sr(SW)}, s10 offen offset:{1024*u} sc1")
    a("s_waitcnt vmcnt(0)")
    stamp(2)
    check(13, 64, 16, sF, True)
    a("v_and_b32 v13, v40, v13\nv_cmp_ne_u32 vcc, 0, v13")
    for q in range(4):
        a(f"v_add_f32 v{64+q}, v{64+q}, v{68+q}\nv_add_f32 v{72+q}, v{72+q}, v{76+q}")
    spin("L_qp_poll", "s_cbranch_vccnz")
    for q in range(4):
        a(f"v_add_f32 v{64+q}, v{64+q}, v{72+q}\nv_mov_b32 v{68+q}, v{64+q}")
    for q in range(4):
        a(f"v_permlane32_swap_b32 v{68+q}, v{64+q}")
    for q in range(4):
        a(f"v_add_f32 v{64+q}, v{64+q}, v{68+q}")
    a("""v_cvt_pk_bf16_f32 v64, v64, v65
    v_cvt_pk_bf16_f32 v65, v66, v67
    ds_write_b64 v5, v[64:65]
    s_waitcnt lgkmcnt(0)""")
    stamp(5)
    a("s_barrier\ns_branch L_WO")

    a("L_A2:")
    srd(SK, 4 << 20)
    a(f"""s_sub_u32 s9, s3, 5
    s_lshl1_add_u32 s10, s8, s9
    s_lshl_b32 s13, s10, 7
    s_lshl_b32 s10, s10, 19
    s_lshl_b32 s11, s7, 8
    s_add_u32 s10, s10, s11
    s_lshl_b32 s12, s9, 14
    s_add_u32 s12, s12, {X}
    s_mov_b32 m0, s12
    v_lshlrev_b32 v4, 2, v3
    v_xor_b32 v4, v4, v2
    v_lshlrev_b32 v4, 4, v4
    v_lshl_add_u32 v32, v3, 13, v4
    v_xor_b32 v33, 16, v32
    v_xor_b32 v34, 32, v32
    v_xor_b32 v35, 48, v32
    s_mov_b32 s14, 0x8000
    s_waitcnt lgkmcnt(0)""")
    for rg in range(16):
        a(f"buffer_load_dwordx4 v{32+(rg&3)}, {sr(SK)}, s10 offen nt lds")
        if rg < 15: a("s_add_u32 m0, m0, 1024\ns_add_u32 s10, s10, s14")
    ep_load()
    stamp(1)
    a(f"""v_and_b32 v4, 3, v0
    v_bfe_u32 v5, v0, 2, 2
    v_lshl_or_b32 v6, v4, 2, v5
    v_xor_b32 v6, v6, v3
    v_lshlrev_b32 v6, 4, v6
    v_lshlrev_b32 v5, 10, v5
    v_lshl_add_u32 v5, v4, 8, v5
    v_add_u32 v5, s12, v5""")
    for t in range(4):
        a(f"v_xor_b32 v4, {64*t}, v6\nv_add_u32 v{10+t}, v5, v4")
    a(f"""s_add_u32 s11, s9, 1
    s_lshl_b32 s11, s11, 15
    v_lshl_add_u32 v5, v3, 4, s11
    s_lshl_b32 s10, s7, 10
    s_add_u32 s10, s10, s13
    s_add_u32 s10, s10, {QL}
    v_lshlrev_b32 v4, 1, v0
    v_cmp_eq_u32 s[14:15], 1, v3
    v_cmp_eq_u32 s[16:17], 2, v3
    v_cmp_eq_u32 s[18:19], 3, v3
    s_waitcnt lgkmcnt(0)""")
    tags(False)
    a(f"""v_bfe_u32 v7, v0, 1, 2
    v_add_u32 v7, s{sF}, v7
    v_and_b32 v8, 1, v0
    v_lshrrev_b32 v7, v8, v7
    v_and_b32 v7, 1, v7
    v_xor_b32 v8, 1, v7
    v_lshlrev_b32 v8, 16, v8""")
    for T in range(4):
        a(f"s_waitcnt vmcnt({12-4*T})")
        for t in range(4):
            a(f"ds_read_b128 {vr(64+16*T+4*t)}, v{10+t} offset:{4096*T}")
    a("s_waitcnt lgkmcnt(0)")
    stamp(2)
    a("s_barrier")
    for t in range(4):
        a(f"ds_read_b128 {vr(16+4*t)}, v5 offset:{64*t}")
    for t in range(4):
        a(f"s_waitcnt lgkmcnt({3-t})")
        for T in range(4):
            a(f"v_mfma_f32_16x16x32_bf16 {vr(32+4*T)}, {vr(16+4*t)}, {vr(64+16*T+4*t)}, {'0' if t == 0 else vr(32+4*T)}")
    qs = math.log2(math.e) / math.sqrt(128.0)
    a(f"""v_cndmask_b32 v9, v32, v36, s[14:15]
    v_cndmask_b32 v9, v9, v40, s[16:17]
    v_cndmask_b32 v9, v9, v44, s[18:19]
    v_mul_f32 v9, {f2u(qs)}, v9
    v_add_u32 v9, v9, v8
    v_lshrrev_b32 v9, 17, v9
    v_lshl_or_b32 v9, v9, 1, v7
    buffer_store_short v9, v4, {sr(SW)}, s10 offen sc1""")
    stamp(3)
    a("s_branch L_WO")

    a("L_ATT:")
    a(f"""s_lshl4_add_u32 s9, s4, s5
    s_cmp_ge_u32 s3, 4
    s_cbranch_scc1 L_ATT_help""")
    srd(SC, 16 << 20)
    a(f"""s_lshl2_add_u32 s10, s9, s3
    s_lshl_b32 s10, s10, 15
    s_lshl_b32 s11, s3, 13
    v_lshlrev_b32 v4, 2, v3
    v_xor_b32 v4, v4, v2
    v_lshlrev_b32 v4, 4, v4
    v_lshl_add_u32 v32, v3, 10, v4
    v_xor_b32 v33, 16, v32
    v_xor_b32 v34, 32, v32
    v_xor_b32 v35, 48, v32
    s_lshl_b32 s15, s3, 8
    s_add_u32 s10, s10, s15
    s_lshl_b32 s15, s3, 15
    s_add_u32 s15, s15, s11
    s_mov_b32 m0, s15
    s_waitcnt lgkmcnt(0)""")
    def rot_setup():
        for tau in range(3):
            a(f"s_cmp_eq_u32 s3, {3-tau}\ns_cselect_b32 s{36+tau}, -3, 1")
    ramp = P["c_ramp"]
    def tdepth(l): return [d for (k, d) in ramp if k <= l][-1]
    seq = []
    def c_load(n):
        cb, rg = n >> 3, n & 7
        a(f"buffer_load_dwordx4 v{32+(rg&3)}, {sr(SC)}, s10 offen nt lds")
        seq.append(n)
        if n < 31:
            if rg < 7: a("s_add_u32 m0, m0, 1024\ns_add_u32 s10, s10, 4096")
            else:
                a(f"""s_lshl_b32 s16, s{36+cb}, 15
                s_sub_u32 s16, s16, {7*1024}
                s_add_u32 m0, m0, s16
                s_lshl_b32 s16, s{36+cb}, 8
                s_sub_u32 s16, s16, {7*4096}
                s_add_u32 s10, s10, s16""")
        if n == P["q_at"]:
            a("ds_write_b32 v39, v2")
        if n == P["go_at"]:
            a(f"s_mov_b64 exec, 1\nbuffer_store_dwordx2 v[36:37], v38, {sr(SW)}, s14 offen sc1\ns_mov_b64 exec, -1")
            seq.append("go")
    def c_wait(n):
        a(f"s_waitcnt vmcnt({len(seq) - 1 - seq.index(n)})")
    issued = 0
    if tdepth(0) >= 8: rot_setup()
    for n in range(tdepth(0)): c_load(n); issued += 1
    if tdepth(0) < 8: rot_setup()
    a(f"""s_add_u32 s16, s11, {X}
    v_mov_b32 v39, s16
    v_mov_b32 v38, 0
    ds_write_b32 v39, v38
    s_waitcnt lgkmcnt(0)
    s_barrier""")
    ep_load()
    stamp(1)
    a(f"""v_and_b32 v4, 3, v0
    v_bfe_u32 v5, v0, 2, 2
    v_lshl_or_b32 v5, v4, 2, v5
    v_lshrrev_b32 v6, 5, v0
    v_xor_b32 v5, v5, v6
    v_lshlrev_b32 v5, 4, v5
    v_bfe_u32 v6, v0, 2, 3
    v_lshlrev_b32 v6, 10, v6
    v_lshl_add_u32 v6, v4, 8, v6
    v_add_u32 v6, s15, v6
    v_and_b32 v7, 31, v0
    v_lshlrev_b32 v7, 10, v7
    s_lshl_b32 s16, s3, 8
    s_add_u32 s16, s16, {X}
    v_add_u32 v7, s16, v7""")
    for x in range(8):
        a(f"v_xor_b32 v4, {32*x}, v5\nv_add_u32 v{8+x}, v6, v4\nv_add_u32 v{16+x}, v7, v4")
    a(f"""v_bfe_u32 v4, v0, 2, 2
    v_bfe_u32 v5, v0, 4, 1
    v_bfe_u32 v6, v0, 1, 1
    v_lshl_or_b32 v5, v5, 1, v6
    v_lshrrev_b32 v6, 5, v0
    v_xor_b32 v5, v5, v6
    v_lshl_or_b32 v5, v4, 2, v5
    v_lshlrev_b32 v5, 4, v5
    v_lshlrev_b32 v6, 10, v6
    v_lshl_add_u32 v6, v4, 8, v6
    v_and_b32 v4, 1, v0
    v_lshl_add_u32 v6, v4, 3, v6
    s_lshl_b32 s12, s3, 15
    v_add_u32 v6, s12, v6""")
    for n in range(4):
        for sec in range(2):
            a(f"v_xor_b32 v4, {64*n + 32*sec}, v5\nv_add_u32 v{24+2*n+sec}, v6, v4")
            if sec: a(f"v_add_u32 v{24+2*n+sec}, 2048, v{24+2*n+sec}")
    a(f"""v_and_b32 v4, 31, v0
    v_lshlrev_b32 v5, 5, v4
    v_add_u32 v96, {X+8192}, v5
    v_lshrrev_b32 v5, 5, v0
    s_lshl_b32 s13, s3, 3
    v_lshl_add_u32 v6, v5, 2, s13
    v_add_u32 v97, v96, v6
    v_lshlrev_b32 v6, 4, v0
    v_add_u32 v98, {X}, v6
    s_lshl_b32 s13, s3, 11
    v_add_u32 v99, s13, v98
    v_lshlrev_b32 v5, 19, v5
    v_lshl_add_u32 v3, v4, 2, v5
    s_lshl_b32 s13, s9, 8
    s_add_u32 s12, s12, s13
    s_add_u32 s12, s12, {BP}
    s_lshl_b32 s14, s9, 7
    s_add_u32 s14, s14, {GO}
    s_cmp_eq_u32 s3, 0
    s_cselect_b32 s14, s14, 0x7ffffff0
    s_waitcnt lgkmcnt(0)""")
    tags(False)
    a(f"""v_and_b32 v1, 3, v0
    v_add_u32 v1, s{sF}, v1
    v_and_b32 v1, 3, v1
    v_mul_u32_u24 v1, 0x8001, v1
    v_mov_b32 v2, 0x10001
    v_mov_b32 v36, s{sF}
    v_mov_b32 v37, s{sF}
    v_mov_b32 v38, 0""")
    landed = 0
    while issued < 32:
        c_wait(landed); landed += 1
        while issued < 32 and issued - landed < tdepth(landed):
            c_load(issued); issued += 1
    stamp(2)
    a("s_barrier")
    stamp(3)
    NB, AH = 8, 4
    def qk_read(t):
        sl = 128 + 8*(t % NB)
        if t % 8 == 0: c_wait(t + 7)
        if t % 8 == 0 and t < 24: a(f"s_lshl_b32 s16, s{36+(t>>3)}, 15\ns_lshl_b32 s17, s{36+(t>>3)}, 8")
        a(f"ds_read_b128 {vr(sl)}, v{8+(t&7)}")
        a(f"ds_read_b128 {vr(sl+4)}, v{16+(t&7)}")
        if t < 24: a(f"v_add_u32 v{8+(t&7)}, s16, v{8+(t&7)}\nv_add_u32 v{16+(t&7)}, s17, v{16+(t&7)}")
    rd = 0
    for t in range(32):
        lim = 24 if t < 24 else 32
        while rd < min(t + AH + 1, lim): qk_read(rd); rd += 1
        a(f"s_waitcnt lgkmcnt({2*(rd - t - 1)})")
        sl = 128 + 8*(t % NB)
        if t == 31:
            stamp(4)
            a("s_barrier")
        a(f"v_mfma_f32_32x32x16_bf16 {vr(64,16)}, {vr(sl)}, {vr(sl+4)}, {'0' if t == 0 else vr(64,16)}")
    def pv_read(half, kk, nn):
        n = 2*half + nn
        base = 128 + 64*(1-half) + 8*kk + 4*nn
        for sec in range(2):
            a(f"ds_read_b64_tr_b16 {vr(base+2*sec,2)}, v{24+2*n+sec} offset:{4096*kk}")
    pvq = [(kk, nn) for kk in range(8) for nn in range(2)]
    for _ in range(5): pv_read(0, *pvq.pop(0))
    a(f"""v_max3_f32 v4, v64, v65, v66
    v_max3_f32 v5, v67, v68, v69
    v_max3_f32 v6, v70, v71, v72
    v_max3_f32 v7, v73, v74, v75
    v_max3_f32 v4, v4, v76, v77
    v_max3_f32 v5, v5, v78, v79
    v_max3_f32 v4, v4, v5, v6
    v_max_f32 v4, v4, v7
    ds_write_b32 v97, v4
    s_waitcnt lgkmcnt(0)
    s_barrier
    ds_read_b128 v[80:83], v96
    ds_read_b128 v[84:87], v96 offset:16""")
    for _ in range(6): pv_read(0, *pvq.pop(0))
    a(f"""s_waitcnt lgkmcnt(12)
    v_max3_f32 v4, v80, v81, v82
    v_max3_f32 v5, v83, v84, v85
    v_max3_f32 v4, v4, v86, v87
    v_max_f32 v20, v4, v5""")
    for r in range(0, 16, 2):
        a(f"v_pk_add_f32 {vr(64+r,2)}, {vr(64+r,2)}, v[20:21] op_sel_hi:[1,0] neg_lo:[0,1] neg_hi:[0,1]")
    for r in range(16):
        a(f"v_exp_f32 v{64+r}, v{64+r}")
        if r >= 3 and r & 1: a(f"v_cvt_pk_bf16_f32 v{88+(r-3)//2}, v{64+r-3}, v{64+r-2}")
        if r == 9: a("ds_write_b128 v99, v[88:91]")
    a("v_cvt_pk_bf16_f32 v95, v78, v79\nds_write_b128 v99, v[92:95] offset:1024")
    a("s_waitcnt lgkmcnt(0)")
    stamp(5)
    a("s_barrier")
    for kk in range(8): a(f"ds_read_b128 {vr(32+4*kk)}, v98 offset:{1024*kk}")
    lq = [("P", kk) for kk in range(8)]
    def lread(half, kk, nn):
        pv_read(half, kk, nn); lq.extend([("F", half, kk, nn)]*2)
    def lwait(items):
        last = max([i for i, x in enumerate(lq) if x in items], default=-1)
        a(f"s_waitcnt lgkmcnt({min(15, len(lq) - 1 - last)})")
    rest0 = list(pvq)
    def pv_store(half, r):
        head = (r & 3) + 8*(r >> 2)
        t0, t1 = 64 + 32*half + r, 80 + 32*half + r
        a(f"""v_cvt_pk_bf16_f32 v{t0}, v{t0}, v{t1}
        v_bfi_b32 v{t0}, v2, v1, v{t0}
        s_add_u32 s13, s12, {head*131072}
        buffer_store_dword v{t0}, v3, {sr(SW)}, s13 offen offset:{128*half} sc1""")
    todo = [(0,) + x for x in rest0] + [(1, kk, nn) for kk in range(8) for nn in range(2)]
    for half in range(2):
        for kk in range(8):
            for nn in range(2):
                lwait([("P", kk), ("F", half, kk, nn)])
                fb = 128 + 64*(1-half) + 8*kk + 4*nn
                acc = 64 + 32*half + 16*nn
                a(f"v_mfma_f32_32x32x16_bf16 {vr(acc,16)}, {vr(32+4*kk)}, {vr(fb)}, {'0' if kk == 0 else vr(acc,16)}")
                for _ in range(2 if half == 0 and kk < 3 else 1):
                    if todo: lread(*todo.pop(0))
                if half == 1 and (kk or nn): pv_store(0, 2*kk + nn - 1)
    pv_store(0, 15)
    stamp(6)
    for r in range(16): pv_store(1, r)
    stamp(7)
    if diag:
        a("s_waitcnt vmcnt(0)"); stamp(8)
    a("s_branch L_exit")

    a("L_ATT_help:")
    a("s_waitcnt lgkmcnt(0)")
    ep_load()
    if P["prefetch"]:
        a(f"""s_cmp_lg_u32 s3, 7
        s_cbranch_scc1 L_nopf
        s_cmp_lg_u32 s5, 0
        s_cbranch_scc1 L_nopf
        s_getpc_b64 s[10:11]
        L_pc:
        s_sub_u32 s10, s10, L_pc - {KNAME}
        s_subb_u32 s11, s11, 0
        v_lshlrev_b32 v4, 7, v0
        v_add_u32 v5, 8192, v4
        v_add_u32 v6, 16384, v4
        v_min_u32 v6, L_codeend - {KNAME} - 4, v6
        global_load_dword v200, v4, s[10:11]
        global_load_dword v201, v5, s[10:11]
        global_load_dword v202, v6, s[10:11]
        L_nopf:""")
    a("s_barrier")
    a("s_waitcnt lgkmcnt(0)")
    tags(True)
    a("L_ATT_help2:")
    a(f"""s_lshl4_add_u32 s9, s4, s5
    s_sub_u32 s10, s3, 4
    s_lshl_b32 s11, s10, 13
    s_add_u32 s12, s11, {QL}
    s_add_u32 s13, s11, {X}
    s_and_b32 s14, s10, 1
    s_lshl_b32 s14, s14, 5
    v_lshlrev_b32 v4, 4, v0
    v_add_u32 v5, s13, v4
    v_xor_b32 v4, s14, v4
    v_mov_b32 v6, 0x10001
    s_movk_i32 s16, 0xff""")
    for r in range(8):
        f = ((r & 3) << 2) | (r >> 2)
        a(f"v_xor_b32 v{8+r}, {16*f}, v4")
    nh = P["qhint"]
    shint("L_qhint", hint_offs(nh, 9, 63, 7, 12, 64//max(nh,1) + 1), 'b')
    if P["q_at"] is not None:
        a(f"""v_mov_b32 v16, s13
        L_qtrig:
        ds_read_b32 v17, v16
        s_waitcnt lgkmcnt(0)
        v_cmp_eq_u32 vcc, 0, v17
        s_sleep 1""")
        a("s_add_u32 s28, s28, 0x10000\ns_cbranch_scc1 L_exit\ns_cbranch_vccnz L_qtrig\ns_and_b32 s28, s28, 0xffff")
    stamp(5)
    a("L_qfetch:")
    for r in range(8):
        a(f"""s_bitcmp1_b32 s16, {r}
        s_cbranch_scc0 L_qs{r}
        s_add_u32 m0, s13, {1024*r}
        s_add_u32 s15, s12, {1024*r}
        buffer_load_dwordx4 v{8+r}, {sr(SW)}, s15 offen sc1 lds
        L_qs{r}:""")
    a("s_waitcnt vmcnt(0)")
    for r in range(8):
        a(f"ds_read_b128 {vr(64+4*r)}, v5 offset:{1024*r}")
    a("s_mov_b32 s16, 0")
    for r in range(8):
        a(f"s_waitcnt lgkmcnt({7-r})")
        check(7, 64+4*r, 4, sB, True)
        a(f"v_and_b32 v7, v6, v7\nv_cmp_ne_u32 vcc, 0, v7\ns_cmp_lg_u64 vcc, 0\ns_cselect_b32 s17, {1<<r}, 0\ns_or_b32 s16, s16, s17")
    spin("L_qfetch", "s_cbranch_scc1", "s_cmp_lg_u32 s16, 0")
    stamp(6)
    a("""s_setprio 0
    s_cmp_eq_u32 s3, 4
    s_cbranch_scc1 L_MLP1
    s_cmp_eq_u32 s3, 5
    s_cbranch_scc1 L_MLP2
    s_cmp_eq_u32 s3, 6
    s_cbranch_scc1 L_FIN""")
    a(f"""v_and_b32 v4, 31, v0
    v_lshlrev_b32 v5, 5, v4
    v_add_u32 v5, {X+8192}, v5
    v_lshlrev_b32 v6, 4, v0
    v_add_u32 v7, {X}, v6
    v_mov_b32 v17, s{sF}
    v_mov_b32 v19, s{sF}
    v_mov_b32 v8, 0x3f803f80
    s_lshl_b32 s12, s9, 9
    s_add_u32 s12, s12, {ST}
    s_barrier
    s_barrier
    s_barrier
    ds_read_b128 v[80:83], v5
    ds_read_b128 v[84:87], v5 offset:16
    s_waitcnt lgkmcnt(0)
    v_max3_f32 v4, v80, v81, v82
    v_max3_f32 v5, v83, v84, v85
    v_max3_f32 v4, v4, v86, v87
    v_max_f32 v16, v4, v5
    s_barrier""")
    for kk in range(8): a(f"ds_read_b128 {vr(32+4*kk)}, v7 offset:{1024*kk}")
    for kk in range(8):
        a(f"s_waitcnt lgkmcnt({7-kk})")
        for q in range(4):
            a(f"v_dot2_f32_bf16 v{20+q}, v{32+4*kk+q}, v8, {'0' if kk == 0 else f'v{20+q}'}")
    a(f"""s_nop 2
    v_add_f32 v20, v20, v21
    v_add_f32 v22, v22, v23
    v_add_f32 v18, v20, v22
    v_mov_b32 v4, v18
    v_permlane32_swap_b32 v4, v18
    v_add_f32 v18, v18, v4
    s_mov_b32 exec_hi, 0
    buffer_store_dwordx4 v[16:19], v6, {sr(SW)}, s12 offen sc1
    s_mov_b64 exec, -1""")
    stamp(7)
    a("s_branch L_exit")

    a("L_FIN:")
    a(f"""s_barrier
    s_cmp_lt_u32 s5, 12
    s_cbranch_scc1 L_exit
    s_barrier
    s_barrier
    s_barrier
    s_load_dwordx2 s[{SC}:{SC+1}], s[0:1], 80
    s_load_dwordx2 s[{SQ}:{SQ+1}], s[0:1], 88
    s_sub_u32 s10, s5, 12
    s_lshl2_add_u32 s10, s4, s10
    s_lshl_b32 s11, s10, 6
    s_lshl_b32 s16, s10, 5
    v_lshrrev_b32 v4, 2, v0
    v_and_b32 v5, 3, v0
    v_lshlrev_b32 v4, 11, v4
    v_lshl_add_u32 v4, v5, 4, v4
    v_lshlrev_b32 v5, 3, v5
    v_mov_b32 v6, 0xff""")
    srd(SX, 1024); srd(SC, 1024); srd(SQ, 1024)
    a(f"""s_waitcnt lgkmcnt(0)
    buffer_load_dwordx2 v[8:9], v5, {sr(SX)}, s16 offen
    buffer_load_dwordx2 v[10:11], v5, {sr(SC)}, s16 offen""")
    def fin_gather(label, first, n, dst):
        a(f"s_add_u32 s13, s11, {DP + first*2048}\ns_mul_i32 s14, s10, 3")
        shint(label + "_h", hint_offs(P["fhint"], 14, 63, 11, 13, 29), 'f')
        a(f"{label}:\ns_mov_b32 s12, s13")
        for x in range(n):
            a(f"buffer_load_dwordx4 {vr(64+4*x)}, v4, {sr(SW)}, s12 offen sc1")
            if x < n-1: a("s_add_u32 s12, s12, 0x8000")
        for x in range(n):
            a(f"s_waitcnt vmcnt({n-1-x})")
            check(7, 64+4*x, 4, sF, x == 0)
            if x == 1:
                for q in range(0, 4, 2): a(f"v_pk_add_f32 {vr(dst+q,2)}, {vr(64+q,2)}, {vr(68+q,2)}")
            elif x > 1:
                for q in range(0, 4, 2): a(f"v_pk_add_f32 {vr(dst+q,2)}, {vr(dst+q,2)}, {vr(64+4*x+q,2)}")
        a("v_and_b32 v7, v6, v7\nv_cmp_ne_u32 vcc, 0, v7")
        spin(label, "s_cbranch_vccnz")
        for r in (4, 8):
            for q in range(4): a(f"v_add_f32_dpp v{dst+q}, v{dst+q}, v{dst+q} row_ror:{r} {DPPM}")
        for sw in ("v_permlane16_swap_b32", "v_permlane32_swap_b32"):
            for q in range(4): a(f"v_mov_b32 v{64+q}, v{dst+q}")
            for q in range(4): a(f"{sw} v{64+q}, v{dst+q}")
            for q in range(0, 4, 2): a(f"v_pk_add_f32 {vr(dst+q,2)}, {vr(dst+q,2)}, {vr(64+q,2)}")
    def round4(d):
        a(f"v_cvt_pk_bf16_f32 v12, v{d}, v{d+1}\nv_cvt_pk_bf16_f32 v13, v{d+2}, v{d+3}")
        unpack2(d, 12); unpack2(d+2, 13)
    fin_gather("L_fin_mlp", 128, 7, 16)
    stamp(7)
    round4(16)
    unpack2(20, 10); unpack2(22, 11); unpack2(24, 8); unpack2(26, 9)
    for q in range(0, 4, 2): a(f"v_pk_add_f32 {vr(16+q,2)}, {vr(16+q,2)}, {vr(20+q,2)}")
    round4(16)
    fin_gather("L_fin_att", 0, 8, 20)
    stamp(8)
    round4(20)
    for q in range(0, 4, 2): a(f"v_pk_add_f32 {vr(20+q,2)}, {vr(20+q,2)}, {vr(24+q,2)}")
    round4(20)
    for q in range(0, 4, 2): a(f"v_pk_add_f32 {vr(20+q,2)}, {vr(20+q,2)}, {vr(16+q,2)}")
    a(f"""v_cvt_pk_bf16_f32 v12, v20, v21
    v_cvt_pk_bf16_f32 v13, v22, v23
    s_mov_b64 exec, 15
    buffer_store_dwordx2 v[12:13], v5, {sr(SQ)}, s16 offen {P['out_pol']}
    s_cmp_lg_u32 s10, 0
    s_cbranch_scc1 L_fin_done
    s_mov_b64 exec, 1
    v_mov_b32 v14, s{sF}
    buffer_store_dword v14, v5, {sr(SW)}, 0 offen offset:{EP} {P['out_pol']}
    L_fin_done:
    s_mov_b64 exec, -1""")
    if diag:
        a("s_waitcnt vmcnt(0)"); stamp(9)
    a("s_branch L_exit")

    late = "s_barrier\ns_barrier\ns_barrier"
    a("L_MLP1:")
    a(f"""s_load_dwordx2 s[{SC}:{SC+1}], s[0:1], 56
    s_lshr_b32 s10, s5, 3
    s_lshl1_add_u32 s10, s4, s10
    s_mul_i32 s11, s29, {64*3584}
    s_lshl_b32 s12, s10, 8
    s_add_u32 s11, s11, s12
    v_mul_u32_u24 v6, {16*3584}, v3
    v_lshl_add_u32 v6, v2, 4, v6
    s_movk_i32 s12, 3584""")
    srd(SC, 512*1792*2)
    a(f"""s_barrier
    s_cmp_ge_u32 s10, 14
    s_cbranch_scc1 L_exit
    s_waitcnt lgkmcnt(0)""")
    if P["mlp_late"]: a(late)
    for t in range(16):
        a(f"buffer_load_dwordx4 {vr(64+4*t)}, v6, {sr(SC)}, s11 offen nt")
        if t < 15: a("s_add_u32 s11, s11, s12")
    a(f"""s_lshl3_add_u32 s10, s10, s29
    s_lshl_b32 s10, s10, 9
    s_add_u32 s10, s10, {HP}""")
    if not P["mlp_late"]: a(late)
    delta_gemv16()
    stamp(7)
    a("s_branch L_exit")

    a("L_MLP2:")
    a(f"""s_load_dwordx2 s[{SQ}:{SQ+1}], s[0:1], 72
    s_load_dwordx2 s[{SK}:{SK+1}], s[0:1], 64
    s_mul_i32 s10, s4, 14
    s_add_u32 s10, s10, s5
    s_lshl_b32 s11, s10, 5
    s_lshl_b32 s12, s10, 14
    v_lshlrev_b32 v5, 12, v3
    v_lshl_add_u32 v5, v2, 4, v5
    v_lshlrev_b32 v7, 3, v3""")
    srd(SQ, 1792*512*2); srd(SK, 1792*2)
    a(f"""s_barrier
    s_cmp_ge_u32 s5, 14
    s_cbranch_scc1 L_exit
    s_waitcnt lgkmcnt(0)""")
    if P["mlp_late"]: a(late)
    a(f"buffer_load_dwordx2 v[12:13], v7, {sr(SK)}, s11 offen")
    for rq in range(4):
        for cb in range(4):
            a(f"buffer_load_dwordx4 {vr(192+16*rq+4*cb)}, v5, {sr(SQ)}, s12 offen offset:{1024*rq + 256*cb} nt")
    delta_masks(32, 36)
    a(f"""s_lshr_b32 s13, s10, 3
    s_lshl_b32 s13, s13, 12
    s_and_b32 s14, s10, 7
    s_lshl_b32 s14, s14, 6
    s_add_u32 s13, s13, s14
    s_add_u32 s13, s13, {HP}
    v_and_b32 v6, 7, v0
    v_lshlrev_b32 v6, 9, v6
    v_lshl_add_u32 v6, v3, 4, v6
    v_mov_b32 v40, 0xff
    s_lshl_b32 s12, s10, 11
    s_add_u32 s12, s12, {DP + 128*2048}""")
    if not P["mlp_late"]: a(late)
    shint("L_hhint", hint_offs(P["hhint"], 10, 7, 9, 13, 3), 'f')
    a(f"""L_hp_poll:
    buffer_load_dwordx4 v[16:19], v6, {sr(SW)}, s13 offen sc1
    s_waitcnt vmcnt(0)""")
    check(7, 16, 4, sF, True)
    a("v_and_b32 v7, v40, v7\nv_cmp_ne_u32 vcc, 0, v7")
    spin("L_hp_poll", "s_cbranch_vccnz")
    for r in (1, 2, 4):
        for q in range(4): a(f"v_add_f32_dpp v{16+q}, v{16+q}, v{16+q} row_ror:{r} {DPPM}")
    a("v_cvt_pk_bf16_f32 v14, v16, v17\nv_cvt_pk_bf16_f32 v15, v18, v19")
    unpack2(16, 14); unpack2(18, 15); unpack2(20, 12); unpack2(22, 13)
    for q in range(4): a(f"v_add_f32 v{16+q}, v{16+q}, v{20+q}")
    for q in range(4): rnd_bf16(16+q, 16+q)
    for q in range(4): a(f"v_max_f32 v{16+q}, 0, v{16+q}\nv_mul_f32 v{16+q}, v{16+q}, v{16+q}\nv_cvt_pk_bf16_f32 v{16+q}, v{16+q}, v{16+q}")
    for rq in range(4):
        for dw in range(4):
            a(f"v_and_b32 v{64+4*rq+dw}, v{16+rq}, v{32+dw}")
    for rq in range(4):
        for cb in range(4):
            a(f"v_mfma_f32_16x16x32_bf16 {vr(96+4*cb)}, {vr(64+4*rq)}, {vr(192+16*rq+4*cb)}, {'0' if rq == 0 else vr(96+4*cb)}")
    for cb in range(4):
        for r in range(4): a(f"v_bfi_b32 v{96+4*cb+r}, v40, s{sF+r}, v{96+4*cb+r}")
    a("s_mov_b32 exec_hi, 0")
    for cb in range(4):
        a(f"buffer_store_dwordx4 {vr(96+4*cb)}, v41, {sr(SW)}, s12 offen offset:{512*cb} sc1")
    a("s_mov_b64 exec, -1")
    stamp(7)
    a("s_branch L_exit")

    a("L_WGT_other:")
    a("s_waitcnt lgkmcnt(0)")
    ep_load()
    a(f"""s_load_dwordx2 s[{SG}:{SG+1}], s[0:1], 32
    s_cmp_eq_u32 s3, 7
    s_cbranch_scc0 L_S1
    s_waitcnt lgkmcnt(0)""")
    tags(False)
    a("s_barrier\ns_branch L_WO")
    a("L_S1:")
    srd(SG, 4 << 20)
    delta_masks(32, 36)
    a(f"""v_lshrrev_b32 v5, 5, v0
    v_bfe_u32 v6, v0, 2, 1
    v_bfe_u32 v7, v0, 3, 2
    v_lshl_add_u32 v7, v6, 5, v7
    v_lshl_add_u32 v7, v5, 2, v7
    v_lshlrev_b32 v7, 13, v7
    v_and_b32 v6, 3, v0
    v_lshlrev_b32 v5, 1, v5
    v_xor_b32 v6, v6, v5
    v_lshl_add_u32 v4, v6, 4, v7
    s_lshl_b32 s10, s8, 20
    s_lshl_b32 s11, s7, 8
    s_add_u32 s10, s10, s11
    s_lshl_b32 s11, s3, 6
    s_add_u32 s10, s10, s11
    s_lshl_b32 s11, s3, 13
    s_add_u32 s11, s11, {X}""")
    a(f"""v_bfe_u32 v5, v0, 2, 2
    v_lshl_add_u32 v5, v3, 3, v5
    v_lshlrev_b32 v5, 6, v5
    v_and_b32 v6, 1, v0
    v_lshl_add_u32 v5, v6, 3, v5
    v_add_u32 v5, s11, v5
    v_bfe_u32 v6, v0, 1, 1
    v_bfe_u32 v7, v0, 4, 1
    v_lshl_or_b32 v6, v7, 1, v6
    v_lshl_add_u32 v8, v6, 4, v5
    v_xor_b32 v9, 32, v8""")
    a(f"""v_and_b32 v5, 7, v0
    v_lshl_add_u32 v5, v5, 2, v3
    v_lshlrev_b32 v10, 9, v5
    v_lshlrev_b32 v11, 4, v0
    v_lshlrev_b32 v5, 4, v2
    v_lshl_add_u32 v5, v3, 3, v5
    s_lshl_b32 s12, s3, 6
    s_add_u32 s13, s12, s11
    v_add_u32 v12, s13, v5
    v_and_b32 v5, 3, v0
    v_mul_u32_u24 v5, {8192+64}, v5
    v_lshl_add_u32 v5, v3, 4, v5
    v_add_u32 v13, {X}, v5
    v_and_b32 v5, 31, v0
    s_add_u32 s13, s12, {X+2048}
    v_lshl_add_u32 v14, v5, 1, s13
    v_mov_b32 v15, s11
    v_mov_b32 v31, {X}
    v_mov_b32 v30, 0x10001
    v_bfe_u32 v5, v0, 4, 1
    v_cmp_eq_u32 s[18:19], 1, v5
    s_mov_b32 m0, s11
    s_lshl4_add_u32 s30, s4, s5
    s_lshl_b32 s30, s30, 7
    s_add_u32 s30, s30, {GO}
    s_waitcnt lgkmcnt(0)""")
    tags(True)
    a("s_barrier\ns_barrier")
    if P["go_at"] is not None:
        a("s_cmp_lg_u32 s3, 0\ns_cbranch_scc1 L_go_done")
        shint("L_go", [30], 't')
        a("L_go_done:\ns_barrier")
    stamp(1)
    for q in range(8):
        if q >= P["wuv_depth"]: a(f"s_waitcnt vmcnt({P['wuv_depth']-1})")
        a(f"buffer_load_dwordx4 v4, {sr(SG)}, s10 offen nt lds")
        if q < 7:
            step = 8*8192 if (q & 3) < 3 else (64 - 24)*8192
            a(f"s_add_u32 m0, m0, 1024\ns_add_u32 s10, s10, {step}")
    a(f"""s_lshl_b32 s12, s3, 13
    s_lshl2_add_u32 s16, s7, s8
    s_lshl_b32 s13, s16, 15
    s_add_u32 s13, s13, s12
    s_add_u32 s13, s13, {BP}
    s_lshl_b32 s12, s12, 1
    s_lshl4_add_u32 s12, s7, s12
    s_add_u32 s12, s12, {ST}
    s_waitcnt vmcnt(0)""")
    for n in range(2):
        for t in range(4):
            for sec in range(2):
                a(f"ds_read_b64_tr_b16 {vr(160+16*n+4*t+2*sec,2)}, v{8+n} offset:{2048*t + 256*sec}")
    a("s_waitcnt lgkmcnt(0)")
    stamp(2)
    nh = P["bhint"]
    for x in range(nh): a(f"s_add_u32 s{30+x}, s13, {(32*x//nh + 3)*256 + 128}")
    shint("L_bhint", [30+x for x in range(nh)], 'b')
    stamp(3)
    a("s_add_u32 s14, s13, 4096\nL_bfetch:")
    a(f"buffer_load_dwordx4 v[16:19], v10, {sr(SW)}, s12 offen sc1")
    for t in range(8):
        a(f"buffer_load_dwordx4 {vr(64+4*t)}, v11, {sr(SW)}, s{13 + (t>>2)} offen offset:{1024*(t&3)} sc1")
    a(f"""s_waitcnt vmcnt(8)""")
    stamp(4)
    a(f"""v_xor_b32 v17, s{sF}, v17
    v_bitop3_b32 v17, v17, v19, s{sF} bitop3:0xf6
    v_mov_b32 v24, v16""")
    allreduce("v_max_f32", 24, 20)
    a("""v_sub_f32 v16, v16, v24
    v_exp_f32 v16, v16
    v_cvt_pk_bf16_f32 v16, v16, v16""")
    for t in range(8):
        for dw in range(4):
            a(f"v_and_b32_dpp v{128+4*t+dw}, v16, v{32+dw} row_newbcast:{t} {DPPM}")
    a("v_and_b32 v25, 0xffff0000, v16\nv_mul_f32 v25, v25, v18")
    allreduce("v_add_f32", 25, 20)
    a("v_mul_f32 v25, 0.5, v25\nds_write_b64 v15, v[24:25] offset:1024")
    stamp(5)
    for t in range(8):
        a(f"s_waitcnt vmcnt({7-t})")
        a(f"v_mfma_f32_16x16x32_bf16 v[40:43], {vr(128+4*t)}, {vr(64+4*t)}, {'0' if t == 0 else 'v[40:43]'}")
        check(7, 64+4*t, 4, sB, t == 0)
    a("v_and_or_b32 v7, v30, v7, v17\nv_cmp_ne_u32 vcc, 0, v7")
    spin("L_bfetch", "s_cbranch_vccnz")
    stamp(6)
    a("""v_cvt_pk_bf16_f32 v44, v40, v41
    v_cvt_pk_bf16_f32 v45, v42, v43
    s_mov_b32 exec_hi, 0
    ds_write_b64 v12, v[44:45]
    s_mov_b64 exec, -1
    s_waitcnt lgkmcnt(0)
    s_barrier""")
    for u in range(4): a(f"ds_read_b64 {vr(80+2*u,2)}, v31 offset:{8192*u + 1024}")
    for t in range(4): a(f"ds_read_b128 {vr(64+4*t)}, v13 offset:{64*t}")
    sm = """v_max3_f32 v4, v80, v82, v84
    v_max_f32 v4, v4, v86
    v_sub_f32 v80, v80, v4
    v_sub_f32 v82, v82, v4
    v_sub_f32 v84, v84, v4
    v_sub_f32 v86, v86, v4
    v_exp_f32 v80, v80
    v_exp_f32 v82, v82
    v_exp_f32 v84, v84
    v_exp_f32 v86, v86
    v_mul_f32 v5, v80, v81
    v_fmac_f32 v5, v82, v83
    v_fmac_f32 v5, v84, v85
    v_fmac_f32 v5, v86, v87
    v_rcp_f32 v5, v5""".split("\n")
    for t in range(4):
        a(f"s_waitcnt lgkmcnt({3-t})")
        for n in range(2):
            a(f"v_mfma_f32_16x16x32_bf16 {vr(40+4*n)}, {vr(64+4*t)}, {vr(160+16*n+4*t)}, {'0' if t == 0 else vr(40+4*n)}")
            a(sm.pop(0))
    for l in sm: a(l)
    for r in range(4): a(f"v_cndmask_b32 v{40+r}, v{40+r}, v{44+r}, s[18:19]")
    a("""v_mul_f32 v6, v40, v80
    v_fmac_f32 v6, v41, v82
    v_fmac_f32 v6, v42, v84
    v_fmac_f32 v6, v43, v86
    v_mul_f32 v6, v6, v5
    v_cvt_pk_bf16_f32 v6, v6, v6
    ds_write_b16 v14, v6
    s_waitcnt lgkmcnt(0)""")
    stamp(7)
    a("s_barrier\ns_branch L_exit")

    a("L_WO:")
    a(f"s_load_dwordx2 s[{SG}:{SG+1}], s[0:1], 40\ns_setprio 0\ns_barrier")
    srd(SG, 4 << 20)
    a(f"""s_sub_u32 s9, s3, 4
    s_lshl_b32 s10, s7, 17
    s_lshl_b32 s11, s9, 8
    s_add_u32 s10, s10, s11
    s_lshl_b32 s11, s9, 15
    v_lshlrev_b32 v4, 2, v3
    v_xor_b32 v4, v4, v2
    v_lshlrev_b32 v4, 4, v4
    v_lshl_add_u32 v4, v3, 10, v4
    v_xor_b32 v5, 32, v4
    s_mov_b32 m0, s11""")
    a(f"""v_bfe_u32 v6, v0, 2, 2
    v_bfe_u32 v7, v0, 4, 1
    v_bfe_u32 v16, v0, 1, 1
    v_lshl_or_b32 v7, v7, 1, v16
    v_lshl_or_b32 v7, v6, 2, v7
    v_lshlrev_b32 v7, 4, v7
    v_lshlrev_b32 v6, 8, v6
    v_lshl_add_u32 v6, v3, 11, v6
    v_and_b32 v16, 1, v0
    v_lshl_add_u32 v6, v16, 3, v6
    v_add_u32 v6, s11, v6""")
    for n in range(8):
        a(f"v_xor_b32 v16, {32*n}, v7\nv_add_u32 v{8+n}, v6, v16")
    a(f"""v_lshlrev_b32 v16, 4, v3
    v_add_u32 v16, {X+2048}, v16
    v_lshlrev_b32 v17, 6, v2
    v_lshl_add_u32 v17, v3, 4, v17
    v_mov_b32 v18, 0xff
    s_lshl2_add_u32 s12, s7, s8
    s_lshl_b32 s12, s12, 11
    s_lshl_b32 s13, s9, 9
    s_add_u32 s12, s12, s13
    s_add_u32 s12, s12, {DP}""")
    for n in range(1, 8):
        a(f"s_mov_b32 s{40+2*n}, {0x01010101 << n}\ns_mov_b32 s{41+2*n}, {0x01010101 << n}")
    a("s_waitcnt lgkmcnt(0)")
    def wo_read(t):
        for n in range(8):
            for sec in range(2):
                a(f"ds_read_b64_tr_b16 {vr(128+32*t+4*n+2*sec,2)}, v{8+n} offset:{8192*t + 1024*sec}")
    nxt = 0
    for rg in range(32):
        if rg == P["wo_early"] and P["go_at"] is not None: a("s_barrier")
        wd = P["wo_edepth"] if rg < P["wo_early"] else P["wo_depth"]
        if rg >= wd:
            a(f"s_waitcnt vmcnt({wd-1})")
            landed = rg - wd + 1
            if landed >= 8*(nxt+1): wo_read(nxt); nxt += 1
        a(f"buffer_load_dwordx4 v{4+((rg>>1)&1)}, {sr(SG)}, s10 offen {P['wo_pol']} lds")
        if rg < 31: a("s_add_u32 m0, m0, 1024\ns_add_u32 s10, s10, 4096")
    while nxt < 4:
        a(f"s_waitcnt vmcnt({24 - 8*nxt})")
        wo_read(nxt); nxt += 1
    stamp(6)
    a("s_barrier\ns_barrier")
    stamp(7)
    for t in range(4): a(f"ds_read_b128 {vr(20+4*t)}, v16 offset:{64*t}")
    a("s_waitcnt lgkmcnt(0)")
    for n in range(8):
        for t in range(4):
            a(f"v_mfma_f32_16x16x32_bf16 {vr(64+4*n)}, {vr(128+32*t+4*n)}, {vr(20+4*t)}, {'0' if t == 0 else vr(64+4*n)}")
            if n >= 3:
                m = n - 2
                a(f"v_cndmask_b32 v{64+t}, v{64+t}, v{64+4*m+t}, s[{40+2*m}:{41+2*m}]")
    for m in (6, 7):
        for t in range(4): a(f"v_cndmask_b32 v{64+t}, v{64+t}, v{64+4*m+t}, s[{40+2*m}:{41+2*m}]")
    for r in range(4): a(f"v_bfi_b32 v{64+r}, v18, s{sF+r}, v{64+r}")
    a(f"""s_mov_b32 exec_lo, 0x00ff00ff
    s_mov_b32 exec_hi, 0x00ff00ff
    buffer_store_dwordx4 v[64:67], v17, {sr(SW)}, s12 offen sc1
    s_mov_b64 exec, -1""")
    stamp(8)
    if diag:
        a("s_waitcnt vmcnt(0)"); stamp(9)

    a("L_exit:")
    if diag:
        a(f"""s_mov_b64 exec, -1
        s_waitcnt lgkmcnt(0)
        s_lshl3_add_u32 s10, s2, s3
        s_lshl_b32 s10, s10, 7
        s_add_u32 s10, s10, {STAMP}
        v_mov_b32 v4, 0""")
        for k in range(10):
            a(f"v_mov_b32 v5, s{80+2*k}\nbuffer_store_dword v5, v4, {sr(SW)}, s10 offen offset:{4*k}")
        a(f"v_mov_b32 v5, s28\nbuffer_store_dword v5, v4, {sr(SW)}, s10 offen offset:40")
        a(f"s_getreg_b32 s11, hwreg(HW_REG_XCC_ID)\nv_mov_b32 v5, s11\nbuffer_store_dword v5, v4, {sr(SW)}, s10 offen offset:44")
        a(f"s_getreg_b32 s11, hwreg(HW_REG_HW_ID)\nv_mov_b32 v5, s11\nbuffer_store_dword v5, v4, {sr(SW)}, s10 offen offset:48")
    a("L_end:\ns_endpgm\nL_codeend:")

    lines = a.lines
    if diag:
        pre = [f"s_mov_b32 s{80+2*k}, 0" for k in range(1, 10)]
        lines = lines[:1] + pre + lines[1:]
    lines, nins = insert_waits(lines)
    b = Asm(); b.lines = lines
    head = f"""; fused MLA decode attention (absorbed form) + squared-relu MLP, one persistent launch, 256 workgroups
; @launch grid=(256,1,1) block=(512,1,1) lds=163840
.amdgcn_target "amdgcn-amd-amdhsa--gfx950"
.text
.globl {KNAME}
.p2align 8
.type {KNAME},@function
{KNAME}:
"""
    foot = f"""
.section .rodata,"a"
.p2align 6
.amdhsa_kernel {KNAME}
  .amdhsa_next_free_vgpr 256
  .amdhsa_next_free_sgpr 102
  .amdhsa_accum_offset 256
  .amdhsa_group_segment_fixed_size 0
  .amdhsa_kernarg_size 112
  .amdhsa_user_sgpr_count 2
  .amdhsa_user_sgpr_kernarg_segment_ptr 1
  .amdhsa_system_sgpr_workgroup_id_x 1
  .amdhsa_float_denorm_mode_32 3
.end_amdhsa_kernel
"""
    return head + b.text() + foot

if __name__ == "__main__":
    import json
    kw = json.loads(sys.argv[2]) if len(sys.argv) > 2 else {}
    open(sys.argv[1], "w").write(gen(**kw))
```

```python
import sys, math, struct
from asmlib import Asm, insert_waits
from gen_common import KNAME

EP, QP, QL, GO, ST, HP, DP, BP, STAMP = 0, 0x1000, 0x40000, 0x48000, 0x50000, 0x60000, 0x80000, 0x100000, 0x800000
WS_REC = 0x1000000
X = 131072
SPIN = 1 << 17

def f2u(x): return struct.unpack("<I", struct.pack("<f", x))[0]
def vr(a, n=4): return f"v[{a}:{a+n-1}]"
def sr(a, n=4): return f"s[{a}:{a+n-1}]"

SX, SC, SQ, SK, SW, SG = 40, 44, 48, 52, 56, 60
sF, sB = 20, 24
HINT = 64
DPPM = "row_mask:0xf bank_mask:0xf"

DEFAULT = dict(diag=False, c_ramp=((0,1),(1,4),(2,8)), wo_depth=8, wo_early=0, wo_edepth=2, wuv_depth=2, prio=True,
               go_at=28, out_pol="sc1", fhint=2, qhint=0, lhint=1, bhint=4, hhint=2, prefetch=True, role_bit=0,
               wo_pol="nt", x_pol="", mlp_late=False, pol="nt", q_at=31, hsleep=0, pretouch=True, st_poll=False)

def gen(**kw):
    P = dict(DEFAULT); P.update(kw)
    diag = P["diag"]
    a = Asm()
    def stamp(k):
        if diag: a(f"s_memrealtime s[{80+2*k}:{81+2*k}]")
    def srd(base, size):
        a(f"s_mov_b32 s{base+2}, {size}\ns_mov_b32 s{base+3}, 0x20000")
    def ep_load(): a(f"s_load_dword s35, s[{SW}:{SW+1}], {EP}")
    def tags(need_b=True):
        for q in range(4): a(f"s_add_u32 s{sF+q}, s35, {q+1}")
        if need_b:
            for q in range(4): a(f"s_and_b32 s{sB+q}, s{sF+q}, 3\ns_mul_i32 s{sB+q}, s{sB+q}, 0x8001")
    def allreduce(op, v, t1):
        for r in (1, 2, 4, 8):
            a(f"{op}_dpp v{v}, v{v}, v{v} row_ror:{r} {DPPM}")
        for sw in ("v_permlane16_swap_b32", "v_permlane32_swap_b32"):
            a(f"v_mov_b32 v{t1}, v{v}\n{sw} v{t1}, v{v}\n{op} v{v}, v{v}, v{t1}")
    def rnd_bf16(d, s):
        a(f"v_cvt_pk_bf16_f32 v{d}, v{s}, v{s}\nv_and_b32 v{d}, 0xffff0000, v{d}")
    def unpack2(d, s):
        a(f"v_lshlrev_b32 v{d}, 16, v{s}\nv_and_b32 v{d+1}, 0xffff0000, v{s}")
    def ln_stats(xr, f, t):
        for i in range(4): unpack2(f+2*i, xr+i)
        a(f"v_add_f32 v{t}, v{f}, v{f+1}\nv_add_f32 v{t+1}, v{f+2}, v{f+3}\nv_add_f32 v{t+2}, v{f+4}, v{f+5}\nv_add_f32 v{t+3}, v{f+6}, v{f+7}")
        a(f"v_add_f32 v{t}, v{t}, v{t+1}\nv_add_f32 v{t+2}, v{t+2}, v{t+3}\nv_add_f32 v{t}, v{t}, v{t+2}")
        allreduce("v_add_f32", t, t+2)
        a(f"v_mul_f32 v{t}, {f2u(1/512)}, v{t}")
        a(f"v_sub_f32 v{t+2}, v{f}, v{t}\nv_mul_f32 v{t+1}, v{t+2}, v{t+2}")
        for i in range(1, 8):
            a(f"v_sub_f32 v{t+2+(i&1)}, v{f+i}, v{t}\nv_fmac_f32 v{t+1}, v{t+2+(i&1)}, v{t+2+(i&1)}")
        allreduce("v_add_f32", t+1, t+2)
        a(f"v_mul_f32 v{t+1}, {f2u(1/512)}, v{t+1}")
        rnd_bf16(t, t)
        rnd_bf16(t+1, t+1)
        a(f"v_add_f32 v{t+1}, {f2u(1e-5)}, v{t+1}")
        rnd_bf16(t+1, t+1)
        a(f"v_sqrt_f32 v{t+1}, v{t+1}")
        rnd_bf16(t+1, t+1)
        a(f"v_rcp_f32 v{t+1}, v{t+1}")
    def delta_masks(m, t):
        a(f"""v_and_b32 v{t}, 1, v0
        v_lshlrev_b32 v{t}, 4, v{t}
        v_mov_b32 v{t+1}, 0xffff
        v_lshlrev_b32 v{t}, v{t}, v{t+1}
        v_bfe_u32 v{t+1}, v0, 1, 3""")
        for dw in range(4):
            a(f"v_cmp_eq_u32 vcc, {dw}, v{t+1}\nv_cndmask_b32 v{m+dw}, 0, v{t}, vcc")
    def check(acc, first, n, tagbase, start):
        for i in range(n):
            if start and i == 0: a(f"v_xor_b32 v{acc}, s{tagbase}, v{first}")
            else: a(f"v_bitop3_b32 v{acc}, v{acc}, v{first+i}, s{tagbase+(i&3)} bitop3:0xf6")
    def spin(label, cond_branch, pre=""):
        a(f"""s_add_u32 s28, s28, 1
        s_cmp_gt_u32 s28, {SPIN}
        s_cbranch_scc1 L_exit
        {pre}
        {cond_branch} {label}""")
    def shint(label, offs, kind):
        if not offs: return
        a(f"{label}:")
        if P["hsleep"]: a(f"s_sleep {P['hsleep']}")
        n = len(offs)
        if kind == 't':
            for x, o in enumerate(offs): a(f"s_load_dwordx2 {sr(HINT+2*x,2)}, s[{SW}:{SW+1}], s{o} glc")
            a("s_waitcnt lgkmcnt(0)")
            for x in range(n):
                a(f"s_xor_b32 s{HINT+2*x+1}, s{HINT+2*x+1}, s{sF}")
                if x: a(f"s_or_b32 s{HINT+1}, s{HINT+1}, s{HINT+2*x+1}")
            fin = f"s_cmp_lg_u32 s{HINT+1}, 0"
        else:
            tb, mask = (sB, 0x10001) if kind == 'b' else (sF, 0xff)
            for x, o in enumerate(offs): a(f"s_load_dwordx4 {sr(HINT+4*x)}, s[{SW}:{SW+1}], s{o} glc")
            a("s_waitcnt lgkmcnt(0)")
            for x in range(4*n):
                a(f"s_xor_b32 s{HINT+x}, s{HINT+x}, s{tb+(x&3)}")
                if x: a(f"s_or_b32 s{HINT}, s{HINT}, s{HINT+x}")
            fin = f"s_and_b32 s{HINT}, s{HINT}, {mask}"
        spin(label, "s_cbranch_scc1", fin)
    def hint_offs(n, seed, modmask, shift, base, spread):
        for x in range(n):
            a(f"s_add_u32 s{30+x}, s{seed}, {x*spread}\ns_and_b32 s{30+x}, s{30+x}, {modmask}\ns_lshl_b32 s{30+x}, s{30+x}, {shift}\ns_add_u32 s{30+x}, s{30+x}, s{base}")
        return [30+x for x in range(n)]

    stamp(0)
    a(f"""s_load_dwordx2 s[{SX}:{SX+1}], s[0:1], 0
    s_load_dwordx2 s[{SQ}:{SQ+1}], s[0:1], 16
    s_load_dwordx2 s[{SK}:{SK+1}], s[0:1], 24
    s_load_dwordx2 s[{SC}:{SC+1}], s[0:1], 8
    s_load_dwordx2 s[{SW}:{SW+1}], s[0:1], 104
    v_lshrrev_b32 v1, 6, v0
    s_cmp_ge_u32 s2, 256
    s_cbranch_scc1 L_end
    v_readfirstlane_b32 s3, v1
    v_and_b32 v0, 63, v0
    s_and_b32 s4, s2, 7""")
    if P["role_bit"] == 0:
        a("s_bfe_u32 s6, s2, 0x10003\ns_lshr_b32 s5, s2, 4")
    else:
        a("s_lshr_b32 s6, s2, 7\ns_bfe_u32 s5, s2, 0x40003")
    a(f"""s_lshr_b32 s7, s5, 2
    s_lshl2_add_u32 s7, s4, s7
    s_and_b32 s8, s5, 3
    s_mov_b32 s28, 0""")
    srd(SW, WS_REC)
    a(f"""v_and_b32 v2, 15, v0
    v_lshrrev_b32 v3, 4, v0
    v_lshlrev_b32 v41, 5, v2
    v_lshl_add_u32 v41, v3, 4, v41
    s_cmp_eq_u32 s6, 0
    s_cbranch_scc1 L_WGT
    s_and_b32 s9, s3, 6
    s_cmp_eq_u32 s9, 4
    s_cbranch_scc0 L_ATT""")

    a("L_A1:")
    if P["prio"]: a("s_setprio 3")
    srd(SX, 1024); srd(SQ, 4 << 20)
    a(f"""s_bfe_u32 s9, s5, 0x10002
    s_xor_b32 s9, s9, s3
    s_and_b32 s9, s9, 1
    s_lshl1_add_u32 s29, s8, s9
    s_lshl_b32 s10, s29, 19
    s_lshl_b32 s11, s7, 8
    s_add_u32 s10, s10, s11
    s_lshl_b32 s11, s29, 7
    v_lshlrev_b32 v4, 4, v0
    v_lshlrev_b32 v5, 1, v0
    v_lshlrev_b32 v6, 17, v3
    v_lshl_add_u32 v6, v2, 4, v6
    s_movk_i32 s12, 0x2000
    s_waitcnt lgkmcnt(0)
    buffer_load_dwordx4 v[8:11], v4, {sr(SX)}, 0 offen {P['x_pol']}
    buffer_load_ushort v12, v5, {sr(SX)}, s11 offen {P['x_pol']}""")
    for t in range(16):
        a(f"buffer_load_dwordx4 {vr(64+4*t)}, v6, {sr(SQ)}, s10 offen nt")
        if t < 15: a("s_add_u32 s10, s10, s12")
    a("s_barrier")
    ep_load()
    stamp(1)
    delta_masks(32, 36)
    a(f"""v_mov_b32 v40, 0xff
    s_lshl3_add_u32 s10, s7, s29
    s_lshl_b32 s10, s10, 9
    s_add_u32 s10, s10, {QP}
    s_waitcnt vmcnt(16)""")
    stamp(2)
    ln_stats(8, 16, 24)
    a("v_lshlrev_b32 v12, 16, v12\nv_sub_f32 v12, v12, v24")
    rnd_bf16(12, 12)
    a("v_mul_f32 v12, v12, v25\nv_cvt_pk_bf16_f32 v12, v12, v12")
    for t in range(16):
        for dw in range(4):
            a(f"v_and_b32_dpp v{128+4*t+dw}, v12, v{32+dw} row_newbcast:{t} {DPPM}")
    a("s_waitcnt lgkmcnt(0)")
    tags(True)
    stamp(3)
    def delta_gemv16():
        for t in range(16):
            a(f"s_waitcnt vmcnt({15-t})")
            a(f"v_mfma_f32_16x16x32_bf16 v[44:47], {vr(128+4*t)}, {vr(64+4*t)}, {'0' if t == 0 else 'v[44:47]'}")
        for r in range(4):
            a(f"v_bfi_b32 v{44+r}, v40, s{sF+r}, v{44+r}")
        a(f"""s_mov_b32 exec_hi, 0
        buffer_store_dwordx4 v[44:47], v41, {sr(SW)}, s10 offen sc1
        s_mov_b64 exec, -1""")
    delta_gemv16()
    stamp(4)
    a("s_branch L_ATT_help2")
    a("""L_WGT:
    s_cmp_eq_u32 s3, 5
    s_cbranch_scc1 L_A2
    s_cmp_eq_u32 s3, 6
    s_cbranch_scc1 L_A2
    s_cmp_eq_u32 s3, 4
    s_cbranch_scc0 L_WGT_other""")
    a(f"""s_lshl_b32 s10, s7, 12
    s_add_u32 s10, s10, {QP}
    v_lshlrev_b32 v4, 4, v0
    s_waitcnt lgkmcnt(0)""")
    if P["pretouch"]:
        for u in range(4):
            a(f"buffer_load_dwordx4 {vr(64+4*u)}, v4, {sr(SW)}, s10 offen offset:{1024*u} sc1")
    ep_load()
    a(f"""v_lshrrev_b32 v5, 5, v0
    v_and_b32 v6, 31, v0
    v_lshlrev_b32 v5, 15, v5
    v_lshl_add_u32 v5, v6, 3, v5
    v_add_u32 v5, 32768, v5
    v_mov_b32 v40, 0xff
    s_waitcnt vmcnt(0) lgkmcnt(0)""")
    tags(False)
    stamp(1)
    a("L_qp_poll:")
    for u in range(4):
        a(f"buffer_load_dwordx4 {vr(64+4*u)}, v4, {sr(SW)}, s10 offen offset:{1024*u} sc1")
    a("s_waitcnt vmcnt(0)")
    stamp(2)
    check(13, 64, 16, sF, True)
    a("v_and_b32 v13, v40, v13\nv_cmp_ne_u32 vcc, 0, v13")
    for q in range(4):
        a(f"v_add_f32 v{64+q}, v{64+q}, v{68+q}\nv_add_f32 v{72+q}, v{72+q}, v{76+q}")
    spin("L_qp_poll", "s_cbranch_vccnz")
    for q in range(4):
        a(f"v_add_f32 v{64+q}, v{64+q}, v{72+q}\nv_mov_b32 v{68+q}, v{64+q}")
    for q in range(4):
        a(f"v_permlane32_swap_b32 v{68+q}, v{64+q}")
    for q in range(4):
        a(f"v_add_f32 v{64+q}, v{64+q}, v{68+q}")
    a("""v_cvt_pk_bf16_f32 v64, v64, v65
    v_cvt_pk_bf16_f32 v65, v66, v67
    ds_write_b64 v5, v[64:65]
    s_waitcnt lgkmcnt(0)""")
    stamp(5)
    a("s_barrier\ns_branch L_WO")

    a("L_A2:")
    srd(SK, 4 << 20)
    a(f"""s_sub_u32 s9, s3, 5
    s_lshl1_add_u32 s10, s8, s9
    s_lshl_b32 s13, s10, 7
    s_lshl_b32 s10, s10, 19
    s_lshl_b32 s11, s7, 8
    s_add_u32 s10, s10, s11
    s_lshl_b32 s12, s9, 14
    s_add_u32 s12, s12, {X}
    s_mov_b32 m0, s12
    v_lshlrev_b32 v4, 2, v3
    v_xor_b32 v4, v4, v2
    v_lshlrev_b32 v4, 4, v4
    v_lshl_add_u32 v32, v3, 13, v4
    v_xor_b32 v33, 16, v32
    v_xor_b32 v34, 32, v32
    v_xor_b32 v35, 48, v32
    s_mov_b32 s14, 0x8000
    s_waitcnt lgkmcnt(0)""")
    for rg in range(16):
        a(f"buffer_load_dwordx4 v{32+(rg&3)}, {sr(SK)}, s10 offen nt lds")
        if rg < 15: a("s_add_u32 m0, m0, 1024\ns_add_u32 s10, s10, s14")
    ep_load()
    stamp(1)
    a(f"""v_and_b32 v4, 3, v0
    v_bfe_u32 v5, v0, 2, 2
    v_lshl_or_b32 v6, v4, 2, v5
    v_xor_b32 v6, v6, v3
    v_lshlrev_b32 v6, 4, v6
    v_lshlrev_b32 v5, 10, v5
    v_lshl_add_u32 v5, v4, 8, v5
    v_add_u32 v5, s12, v5""")
    for t in range(4):
        a(f"v_xor_b32 v4, {64*t}, v6\nv_add_u32 v{10+t}, v5, v4")
    a(f"""s_add_u32 s11, s9, 1
    s_lshl_b32 s11, s11, 15
    v_lshl_add_u32 v5, v3, 4, s11
    s_lshl_b32 s10, s7, 10
    s_add_u32 s10, s10, s13
    s_add_u32 s10, s10, {QL}
    v_lshlrev_b32 v4, 1, v0
    v_cmp_eq_u32 s[14:15], 1, v3
    v_cmp_eq_u32 s[16:17], 2, v3
    v_cmp_eq_u32 s[18:19], 3, v3
    s_waitcnt lgkmcnt(0)""")
    tags(False)
    a(f"""v_bfe_u32 v7, v0, 1, 2
    v_add_u32 v7, s{sF}, v7
    v_and_b32 v8, 1, v0
    v_lshrrev_b32 v7, v8, v7
    v_and_b32 v7, 1, v7
    v_xor_b32 v8, 1, v7
    v_lshlrev_b32 v8, 16, v8""")
    for T in range(4):
        a(f"s_waitcnt vmcnt({12-4*T})")
        for t in range(4):
            a(f"ds_read_b128 {vr(64+16*T+4*t)}, v{10+t} offset:{4096*T}")
    a("s_waitcnt lgkmcnt(0)")
    stamp(2)
    a("s_barrier")
    for t in range(4):
        a(f"ds_read_b128 {vr(16+4*t)}, v5 offset:{64*t}")
    for t in range(4):
        a(f"s_waitcnt lgkmcnt({3-t})")
        for T in range(4):
            a(f"v_mfma_f32_16x16x32_bf16 {vr(32+4*T)}, {vr(16+4*t)}, {vr(64+16*T+4*t)}, {'0' if t == 0 else vr(32+4*T)}")
    qs = math.log2(math.e) / math.sqrt(128.0)
    a(f"""v_cndmask_b32 v9, v32, v36, s[14:15]
    v_cndmask_b32 v9, v9, v40, s[16:17]
    v_cndmask_b32 v9, v9, v44, s[18:19]
    v_mul_f32 v9, {f2u(qs)}, v9
    v_add_u32 v9, v9, v8
    v_lshrrev_b32 v9, 17, v9
    v_lshl_or_b32 v9, v9, 1, v7
    buffer_store_short v9, v4, {sr(SW)}, s10 offen sc1""")
    stamp(3)
    a("s_branch L_WO")

    a("L_ATT:")
    a(f"""s_lshl4_add_u32 s9, s4, s5
    s_cmp_ge_u32 s3, 4
    s_cbranch_scc1 L_ATT_help""")
    srd(SC, 16 << 20)
    a(f"""s_lshl2_add_u32 s10, s9, s3
    s_lshl_b32 s10, s10, 15
    s_lshl_b32 s11, s3, 13
    v_lshlrev_b32 v4, 2, v3
    v_xor_b32 v4, v4, v2
    v_lshlrev_b32 v4, 4, v4
    v_lshl_add_u32 v32, v3, 10, v4
    v_xor_b32 v33, 16, v32
    v_xor_b32 v34, 32, v32
    v_xor_b32 v35, 48, v32
    s_lshl_b32 s15, s3, 8
    s_add_u32 s10, s10, s15
    s_lshl_b32 s15, s3, 15
    s_add_u32 s15, s15, s11
    s_mov_b32 m0, s15
    s_waitcnt lgkmcnt(0)""")
    def rot_setup():
        for tau in range(3):
            a(f"s_cmp_eq_u32 s3, {3-tau}\ns_cselect_b32 s{36+tau}, -3, 1")
    ramp = P["c_ramp"]
    def tdepth(l): return [d for (k, d) in ramp if k <= l][-1]
    seq = []
    def c_load(n):
        cb, rg = n >> 3, n & 7
        a(f"buffer_load_dwordx4 v{32+(rg&3)}, {sr(SC)}, s10 offen nt lds")
        seq.append(n)
        if n < 31:
            if rg < 7: a("s_add_u32 m0, m0, 1024\ns_add_u32 s10, s10, 4096")
            else:
                a(f"""s_lshl_b32 s16, s{36+cb}, 15
                s_sub_u32 s16, s16, {7*1024}
                s_add_u32 m0, m0, s16
                s_lshl_b32 s16, s{36+cb}, 8
                s_sub_u32 s16, s16, {7*4096}
                s_add_u32 s10, s10, s16""")
        if n == P["q_at"]:
            a("ds_write_b32 v39, v2")
        if n == P["go_at"]:
            a(f"s_mov_b64 exec, 1\nbuffer_store_dwordx2 v[36:37], v38, {sr(SW)}, s14 offen sc1\ns_mov_b64 exec, -1")
            seq.append("go")
    def c_wait(n):
        a(f"s_waitcnt vmcnt({len(seq) - 1 - seq.index(n)})")
    issued = 0
    if tdepth(0) >= 8: rot_setup()
    for n in range(tdepth(0)): c_load(n); issued += 1
    if tdepth(0) < 8: rot_setup()
    a(f"""s_add_u32 s16, s11, {X}
    v_mov_b32 v39, s16
    v_mov_b32 v38, 0
    ds_write_b32 v39, v38
    s_waitcnt lgkmcnt(0)
    s_barrier""")
    ep_load()
    stamp(1)
    a(f"""v_and_b32 v4, 3, v0
    v_bfe_u32 v5, v0, 2, 2
    v_lshl_or_b32 v5, v4, 2, v5
    v_lshrrev_b32 v6, 5, v0
    v_xor_b32 v5, v5, v6
    v_lshlrev_b32 v5, 4, v5
    v_bfe_u32 v6, v0, 2, 3
    v_lshlrev_b32 v6, 10, v6
    v_lshl_add_u32 v6, v4, 8, v6
    v_add_u32 v6, s15, v6
    v_and_b32 v7, 31, v0
    v_lshlrev_b32 v7, 10, v7
    s_lshl_b32 s16, s3, 8
    s_add_u32 s16, s16, {X}
    v_add_u32 v7, s16, v7""")
    for x in range(8):
        a(f"v_xor_b32 v4, {32*x}, v5\nv_add_u32 v{8+x}, v6, v4\nv_add_u32 v{16+x}, v7, v4")
    a(f"""v_bfe_u32 v4, v0, 2, 2
    v_bfe_u32 v5, v0, 4, 1
    v_bfe_u32 v6, v0, 1, 1
    v_lshl_or_b32 v5, v5, 1, v6
    v_lshrrev_b32 v6, 5, v0
    v_xor_b32 v5, v5, v6
    v_lshl_or_b32 v5, v4, 2, v5
    v_lshlrev_b32 v5, 4, v5
    v_lshlrev_b32 v6, 10, v6
    v_lshl_add_u32 v6, v4, 8, v6
    v_and_b32 v4, 1, v0
    v_lshl_add_u32 v6, v4, 3, v6
    s_lshl_b32 s12, s3, 15
    v_add_u32 v6, s12, v6""")
    for n in range(4):
        for sec in range(2):
            a(f"v_xor_b32 v4, {64*n + 32*sec}, v5\nv_add_u32 v{24+2*n+sec}, v6, v4")
            if sec: a(f"v_add_u32 v{24+2*n+sec}, 2048, v{24+2*n+sec}")
    a(f"""v_and_b32 v4, 31, v0
    v_lshlrev_b32 v5, 5, v4
    v_add_u32 v96, {X+8192}, v5
    v_lshrrev_b32 v5, 5, v0
    s_lshl_b32 s13, s3, 3
    v_lshl_add_u32 v6, v5, 2, s13
    v_add_u32 v97, v96, v6
    v_lshlrev_b32 v6, 4, v0
    v_add_u32 v98, {X}, v6
    s_lshl_b32 s13, s3, 11
    v_add_u32 v99, s13, v98
    v_lshlrev_b32 v5, 19, v5
    v_lshl_add_u32 v3, v4, 2, v5
    s_lshl_b32 s13, s9, 8
    s_add_u32 s12, s12, s13
    s_add_u32 s12, s12, {BP}
    s_lshl_b32 s14, s9, 7
    s_add_u32 s14, s14, {GO}
    s_cmp_eq_u32 s3, 0
    s_cselect_b32 s14, s14, 0x7ffffff0
    s_waitcnt lgkmcnt(0)""")
    tags(False)
    a(f"""v_and_b32 v1, 3, v0
    v_add_u32 v1, s{sF}, v1
    v_and_b32 v1, 3, v1
    v_mul_u32_u24 v1, 0x8001, v1
    v_mov_b32 v2, 0x10001
    v_mov_b32 v36, s{sF}
    v_mov_b32 v37, s{sF}
    v_mov_b32 v38, 0""")
    landed = 0
    while issued < 32:
        c_wait(landed); landed += 1
        while issued < 32 and issued - landed < tdepth(landed):
            c_load(issued); issued += 1
    stamp(2)
    a("s_barrier")
    stamp(3)
    NB, AH = 8, 4
    def qk_read(t):
        sl = 128 + 8*(t % NB)
        if t % 8 == 0: c_wait(t + 7)
        if t % 8 == 0 and t < 24: a(f"s_lshl_b32 s16, s{36+(t>>3)}, 15\ns_lshl_b32 s17, s{36+(t>>3)}, 8")
        a(f"ds_read_b128 {vr(sl)}, v{8+(t&7)}")
        a(f"ds_read_b128 {vr(sl+4)}, v{16+(t&7)}")
        if t < 24: a(f"v_add_u32 v{8+(t&7)}, s16, v{8+(t&7)}\nv_add_u32 v{16+(t&7)}, s17, v{16+(t&7)}")
    rd = 0
    for t in range(32):
        lim = 24 if t < 24 else 32
        while rd < min(t + AH + 1, lim): qk_read(rd); rd += 1
        a(f"s_waitcnt lgkmcnt({2*(rd - t - 1)})")
        sl = 128 + 8*(t % NB)
        if t == 31:
            stamp(4)
            a("s_barrier")
        a(f"v_mfma_f32_32x32x16_bf16 {vr(64,16)}, {vr(sl)}, {vr(sl+4)}, {'0' if t == 0 else vr(64,16)}")
    def pv_read(half, kk, nn):
        n = 2*half + nn
        base = 128 + 64*(1-half) + 8*kk + 4*nn
        for sec in range(2):
            a(f"ds_read_b64_tr_b16 {vr(base+2*sec,2)}, v{24+2*n+sec} offset:{4096*kk}")
    pvq = [(kk, nn) for kk in range(8) for nn in range(2)]
    for _ in range(5): pv_read(0, *pvq.pop(0))
    a(f"""v_max3_f32 v4, v64, v65, v66
    v_max3_f32 v5, v67, v68, v69
    v_max3_f32 v6, v70, v71, v72
    v_max3_f32 v7, v73, v74, v75
    v_max3_f32 v4, v4, v76, v77
    v_max3_f32 v5, v5, v78, v79
    v_max3_f32 v4, v4, v5, v6
    v_max_f32 v4, v4, v7
    ds_write_b32 v97, v4
    s_waitcnt lgkmcnt(0)
    s_barrier
    ds_read_b128 v[80:83], v96
    ds_read_b128 v[84:87], v96 offset:16""")
    for _ in range(6): pv_read(0, *pvq.pop(0))
    a(f"""s_waitcnt lgkmcnt(12)
    v_max3_f32 v4, v80, v81, v82
    v_max3_f32 v5, v83, v84, v85
    v_max3_f32 v4, v4, v86, v87
    v_max_f32 v20, v4, v5""")
    for r in range(0, 16, 2):
        a(f"v_pk_add_f32 {vr(64+r,2)}, {vr(64+r,2)}, v[20:21] op_sel_hi:[1,0] neg_lo:[0,1] neg_hi:[0,1]")
    for r in range(16):
        a(f"v_exp_f32 v{64+r}, v{64+r}")
        if r >= 3 and r & 1: a(f"v_cvt_pk_bf16_f32 v{88+(r-3)//2}, v{64+r-3}, v{64+r-2}")
        if r == 9: a("ds_write_b128 v99, v[88:91]")
    a("v_cvt_pk_bf16_f32 v95, v78, v79\nds_write_b128 v99, v[92:95] offset:1024")
    a("s_waitcnt lgkmcnt(0)")
    stamp(5)
    a("s_barrier")
    for kk in range(8): a(f"ds_read_b128 {vr(32+4*kk)}, v98 offset:{1024*kk}")
    lq = [("P", kk) for kk in range(8)]
    def lread(half, kk, nn):
        pv_read(half, kk, nn); lq.extend([("F", half, kk, nn)]*2)
    def lwait(items):
        last = max([i for i, x in enumerate(lq) if x in items], default=-1)
        a(f"s_waitcnt lgkmcnt({min(15, len(lq) - 1 - last)})")
    rest0 = list(pvq)
    def pv_store(half, r):
        head = (r & 3) + 8*(r >> 2)
        t0, t1 = 64 + 32*half + r, 80 + 32*half + r
        a(f"""v_cvt_pk_bf16_f32 v{t0}, v{t0}, v{t1}
        v_bfi_b32 v{t0}, v2, v1, v{t0}
        s_add_u32 s13, s12, {head*131072}
        buffer_store_dword v{t0}, v3, {sr(SW)}, s13 offen offset:{128*half} sc1""")
    todo = [(0,) + x for x in rest0] + [(1, kk, nn) for kk in range(8) for nn in range(2)]
    for half in range(2):
        for kk in range(8):
            for nn in range(2):
                lwait([("P", kk), ("F", half, kk, nn)])
                fb = 128 + 64*(1-half) + 8*kk + 4*nn
                acc = 64 + 32*half + 16*nn
                a(f"v_mfma_f32_32x32x16_bf16 {vr(acc,16)}, {vr(32+4*kk)}, {vr(fb)}, {'0' if kk == 0 else vr(acc,16)}")
                for _ in range(2 if half == 0 and kk < 3 else 1):
                    if todo: lread(*todo.pop(0))
                if half == 1 and (kk or nn): pv_store(0, 2*kk + nn - 1)
    pv_store(0, 15)
    stamp(6)
    for r in range(16): pv_store(1, r)
    stamp(7)
    if diag:
        a("s_waitcnt vmcnt(0)"); stamp(8)
    a("s_branch L_exit")

    a("L_ATT_help:")
    a("s_waitcnt lgkmcnt(0)")
    ep_load()
    if P["prefetch"]:
        a(f"""s_cmp_lg_u32 s3, 7
        s_cbranch_scc1 L_nopf
        s_cmp_lg_u32 s5, 0
        s_cbranch_scc1 L_nopf
        s_getpc_b64 s[10:11]
        L_pc:
        s_sub_u32 s10, s10, L_pc - {KNAME}
        s_subb_u32 s11, s11, 0
        v_lshlrev_b32 v4, 7, v0
        v_add_u32 v5, 8192, v4
        v_add_u32 v6, 16384, v4
        v_min_u32 v6, L_codeend - {KNAME} - 4, v6
        global_load_dword v200, v4, s[10:11]
        global_load_dword v201, v5, s[10:11]
        global_load_dword v202, v6, s[10:11]
        L_nopf:""")
    a("s_barrier")
    a("s_waitcnt lgkmcnt(0)")
    tags(True)
    a("L_ATT_help2:")
    a(f"""s_lshl4_add_u32 s9, s4, s5
    s_sub_u32 s10, s3, 4
    s_lshl_b32 s11, s10, 13
    s_add_u32 s12, s11, {QL}
    s_add_u32 s13, s11, {X}
    s_and_b32 s14, s10, 1
    s_lshl_b32 s14, s14, 5
    v_lshlrev_b32 v4, 4, v0
    v_add_u32 v5, s13, v4
    v_xor_b32 v4, s14, v4
    v_mov_b32 v6, 0x10001
    s_movk_i32 s16, 0xff""")
    for r in range(8):
        f = ((r & 3) << 2) | (r >> 2)
        a(f"v_xor_b32 v{8+r}, {16*f}, v4")
    nh = P["qhint"]
    shint("L_qhint", hint_offs(nh, 9, 63, 7, 12, 64//max(nh,1) + 1), 'b')
    if P["q_at"] is not None:
        a(f"""v_mov_b32 v16, s13
        L_qtrig:
        ds_read_b32 v17, v16
        s_waitcnt lgkmcnt(0)
        v_cmp_eq_u32 vcc, 0, v17
        s_sleep 1""")
        a("s_add_u32 s28, s28, 0x10000\ns_cbranch_scc1 L_exit\ns_cbranch_vccnz L_qtrig\ns_and_b32 s28, s28, 0xffff")
    stamp(5)
    a("L_qfetch:")
    for r in range(8):
        a(f"""s_bitcmp1_b32 s16, {r}
        s_cbranch_scc0 L_qs{r}
        s_add_u32 m0, s13, {1024*r}
        s_add_u32 s15, s12, {1024*r}
        buffer_load_dwordx4 v{8+r}, {sr(SW)}, s15 offen sc1 lds
        L_qs{r}:""")
    a("s_waitcnt vmcnt(0)")
    for r in range(8):
        a(f"ds_read_b128 {vr(64+4*r)}, v5 offset:{1024*r}")
    a("s_mov_b32 s16, 0")
    for r in range(8):
        a(f"s_waitcnt lgkmcnt({7-r})")
        check(7, 64+4*r, 4, sB, True)
        a(f"v_and_b32 v7, v6, v7\nv_cmp_ne_u32 vcc, 0, v7\ns_cmp_lg_u64 vcc, 0\ns_cselect_b32 s17, {1<<r}, 0\ns_or_b32 s16, s16, s17")
    spin("L_qfetch", "s_cbranch_scc1", "s_cmp_lg_u32 s16, 0")
    stamp(6)
    a("""s_setprio 0
    s_cmp_eq_u32 s3, 4
    s_cbranch_scc1 L_MLP1
    s_cmp_eq_u32 s3, 5
    s_cbranch_scc1 L_MLP2
    s_cmp_eq_u32 s3, 6
    s_cbranch_scc1 L_FIN""")
    a(f"""v_and_b32 v4, 31, v0
    v_lshlrev_b32 v5, 5, v4
    v_add_u32 v5, {X+8192}, v5
    v_lshlrev_b32 v6, 4, v0
    v_add_u32 v7, {X}, v6
    v_mov_b32 v17, s{sF}
    v_mov_b32 v19, s{sF}
    v_mov_b32 v8, 0x3f803f80
    s_lshl_b32 s12, s9, 9
    s_add_u32 s12, s12, {ST}
    s_barrier
    s_barrier
    s_barrier
    ds_read_b128 v[80:83], v5
    ds_read_b128 v[84:87], v5 offset:16
    s_waitcnt lgkmcnt(0)
    v_max3_f32 v4, v80, v81, v82
    v_max3_f32 v5, v83, v84, v85
    v_max3_f32 v4, v4, v86, v87
    v_max_f32 v16, v4, v5
    s_barrier""")
    for kk in range(8): a(f"ds_read_b128 {vr(32+4*kk)}, v7 offset:{1024*kk}")
    for kk in range(8):
        a(f"s_waitcnt lgkmcnt({7-kk})")
        for q in range(4):
            a(f"v_dot2_f32_bf16 v{20+q}, v{32+4*kk+q}, v8, {'0' if kk == 0 else f'v{20+q}'}")
    a(f"""s_nop 2
    v_add_f32 v20, v20, v21
    v_add_f32 v22, v22, v23
    v_add_f32 v18, v20, v22
    v_mov_b32 v4, v18
    v_permlane32_swap_b32 v4, v18
    v_add_f32 v18, v18, v4
    s_mov_b32 exec_hi, 0
    buffer_store_dwordx4 v[16:19], v6, {sr(SW)}, s12 offen sc1
    s_mov_b64 exec, -1""")
    stamp(7)
    a("s_branch L_exit")

    a("L_FIN:")
    a(f"""s_barrier
    s_cmp_lt_u32 s5, 12
    s_cbranch_scc1 L_exit
    s_barrier
    s_barrier
    s_barrier
    s_load_dwordx2 s[{SC}:{SC+1}], s[0:1], 80
    s_load_dwordx2 s[{SQ}:{SQ+1}], s[0:1], 88
    s_sub_u32 s10, s5, 12
    s_lshl2_add_u32 s10, s4, s10
    s_lshl_b32 s11, s10, 6
    s_lshl_b32 s16, s10, 5
    v_lshrrev_b32 v4, 2, v0
    v_and_b32 v5, 3, v0
    v_lshlrev_b32 v4, 11, v4
    v_lshl_add_u32 v4, v5, 4, v4
    v_lshlrev_b32 v5, 3, v5
    v_mov_b32 v6, 0xff""")
    srd(SX, 1024); srd(SC, 1024); srd(SQ, 1024)
    a(f"""s_waitcnt lgkmcnt(0)
    buffer_load_dwordx2 v[8:9], v5, {sr(SX)}, s16 offen
    buffer_load_dwordx2 v[10:11], v5, {sr(SC)}, s16 offen""")
    def fin_gather(label, first, n, dst):
        a(f"s_add_u32 s13, s11, {DP + first*2048}\ns_mul_i32 s14, s10, 3")
        shint(label + "_h", hint_offs(P["fhint"], 14, 63, 11, 13, 29), 'f')
        a(f"{label}:\ns_mov_b32 s12, s13")
        for x in range(n):
            a(f"buffer_load_dwordx4 {vr(64+4*x)}, v4, {sr(SW)}, s12 offen sc1")
            if x < n-1: a("s_add_u32 s12, s12, 0x8000")
        for x in range(n):
            a(f"s_waitcnt vmcnt({n-1-x})")
            check(7, 64+4*x, 4, sF, x == 0)
            if x == 1:
                for q in range(0, 4, 2): a(f"v_pk_add_f32 {vr(dst+q,2)}, {vr(64+q,2)}, {vr(68+q,2)}")
            elif x > 1:
                for q in range(0, 4, 2): a(f"v_pk_add_f32 {vr(dst+q,2)}, {vr(dst+q,2)}, {vr(64+4*x+q,2)}")
        a("v_and_b32 v7, v6, v7\nv_cmp_ne_u32 vcc, 0, v7")
        spin(label, "s_cbranch_vccnz")
        for r in (4, 8):
            for q in range(4): a(f"v_add_f32_dpp v{dst+q}, v{dst+q}, v{dst+q} row_ror:{r} {DPPM}")
        for sw in ("v_permlane16_swap_b32", "v_permlane32_swap_b32"):
            for q in range(4): a(f"v_mov_b32 v{64+q}, v{dst+q}")
            for q in range(4): a(f"{sw} v{64+q}, v{dst+q}")
            for q in range(0, 4, 2): a(f"v_pk_add_f32 {vr(dst+q,2)}, {vr(dst+q,2)}, {vr(64+q,2)}")
    def round4(d):
        a(f"v_cvt_pk_bf16_f32 v12, v{d}, v{d+1}\nv_cvt_pk_bf16_f32 v13, v{d+2}, v{d+3}")
        unpack2(d, 12); unpack2(d+2, 13)
    fin_gather("L_fin_mlp", 128, 7, 16)
    stamp(7)
    round4(16)
    unpack2(20, 10); unpack2(22, 11); unpack2(24, 8); unpack2(26, 9)
    for q in range(0, 4, 2): a(f"v_pk_add_f32 {vr(16+q,2)}, {vr(16+q,2)}, {vr(20+q,2)}")
    round4(16)
    fin_gather("L_fin_att", 0, 8, 20)
    stamp(8)
    round4(20)
    for q in range(0, 4, 2): a(f"v_pk_add_f32 {vr(20+q,2)}, {vr(20+q,2)}, {vr(24+q,2)}")
    round4(20)
    for q in range(0, 4, 2): a(f"v_pk_add_f32 {vr(20+q,2)}, {vr(20+q,2)}, {vr(16+q,2)}")
    a(f"""v_cvt_pk_bf16_f32 v12, v20, v21
    v_cvt_pk_bf16_f32 v13, v22, v23
    s_mov_b64 exec, 15
    buffer_store_dwordx2 v[12:13], v5, {sr(SQ)}, s16 offen {P['out_pol']}
    s_cmp_lg_u32 s10, 0
    s_cbranch_scc1 L_fin_done
    s_mov_b64 exec, 1
    v_mov_b32 v14, s{sF}
    buffer_store_dword v14, v5, {sr(SW)}, 0 offen offset:{EP} {P['out_pol']}
    L_fin_done:
    s_mov_b64 exec, -1""")
    if diag:
        a("s_waitcnt vmcnt(0)"); stamp(9)
    a("s_branch L_exit")

    late = "s_barrier\ns_barrier\ns_barrier"
    a("L_MLP1:")
    a(f"""s_load_dwordx2 s[{SC}:{SC+1}], s[0:1], 56
    s_lshr_b32 s10, s5, 3
    s_lshl1_add_u32 s10, s4, s10
    s_mul_i32 s11, s29, {64*3584}
    s_lshl_b32 s12, s10, 8
    s_add_u32 s11, s11, s12
    v_mul_u32_u24 v6, {16*3584}, v3
    v_lshl_add_u32 v6, v2, 4, v6
    s_movk_i32 s12, 3584""")
    srd(SC, 512*1792*2)
    a(f"""s_barrier
    s_cmp_ge_u32 s10, 14
    s_cbranch_scc1 L_exit
    s_waitcnt lgkmcnt(0)""")
    if P["mlp_late"]: a(late)
    for t in range(16):
        a(f"buffer_load_dwordx4 {vr(64+4*t)}, v6, {sr(SC)}, s11 offen nt")
        if t < 15: a("s_add_u32 s11, s11, s12")
    a(f"""s_lshl3_add_u32 s10, s10, s29
    s_lshl_b32 s10, s10, 9
    s_add_u32 s10, s10, {HP}""")
    if not P["mlp_late"]: a(late)
    delta_gemv16()
    stamp(7)
    a("s_branch L_exit")

    a("L_MLP2:")
    a(f"""s_load_dwordx2 s[{SQ}:{SQ+1}], s[0:1], 72
    s_load_dwordx2 s[{SK}:{SK+1}], s[0:1], 64
    s_mul_i32 s10, s4, 14
    s_add_u32 s10, s10, s5
    s_lshl_b32 s11, s10, 5
    s_lshl_b32 s12, s10, 14
    v_lshlrev_b32 v5, 12, v3
    v_lshl_add_u32 v5, v2, 4, v5
    v_lshlrev_b32 v7, 3, v3""")
    srd(SQ, 1792*512*2); srd(SK, 1792*2)
    a(f"""s_barrier
    s_cmp_ge_u32 s5, 14
    s_cbranch_scc1 L_exit
    s_waitcnt lgkmcnt(0)""")
    if P["mlp_late"]: a(late)
    a(f"buffer_load_dwordx2 v[12:13], v7, {sr(SK)}, s11 offen")
    for rq in range(4):
        for cb in range(4):
            a(f"buffer_load_dwordx4 {vr(192+16*rq+4*cb)}, v5, {sr(SQ)}, s12 offen offset:{1024*rq + 256*cb} nt")
    delta_masks(32, 36)
    a(f"""s_lshr_b32 s13, s10, 3
    s_lshl_b32 s13, s13, 12
    s_and_b32 s14, s10, 7
    s_lshl_b32 s14, s14, 6
    s_add_u32 s13, s13, s14
    s_add_u32 s13, s13, {HP}
    v_and_b32 v6, 7, v0
    v_lshlrev_b32 v6, 9, v6
    v_lshl_add_u32 v6, v3, 4, v6
    v_mov_b32 v40, 0xff
    s_lshl_b32 s12, s10, 11
    s_add_u32 s12, s12, {DP + 128*2048}""")
    if not P["mlp_late"]: a(late)
    shint("L_hhint", hint_offs(P["hhint"], 10, 7, 9, 13, 3), 'f')
    a(f"""L_hp_poll:
    buffer_load_dwordx4 v[16:19], v6, {sr(SW)}, s13 offen sc1
    s_waitcnt vmcnt(0)""")
    check(7, 16, 4, sF, True)
    a("v_and_b32 v7, v40, v7\nv_cmp_ne_u32 vcc, 0, v7")
    spin("L_hp_poll", "s_cbranch_vccnz")
    for r in (1, 2, 4):
        for q in range(4): a(f"v_add_f32_dpp v{16+q}, v{16+q}, v{16+q} row_ror:{r} {DPPM}")
    a("v_cvt_pk_bf16_f32 v14, v16, v17\nv_cvt_pk_bf16_f32 v15, v18, v19")
    unpack2(16, 14); unpack2(18, 15); unpack2(20, 12); unpack2(22, 13)
    for q in range(4): a(f"v_add_f32 v{16+q}, v{16+q}, v{20+q}")
    for q in range(4): rnd_bf16(16+q, 16+q)
    for q in range(4): a(f"v_max_f32 v{16+q}, 0, v{16+q}\nv_mul_f32 v{16+q}, v{16+q}, v{16+q}\nv_cvt_pk_bf16_f32 v{16+q}, v{16+q}, v{16+q}")
    for rq in range(4):
        for dw in range(4):
            a(f"v_and_b32 v{64+4*rq+dw}, v{16+rq}, v{32+dw}")
    for rq in range(4):
        for cb in range(4):
            a(f"v_mfma_f32_16x16x32_bf16 {vr(96+4*cb)}, {vr(64+4*rq)}, {vr(192+16*rq+4*cb)}, {'0' if rq == 0 else vr(96+4*cb)}")
    for cb in range(4):
        for r in range(4): a(f"v_bfi_b32 v{96+4*cb+r}, v40, s{sF+r}, v{96+4*cb+r}")
    a("s_mov_b32 exec_hi, 0")
    for cb in range(4):
        a(f"buffer_store_dwordx4 {vr(96+4*cb)}, v41, {sr(SW)}, s12 offen offset:{512*cb} sc1")
    a("s_mov_b64 exec, -1")
    stamp(7)
    a("s_branch L_exit")

    a("L_WGT_other:")
    a("s_waitcnt lgkmcnt(0)")
    ep_load()
    a(f"""s_load_dwordx2 s[{SG}:{SG+1}], s[0:1], 32
    s_cmp_eq_u32 s3, 7
    s_cbranch_scc0 L_S1
    s_waitcnt lgkmcnt(0)""")
    tags(False)
    a("s_barrier\ns_branch L_WO")
    a("L_S1:")
    srd(SG, 4 << 20)
    delta_masks(32, 36)
    a(f"""v_lshrrev_b32 v5, 5, v0
    v_bfe_u32 v6, v0, 2, 1
    v_bfe_u32 v7, v0, 3, 2
    v_lshl_add_u32 v7, v6, 5, v7
    v_lshl_add_u32 v7, v5, 2, v7
    v_lshlrev_b32 v7, 13, v7
    v_and_b32 v6, 3, v0
    v_lshlrev_b32 v5, 1, v5
    v_xor_b32 v6, v6, v5
    v_lshl_add_u32 v4, v6, 4, v7
    s_lshl_b32 s10, s8, 20
    s_lshl_b32 s11, s7, 8
    s_add_u32 s10, s10, s11
    s_lshl_b32 s11, s3, 6
    s_add_u32 s10, s10, s11
    s_lshl_b32 s11, s3, 13
    s_add_u32 s11, s11, {X}""")
    a(f"""v_bfe_u32 v5, v0, 2, 2
    v_lshl_add_u32 v5, v3, 3, v5
    v_lshlrev_b32 v5, 6, v5
    v_and_b32 v6, 1, v0
    v_lshl_add_u32 v5, v6, 3, v5
    v_add_u32 v5, s11, v5
    v_bfe_u32 v6, v0, 1, 1
    v_bfe_u32 v7, v0, 4, 1
    v_lshl_or_b32 v6, v7, 1, v6
    v_lshl_add_u32 v8, v6, 4, v5
    v_xor_b32 v9, 32, v8""")
    a(f"""v_and_b32 v5, 7, v0
    v_lshl_add_u32 v5, v5, 2, v3
    v_lshlrev_b32 v10, 9, v5
    v_lshlrev_b32 v11, 4, v0
    v_lshlrev_b32 v5, 4, v2
    v_lshl_add_u32 v5, v3, 3, v5
    s_lshl_b32 s12, s3, 6
    s_add_u32 s13, s12, s11
    v_add_u32 v12, s13, v5
    v_and_b32 v5, 3, v0
    v_mul_u32_u24 v5, {8192+64}, v5
    v_lshl_add_u32 v5, v3, 4, v5
    v_add_u32 v13, {X}, v5
    v_and_b32 v5, 31, v0
    s_add_u32 s13, s12, {X+2048}
    v_lshl_add_u32 v14, v5, 1, s13
    v_mov_b32 v15, s11
    v_mov_b32 v31, {X}
    v_mov_b32 v30, 0x10001
    v_bfe_u32 v5, v0, 4, 1
    v_cmp_eq_u32 s[18:19], 1, v5
    s_mov_b32 m0, s11
    s_lshl4_add_u32 s30, s4, s5
    s_lshl_b32 s30, s30, 7
    s_add_u32 s30, s30, {GO}
    s_waitcnt lgkmcnt(0)""")
    tags(True)
    a("s_barrier\ns_barrier")
    if P["go_at"] is not None:
        a("s_cmp_lg_u32 s3, 0\ns_cbranch_scc1 L_go_done")
        shint("L_go", [30], 't')
        a("L_go_done:\ns_barrier")
    stamp(1)
    for q in range(8):
        if q >= P["wuv_depth"]: a(f"s_waitcnt vmcnt({P['wuv_depth']-1})")
        a(f"buffer_load_dwordx4 v4, {sr(SG)}, s10 offen nt lds")
        if q < 7:
            step = 8*8192 if (q & 3) < 3 else (64 - 24)*8192
            a(f"s_add_u32 m0, m0, 1024\ns_add_u32 s10, s10, {step}")
    a(f"""s_lshl_b32 s12, s3, 13
    s_lshl2_add_u32 s16, s7, s8
    s_lshl_b32 s13, s16, 15
    s_add_u32 s13, s13, s12
    s_add_u32 s13, s13, {BP}
    s_lshl_b32 s12, s12, 1
    s_lshl4_add_u32 s12, s7, s12
    s_add_u32 s12, s12, {ST}
    s_waitcnt vmcnt(0)""")
    for n in range(2):
        for t in range(4):
            for sec in range(2):
                a(f"ds_read_b64_tr_b16 {vr(160+16*n+4*t+2*sec,2)}, v{8+n} offset:{2048*t + 256*sec}")
    a("s_waitcnt lgkmcnt(0)")
    stamp(2)
    nh = P["bhint"]
    for x in range(nh): a(f"s_add_u32 s{30+x}, s13, {(32*x//nh + 3)*256 + 128}")
    shint("L_bhint", [30+x for x in range(nh)], 'b')
    stamp(3)
    a("s_add_u32 s14, s13, 4096\nL_bfetch:")
    a(f"buffer_load_dwordx4 v[16:19], v10, {sr(SW)}, s12 offen sc1")
    for t in range(8):
        a(f"buffer_load_dwordx4 {vr(64+4*t)}, v11, {sr(SW)}, s{13 + (t>>2)} offen offset:{1024*(t&3)} sc1")
    a(f"""s_waitcnt vmcnt(8)""")
    stamp(4)
    a(f"""v_xor_b32 v17, s{sF}, v17
    v_bitop3_b32 v17, v17, v19, s{sF} bitop3:0xf6
    v_mov_b32 v24, v16""")
    allreduce("v_max_f32", 24, 20)
    a("""v_sub_f32 v16, v16, v24
    v_exp_f32 v16, v16
    v_cvt_pk_bf16_f32 v16, v16, v16""")
    for t in range(8):
        for dw in range(4):
            a(f"v_and_b32_dpp v{128+4*t+dw}, v16, v{32+dw} row_newbcast:{t} {DPPM}")
    a("v_and_b32 v25, 0xffff0000, v16\nv_mul_f32 v25, v25, v18")
    allreduce("v_add_f32", 25, 20)
    a("v_mul_f32 v25, 0.5, v25\nds_write_b64 v15, v[24:25] offset:1024")
    stamp(5)
    for t in range(8):
        a(f"s_waitcnt vmcnt({7-t})")
        a(f"v_mfma_f32_16x16x32_bf16 v[40:43], {vr(128+4*t)}, {vr(64+4*t)}, {'0' if t == 0 else 'v[40:43]'}")
        check(7, 64+4*t, 4, sB, t == 0)
    a("v_and_or_b32 v7, v30, v7, v17\nv_cmp_ne_u32 vcc, 0, v7")
    spin("L_bfetch", "s_cbranch_vccnz")
    stamp(6)
    a("""v_cvt_pk_bf16_f32 v44, v40, v41
    v_cvt_pk_bf16_f32 v45, v42, v43
    s_mov_b32 exec_hi, 0
    ds_write_b64 v12, v[44:45]
    s_mov_b64 exec, -1
    s_waitcnt lgkmcnt(0)
    s_barrier""")
    for u in range(4): a(f"ds_read_b64 {vr(80+2*u,2)}, v31 offset:{8192*u + 1024}")
    for t in range(4): a(f"ds_read_b128 {vr(64+4*t)}, v13 offset:{64*t}")
    sm = """v_max3_f32 v4, v80, v82, v84
    v_max_f32 v4, v4, v86
    v_sub_f32 v80, v80, v4
    v_sub_f32 v82, v82, v4
    v_sub_f32 v84, v84, v4
    v_sub_f32 v86, v86, v4
    v_exp_f32 v80, v80
    v_exp_f32 v82, v82
    v_exp_f32 v84, v84
    v_exp_f32 v86, v86
    v_mul_f32 v5, v80, v81
    v_fmac_f32 v5, v82, v83
    v_fmac_f32 v5, v84, v85
    v_fmac_f32 v5, v86, v87
    v_rcp_f32 v5, v5""".split("\n")
    for t in range(4):
        a(f"s_waitcnt lgkmcnt({3-t})")
        for n in range(2):
            a(f"v_mfma_f32_16x16x32_bf16 {vr(40+4*n)}, {vr(64+4*t)}, {vr(160+16*n+4*t)}, {'0' if t == 0 else vr(40+4*n)}")
            a(sm.pop(0))
    for l in sm: a(l)
    for r in range(4): a(f"v_cndmask_b32 v{40+r}, v{40+r}, v{44+r}, s[18:19]")
    a("""v_mul_f32 v6, v40, v80
    v_fmac_f32 v6, v41, v82
    v_fmac_f32 v6, v42, v84
    v_fmac_f32 v6, v43, v86
    v_mul_f32 v6, v6, v5
    v_cvt_pk_bf16_f32 v6, v6, v6
    ds_write_b16 v14, v6
    s_waitcnt lgkmcnt(0)""")
    stamp(7)
    a("s_barrier\ns_branch L_exit")

    a("L_WO:")
    a(f"s_load_dwordx2 s[{SG}:{SG+1}], s[0:1], 40\ns_setprio 0\ns_barrier")
    srd(SG, 4 << 20)
    a(f"""s_sub_u32 s9, s3, 4
    s_lshl_b32 s10, s7, 17
    s_lshl_b32 s11, s9, 8
    s_add_u32 s10, s10, s11
    s_lshl_b32 s11, s9, 15
    v_lshlrev_b32 v4, 2, v3
    v_xor_b32 v4, v4, v2
    v_lshlrev_b32 v4, 4, v4
    v_lshl_add_u32 v4, v3, 10, v4
    v_xor_b32 v5, 32, v4
    s_mov_b32 m0, s11""")
    a(f"""v_bfe_u32 v6, v0, 2, 2
    v_bfe_u32 v7, v0, 4, 1
    v_bfe_u32 v16, v0, 1, 1
    v_lshl_or_b32 v7, v7, 1, v16
    v_lshl_or_b32 v7, v6, 2, v7
    v_lshlrev_b32 v7, 4, v7
    v_lshlrev_b32 v6, 8, v6
    v_lshl_add_u32 v6, v3, 11, v6
    v_and_b32 v16, 1, v0
    v_lshl_add_u32 v6, v16, 3, v6
    v_add_u32 v6, s11, v6""")
    for n in range(8):
        a(f"v_xor_b32 v16, {32*n}, v7\nv_add_u32 v{8+n}, v6, v16")
    a(f"""v_lshlrev_b32 v16, 4, v3
    v_add_u32 v16, {X+2048}, v16
    v_lshlrev_b32 v17, 6, v2
    v_lshl_add_u32 v17, v3, 4, v17
    v_mov_b32 v18, 0xff
    s_lshl2_add_u32 s12, s7, s8
    s_lshl_b32 s12, s12, 11
    s_lshl_b32 s13, s9, 9
    s_add_u32 s12, s12, s13
    s_add_u32 s12, s12, {DP}""")
    for n in range(1, 8):
        a(f"s_mov_b32 s{40+2*n}, {0x01010101 << n}\ns_mov_b32 s{41+2*n}, {0x01010101 << n}")
    a("s_waitcnt lgkmcnt(0)")
    def wo_read(t):
        for n in range(8):
            for sec in range(2):
                a(f"ds_read_b64_tr_b16 {vr(128+32*t+4*n+2*sec,2)}, v{8+n} offset:{8192*t + 1024*sec}")
    nxt = 0
    for rg in range(32):
        if rg == P["wo_early"] and P["go_at"] is not None: a("s_barrier")
        wd = P["wo_edepth"] if rg < P["wo_early"] else P["wo_depth"]
        if rg >= wd:
            a(f"s_waitcnt vmcnt({wd-1})")
            landed = rg - wd + 1
            if landed >= 8*(nxt+1): wo_read(nxt); nxt += 1
        a(f"buffer_load_dwordx4 v{4+((rg>>1)&1)}, {sr(SG)}, s10 offen {P['wo_pol']} lds")
        if rg < 31: a("s_add_u32 m0, m0, 1024\ns_add_u32 s10, s10, 4096")
    while nxt < 4:
        a(f"s_waitcnt vmcnt({24 - 8*nxt})")
        wo_read(nxt); nxt += 1
    stamp(6)
    a("s_barrier\ns_barrier")
    stamp(7)
    for t in range(4): a(f"ds_read_b128 {vr(20+4*t)}, v16 offset:{64*t}")
    a("s_waitcnt lgkmcnt(0)")
    for n in range(8):
        for t in range(4):
            a(f"v_mfma_f32_16x16x32_bf16 {vr(64+4*n)}, {vr(128+32*t+4*n)}, {vr(20+4*t)}, {'0' if t == 0 else vr(64+4*n)}")
            if n >= 3:
                m = n - 2
                a(f"v_cndmask_b32 v{64+t}, v{64+t}, v{64+4*m+t}, s[{40+2*m}:{41+2*m}]")
    for m in (6, 7):
        for t in range(4): a(f"v_cndmask_b32 v{64+t}, v{64+t}, v{64+4*m+t}, s[{40+2*m}:{41+2*m}]")
    for r in range(4): a(f"v_bfi_b32 v{64+r}, v18, s{sF+r}, v{64+r}")
    a(f"""s_mov_b32 exec_lo, 0x00ff00ff
    s_mov_b32 exec_hi, 0x00ff00ff
    buffer_store_dwordx4 v[64:67], v17, {sr(SW)}, s12 offen sc1
    s_mov_b64 exec, -1""")
    stamp(8)
    if diag:
        a("s_waitcnt vmcnt(0)"); stamp(9)

    a("L_exit:")
    if diag:
        a(f"""s_mov_b64 exec, -1
        s_waitcnt lgkmcnt(0)
        s_lshl3_add_u32 s10, s2, s3
        s_lshl_b32 s10, s10, 7
        s_add_u32 s10, s10, {STAMP}
        v_mov_b32 v4, 0""")
        for k in range(10):
            a(f"v_mov_b32 v5, s{80+2*k}\nbuffer_store_dword v5, v4, {sr(SW)}, s10 offen offset:{4*k}")
        a(f"v_mov_b32 v5, s28\nbuffer_store_dword v5, v4, {sr(SW)}, s10 offen offset:40")
        a(f"s_getreg_b32 s11, hwreg(HW_REG_XCC_ID)\nv_mov_b32 v5, s11\nbuffer_store_dword v5, v4, {sr(SW)}, s10 offen offset:44")
        a(f"s_getreg_b32 s11, hwreg(HW_REG_HW_ID)\nv_mov_b32 v5, s11\nbuffer_store_dword v5, v4, {sr(SW)}, s10 offen offset:48")
    a("L_end:\ns_endpgm\nL_codeend:")

    lines = a.lines
    if diag:
        pre = [f"s_mov_b32 s{80+2*k}, 0" for k in range(1, 10)]
        lines = lines[:1] + pre + lines[1:]
    lines, nins = insert_waits(lines)
    b = Asm(); b.lines = lines
    head = f"""; fused MLA decode attention (absorbed form) + squared-relu MLP, one persistent launch, 256 workgroups
; @launch grid=(256,1,1) block=(512,1,1) lds=163840
.amdgcn_target "amdgcn-amd-amdhsa--gfx950"
.text
.globl {KNAME}
.p2align 8
.type {KNAME},@function
{KNAME}:
"""
    foot = f"""
.section .rodata,"a"
.p2align 6
.amdhsa_kernel {KNAME}
  .amdhsa_next_free_vgpr 256
  .amdhsa_next_free_sgpr 102
  .amdhsa_accum_offset 256
  .amdhsa_group_segment_fixed_size 0
  .amdhsa_kernarg_size 112
  .amdhsa_user_sgpr_count 2
  .amdhsa_user_sgpr_kernarg_segment_ptr 1
  .amdhsa_system_sgpr_workgroup_id_x 1
  .amdhsa_float_denorm_mode_32 3
.end_amdhsa_kernel
"""
    txt = b.text()
    if P["pol"] != "nt":
        txt = txt.replace(" nt lds", f" {P['pol']} lds").replace(" nt\n", f" {P['pol']}\n")
    return head + txt + foot

if __name__ == "__main__":
    import json
    kw = json.loads(sys.argv[2]) if len(sys.argv) > 2 else {}
    open(sys.argv[1], "w").write(gen(**kw))
```

```python
import sys, math, struct
from asmlib import Asm, insert_waits
from gen_common import KNAME

EP, QP, QL, GO, ST, HP, DP, BP, STAMP = 0, 0x1000, 0x40000, 0x48000, 0x50000, 0x60000, 0x80000, 0x100000, 0x800000
WS_REC = 0x1000000
X = 131072
SPIN = 1 << 17

def f2u(x): return struct.unpack("<I", struct.pack("<f", x))[0]
def vr(a, n=4): return f"v[{a}:{a+n-1}]"
def sr(a, n=4): return f"s[{a}:{a+n-1}]"

SX, SC, SQ, SK, SW, SG = 40, 44, 48, 52, 56, 60
sF, sB = 20, 24
HINT = 64
DPPM = "row_mask:0xf bank_mask:0xf"

DEFAULT = dict(diag=False, c_ramp=((0,1),(1,4),(2,8)), wo_depth=8, wo_early=0, wo_edepth=2, wuv_depth=2, prio=True,
               go_at=28, out_pol="sc1", fhint=2, qhint=0, lhint=1, bhint=4, hhint=2, prefetch=True, role_bit=0,
               wo_pol="nt", x_pol="", mlp_late=False, pol="nt", calib=0, q_at=31, hsleep=0, pretouch=True, st_poll=False)

def gen(**kw):
    P = dict(DEFAULT); P.update(kw)
    diag = P["diag"]
    a = Asm()
    def stamp(k):
        if diag: a(f"s_memrealtime s[{80+2*k}:{81+2*k}]")
    def srd(base, size):
        a(f"s_mov_b32 s{base+2}, {size}\ns_mov_b32 s{base+3}, 0x20000")
    def ep_load(): a(f"s_load_dword s35, s[{SW}:{SW+1}], {EP}")
    def tags(need_b=True):
        for q in range(4): a(f"s_add_u32 s{sF+q}, s35, {q+1}")
        if need_b:
            for q in range(4): a(f"s_and_b32 s{sB+q}, s{sF+q}, 3\ns_mul_i32 s{sB+q}, s{sB+q}, 0x8001")
    def allreduce(op, v, t1):
        for r in (1, 2, 4, 8):
            a(f"{op}_dpp v{v}, v{v}, v{v} row_ror:{r} {DPPM}")
        for sw in ("v_permlane16_swap_b32", "v_permlane32_swap_b32"):
            a(f"v_mov_b32 v{t1}, v{v}\n{sw} v{t1}, v{v}\n{op} v{v}, v{v}, v{t1}")
    def rnd_bf16(d, s):
        a(f"v_cvt_pk_bf16_f32 v{d}, v{s}, v{s}\nv_and_b32 v{d}, 0xffff0000, v{d}")
    def unpack2(d, s):
        a(f"v_lshlrev_b32 v{d}, 16, v{s}\nv_and_b32 v{d+1}, 0xffff0000, v{s}")
    def ln_stats(xr, f, t):
        for i in range(4): unpack2(f+2*i, xr+i)
        a(f"v_add_f32 v{t}, v{f}, v{f+1}\nv_add_f32 v{t+1}, v{f+2}, v{f+3}\nv_add_f32 v{t+2}, v{f+4}, v{f+5}\nv_add_f32 v{t+3}, v{f+6}, v{f+7}")
        a(f"v_add_f32 v{t}, v{t}, v{t+1}\nv_add_f32 v{t+2}, v{t+2}, v{t+3}\nv_add_f32 v{t}, v{t}, v{t+2}")
        allreduce("v_add_f32", t, t+2)
        a(f"v_mul_f32 v{t}, {f2u(1/512)}, v{t}")
        a(f"v_sub_f32 v{t+2}, v{f}, v{t}\nv_mul_f32 v{t+1}, v{t+2}, v{t+2}")
        for i in range(1, 8):
            a(f"v_sub_f32 v{t+2+(i&1)}, v{f+i}, v{t}\nv_fmac_f32 v{t+1}, v{t+2+(i&1)}, v{t+2+(i&1)}")
        allreduce("v_add_f32", t+1, t+2)
        a(f"v_mul_f32 v{t+1}, {f2u(1/512)}, v{t+1}")
        rnd_bf16(t, t)
        rnd_bf16(t+1, t+1)
        a(f"v_add_f32 v{t+1}, {f2u(1e-5)}, v{t+1}")
        rnd_bf16(t+1, t+1)
        a(f"v_sqrt_f32 v{t+1}, v{t+1}")
        rnd_bf16(t+1, t+1)
        a(f"v_rcp_f32 v{t+1}, v{t+1}")
    def delta_masks(m, t):
        a(f"""v_and_b32 v{t}, 1, v0
        v_lshlrev_b32 v{t}, 4, v{t}
        v_mov_b32 v{t+1}, 0xffff
        v_lshlrev_b32 v{t}, v{t}, v{t+1}
        v_bfe_u32 v{t+1}, v0, 1, 3""")
        for dw in range(4):
            a(f"v_cmp_eq_u32 vcc, {dw}, v{t+1}\nv_cndmask_b32 v{m+dw}, 0, v{t}, vcc")
    def check(acc, first, n, tagbase, start):
        for i in range(n):
            if start and i == 0: a(f"v_xor_b32 v{acc}, s{tagbase}, v{first}")
            else: a(f"v_bitop3_b32 v{acc}, v{acc}, v{first+i}, s{tagbase+(i&3)} bitop3:0xf6")
    def spin(label, cond_branch, pre=""):
        a(f"""s_add_u32 s28, s28, 1
        s_cmp_gt_u32 s28, {SPIN}
        s_cbranch_scc1 L_exit
        {pre}
        {cond_branch} {label}""")
    def shint(label, offs, kind):
        if not offs: return
        a(f"{label}:")
        if P["hsleep"]: a(f"s_sleep {P['hsleep']}")
        n = len(offs)
        if kind == 't':
            for x, o in enumerate(offs): a(f"s_load_dwordx2 {sr(HINT+2*x,2)}, s[{SW}:{SW+1}], s{o} glc")
            a("s_waitcnt lgkmcnt(0)")
            for x in range(n):
                a(f"s_xor_b32 s{HINT+2*x+1}, s{HINT+2*x+1}, s{sF}")
                if x: a(f"s_or_b32 s{HINT+1}, s{HINT+1}, s{HINT+2*x+1}")
            fin = f"s_cmp_lg_u32 s{HINT+1}, 0"
        else:
            tb, mask = (sB, 0x10001) if kind == 'b' else (sF, 0xff)
            for x, o in enumerate(offs): a(f"s_load_dwordx4 {sr(HINT+4*x)}, s[{SW}:{SW+1}], s{o} glc")
            a("s_waitcnt lgkmcnt(0)")
            for x in range(4*n):
                a(f"s_xor_b32 s{HINT+x}, s{HINT+x}, s{tb+(x&3)}")
                if x: a(f"s_or_b32 s{HINT}, s{HINT}, s{HINT+x}")
            fin = f"s_and_b32 s{HINT}, s{HINT}, {mask}"
        spin(label, "s_cbranch_scc1", fin)
    def hint_offs(n, seed, modmask, shift, base, spread):
        for x in range(n):
            a(f"s_add_u32 s{30+x}, s{seed}, {x*spread}\ns_and_b32 s{30+x}, s{30+x}, {modmask}\ns_lshl_b32 s{30+x}, s{30+x}, {shift}\ns_add_u32 s{30+x}, s{30+x}, s{base}")
        return [30+x for x in range(n)]

    stamp(0)
    if P["calib"]: a("s_memrealtime s[80:81]")
    a(f"""s_load_dwordx2 s[{SX}:{SX+1}], s[0:1], 0
    s_load_dwordx2 s[{SQ}:{SQ+1}], s[0:1], 16
    s_load_dwordx2 s[{SK}:{SK+1}], s[0:1], 24
    s_load_dwordx2 s[{SC}:{SC+1}], s[0:1], 8
    s_load_dwordx2 s[{SW}:{SW+1}], s[0:1], 104
    v_lshrrev_b32 v1, 6, v0
    s_cmp_ge_u32 s2, 256
    s_cbranch_scc1 L_end
    v_readfirstlane_b32 s3, v1
    v_and_b32 v0, 63, v0
    s_and_b32 s4, s2, 7""")
    if P["role_bit"] == 0:
        a("s_bfe_u32 s6, s2, 0x10003\ns_lshr_b32 s5, s2, 4")
    else:
        a("s_lshr_b32 s6, s2, 7\ns_bfe_u32 s5, s2, 0x40003")
    a(f"""s_lshr_b32 s7, s5, 2
    s_lshl2_add_u32 s7, s4, s7
    s_and_b32 s8, s5, 3
    s_mov_b32 s28, 0""")
    srd(SW, WS_REC)
    a(f"""v_and_b32 v2, 15, v0
    v_lshrrev_b32 v3, 4, v0
    v_lshlrev_b32 v41, 5, v2
    v_lshl_add_u32 v41, v3, 4, v41
    s_cmp_eq_u32 s6, 0
    s_cbranch_scc1 L_WGT
    s_and_b32 s9, s3, 6
    s_cmp_eq_u32 s9, 4
    s_cbranch_scc0 L_ATT""")

    a("L_A1:")
    if P["prio"]: a("s_setprio 3")
    srd(SX, 1024); srd(SQ, 4 << 20)
    a(f"""s_bfe_u32 s9, s5, 0x10002
    s_xor_b32 s9, s9, s3
    s_and_b32 s9, s9, 1
    s_lshl1_add_u32 s29, s8, s9
    s_lshl_b32 s10, s29, 19
    s_lshl_b32 s11, s7, 8
    s_add_u32 s10, s10, s11
    s_lshl_b32 s11, s29, 7
    v_lshlrev_b32 v4, 4, v0
    v_lshlrev_b32 v5, 1, v0
    v_lshlrev_b32 v6, 17, v3
    v_lshl_add_u32 v6, v2, 4, v6
    s_movk_i32 s12, 0x2000
    s_waitcnt lgkmcnt(0)
    buffer_load_dwordx4 v[8:11], v4, {sr(SX)}, 0 offen {P['x_pol']}
    buffer_load_ushort v12, v5, {sr(SX)}, s11 offen {P['x_pol']}""")
    for t in range(16):
        a(f"buffer_load_dwordx4 {vr(64+4*t)}, v6, {sr(SQ)}, s10 offen nt")
        if t < 15: a("s_add_u32 s10, s10, s12")
    a("s_barrier")
    ep_load()
    stamp(1)
    delta_masks(32, 36)
    a(f"""v_mov_b32 v40, 0xff
    s_lshl3_add_u32 s10, s7, s29
    s_lshl_b32 s10, s10, 9
    s_add_u32 s10, s10, {QP}
    s_waitcnt vmcnt(16)""")
    stamp(2)
    ln_stats(8, 16, 24)
    a("v_lshlrev_b32 v12, 16, v12\nv_sub_f32 v12, v12, v24")
    rnd_bf16(12, 12)
    a("v_mul_f32 v12, v12, v25\nv_cvt_pk_bf16_f32 v12, v12, v12")
    for t in range(16):
        for dw in range(4):
            a(f"v_and_b32_dpp v{128+4*t+dw}, v12, v{32+dw} row_newbcast:{t} {DPPM}")
    a("s_waitcnt lgkmcnt(0)")
    tags(True)
    stamp(3)
    def delta_gemv16():
        for t in range(16):
            a(f"s_waitcnt vmcnt({15-t})")
            a(f"v_mfma_f32_16x16x32_bf16 v[44:47], {vr(128+4*t)}, {vr(64+4*t)}, {'0' if t == 0 else 'v[44:47]'}")
        for r in range(4):
            a(f"v_bfi_b32 v{44+r}, v40, s{sF+r}, v{44+r}")
        a(f"""s_mov_b32 exec_hi, 0
        buffer_store_dwordx4 v[44:47], v41, {sr(SW)}, s10 offen sc1
        s_mov_b64 exec, -1""")
    delta_gemv16()
    stamp(4)
    a("s_branch L_ATT_help2")
    a("""L_WGT:
    s_cmp_eq_u32 s3, 5
    s_cbranch_scc1 L_A2
    s_cmp_eq_u32 s3, 6
    s_cbranch_scc1 L_A2
    s_cmp_eq_u32 s3, 4
    s_cbranch_scc0 L_WGT_other""")
    a(f"""s_lshl_b32 s10, s7, 12
    s_add_u32 s10, s10, {QP}
    v_lshlrev_b32 v4, 4, v0
    s_waitcnt lgkmcnt(0)""")
    if P["pretouch"]:
        for u in range(4):
            a(f"buffer_load_dwordx4 {vr(64+4*u)}, v4, {sr(SW)}, s10 offen offset:{1024*u} sc1")
    ep_load()
    a(f"""v_lshrrev_b32 v5, 5, v0
    v_and_b32 v6, 31, v0
    v_lshlrev_b32 v5, 15, v5
    v_lshl_add_u32 v5, v6, 3, v5
    v_add_u32 v5, 32768, v5
    v_mov_b32 v40, 0xff
    s_waitcnt vmcnt(0) lgkmcnt(0)""")
    tags(False)
    stamp(1)
    a("L_qp_poll:")
    for u in range(4):
        a(f"buffer_load_dwordx4 {vr(64+4*u)}, v4, {sr(SW)}, s10 offen offset:{1024*u} sc1")
    a("s_waitcnt vmcnt(0)")
    stamp(2)
    check(13, 64, 16, sF, True)
    a("v_and_b32 v13, v40, v13\nv_cmp_ne_u32 vcc, 0, v13")
    for q in range(4):
        a(f"v_add_f32 v{64+q}, v{64+q}, v{68+q}\nv_add_f32 v{72+q}, v{72+q}, v{76+q}")
    spin("L_qp_poll", "s_cbranch_vccnz")
    for q in range(4):
        a(f"v_add_f32 v{64+q}, v{64+q}, v{72+q}\nv_mov_b32 v{68+q}, v{64+q}")
    for q in range(4):
        a(f"v_permlane32_swap_b32 v{68+q}, v{64+q}")
    for q in range(4):
        a(f"v_add_f32 v{64+q}, v{64+q}, v{68+q}")
    a("""v_cvt_pk_bf16_f32 v64, v64, v65
    v_cvt_pk_bf16_f32 v65, v66, v67
    ds_write_b64 v5, v[64:65]
    s_waitcnt lgkmcnt(0)""")
    stamp(5)
    a("s_barrier\ns_branch L_WO")

    a("L_A2:")
    srd(SK, 4 << 20)
    a(f"""s_sub_u32 s9, s3, 5
    s_lshl1_add_u32 s10, s8, s9
    s_lshl_b32 s13, s10, 7
    s_lshl_b32 s10, s10, 19
    s_lshl_b32 s11, s7, 8
    s_add_u32 s10, s10, s11
    s_lshl_b32 s12, s9, 14
    s_add_u32 s12, s12, {X}
    s_mov_b32 m0, s12
    v_lshlrev_b32 v4, 2, v3
    v_xor_b32 v4, v4, v2
    v_lshlrev_b32 v4, 4, v4
    v_lshl_add_u32 v32, v3, 13, v4
    v_xor_b32 v33, 16, v32
    v_xor_b32 v34, 32, v32
    v_xor_b32 v35, 48, v32
    s_mov_b32 s14, 0x8000
    s_waitcnt lgkmcnt(0)""")
    for rg in range(16):
        a(f"buffer_load_dwordx4 v{32+(rg&3)}, {sr(SK)}, s10 offen nt lds")
        if rg < 15: a("s_add_u32 m0, m0, 1024\ns_add_u32 s10, s10, s14")
    ep_load()
    stamp(1)
    a(f"""v_and_b32 v4, 3, v0
    v_bfe_u32 v5, v0, 2, 2
    v_lshl_or_b32 v6, v4, 2, v5
    v_xor_b32 v6, v6, v3
    v_lshlrev_b32 v6, 4, v6
    v_lshlrev_b32 v5, 10, v5
    v_lshl_add_u32 v5, v4, 8, v5
    v_add_u32 v5, s12, v5""")
    for t in range(4):
        a(f"v_xor_b32 v4, {64*t}, v6\nv_add_u32 v{10+t}, v5, v4")
    a(f"""s_add_u32 s11, s9, 1
    s_lshl_b32 s11, s11, 15
    v_lshl_add_u32 v5, v3, 4, s11
    s_lshl_b32 s10, s7, 10
    s_add_u32 s10, s10, s13
    s_add_u32 s10, s10, {QL}
    v_lshlrev_b32 v4, 1, v0
    v_cmp_eq_u32 s[14:15], 1, v3
    v_cmp_eq_u32 s[16:17], 2, v3
    v_cmp_eq_u32 s[18:19], 3, v3
    s_waitcnt lgkmcnt(0)""")
    tags(False)
    a(f"""v_bfe_u32 v7, v0, 1, 2
    v_add_u32 v7, s{sF}, v7
    v_and_b32 v8, 1, v0
    v_lshrrev_b32 v7, v8, v7
    v_and_b32 v7, 1, v7
    v_xor_b32 v8, 1, v7
    v_lshlrev_b32 v8, 16, v8""")
    for T in range(4):
        a(f"s_waitcnt vmcnt({12-4*T})")
        for t in range(4):
            a(f"ds_read_b128 {vr(64+16*T+4*t)}, v{10+t} offset:{4096*T}")
    a("s_waitcnt lgkmcnt(0)")
    stamp(2)
    a("s_barrier")
    for t in range(4):
        a(f"ds_read_b128 {vr(16+4*t)}, v5 offset:{64*t}")
    for t in range(4):
        a(f"s_waitcnt lgkmcnt({3-t})")
        for T in range(4):
            a(f"v_mfma_f32_16x16x32_bf16 {vr(32+4*T)}, {vr(16+4*t)}, {vr(64+16*T+4*t)}, {'0' if t == 0 else vr(32+4*T)}")
    qs = math.log2(math.e) / math.sqrt(128.0)
    a(f"""v_cndmask_b32 v9, v32, v36, s[14:15]
    v_cndmask_b32 v9, v9, v40, s[16:17]
    v_cndmask_b32 v9, v9, v44, s[18:19]
    v_mul_f32 v9, {f2u(qs)}, v9
    v_add_u32 v9, v9, v8
    v_lshrrev_b32 v9, 17, v9
    v_lshl_or_b32 v9, v9, 1, v7
    buffer_store_short v9, v4, {sr(SW)}, s10 offen sc1""")
    stamp(3)
    a("s_branch L_WO")

    a("L_ATT:")
    a(f"""s_lshl4_add_u32 s9, s4, s5
    s_cmp_ge_u32 s3, 4
    s_cbranch_scc1 L_ATT_help""")
    srd(SC, 16 << 20)
    a(f"""s_lshl2_add_u32 s10, s9, s3
    s_lshl_b32 s10, s10, 15
    s_lshl_b32 s11, s3, 13
    v_lshlrev_b32 v4, 2, v3
    v_xor_b32 v4, v4, v2
    v_lshlrev_b32 v4, 4, v4
    v_lshl_add_u32 v32, v3, 10, v4
    v_xor_b32 v33, 16, v32
    v_xor_b32 v34, 32, v32
    v_xor_b32 v35, 48, v32
    s_lshl_b32 s15, s3, 8
    s_add_u32 s10, s10, s15
    s_lshl_b32 s15, s3, 15
    s_add_u32 s15, s15, s11
    s_mov_b32 m0, s15
    s_waitcnt lgkmcnt(0)""")
    def rot_setup():
        for tau in range(3):
            a(f"s_cmp_eq_u32 s3, {3-tau}\ns_cselect_b32 s{36+tau}, -3, 1")
    ramp = P["c_ramp"]
    def tdepth(l): return [d for (k, d) in ramp if k <= l][-1]
    seq = []
    def c_load(n):
        cb, rg = n >> 3, n & 7
        a(f"buffer_load_dwordx4 v{32+(rg&3)}, {sr(SC)}, s10 offen nt lds")
        seq.append(n)
        if n < 31:
            if rg < 7: a("s_add_u32 m0, m0, 1024\ns_add_u32 s10, s10, 4096")
            else:
                a(f"""s_lshl_b32 s16, s{36+cb}, 15
                s_sub_u32 s16, s16, {7*1024}
                s_add_u32 m0, m0, s16
                s_lshl_b32 s16, s{36+cb}, 8
                s_sub_u32 s16, s16, {7*4096}
                s_add_u32 s10, s10, s16""")
        if n == P["q_at"]:
            a("ds_write_b32 v39, v2")
        if n == P["go_at"]:
            a(f"s_mov_b64 exec, 1\nbuffer_store_dwordx2 v[36:37], v38, {sr(SW)}, s14 offen sc1\ns_mov_b64 exec, -1")
            seq.append("go")
    def c_wait(n):
        a(f"s_waitcnt vmcnt({len(seq) - 1 - seq.index(n)})")
    issued = 0
    if tdepth(0) >= 8: rot_setup()
    for n in range(tdepth(0)): c_load(n); issued += 1
    if tdepth(0) < 8: rot_setup()
    a(f"""s_add_u32 s16, s11, {X}
    v_mov_b32 v39, s16
    v_mov_b32 v38, 0
    ds_write_b32 v39, v38
    s_waitcnt lgkmcnt(0)
    s_barrier""")
    ep_load()
    stamp(1)
    a(f"""v_and_b32 v4, 3, v0
    v_bfe_u32 v5, v0, 2, 2
    v_lshl_or_b32 v5, v4, 2, v5
    v_lshrrev_b32 v6, 5, v0
    v_xor_b32 v5, v5, v6
    v_lshlrev_b32 v5, 4, v5
    v_bfe_u32 v6, v0, 2, 3
    v_lshlrev_b32 v6, 10, v6
    v_lshl_add_u32 v6, v4, 8, v6
    v_add_u32 v6, s15, v6
    v_and_b32 v7, 31, v0
    v_lshlrev_b32 v7, 10, v7
    s_lshl_b32 s16, s3, 8
    s_add_u32 s16, s16, {X}
    v_add_u32 v7, s16, v7""")
    for x in range(8):
        a(f"v_xor_b32 v4, {32*x}, v5\nv_add_u32 v{8+x}, v6, v4\nv_add_u32 v{16+x}, v7, v4")
    a(f"""v_bfe_u32 v4, v0, 2, 2
    v_bfe_u32 v5, v0, 4, 1
    v_bfe_u32 v6, v0, 1, 1
    v_lshl_or_b32 v5, v5, 1, v6
    v_lshrrev_b32 v6, 5, v0
    v_xor_b32 v5, v5, v6
    v_lshl_or_b32 v5, v4, 2, v5
    v_lshlrev_b32 v5, 4, v5
    v_lshlrev_b32 v6, 10, v6
    v_lshl_add_u32 v6, v4, 8, v6
    v_and_b32 v4, 1, v0
    v_lshl_add_u32 v6, v4, 3, v6
    s_lshl_b32 s12, s3, 15
    v_add_u32 v6, s12, v6""")
    for n in range(4):
        for sec in range(2):
            a(f"v_xor_b32 v4, {64*n + 32*sec}, v5\nv_add_u32 v{24+2*n+sec}, v6, v4")
            if sec: a(f"v_add_u32 v{24+2*n+sec}, 2048, v{24+2*n+sec}")
    a(f"""v_and_b32 v4, 31, v0
    v_lshlrev_b32 v5, 5, v4
    v_add_u32 v96, {X+8192}, v5
    v_lshrrev_b32 v5, 5, v0
    s_lshl_b32 s13, s3, 3
    v_lshl_add_u32 v6, v5, 2, s13
    v_add_u32 v97, v96, v6
    v_lshlrev_b32 v6, 4, v0
    v_add_u32 v98, {X}, v6
    s_lshl_b32 s13, s3, 11
    v_add_u32 v99, s13, v98
    v_lshlrev_b32 v5, 19, v5
    v_lshl_add_u32 v3, v4, 2, v5
    s_lshl_b32 s13, s9, 8
    s_add_u32 s12, s12, s13
    s_add_u32 s12, s12, {BP}
    s_lshl_b32 s14, s9, 7
    s_add_u32 s14, s14, {GO}
    s_cmp_eq_u32 s3, 0
    s_cselect_b32 s14, s14, 0x7ffffff0
    s_waitcnt lgkmcnt(0)""")
    tags(False)
    a(f"""v_and_b32 v1, 3, v0
    v_add_u32 v1, s{sF}, v1
    v_and_b32 v1, 3, v1
    v_mul_u32_u24 v1, 0x8001, v1
    v_mov_b32 v2, 0x10001
    v_mov_b32 v36, s{sF}
    v_mov_b32 v37, s{sF}
    v_mov_b32 v38, 0""")
    landed = 0
    while issued < 32:
        c_wait(landed); landed += 1
        while issued < 32 and issued - landed < tdepth(landed):
            c_load(issued); issued += 1
    stamp(2)
    a("s_barrier")
    stamp(3)
    NB, AH = 8, 4
    def qk_read(t):
        sl = 128 + 8*(t % NB)
        if t % 8 == 0: c_wait(t + 7)
        if t % 8 == 0 and t < 24: a(f"s_lshl_b32 s16, s{36+(t>>3)}, 15\ns_lshl_b32 s17, s{36+(t>>3)}, 8")
        a(f"ds_read_b128 {vr(sl)}, v{8+(t&7)}")
        a(f"ds_read_b128 {vr(sl+4)}, v{16+(t&7)}")
        if t < 24: a(f"v_add_u32 v{8+(t&7)}, s16, v{8+(t&7)}\nv_add_u32 v{16+(t&7)}, s17, v{16+(t&7)}")
    rd = 0
    for t in range(32):
        lim = 24 if t < 24 else 32
        while rd < min(t + AH + 1, lim): qk_read(rd); rd += 1
        a(f"s_waitcnt lgkmcnt({2*(rd - t - 1)})")
        sl = 128 + 8*(t % NB)
        if t == 31:
            stamp(4)
            a("s_barrier")
        a(f"v_mfma_f32_32x32x16_bf16 {vr(64,16)}, {vr(sl)}, {vr(sl+4)}, {'0' if t == 0 else vr(64,16)}")
    def pv_read(half, kk, nn):
        n = 2*half + nn
        base = 128 + 64*(1-half) + 8*kk + 4*nn
        for sec in range(2):
            a(f"ds_read_b64_tr_b16 {vr(base+2*sec,2)}, v{24+2*n+sec} offset:{4096*kk}")
    pvq = [(kk, nn) for kk in range(8) for nn in range(2)]
    for _ in range(5): pv_read(0, *pvq.pop(0))
    a(f"""v_max3_f32 v4, v64, v65, v66
    v_max3_f32 v5, v67, v68, v69
    v_max3_f32 v6, v70, v71, v72
    v_max3_f32 v7, v73, v74, v75
    v_max3_f32 v4, v4, v76, v77
    v_max3_f32 v5, v5, v78, v79
    v_max3_f32 v4, v4, v5, v6
    v_max_f32 v4, v4, v7
    ds_write_b32 v97, v4
    s_waitcnt lgkmcnt(0)
    s_barrier
    ds_read_b128 v[80:83], v96
    ds_read_b128 v[84:87], v96 offset:16""")
    for _ in range(6): pv_read(0, *pvq.pop(0))
    a(f"""s_waitcnt lgkmcnt(12)
    v_max3_f32 v4, v80, v81, v82
    v_max3_f32 v5, v83, v84, v85
    v_max3_f32 v4, v4, v86, v87
    v_max_f32 v20, v4, v5""")
    for r in range(0, 16, 2):
        a(f"v_pk_add_f32 {vr(64+r,2)}, {vr(64+r,2)}, v[20:21] op_sel_hi:[1,0] neg_lo:[0,1] neg_hi:[0,1]")
    for r in range(16):
        a(f"v_exp_f32 v{64+r}, v{64+r}")
        if r >= 3 and r & 1: a(f"v_cvt_pk_bf16_f32 v{88+(r-3)//2}, v{64+r-3}, v{64+r-2}")
        if r == 9: a("ds_write_b128 v99, v[88:91]")
    a("v_cvt_pk_bf16_f32 v95, v78, v79\nds_write_b128 v99, v[92:95] offset:1024")
    a("s_waitcnt lgkmcnt(0)")
    stamp(5)
    a("s_barrier")
    for kk in range(8): a(f"ds_read_b128 {vr(32+4*kk)}, v98 offset:{1024*kk}")
    lq = [("P", kk) for kk in range(8)]
    def lread(half, kk, nn):
        pv_read(half, kk, nn); lq.extend([("F", half, kk, nn)]*2)
    def lwait(items):
        last = max([i for i, x in enumerate(lq) if x in items], default=-1)
        a(f"s_waitcnt lgkmcnt({min(15, len(lq) - 1 - last)})")
    rest0 = list(pvq)
    def pv_store(half, r):
        head = (r & 3) + 8*(r >> 2)
        t0, t1 = 64 + 32*half + r, 80 + 32*half + r
        a(f"""v_cvt_pk_bf16_f32 v{t0}, v{t0}, v{t1}
        v_bfi_b32 v{t0}, v2, v1, v{t0}
        s_add_u32 s13, s12, {head*131072}
        buffer_store_dword v{t0}, v3, {sr(SW)}, s13 offen offset:{128*half} sc1""")
    todo = [(0,) + x for x in rest0] + [(1, kk, nn) for kk in range(8) for nn in range(2)]
    for half in range(2):
        for kk in range(8):
            for nn in range(2):
                lwait([("P", kk), ("F", half, kk, nn)])
                fb = 128 + 64*(1-half) + 8*kk + 4*nn
                acc = 64 + 32*half + 16*nn
                a(f"v_mfma_f32_32x32x16_bf16 {vr(acc,16)}, {vr(32+4*kk)}, {vr(fb)}, {'0' if kk == 0 else vr(acc,16)}")
                for _ in range(2 if half == 0 and kk < 3 else 1):
                    if todo: lread(*todo.pop(0))
                if half == 1 and (kk or nn): pv_store(0, 2*kk + nn - 1)
    pv_store(0, 15)
    stamp(6)
    for r in range(16): pv_store(1, r)
    stamp(7)
    if diag:
        a("s_waitcnt vmcnt(0)"); stamp(8)
    a("s_branch L_exit")

    a("L_ATT_help:")
    a("s_waitcnt lgkmcnt(0)")
    ep_load()
    if P["prefetch"]:
        a(f"""s_cmp_lg_u32 s3, 7
        s_cbranch_scc1 L_nopf
        s_cmp_lg_u32 s5, 0
        s_cbranch_scc1 L_nopf
        s_getpc_b64 s[10:11]
        L_pc:
        s_sub_u32 s10, s10, L_pc - {KNAME}
        s_subb_u32 s11, s11, 0
        v_lshlrev_b32 v4, 7, v0
        v_add_u32 v5, 8192, v4
        v_add_u32 v6, 16384, v4
        v_min_u32 v6, L_codeend - {KNAME} - 4, v6
        global_load_dword v200, v4, s[10:11]
        global_load_dword v201, v5, s[10:11]
        global_load_dword v202, v6, s[10:11]
        L_nopf:""")
    a("s_barrier")
    a("s_waitcnt lgkmcnt(0)")
    tags(True)
    a("L_ATT_help2:")
    a(f"""s_lshl4_add_u32 s9, s4, s5
    s_sub_u32 s10, s3, 4
    s_lshl_b32 s11, s10, 13
    s_add_u32 s12, s11, {QL}
    s_add_u32 s13, s11, {X}
    s_and_b32 s14, s10, 1
    s_lshl_b32 s14, s14, 5
    v_lshlrev_b32 v4, 4, v0
    v_add_u32 v5, s13, v4
    v_xor_b32 v4, s14, v4
    v_mov_b32 v6, 0x10001
    s_movk_i32 s16, 0xff""")
    for r in range(8):
        f = ((r & 3) << 2) | (r >> 2)
        a(f"v_xor_b32 v{8+r}, {16*f}, v4")
    nh = P["qhint"]
    shint("L_qhint", hint_offs(nh, 9, 63, 7, 12, 64//max(nh,1) + 1), 'b')
    if P["q_at"] is not None:
        a(f"""v_mov_b32 v16, s13
        L_qtrig:
        ds_read_b32 v17, v16
        s_waitcnt lgkmcnt(0)
        v_cmp_eq_u32 vcc, 0, v17
        s_sleep 1""")
        a("s_add_u32 s28, s28, 0x10000\ns_cbranch_scc1 L_exit\ns_cbranch_vccnz L_qtrig\ns_and_b32 s28, s28, 0xffff")
    stamp(5)
    a("L_qfetch:")
    for r in range(8):
        a(f"""s_bitcmp1_b32 s16, {r}
        s_cbranch_scc0 L_qs{r}
        s_add_u32 m0, s13, {1024*r}
        s_add_u32 s15, s12, {1024*r}
        buffer_load_dwordx4 v{8+r}, {sr(SW)}, s15 offen sc1 lds
        L_qs{r}:""")
    a("s_waitcnt vmcnt(0)")
    for r in range(8):
        a(f"ds_read_b128 {vr(64+4*r)}, v5 offset:{1024*r}")
    a("s_mov_b32 s16, 0")
    for r in range(8):
        a(f"s_waitcnt lgkmcnt({7-r})")
        check(7, 64+4*r, 4, sB, True)
        a(f"v_and_b32 v7, v6, v7\nv_cmp_ne_u32 vcc, 0, v7\ns_cmp_lg_u64 vcc, 0\ns_cselect_b32 s17, {1<<r}, 0\ns_or_b32 s16, s16, s17")
    spin("L_qfetch", "s_cbranch_scc1", "s_cmp_lg_u32 s16, 0")
    stamp(6)
    a("""s_setprio 0
    s_cmp_eq_u32 s3, 4
    s_cbranch_scc1 L_MLP1
    s_cmp_eq_u32 s3, 5
    s_cbranch_scc1 L_MLP2
    s_cmp_eq_u32 s3, 6
    s_cbranch_scc1 L_FIN""")
    a(f"""v_and_b32 v4, 31, v0
    v_lshlrev_b32 v5, 5, v4
    v_add_u32 v5, {X+8192}, v5
    v_lshlrev_b32 v6, 4, v0
    v_add_u32 v7, {X}, v6
    v_mov_b32 v17, s{sF}
    v_mov_b32 v19, s{sF}
    v_mov_b32 v8, 0x3f803f80
    s_lshl_b32 s12, s9, 9
    s_add_u32 s12, s12, {ST}
    s_barrier
    s_barrier
    s_barrier
    ds_read_b128 v[80:83], v5
    ds_read_b128 v[84:87], v5 offset:16
    s_waitcnt lgkmcnt(0)
    v_max3_f32 v4, v80, v81, v82
    v_max3_f32 v5, v83, v84, v85
    v_max3_f32 v4, v4, v86, v87
    v_max_f32 v16, v4, v5
    s_barrier""")
    for kk in range(8): a(f"ds_read_b128 {vr(32+4*kk)}, v7 offset:{1024*kk}")
    for kk in range(8):
        a(f"s_waitcnt lgkmcnt({7-kk})")
        for q in range(4):
            a(f"v_dot2_f32_bf16 v{20+q}, v{32+4*kk+q}, v8, {'0' if kk == 0 else f'v{20+q}'}")
    a(f"""s_nop 2
    v_add_f32 v20, v20, v21
    v_add_f32 v22, v22, v23
    v_add_f32 v18, v20, v22
    v_mov_b32 v4, v18
    v_permlane32_swap_b32 v4, v18
    v_add_f32 v18, v18, v4
    s_mov_b32 exec_hi, 0
    buffer_store_dwordx4 v[16:19], v6, {sr(SW)}, s12 offen sc1
    s_mov_b64 exec, -1""")
    stamp(7)
    a("s_branch L_exit")

    a("L_FIN:")
    a(f"""s_barrier
    s_cmp_lt_u32 s5, 12
    s_cbranch_scc1 L_exit
    s_barrier
    s_barrier
    s_barrier
    s_load_dwordx2 s[{SC}:{SC+1}], s[0:1], 80
    s_load_dwordx2 s[{SQ}:{SQ+1}], s[0:1], 88
    s_sub_u32 s10, s5, 12
    s_lshl2_add_u32 s10, s4, s10
    s_lshl_b32 s11, s10, 6
    s_lshl_b32 s16, s10, 5
    v_lshrrev_b32 v4, 2, v0
    v_and_b32 v5, 3, v0
    v_lshlrev_b32 v4, 11, v4
    v_lshl_add_u32 v4, v5, 4, v4
    v_lshlrev_b32 v5, 3, v5
    v_mov_b32 v6, 0xff""")
    srd(SX, 1024); srd(SC, 1024); srd(SQ, 1024)
    a(f"""s_waitcnt lgkmcnt(0)
    buffer_load_dwordx2 v[8:9], v5, {sr(SX)}, s16 offen
    buffer_load_dwordx2 v[10:11], v5, {sr(SC)}, s16 offen""")
    def fin_gather(label, first, n, dst):
        a(f"s_add_u32 s13, s11, {DP + first*2048}\ns_mul_i32 s14, s10, 3")
        shint(label + "_h", hint_offs(P["fhint"], 14, 63, 11, 13, 29), 'f')
        a(f"{label}:\ns_mov_b32 s12, s13")
        for x in range(n):
            a(f"buffer_load_dwordx4 {vr(64+4*x)}, v4, {sr(SW)}, s12 offen sc1")
            if x < n-1: a("s_add_u32 s12, s12, 0x8000")
        for x in range(n):
            a(f"s_waitcnt vmcnt({n-1-x})")
            check(7, 64+4*x, 4, sF, x == 0)
            if x == 1:
                for q in range(0, 4, 2): a(f"v_pk_add_f32 {vr(dst+q,2)}, {vr(64+q,2)}, {vr(68+q,2)}")
            elif x > 1:
                for q in range(0, 4, 2): a(f"v_pk_add_f32 {vr(dst+q,2)}, {vr(dst+q,2)}, {vr(64+4*x+q,2)}")
        a("v_and_b32 v7, v6, v7\nv_cmp_ne_u32 vcc, 0, v7")
        spin(label, "s_cbranch_vccnz")
        for r in (4, 8):
            for q in range(4): a(f"v_add_f32_dpp v{dst+q}, v{dst+q}, v{dst+q} row_ror:{r} {DPPM}")
        for sw in ("v_permlane16_swap_b32", "v_permlane32_swap_b32"):
            for q in range(4): a(f"v_mov_b32 v{64+q}, v{dst+q}")
            for q in range(4): a(f"{sw} v{64+q}, v{dst+q}")
            for q in range(0, 4, 2): a(f"v_pk_add_f32 {vr(dst+q,2)}, {vr(dst+q,2)}, {vr(64+q,2)}")
    def round4(d):
        a(f"v_cvt_pk_bf16_f32 v12, v{d}, v{d+1}\nv_cvt_pk_bf16_f32 v13, v{d+2}, v{d+3}")
        unpack2(d, 12); unpack2(d+2, 13)
    fin_gather("L_fin_mlp", 128, 7, 16)
    stamp(7)
    round4(16)
    unpack2(20, 10); unpack2(22, 11); unpack2(24, 8); unpack2(26, 9)
    for q in range(0, 4, 2): a(f"v_pk_add_f32 {vr(16+q,2)}, {vr(16+q,2)}, {vr(20+q,2)}")
    round4(16)
    fin_gather("L_fin_att", 0, 8, 20)
    stamp(8)
    round4(20)
    for q in range(0, 4, 2): a(f"v_pk_add_f32 {vr(20+q,2)}, {vr(20+q,2)}, {vr(24+q,2)}")
    round4(20)
    for q in range(0, 4, 2): a(f"v_pk_add_f32 {vr(20+q,2)}, {vr(20+q,2)}, {vr(16+q,2)}")
    a(f"""v_cvt_pk_bf16_f32 v12, v20, v21
    v_cvt_pk_bf16_f32 v13, v22, v23
    s_mov_b64 exec, 15
    buffer_store_dwordx2 v[12:13], v5, {sr(SQ)}, s16 offen {P['out_pol']}
    s_cmp_lg_u32 s10, 0
    s_cbranch_scc1 L_fin_done
    s_mov_b64 exec, 1
    v_mov_b32 v14, s{sF}
    buffer_store_dword v14, v5, {sr(SW)}, 0 offen offset:{EP} {P['out_pol']}
    L_fin_done:
    s_mov_b64 exec, -1""")
    if P["calib"]:
        a(f"""s_add_u32 s80, s80, {P['calib']}
        L_cal:
        s_memrealtime s[82:83]
        s_waitcnt lgkmcnt(0)
        s_sub_u32 s83, s82, s80
        s_cmp_lt_i32 s83, 0
        s_cbranch_scc1 L_cal""")
    if diag:
        a("s_waitcnt vmcnt(0)"); stamp(9)
    a("s_branch L_exit")

    late = "s_barrier\ns_barrier\ns_barrier"
    a("L_MLP1:")
    a(f"""s_load_dwordx2 s[{SC}:{SC+1}], s[0:1], 56
    s_lshr_b32 s10, s5, 3
    s_lshl1_add_u32 s10, s4, s10
    s_mul_i32 s11, s29, {64*3584}
    s_lshl_b32 s12, s10, 8
    s_add_u32 s11, s11, s12
    v_mul_u32_u24 v6, {16*3584}, v3
    v_lshl_add_u32 v6, v2, 4, v6
    s_movk_i32 s12, 3584""")
    srd(SC, 512*1792*2)
    a(f"""s_barrier
    s_cmp_ge_u32 s10, 14
    s_cbranch_scc1 L_exit
    s_waitcnt lgkmcnt(0)""")
    if P["mlp_late"]: a(late)
    for t in range(16):
        a(f"buffer_load_dwordx4 {vr(64+4*t)}, v6, {sr(SC)}, s11 offen nt")
        if t < 15: a("s_add_u32 s11, s11, s12")
    a(f"""s_lshl3_add_u32 s10, s10, s29
    s_lshl_b32 s10, s10, 9
    s_add_u32 s10, s10, {HP}""")
    if not P["mlp_late"]: a(late)
    delta_gemv16()
    stamp(7)
    a("s_branch L_exit")

    a("L_MLP2:")
    a(f"""s_load_dwordx2 s[{SQ}:{SQ+1}], s[0:1], 72
    s_load_dwordx2 s[{SK}:{SK+1}], s[0:1], 64
    s_mul_i32 s10, s4, 14
    s_add_u32 s10, s10, s5
    s_lshl_b32 s11, s10, 5
    s_lshl_b32 s12, s10, 14
    v_lshlrev_b32 v5, 12, v3
    v_lshl_add_u32 v5, v2, 4, v5
    v_lshlrev_b32 v7, 3, v3""")
    srd(SQ, 1792*512*2); srd(SK, 1792*2)
    a(f"""s_barrier
    s_cmp_ge_u32 s5, 14
    s_cbranch_scc1 L_exit
    s_waitcnt lgkmcnt(0)""")
    if P["mlp_late"]: a(late)
    a(f"buffer_load_dwordx2 v[12:13], v7, {sr(SK)}, s11 offen")
    for rq in range(4):
        for cb in range(4):
            a(f"buffer_load_dwordx4 {vr(192+16*rq+4*cb)}, v5, {sr(SQ)}, s12 offen offset:{1024*rq + 256*cb} nt")
    delta_masks(32, 36)
    a(f"""s_lshr_b32 s13, s10, 3
    s_lshl_b32 s13, s13, 12
    s_and_b32 s14, s10, 7
    s_lshl_b32 s14, s14, 6
    s_add_u32 s13, s13, s14
    s_add_u32 s13, s13, {HP}
    v_and_b32 v6, 7, v0
    v_lshlrev_b32 v6, 9, v6
    v_lshl_add_u32 v6, v3, 4, v6
    v_mov_b32 v40, 0xff
    s_lshl_b32 s12, s10, 11
    s_add_u32 s12, s12, {DP + 128*2048}""")
    if not P["mlp_late"]: a(late)
    shint("L_hhint", hint_offs(P["hhint"], 10, 7, 9, 13, 3), 'f')
    a(f"""L_hp_poll:
    buffer_load_dwordx4 v[16:19], v6, {sr(SW)}, s13 offen sc1
    s_waitcnt vmcnt(0)""")
    check(7, 16, 4, sF, True)
    a("v_and_b32 v7, v40, v7\nv_cmp_ne_u32 vcc, 0, v7")
    spin("L_hp_poll", "s_cbranch_vccnz")
    for r in (1, 2, 4):
        for q in range(4): a(f"v_add_f32_dpp v{16+q}, v{16+q}, v{16+q} row_ror:{r} {DPPM}")
    a("v_cvt_pk_bf16_f32 v14, v16, v17\nv_cvt_pk_bf16_f32 v15, v18, v19")
    unpack2(16, 14); unpack2(18, 15); unpack2(20, 12); unpack2(22, 13)
    for q in range(4): a(f"v_add_f32 v{16+q}, v{16+q}, v{20+q}")
    for q in range(4): rnd_bf16(16+q, 16+q)
    for q in range(4): a(f"v_max_f32 v{16+q}, 0, v{16+q}\nv_mul_f32 v{16+q}, v{16+q}, v{16+q}\nv_cvt_pk_bf16_f32 v{16+q}, v{16+q}, v{16+q}")
    for rq in range(4):
        for dw in range(4):
            a(f"v_and_b32 v{64+4*rq+dw}, v{16+rq}, v{32+dw}")
    for rq in range(4):
        for cb in range(4):
            a(f"v_mfma_f32_16x16x32_bf16 {vr(96+4*cb)}, {vr(64+4*rq)}, {vr(192+16*rq+4*cb)}, {'0' if rq == 0 else vr(96+4*cb)}")
    for cb in range(4):
        for r in range(4): a(f"v_bfi_b32 v{96+4*cb+r}, v40, s{sF+r}, v{96+4*cb+r}")
    a("s_mov_b32 exec_hi, 0")
    for cb in range(4):
        a(f"buffer_store_dwordx4 {vr(96+4*cb)}, v41, {sr(SW)}, s12 offen offset:{512*cb} sc1")
    a("s_mov_b64 exec, -1")
    stamp(7)
    a("s_branch L_exit")

    a("L_WGT_other:")
    a("s_waitcnt lgkmcnt(0)")
    ep_load()
    a(f"""s_load_dwordx2 s[{SG}:{SG+1}], s[0:1], 32
    s_cmp_eq_u32 s3, 7
    s_cbranch_scc0 L_S1
    s_waitcnt lgkmcnt(0)""")
    tags(False)
    a("s_barrier\ns_branch L_WO")
    a("L_S1:")
    srd(SG, 4 << 20)
    delta_masks(32, 36)
    a(f"""v_lshrrev_b32 v5, 5, v0
    v_bfe_u32 v6, v0, 2, 1
    v_bfe_u32 v7, v0, 3, 2
    v_lshl_add_u32 v7, v6, 5, v7
    v_lshl_add_u32 v7, v5, 2, v7
    v_lshlrev_b32 v7, 13, v7
    v_and_b32 v6, 3, v0
    v_lshlrev_b32 v5, 1, v5
    v_xor_b32 v6, v6, v5
    v_lshl_add_u32 v4, v6, 4, v7
    s_lshl_b32 s10, s8, 20
    s_lshl_b32 s11, s7, 8
    s_add_u32 s10, s10, s11
    s_lshl_b32 s11, s3, 6
    s_add_u32 s10, s10, s11
    s_lshl_b32 s11, s3, 13
    s_add_u32 s11, s11, {X}""")
    a(f"""v_bfe_u32 v5, v0, 2, 2
    v_lshl_add_u32 v5, v3, 3, v5
    v_lshlrev_b32 v5, 6, v5
    v_and_b32 v6, 1, v0
    v_lshl_add_u32 v5, v6, 3, v5
    v_add_u32 v5, s11, v5
    v_bfe_u32 v6, v0, 1, 1
    v_bfe_u32 v7, v0, 4, 1
    v_lshl_or_b32 v6, v7, 1, v6
    v_lshl_add_u32 v8, v6, 4, v5
    v_xor_b32 v9, 32, v8""")
    a(f"""v_and_b32 v5, 7, v0
    v_lshl_add_u32 v5, v5, 2, v3
    v_lshlrev_b32 v10, 9, v5
    v_lshlrev_b32 v11, 4, v0
    v_lshlrev_b32 v5, 4, v2
    v_lshl_add_u32 v5, v3, 3, v5
    s_lshl_b32 s12, s3, 6
    s_add_u32 s13, s12, s11
    v_add_u32 v12, s13, v5
    v_and_b32 v5, 3, v0
    v_mul_u32_u24 v5, {8192+64}, v5
    v_lshl_add_u32 v5, v3, 4, v5
    v_add_u32 v13, {X}, v5
    v_and_b32 v5, 31, v0
    s_add_u32 s13, s12, {X+2048}
    v_lshl_add_u32 v14, v5, 1, s13
    v_mov_b32 v15, s11
    v_mov_b32 v31, {X}
    v_mov_b32 v30, 0x10001
    v_bfe_u32 v5, v0, 4, 1
    v_cmp_eq_u32 s[18:19], 1, v5
    s_mov_b32 m0, s11
    s_lshl4_add_u32 s30, s4, s5
    s_lshl_b32 s30, s30, 7
    s_add_u32 s30, s30, {GO}
    s_waitcnt lgkmcnt(0)""")
    tags(True)
    a("s_barrier\ns_barrier")
    if P["go_at"] is not None:
        a("s_cmp_lg_u32 s3, 0\ns_cbranch_scc1 L_go_done")
        shint("L_go", [30], 't')
        a("L_go_done:\ns_barrier")
    stamp(1)
    for q in range(8):
        if q >= P["wuv_depth"]: a(f"s_waitcnt vmcnt({P['wuv_depth']-1})")
        a(f"buffer_load_dwordx4 v4, {sr(SG)}, s10 offen nt lds")
        if q < 7:
            step = 8*8192 if (q & 3) < 3 else (64 - 24)*8192
            a(f"s_add_u32 m0, m0, 1024\ns_add_u32 s10, s10, {step}")
    a(f"""s_lshl_b32 s12, s3, 13
    s_lshl2_add_u32 s16, s7, s8
    s_lshl_b32 s13, s16, 15
    s_add_u32 s13, s13, s12
    s_add_u32 s13, s13, {BP}
    s_lshl_b32 s12, s12, 1
    s_lshl4_add_u32 s12, s7, s12
    s_add_u32 s12, s12, {ST}
    s_waitcnt vmcnt(0)""")
    for n in range(2):
        for t in range(4):
            for sec in range(2):
                a(f"ds_read_b64_tr_b16 {vr(160+16*n+4*t+2*sec,2)}, v{8+n} offset:{2048*t + 256*sec}")
    a("s_waitcnt lgkmcnt(0)")
    stamp(2)
    nh = P["bhint"]
    for x in range(nh): a(f"s_add_u32 s{30+x}, s13, {(32*x//nh + 3)*256 + 128}")
    shint("L_bhint", [30+x for x in range(nh)], 'b')
    stamp(3)
    a("s_add_u32 s14, s13, 4096\nL_bfetch:")
    a(f"buffer_load_dwordx4 v[16:19], v10, {sr(SW)}, s12 offen sc1")
    for t in range(8):
        a(f"buffer_load_dwordx4 {vr(64+4*t)}, v11, {sr(SW)}, s{13 + (t>>2)} offen offset:{1024*(t&3)} sc1")
    a(f"""s_waitcnt vmcnt(8)""")
    stamp(4)
    a(f"""v_xor_b32 v17, s{sF}, v17
    v_bitop3_b32 v17, v17, v19, s{sF} bitop3:0xf6
    v_mov_b32 v24, v16""")
    allreduce("v_max_f32", 24, 20)
    a("""v_sub_f32 v16, v16, v24
    v_exp_f32 v16, v16
    v_cvt_pk_bf16_f32 v16, v16, v16""")
    for t in range(8):
        for dw in range(4):
            a(f"v_and_b32_dpp v{128+4*t+dw}, v16, v{32+dw} row_newbcast:{t} {DPPM}")
    a("v_and_b32 v25, 0xffff0000, v16\nv_mul_f32 v25, v25, v18")
    allreduce("v_add_f32", 25, 20)
    a("v_mul_f32 v25, 0.5, v25\nds_write_b64 v15, v[24:25] offset:1024")
    stamp(5)
    for t in range(8):
        a(f"s_waitcnt vmcnt({7-t})")
        a(f"v_mfma_f32_16x16x32_bf16 v[40:43], {vr(128+4*t)}, {vr(64+4*t)}, {'0' if t == 0 else 'v[40:43]'}")
        check(7, 64+4*t, 4, sB, t == 0)
    a("v_and_or_b32 v7, v30, v7, v17\nv_cmp_ne_u32 vcc, 0, v7")
    spin("L_bfetch", "s_cbranch_vccnz")
    stamp(6)
    a("""v_cvt_pk_bf16_f32 v44, v40, v41
    v_cvt_pk_bf16_f32 v45, v42, v43
    s_mov_b32 exec_hi, 0
    ds_write_b64 v12, v[44:45]
    s_mov_b64 exec, -1
    s_waitcnt lgkmcnt(0)
    s_barrier""")
    for u in range(4): a(f"ds_read_b64 {vr(80+2*u,2)}, v31 offset:{8192*u + 1024}")
    for t in range(4): a(f"ds_read_b128 {vr(64+4*t)}, v13 offset:{64*t}")
    sm = """v_max3_f32 v4, v80, v82, v84
    v_max_f32 v4, v4, v86
    v_sub_f32 v80, v80, v4
    v_sub_f32 v82, v82, v4
    v_sub_f32 v84, v84, v4
    v_sub_f32 v86, v86, v4
    v_exp_f32 v80, v80
    v_exp_f32 v82, v82
    v_exp_f32 v84, v84
    v_exp_f32 v86, v86
    v_mul_f32 v5, v80, v81
    v_fmac_f32 v5, v82, v83
    v_fmac_f32 v5, v84, v85
    v_fmac_f32 v5, v86, v87
    v_rcp_f32 v5, v5""".split("\n")
    for t in range(4):
        a(f"s_waitcnt lgkmcnt({3-t})")
        for n in range(2):
            a(f"v_mfma_f32_16x16x32_bf16 {vr(40+4*n)}, {vr(64+4*t)}, {vr(160+16*n+4*t)}, {'0' if t == 0 else vr(40+4*n)}")
            a(sm.pop(0))
    for l in sm: a(l)
    for r in range(4): a(f"v_cndmask_b32 v{40+r}, v{40+r}, v{44+r}, s[18:19]")
    a("""v_mul_f32 v6, v40, v80
    v_fmac_f32 v6, v41, v82
    v_fmac_f32 v6, v42, v84
    v_fmac_f32 v6, v43, v86
    v_mul_f32 v6, v6, v5
    v_cvt_pk_bf16_f32 v6, v6, v6
    ds_write_b16 v14, v6
    s_waitcnt lgkmcnt(0)""")
    stamp(7)
    a("s_barrier\ns_branch L_exit")

    a("L_WO:")
    a(f"s_load_dwordx2 s[{SG}:{SG+1}], s[0:1], 40\ns_setprio 0\ns_barrier")
    srd(SG, 4 << 20)
    a(f"""s_sub_u32 s9, s3, 4
    s_lshl_b32 s10, s7, 17
    s_lshl_b32 s11, s9, 8
    s_add_u32 s10, s10, s11
    s_lshl_b32 s11, s9, 15
    v_lshlrev_b32 v4, 2, v3
    v_xor_b32 v4, v4, v2
    v_lshlrev_b32 v4, 4, v4
    v_lshl_add_u32 v4, v3, 10, v4
    v_xor_b32 v5, 32, v4
    s_mov_b32 m0, s11""")
    a(f"""v_bfe_u32 v6, v0, 2, 2
    v_bfe_u32 v7, v0, 4, 1
    v_bfe_u32 v16, v0, 1, 1
    v_lshl_or_b32 v7, v7, 1, v16
    v_lshl_or_b32 v7, v6, 2, v7
    v_lshlrev_b32 v7, 4, v7
    v_lshlrev_b32 v6, 8, v6
    v_lshl_add_u32 v6, v3, 11, v6
    v_and_b32 v16, 1, v0
    v_lshl_add_u32 v6, v16, 3, v6
    v_add_u32 v6, s11, v6""")
    for n in range(8):
        a(f"v_xor_b32 v16, {32*n}, v7\nv_add_u32 v{8+n}, v6, v16")
    a(f"""v_lshlrev_b32 v16, 4, v3
    v_add_u32 v16, {X+2048}, v16
    v_lshlrev_b32 v17, 6, v2
    v_lshl_add_u32 v17, v3, 4, v17
    v_mov_b32 v18, 0xff
    s_lshl2_add_u32 s12, s7, s8
    s_lshl_b32 s12, s12, 11
    s_lshl_b32 s13, s9, 9
    s_add_u32 s12, s12, s13
    s_add_u32 s12, s12, {DP}""")
    for n in range(1, 8):
        a(f"s_mov_b32 s{40+2*n}, {0x01010101 << n}\ns_mov_b32 s{41+2*n}, {0x01010101 << n}")
    a("s_waitcnt lgkmcnt(0)")
    def wo_read(t):
        for n in range(8):
            for sec in range(2):
                a(f"ds_read_b64_tr_b16 {vr(128+32*t+4*n+2*sec,2)}, v{8+n} offset:{8192*t + 1024*sec}")
    nxt = 0
    for rg in range(32):
        if rg == P["wo_early"] and P["go_at"] is not None: a("s_barrier")
        wd = P["wo_edepth"] if rg < P["wo_early"] else P["wo_depth"]
        if rg >= wd:
            a(f"s_waitcnt vmcnt({wd-1})")
            landed = rg - wd + 1
            if landed >= 8*(nxt+1): wo_read(nxt); nxt += 1
        a(f"buffer_load_dwordx4 v{4+((rg>>1)&1)}, {sr(SG)}, s10 offen {P['wo_pol']} lds")
        if rg < 31: a("s_add_u32 m0, m0, 1024\ns_add_u32 s10, s10, 4096")
    while nxt < 4:
        a(f"s_waitcnt vmcnt({24 - 8*nxt})")
        wo_read(nxt); nxt += 1
    stamp(6)
    a("s_barrier\ns_barrier")
    stamp(7)
    for t in range(4): a(f"ds_read_b128 {vr(20+4*t)}, v16 offset:{64*t}")
    a("s_waitcnt lgkmcnt(0)")
    for n in range(8):
        for t in range(4):
            a(f"v_mfma_f32_16x16x32_bf16 {vr(64+4*n)}, {vr(128+32*t+4*n)}, {vr(20+4*t)}, {'0' if t == 0 else vr(64+4*n)}")
            if n >= 3:
                m = n - 2
                a(f"v_cndmask_b32 v{64+t}, v{64+t}, v{64+4*m+t}, s[{40+2*m}:{41+2*m}]")
    for m in (6, 7):
        for t in range(4): a(f"v_cndmask_b32 v{64+t}, v{64+t}, v{64+4*m+t}, s[{40+2*m}:{41+2*m}]")
    for r in range(4): a(f"v_bfi_b32 v{64+r}, v18, s{sF+r}, v{64+r}")
    a(f"""s_mov_b32 exec_lo, 0x00ff00ff
    s_mov_b32 exec_hi, 0x00ff00ff
    buffer_store_dwordx4 v[64:67], v17, {sr(SW)}, s12 offen sc1
    s_mov_b64 exec, -1""")
    stamp(8)
    if diag:
        a("s_waitcnt vmcnt(0)"); stamp(9)

    a("L_exit:")
    if diag:
        a(f"""s_mov_b64 exec, -1
        s_waitcnt lgkmcnt(0)
        s_lshl3_add_u32 s10, s2, s3
        s_lshl_b32 s10, s10, 7
        s_add_u32 s10, s10, {STAMP}
        v_mov_b32 v4, 0""")
        for k in range(10):
            a(f"v_mov_b32 v5, s{80+2*k}\nbuffer_store_dword v5, v4, {sr(SW)}, s10 offen offset:{4*k}")
        a(f"v_mov_b32 v5, s28\nbuffer_store_dword v5, v4, {sr(SW)}, s10 offen offset:40")
        a(f"s_getreg_b32 s11, hwreg(HW_REG_XCC_ID)\nv_mov_b32 v5, s11\nbuffer_store_dword v5, v4, {sr(SW)}, s10 offen offset:44")
        a(f"s_getreg_b32 s11, hwreg(HW_REG_HW_ID)\nv_mov_b32 v5, s11\nbuffer_store_dword v5, v4, {sr(SW)}, s10 offen offset:48")
    a("L_end:\ns_endpgm\nL_codeend:")

    lines = a.lines
    if diag:
        pre = [f"s_mov_b32 s{80+2*k}, 0" for k in range(1, 10)]
        lines = lines[:1] + pre + lines[1:]
    lines, nins = insert_waits(lines)
    b = Asm(); b.lines = lines
    head = f"""; fused MLA decode attention (absorbed form) + squared-relu MLP, one persistent launch, 256 workgroups
; @launch grid=(256,1,1) block=(512,1,1) lds=163840
.amdgcn_target "amdgcn-amd-amdhsa--gfx950"
.text
.globl {KNAME}
.p2align 8
.type {KNAME},@function
{KNAME}:
"""
    foot = f"""
.section .rodata,"a"
.p2align 6
.amdhsa_kernel {KNAME}
  .amdhsa_next_free_vgpr 256
  .amdhsa_next_free_sgpr 102
  .amdhsa_accum_offset 256
  .amdhsa_group_segment_fixed_size 0
  .amdhsa_kernarg_size 112
  .amdhsa_user_sgpr_count 2
  .amdhsa_user_sgpr_kernarg_segment_ptr 1
  .amdhsa_system_sgpr_workgroup_id_x 1
  .amdhsa_float_denorm_mode_32 3
.end_amdhsa_kernel
"""
    txt = b.text()
    if P["pol"] != "nt":
        txt = txt.replace(" nt lds", f" {P['pol']} lds").replace(" nt\n", f" {P['pol']}\n")
    return head + txt + foot

if __name__ == "__main__":
    import json
    kw = json.loads(sys.argv[2]) if len(sys.argv) > 2 else {}
    open(sys.argv[1], "w").write(gen(**kw))
```

```python
import sys, math, struct
from asmlib import Asm, insert_waits
from gen_common import KNAME

EP, QP, QL, GO, ST, HP, DP, BP, STAMP = 0, 0x1000, 0x40000, 0x48000, 0x50000, 0x60000, 0x80000, 0x100000, 0x800000
WS_REC = 0x1000000
X = 131072
SPIN = 1 << 17

def f2u(x): return struct.unpack("<I", struct.pack("<f", x))[0]
def vr(a, n=4): return f"v[{a}:{a+n-1}]"
def sr(a, n=4): return f"s[{a}:{a+n-1}]"

SX, SC, SQ, SK, SW, SG = 40, 44, 48, 52, 56, 60
sF, sB = 20, 24
HINT = 64
DPPM = "row_mask:0xf bank_mask:0xf"

DEFAULT = dict(diag=False, c_ramp=((0,1),(1,6),(3,10)), uk_pre=0, phint=0, pf_wgs=16, bi_at=2, mlp_pos='g', cw_at=10, sm_pre=5, pv_fill=2, cyc=False, mlp_depth=16, ukpf=1, ukpf_wait=True, cpf=0, cpf_depth=4, wo_depth=8, wo_early=0, wo_edepth=2, wuv_depth=8, wo_rot=True, wo_bar=(15, 21), abl=(), go_common=True, prio=True,
               go_at=31, out_pol="sc1", fhint=2, qhint=0, lhint=1, bhint=4, hhint=2, prefetch=True, role_bit=0,
               wo_pol="", x_pol="", mlp_late=False, pol="nt", calib=0, q_at=31, hsleep=0, pretouch=True, st_poll=False)

def gen(**kw):
    P = dict(DEFAULT); P.update(kw)
    diag = P["diag"]
    a = Asm()
    def stamp(k):
        if diag: a(f"{'s_memtime' if P['cyc'] else 's_memrealtime'} s[{80+2*k}:{81+2*k}]")
    def srd(base, size):
        a(f"s_mov_b32 s{base+2}, {size}\ns_mov_b32 s{base+3}, 0x20000")
    def ep_load(): a(f"s_load_dword s35, s[{SW}:{SW+1}], {EP}")
    def tags(need_b=True):
        for q in range(4): a(f"s_add_u32 s{sF+q}, s35, {q+1}")
        if need_b:
            for q in range(4): a(f"s_and_b32 s{sB+q}, s{sF+q}, 3\ns_mul_i32 s{sB+q}, s{sB+q}, 0x8001")
    def allreduce(op, v, t1):
        for r in (1, 2, 4, 8):
            a(f"{op}_dpp v{v}, v{v}, v{v} row_ror:{r} {DPPM}")
        for sw in ("v_permlane16_swap_b32", "v_permlane32_swap_b32"):
            a(f"v_mov_b32 v{t1}, v{v}\n{sw} v{t1}, v{v}\n{op} v{v}, v{v}, v{t1}")
    def rnd_bf16(d, s):
        a(f"v_cvt_pk_bf16_f32 v{d}, v{s}, v{s}\nv_and_b32 v{d}, 0xffff0000, v{d}")
    def unpack2(d, s):
        a(f"v_lshlrev_b32 v{d}, 16, v{s}\nv_and_b32 v{d+1}, 0xffff0000, v{s}")
    def ln_stats(xr, f, t):
        for i in range(4): unpack2(f+2*i, xr+i)
        a(f"v_add_f32 v{t}, v{f}, v{f+1}\nv_add_f32 v{t+1}, v{f+2}, v{f+3}\nv_add_f32 v{t+2}, v{f+4}, v{f+5}\nv_add_f32 v{t+3}, v{f+6}, v{f+7}")
        a(f"v_add_f32 v{t}, v{t}, v{t+1}\nv_add_f32 v{t+2}, v{t+2}, v{t+3}\nv_add_f32 v{t}, v{t}, v{t+2}")
        allreduce("v_add_f32", t, t+2)
        a(f"v_mul_f32 v{t}, {f2u(1/512)}, v{t}")
        a(f"v_sub_f32 v{t+2}, v{f}, v{t}\nv_mul_f32 v{t+1}, v{t+2}, v{t+2}")
        for i in range(1, 8):
            a(f"v_sub_f32 v{t+2+(i&1)}, v{f+i}, v{t}\nv_fmac_f32 v{t+1}, v{t+2+(i&1)}, v{t+2+(i&1)}")
        allreduce("v_add_f32", t+1, t+2)
        a(f"v_mul_f32 v{t+1}, {f2u(1/512)}, v{t+1}")
        rnd_bf16(t, t)
        rnd_bf16(t+1, t+1)
        a(f"v_add_f32 v{t+1}, {f2u(1e-5)}, v{t+1}")
        rnd_bf16(t+1, t+1)
        a(f"v_sqrt_f32 v{t+1}, v{t+1}")
        rnd_bf16(t+1, t+1)
        a(f"v_rcp_f32 v{t+1}, v{t+1}")
    def delta_masks(m, t):
        a(f"""v_and_b32 v{t}, 1, v0
        v_lshlrev_b32 v{t}, 4, v{t}
        v_mov_b32 v{t+1}, 0xffff
        v_lshlrev_b32 v{t}, v{t}, v{t+1}
        v_bfe_u32 v{t+1}, v0, 1, 3""")
        for dw in range(4):
            a(f"v_cmp_eq_u32 vcc, {dw}, v{t+1}\nv_cndmask_b32 v{m+dw}, 0, v{t}, vcc")
    def check(acc, first, n, tagbase, start):
        for i in range(n):
            if start and i == 0: a(f"v_xor_b32 v{acc}, s{tagbase}, v{first}")
            else: a(f"v_bitop3_b32 v{acc}, v{acc}, v{first+i}, s{tagbase+(i&3)} bitop3:0xf6")
    def spin(label, cond_branch, pre=""):
        a(f"""s_add_u32 s28, s28, 1
        s_cmp_gt_u32 s28, {SPIN}
        s_cbranch_scc1 L_exit
        {pre}
        {cond_branch} {label}""")
    def shint(label, offs, kind):
        if not offs: return
        a(f"{label}:")
        if P["hsleep"]: a(f"s_sleep {P['hsleep']}")
        n = len(offs)
        if kind == 'd':
            for x, o in enumerate(offs): a(f"s_load_dword s{HINT+x}, s[{SW}:{SW+1}], s{o} glc")
            a("s_waitcnt lgkmcnt(0)")
            for x in range(n):
                a(f"s_xor_b32 s{HINT+x}, s{HINT+x}, s{sF}")
                if x: a(f"s_or_b32 s{HINT}, s{HINT}, s{HINT+x}")
            fin = f"s_and_b32 s{HINT}, s{HINT}, 0xff"
        elif kind == 't':
            for x, o in enumerate(offs): a(f"s_load_dwordx2 {sr(HINT+2*x,2)}, s[{SW}:{SW+1}], s{o} glc")
            a("s_waitcnt lgkmcnt(0)")
            for x in range(n):
                a(f"s_xor_b32 s{HINT+2*x+1}, s{HINT+2*x+1}, s{sF}")
                if x: a(f"s_or_b32 s{HINT+1}, s{HINT+1}, s{HINT+2*x+1}")
            fin = f"s_cmp_lg_u32 s{HINT+1}, 0"
        else:
            tb, mask = (sB, 0x10001) if kind == 'b' else (sF, 0xff)
            for x, o in enumerate(offs): a(f"s_load_dwordx4 {sr(HINT+4*x)}, s[{SW}:{SW+1}], s{o} glc")
            a("s_waitcnt lgkmcnt(0)")
            for x in range(4*n):
                a(f"s_xor_b32 s{HINT+x}, s{HINT+x}, s{tb+(x&3)}")
                if x: a(f"s_or_b32 s{HINT}, s{HINT}, s{HINT+x}")
            fin = f"s_and_b32 s{HINT}, s{HINT}, {mask}"
        spin(label, "s_cbranch_scc1", fin)
    def hint_offs(n, seed, modmask, shift, base, spread):
        for x in range(n):
            a(f"s_add_u32 s{30+x}, s{seed}, {x*spread}\ns_and_b32 s{30+x}, s{30+x}, {modmask}\ns_lshl_b32 s{30+x}, s{30+x}, {shift}\ns_add_u32 s{30+x}, s{30+x}, s{base}")
        return [30+x for x in range(n)]

    stamp(0)
    if P["calib"]: a("s_memrealtime s[80:81]")
    a(f"""s_load_dwordx2 s[{SX}:{SX+1}], s[0:1], 0""")
    if P["prefetch"]:
        a(f"""s_cmp_ge_u32 s2, {P['pf_wgs']}
        s_cbranch_scc1 L_nopf
        s_getpc_b64 s[10:11]
        L_pc:
        v_lshlrev_b32 v4, 6, v0
        v_min_u32 v4, L_codeend - L_pc - 4, v4
        global_load_dword v255, v4, s[10:11]
        L_nopf:""")
    a(f"""s_load_dwordx2 s[{SQ}:{SQ+1}], s[0:1], 16
    s_load_dwordx2 s[{SK}:{SK+1}], s[0:1], 24
    s_load_dwordx2 s[{SC}:{SC+1}], s[0:1], 8
    s_load_dwordx2 s[{SW}:{SW+1}], s[0:1], 104
    v_lshrrev_b32 v1, 6, v0
    s_cmp_ge_u32 s2, 256
    s_cbranch_scc1 L_end
    v_readfirstlane_b32 s3, v1
    v_and_b32 v0, 63, v0
    s_and_b32 s4, s2, 7""")
    if P["role_bit"] == 0:
        a("s_bfe_u32 s6, s2, 0x10003\ns_lshr_b32 s5, s2, 4")
    else:
        a("s_lshr_b32 s6, s2, 7\ns_bfe_u32 s5, s2, 0x40003")
    a(f"""s_lshr_b32 s7, s5, 2
    s_lshl2_add_u32 s7, s4, s7
    s_and_b32 s8, s5, 3
    s_mov_b32 s28, 0""")
    srd(SW, WS_REC)
    a(f"""v_and_b32 v2, 15, v0
    v_lshrrev_b32 v3, 4, v0
    v_lshlrev_b32 v41, 5, v2
    v_lshl_add_u32 v41, v3, 4, v41
    s_cmp_eq_u32 s6, 1
    s_cbranch_scc1 L_ATT
    s_sub_u32 s9, s3, 5
    s_cmp_lt_u32 s9, 2
    s_cbranch_scc0 L_WGT""")

    def xn_operands(nout, st=None):
        delta_masks(32, 36)
        a(f"v_mov_b32 v40, 0xff\ns_waitcnt vmcnt({nout})")
        if st is not None: stamp(st)
        ln_stats(8, 16, 24)
        a("v_lshlrev_b32 v12, 16, v12\nv_sub_f32 v12, v12, v24")
        rnd_bf16(12, 12)
        a("v_mul_f32 v12, v12, v25\nv_cvt_pk_bf16_f32 v12, v12, v12")
        for t in range(16):
            for dw in range(4):
                a(f"v_and_b32_dpp v{128+4*t+dw}, v12, v{32+dw} row_newbcast:{t} {DPPM}")
    def delta_gemv16(db=64, waits=None, between=None):
        for t in range(16):
            a(f"s_waitcnt vmcnt({15-t if waits is None else waits(t)})")
            if between: between(t)
            a(f"v_mfma_f32_16x16x32_bf16 v[44:47], {vr(128+4*t)}, {vr(db+4*t)}, {'0' if t == 0 else 'v[44:47]'}")
        for r in range(4):
            a(f"v_bfi_b32 v{44+r}, v40, s{sF+r}, v{44+r}")
        a(f"""s_mov_b32 exec_hi, 0
        buffer_store_dwordx4 v[44:47], v41, {sr(SW)}, s10 offen sc1
        s_mov_b64 exec, -1""")

    a("L_A12:")
    srd(SX, 1024); srd(SQ, 4 << 20)
    a(f"""s_lshl1_add_u32 s29, s8, s9
    s_lshl_b32 s10, s29, 19
    s_lshl_b32 s11, s7, 8
    s_add_u32 s10, s10, s11
    s_mov_b32 s13, s10
    s_lshl_b32 s11, s29, 7
    v_lshlrev_b32 v4, 4, v0
    v_lshlrev_b32 v5, 1, v0
    v_lshlrev_b32 v6, 17, v3
    v_lshl_add_u32 v6, v2, 4, v6
    s_movk_i32 s12, 0x2000
    s_waitcnt lgkmcnt(0)
    buffer_load_dwordx4 v[8:11], v4, {sr(SX)}, 0 offen {P['x_pol']}
    buffer_load_ushort v12, v5, {sr(SX)}, s11 offen {P['x_pol']}""")
    for t in range(16):
        a(f"buffer_load_dwordx4 {vr(64+4*t)}, v6, {sr(SQ)}, s10 offen nt")
        if t < 15: a("s_add_u32 s10, s10, s12")
    srd(SK, 4 << 20)
    a(f"""s_lshl_b32 s12, s9, 14
    s_add_u32 s12, s12, {X}
    s_mov_b32 m0, s12
    v_lshlrev_b32 v4, 2, v3
    v_xor_b32 v4, v4, v2
    v_lshlrev_b32 v4, 4, v4
    v_lshl_add_u32 v48, v3, 13, v4
    v_xor_b32 v49, 16, v48
    v_xor_b32 v50, 32, v48
    v_xor_b32 v51, 48, v48
    s_mov_b32 s14, 0x8000""")
    def uk_load(rg):
        a(f"buffer_load_dwordx4 v{48+(rg&3)}, {sr(SK)}, s13 offen nt lds")
        if rg < 15: a("s_add_u32 m0, m0, 1024\ns_add_u32 s13, s13, s14")
    up = P["uk_pre"]
    for rg in range(up): uk_load(rg)
    ep_load()
    stamp(1)
    a(f"""s_lshl3_add_u32 s10, s7, s29
    s_lshl_b32 s10, s10, 9
    s_add_u32 s10, s10, {QP}""")
    xn_operands(16 + up)
    a("s_waitcnt lgkmcnt(0)")
    tags(False)
    delta_gemv16(64, lambda t: 15 - t + min(16, up + t), lambda t: uk_load(up + t) if up + t < 16 else None)
    stamp(2)
    a(f"""v_and_b32 v4, 3, v0
    v_bfe_u32 v5, v0, 2, 2
    v_lshl_or_b32 v6, v4, 2, v5
    v_xor_b32 v6, v6, v3
    v_lshlrev_b32 v6, 4, v6
    v_lshlrev_b32 v5, 10, v5
    v_lshl_add_u32 v5, v4, 8, v5
    v_add_u32 v5, s12, v5""")
    for t in range(4):
        a(f"v_xor_b32 v4, {64*t}, v6\nv_add_u32 v{10+t}, v5, v4")
    a(f"""s_add_u32 s13, s9, 1
    s_lshl_b32 s13, s13, 15
    v_lshl_add_u32 v5, v3, 4, s13
    s_lshl_b32 s10, s7, 10
    s_add_u32 s10, s10, s11
    s_add_u32 s10, s10, {QL}
    v_lshlrev_b32 v4, 1, v0
    v_cmp_eq_u32 s[14:15], 1, v3
    v_cmp_eq_u32 s[16:17], 2, v3
    v_cmp_eq_u32 s[18:19], 3, v3
    v_bfe_u32 v7, v0, 1, 2
    v_add_u32 v7, s{sF}, v7
    v_and_b32 v8, 1, v0
    v_lshrrev_b32 v7, v8, v7
    v_and_b32 v7, 1, v7
    v_xor_b32 v8, 1, v7
    v_lshlrev_b32 v8, 16, v8""")
    for T in range(4):
        a(f"s_waitcnt vmcnt({13-4*T})")
        for t in range(4):
            a(f"ds_read_b128 {vr(64+16*T+4*t)}, v{10+t} offset:{4096*T}")
    a("s_waitcnt lgkmcnt(0)")
    stamp(3)
    a("s_barrier")
    for t in range(4):
        a(f"ds_read_b128 {vr(16+4*t)}, v5 offset:{64*t}")
    for t in range(4):
        a(f"s_waitcnt lgkmcnt({3-t})")
        for T in range(4):
            a(f"v_mfma_f32_16x16x32_bf16 {vr(32+4*T)}, {vr(16+4*t)}, {vr(64+16*T+4*t)}, {'0' if t == 0 else vr(32+4*T)}")
    qs = math.log2(math.e) / math.sqrt(128.0)
    a(f"""v_cndmask_b32 v9, v32, v36, s[14:15]
    v_cndmask_b32 v9, v9, v40, s[16:17]
    v_cndmask_b32 v9, v9, v44, s[18:19]
    v_mul_f32 v9, {f2u(qs)}, v9
    v_add_u32 v9, v9, v8
    v_lshrrev_b32 v9, 17, v9
    v_lshl_or_b32 v9, v9, 1, v7
    buffer_store_short v9, v4, {sr(SW)}, s10 offen sc1""")
    stamp(4)
    a("s_branch L_WO")

    a(f"""L_WGT:
    s_cmp_eq_u32 s3, 4
    s_cbranch_scc0 L_WGT_other
    s_lshl_b32 s10, s7, 12
    s_add_u32 s10, s10, {QP}
    v_lshlrev_b32 v4, 4, v0
    s_waitcnt lgkmcnt(0)""")
    ep_load()
    a(f"""v_lshrrev_b32 v5, 5, v0
    v_and_b32 v6, 31, v0
    v_lshlrev_b32 v5, 15, v5
    v_lshl_add_u32 v5, v6, 3, v5
    v_add_u32 v5, 32768, v5
    v_mov_b32 v40, 0xff
    s_lshl_b32 s11, s8, 7
    s_add_u32 s11, s11, s10
    s_waitcnt lgkmcnt(0)""")
    tags(False)
    np_ = P["phint"]
    for x in range(np_): a(f"s_add_u32 s{72+x}, s11, {512*(x*8//np_)}")
    shint("L_phint", [72+x for x in range(np_)], 'd')
    stamp(1)
    a("L_qp_poll:")
    for u in range(4):
        a(f"buffer_load_dwordx4 {vr(64+4*u)}, v4, {sr(SW)}, s10 offen offset:{1024*u} sc1")
    a("s_waitcnt vmcnt(0)")
    stamp(2)
    check(13, 64, 16, sF, True)
    a("v_and_b32 v13, v40, v13\nv_cmp_ne_u32 vcc, 0, v13")
    for q in range(4):
        a(f"v_add_f32 v{64+q}, v{64+q}, v{68+q}\nv_add_f32 v{72+q}, v{72+q}, v{76+q}")
    spin("L_qp_poll", "s_cbranch_vccnz")
    for q in range(4):
        a(f"v_add_f32 v{64+q}, v{64+q}, v{72+q}\nv_mov_b32 v{68+q}, v{64+q}")
    for q in range(4):
        a(f"v_permlane32_swap_b32 v{68+q}, v{64+q}")
    for q in range(4):
        a(f"v_add_f32 v{64+q}, v{64+q}, v{68+q}")
    a("""v_cvt_pk_bf16_f32 v64, v64, v65
    v_cvt_pk_bf16_f32 v65, v66, v67
    ds_write_b64 v5, v[64:65]
    s_waitcnt lgkmcnt(0)""")
    stamp(3)
    a("s_barrier\ns_branch L_WO")

    a("L_ATT:")
    a(f"""s_lshl4_add_u32 s9, s4, s5
    s_cmp_ge_u32 s3, 4
    s_cbranch_scc1 L_ATT_help""")
    srd(SC, 16 << 20)
    a(f"""s_lshl2_add_u32 s10, s9, s3
    s_lshl_b32 s10, s10, 15
    s_lshl_b32 s11, s3, 13
    v_lshlrev_b32 v4, 2, v3
    v_xor_b32 v4, v4, v2
    v_lshlrev_b32 v4, 4, v4
    v_lshl_add_u32 v32, v3, 10, v4
    v_xor_b32 v33, 32, v32
    s_mov_b32 m0, s11
    s_movk_i32 s15, 0x1000
    s_waitcnt lgkmcnt(0)""")
    ramp = P["c_ramp"]
    def tdepth(l): return [d for (k, d) in ramp if k <= l][-1]
    seq = []
    def go_store():
        a(f"s_mov_b64 exec, 1\nbuffer_store_dwordx2 v[122:123], v124, {sr(SW)}, s14 offen sc1\ns_mov_b64 exec, -1")
        seq.append("go")
    def c_load(n):
        cb, rg = n >> 3, n & 7
        a(f"buffer_load_dwordx4 v{32+(rg&1)}, {sr(SC)}, s10 offen nt lds")
        seq.append(n)
        if n < 31:
            if rg < 7: a("s_addk_i32 m0, 0x400\ns_add_u32 s10, s10, s15")
            else: a(f"s_addk_i32 m0, {32768 - 7*1024}\ns_sub_u32 s10, s10, {7*4096 - 256}")
        if n == P["q_at"]:
            a("ds_write_b32 v125, v2")
        if n == P["go_at"]: go_store()
    def c_wait(n):
        a(f"s_waitcnt vmcnt({len(seq) - 1 - seq.index(n)})")
    issued = 0
    for n in range(tdepth(0)): c_load(n); issued += 1
    a(f"""s_add_u32 s16, s11, {X}
    v_mov_b32 v125, s16
    v_mov_b32 v124, 0
    ds_write_b32 v125, v124""")
    ep_load()
    stamp(1)
    a(f"""v_and_b32 v4, 3, v0
    v_lshrrev_b32 v1, 5, v0
    v_bfe_u32 v5, v0, 2, 2
    v_lshl_or_b32 v5, v4, 2, v5
    v_xor_b32 v5, v5, v1
    v_lshlrev_b32 v5, 4, v5
    v_and_b32 v7, 31, v0
    v_lshl_add_u32 v7, v7, 10, v5
    v_add_u32 v16, {X}, v7
    v_bfe_u32 v5, v0, 2, 1
    v_lshl_or_b32 v5, v4, 1, v5
    v_lshl_or_b32 v5, v5, 1, v1
    v_lshlrev_b32 v5, 4, v5
    v_bfe_u32 v6, v0, 2, 3
    v_lshl_add_u32 v5, v6, 10, v5
    v_lshl_add_u32 v5, v4, 8, v5
    v_add_u32 v8, s11, v5""")
    for x in range(1, 8):
        a(f"v_xor_b32 v{8+x}, {32*x}, v8\nv_xor_b32 v{16+x}, {32*x}, v16")
    a(f"""v_bfe_u32 v4, v0, 2, 2
    v_bfe_u32 v5, v0, 4, 1
    v_bfe_u32 v6, v0, 1, 1
    v_lshl_or_b32 v6, v5, 1, v6
    v_lshl_or_b32 v6, v4, 2, v6
    v_lshlrev_b32 v6, 4, v6
    v_lshl_add_u32 v6, v4, 8, v6
    v_lshl_add_u32 v6, v5, 10, v6
    v_lshl_add_u32 v6, v1, 12, v6
    v_and_b32 v4, 1, v0
    v_lshl_add_u32 v6, v4, 3, v6
    s_lshl_b32 s12, s3, 15
    v_add_u32 v24, s12, v6""")
    for n in range(1, 8):
        a(f"v_xor_b32 v{24+n}, {32*n}, v24")
    a(f"""v_lshlrev_b32 v6, 5, v2
    v_lshl_add_u32 v6, v5, 4, v6
    v_add_u32 v96, {X+8192}, v6
    v_xor_b32 v116, 16, v96
    v_and_b32 v4, 31, v0
    v_lshlrev_b32 v6, 5, v4
    v_lshl_add_u32 v6, v1, 4, v6
    s_lshl2_add_u32 s13, s3, {X+8192}
    v_add_u32 v97, s13, v6
    v_lshlrev_b32 v6, 4, v2
    v_lshl_add_u32 v7, v5, 9, v6
    v_lshl_add_u32 v7, v1, 10, v7
    v_add_u32 v98, {X}, v7
    s_lshl_b32 s13, s3, 11
    s_add_u32 s13, s13, {X}
    v_lshl_add_u32 v99, v0, 4, s13
    v_lshl_add_u32 v3, v3, 19, v6
    s_lshl_b32 s13, s9, 8
    s_add_u32 s12, s12, s13
    s_add_u32 s12, s12, {BP}
    s_lshl_b32 s14, s9, 7
    s_add_u32 s14, s14, {GO}
    s_cmp_eq_u32 s3, 0
    s_cselect_b32 s14, s14, 0x7ffffff0
    s_waitcnt lgkmcnt(0)""")
    tags(True)
    a(f"""v_mov_b32 v2, 0x10001
    v_mov_b32 v122, s{sF}
    v_mov_b32 v123, s{sF}""")
    for hh in range(2):
        for r in range(4):
            a(f"s_add_u32 s{64+4*hh+r}, s12, {(16*hh + r)*131072}")
    lq = []
    def lop(text, key): a(text); lq.append(key)
    def lwait(items):
        last = max([i for i, x in enumerate(lq) if x in items], default=-1)
        if last >= 0: a(f"s_waitcnt lgkmcnt({min(15, len(lq) - 1 - last)})")
        del lq[:last+1]
    def c_read(t):
        lop(f"ds_read_b128 {vr(128+4*t)}, v{8+(t&7)} offset:{32768*((t>>3)&1)}", ("C", t))
        if t >> 3 == 1: a(f"v_add_u32 v{8+(t&7)}, 0x10000, v{8+(t&7)}")
    landed = 0; pre = 0
    while issued < 32:
        c_wait(landed); landed += 1
        while issued < 32 and issued - landed < tdepth(landed):
            c_load(issued); issued += 1
        if landed == P["bi_at"]: a("s_barrier")
        if landed >= 8*(pre+1):
            for t in range(8*pre, 8*pre+8): c_read(t)
            pre += 1
    stamp(2)
    while pre < 3:
        c_wait(8*pre + 7)
        for t in range(8*pre, 8*pre+8): c_read(t)
        pre += 1
    a("s_barrier")
    if P["go_at"] == "B0": go_store()
    stamp(3)
    def qslot(t):
        k = t % 12
        return 32 + 4*k if k < 8 else 100 + 4*(k - 8)
    def q_read(t): lop(f"ds_read_b128 {vr(qslot(t))}, v{16+(t&7)} offset:{256*(t>>3)}", ("Q", t))
    def pv_read(n, w):
        base = 128 + 16*n + 4*w
        for sec in range(2):
            lop(f"ds_read_b64_tr_b16 {vr(base+2*sec,2)}, v{24+n} offset:{8192*w + 2048*sec}", ("F", n, w))
    pv0 = [(n, w) for w in range(4) for n in range(4)]
    pv1 = [(n, w) for n in range(4, 8) for w in range(4)]
    rd = 0
    TB = 23
    for t in range(32):
        tgt = t + 5 if t < 16 else min(32, t + 5 + 2*(t - 15))
        tgt = min(tgt, t + 11, 32)
        while rd < tgt: q_read(rd); rd += 1
        if t == P["cw_at"]:
            c_wait(31)
            if P["go_at"] == "CL": go_store()
        if P["cw_at"] <= t < P["cw_at"] + 4: c_read(24 + 2*(t - P["cw_at"])); c_read(25 + 2*(t - P["cw_at"]))
        if t == TB:
            a("s_waitcnt lgkmcnt(0)"); del lq[:]
            stamp(4)
            a("s_barrier")
        lwait([("Q", t), ("C", t)])
        a(f"v_mfma_f32_32x32x16_bf16 {vr(64,16)}, {vr(128+4*t)}, {vr(qslot(t))}, {'0' if t == 0 else vr(64,16)}")
        if t >= TB:
            for _ in range(2):
                if pv0: pv_read(*pv0.pop(0))
    assert not pv0
    for _ in range(P["sm_pre"]): pv_read(*pv1.pop(0))
    a(f"""v_max3_f32 v4, v64, v65, v66
    v_max3_f32 v5, v67, v68, v69
    v_max3_f32 v6, v70, v71, v72
    v_max3_f32 v7, v73, v74, v75
    v_max3_f32 v4, v4, v76, v77
    v_max3_f32 v5, v5, v78, v79
    v_max3_f32 v4, v4, v5, v6
    v_max_f32 v4, v4, v7
    v_ceil_f32 v20, v4""")
    for r in range(0, 16, 2):
        a(f"v_pk_add_f32 {vr(64+r,2)}, {vr(64+r,2)}, v[20:21] op_sel_hi:[1,0] neg_lo:[0,1] neg_hi:[0,1]")
    a(f"v_mul_f32 v20, {f2u(128.0)}, v20\nds_write_b32 v97, v20")
    for r in range(16):
        a(f"v_exp_f32 v{64+r}, v{64+r}")
        if r >= 3 and r & 1: a(f"v_cvt_pk_bf16_f32 v{80+(r-3)//2}, v{64+r-3}, v{64+r-2}")
        if r == 9: a("ds_write_b128 v99, v[80:83]")
    a("v_pk_add_f32 v[64:65], v[64:65], v[66:67]\nv_cvt_pk_bf16_f32 v87, v78, v79\nds_write_b128 v99, v[84:87] offset:1024")
    a("""v_pk_add_f32 v[68:69], v[68:69], v[70:71]
    v_pk_add_f32 v[72:73], v[72:73], v[74:75]
    v_pk_add_f32 v[76:77], v[76:77], v[78:79]
    v_pk_add_f32 v[64:65], v[64:65], v[68:69]
    v_pk_add_f32 v[72:73], v[72:73], v[76:77]
    v_pk_add_f32 v[64:65], v[64:65], v[72:73]
    v_add_f32 v64, v64, v65
    ds_write_b32 v97, v64 offset:1024
    s_waitcnt lgkmcnt(0)""")
    del lq[:]
    stamp(5)
    a("s_barrier")
    def m_read(hh):
        lop(f"ds_read_b128 {vr(8+8*hh)}, v96 offset:{512*hh}", ("M", hh))
        lop(f"ds_read_b128 {vr(12+8*hh)}, v116 offset:{512*hh}", ("M", hh))
    def p_read(hh, w): lop(f"ds_read_b128 {vr(32+16*hh+4*w)}, v98 offset:{2048*w + 256*hh}", ("P", hh, w))
    m_read(0)
    for w in range(4): p_read(0, w)
    m_read(1)
    for w in range(4): p_read(1, w)
    def dcalc(hh):
        o, x = 8 + 8*hh, 12 + 8*hh
        return [f"v_max3_f32 v{x}, v{x}, v{x+1}, v{x+2}", f"v_max3_f32 v{x+1}, v{o}, v{o+1}, v{o+2}",
                f"v_max3_f32 v{x}, v{x}, v{x+3}, v{o+3}", f"v_max_f32 v{x}, v{x}, v{x+1}",
                f"v_pk_add_f32 {vr(o,2)}, {vr(x,2)}, {vr(o,2)} op_sel_hi:[0,1] neg_lo:[0,1] neg_hi:[0,1]",
                f"v_cvt_u32_f32 v{o}, v{o}", f"v_cvt_u32_f32 v{o+1}, v{o+1}", f"v_cvt_pk_u16_u32 v{4+2*hh}, v{o}, v{o+1}",
                f"v_pk_add_f32 {vr(o+2,2)}, {vr(x,2)}, {vr(o+2,2)} op_sel_hi:[0,1] neg_lo:[0,1] neg_hi:[0,1]",
                f"v_cvt_u32_f32 v{o+2}, v{o+2}", f"v_cvt_u32_f32 v{o+3}, v{o+3}", f"v_cvt_pk_u16_u32 v{5+2*hh}, v{o+2}, v{o+3}"]
    def pscale(hh, w):
        d = 4 + 2*hh + (w >> 1); sel = w & 1
        return [f"v_pk_sub_u16 v{32+16*hh+4*w+q}, v{32+16*hh+4*w+q}, v{d} op_sel:[0,{sel}] op_sel_hi:[1,{sel}] clamp" for q in range(4)]
    def outblk(hh, r): return (8 if hh == 0 else 64) + 4*r
    def pack(hh, q):
        L = []
        for r in range(4):
            o = outblk(hh, r) + q
            L += [f"v_cvt_pk_bf16_f32 v{o}, v{64+32*hh+8*q+r}, v{64+32*hh+8*q+4+r}", f"v_bfi_b32 v{o}, v2, s{sB+q}, v{o}"]
        return L
    def ostore(hh, r): return f"buffer_store_dwordx4 {vr(outblk(hh, r))}, v3, {sr(SW)}, s{64+4*hh+r} offen sc1"
    order = []
    for hh in range(2):
        if hh == 0:
            order += [(0, n, w) for w in range(4) for n in range(4)] + [(0, n, w) for n in range(4, 8) for w in range(4)]
        else:
            order += [(1, n, w) for n in range(8) for w in range(4)]
    pos_last = {}
    for i, (hh, n, w) in enumerate(order): pos_last[(hh, n)] = i
    F = []
    d0 = dcalc(0)
    lwait([("M", 0)])
    for l in d0[:8]: a(l)
    lwait([("P", 0, 0)])
    for l in pscale(0, 0): a(l)
    F += [(0, 3, "w", [("P", 0, 1)])] + [(0, 3, "i", l) for l in pscale(0, 1)]
    F += [(0, 7, "i", l) for l in d0[8:]] + [(0, 7, "w", [("P", 0, 2)])] + [(0, 7, "i", l) for l in pscale(0, 2)]
    F += [(0, 11, "w", [("P", 0, 3)])] + [(0, 11, "i", l) for l in pscale(0, 3)]
    for (n, w) in pv1: F.append((0, 16 + 4*(n-4) + w - 5, "r", (n, w)))
    F += [(0, 30, "w", [("M", 1), ("P", 1, 3)])] + [(0, 30, "i", l) for l in dcalc(1)]
    for w in range(4): F += [(0, 30, "i", l) for l in pscale(1, w)]
    GAP = 3
    for q in range(4): F += [(pos_last[(0, 2*q+1)] + GAP, 99, "i", l) for l in pack(0, q)]
    for r in range(4): F.append((0, 99, "i", ostore(0, r)))
    for q in range(3): F += [(pos_last[(1, 2*q+1)] + GAP, 99, "i", l) for l in pack(1, q)]
    def emit(f):
        if f[2] == "i": a(f[3]); return 1
        if f[2] == "w": lwait(f[3]); return 0
        pv_read(*f[3]); return 2
    for i, (hh, n, w) in enumerate(order):
        lwait([("F", n, w)])
        acc = 64 + 32*hh + 4*n
        a(f"v_mfma_f32_16x16x32_bf16 {vr(acc)}, {vr(32+16*hh+4*w)}, {vr(128+16*n+4*w)}, {'0' if w == 0 else vr(acc)}")
        used = 0
        while F and F[0][0] <= i and (used < P["pv_fill"] or any(f[1] <= i for f in F)):
            used += emit(F.pop(0))
    stamp(6)
    while F: emit(F.pop(0))
    pk = pack(1, 3)
    for r in range(4):
        a(pk[2*r]); a(pk[2*r+1]); a(ostore(1, r))
    stamp(7)
    if diag:
        a("s_waitcnt vmcnt(0)"); stamp(8)
    a("s_branch L_exit")

    a("L_ATT_help:")
    a("s_waitcnt lgkmcnt(0)")
    ep_load()
    if P["ukpf"]:
        srd(SK, 4 << 20)
        a(f"""s_sub_u32 s10, s3, 4
        s_lshl2_add_u32 s10, s8, s10
        s_lshl_b32 s10, s10, 18
        s_lshl_b32 s11, s7, 8
        s_add_u32 s10, s10, s11
        v_lshrrev_b32 v4, 1, v0
        v_and_b32 v5, 1, v0
        v_lshlrev_b32 v4, 13, v4
        v_lshl_add_u32 v4, v5, 7, v4""")
        if P["ukpf_wait"]: a("s_waitcnt lgkmcnt(0)")
        a(f"buffer_load_dword v254, v4, {sr(SK)}, s10 offen")
        if P["ukpf"] == 2: a(f"buffer_load_dword v253, v4, {sr(SK)}, s10 offen offset:64")
    a("s_waitcnt lgkmcnt(0)")
    tags(True)
    if P["mlp_pos"] not in ("w", "g"):
        srd(SX, 1024)
        a(f"""s_and_b32 s29, s5, 7
        s_cmp_ge_u32 s3, 6
        s_cbranch_scc1 L_ATT_help2
        s_lshl_b32 s11, s29, 7
        v_lshlrev_b32 v4, 4, v0
        v_lshlrev_b32 v5, 1, v0
        buffer_load_dwordx4 v[8:11], v4, {sr(SX)}, 0 offen
        buffer_load_ushort v12, v5, {sr(SX)}, s11 offen""")
        xn_operands(0)
    a("L_ATT_help2:")
    a(f"""s_lshl4_add_u32 s9, s4, s5
    s_sub_u32 s10, s3, 4
    s_lshl_b32 s11, s10, 13
    s_add_u32 s12, s11, {QL}
    s_add_u32 s13, s11, {X}
    s_and_b32 s14, s10, 1
    s_lshl_b32 s14, s14, 5
    v_lshlrev_b32 v4, 4, v0
    v_add_u32 v5, s13, v4
    v_xor_b32 v4, s14, v4
    v_mov_b32 v6, 0x10001
    s_movk_i32 s16, 0xff""")
    for r in range(8):
        f = ((r & 3) << 2) | (r >> 2)
        a(f"v_xor_b32 v{8+r}, {16*f}, v4")
    if P["mlp_pos"] not in ("w", "g"):
        a(f"""s_mov_b32 s38, 0
        s_cmp_eq_u32 s3, 4
        s_cselect_b32 s15, 56, 72
        s_load_dwordx2 s[{SC}:{SC+1}], s[0:1], s15
        s_load_dwordx2 s[{SK}:{SK+1}], s[0:1], 64
        v_lshlrev_b32 v21, 3, v3
        s_cbranch_scc0 L_ms2
        s_lshr_b32 s18, s5, 3
        s_lshl1_add_u32 s18, s4, s18
        s_mul_i32 s19, s29, {64*3584}
        s_lshl_b32 s15, s18, 8
        s_add_u32 s19, s19, s15
        v_mul_u32_u24 v20, {16*3584}, v3
        s_movk_i32 s39, 3584
        s_cmp_lt_u32 s18, 14
        s_cselect_b32 s38, 1, 0
        s_branch L_ms3
        L_ms2:
        s_mul_i32 s18, s4, 14
        s_add_u32 s18, s18, s5
        s_lshl_b32 s19, s18, 14
        v_lshlrev_b32 v20, 12, v3
        s_movk_i32 s39, 256
        s_cmp_lt_u32 s5, 14
        s_cselect_b32 s38, 1, 0
        s_cmp_eq_u32 s3, 5
        s_cselect_b32 s38, s38, 0
        L_ms3:
        v_lshl_add_u32 v20, v2, 4, v20
        s_lshl_b32 s17, s18, 5""")
        srd(SC, 512*1792*2); srd(SK, 1792*2)
        a(f"s_waitcnt lgkmcnt(0)\nbuffer_load_dwordx2 v[48:49], v21, {sr(SK)}, s17 offen")
    a("s_barrier")
    nh = P["qhint"]
    shint("L_qhint", hint_offs(nh, 9, 63, 7, 12, 64//max(nh,1) + 1), 'b')
    if P["q_at"] is not None:
        a(f"""v_mov_b32 v16, s13
        L_qtrig:
        ds_read_b32 v17, v16
        s_waitcnt lgkmcnt(0)
        v_cmp_eq_u32 vcc, 0, v17
        s_sleep 1""")
        a("s_add_u32 s28, s28, 0x10000\ns_cbranch_scc1 L_exit\ns_cbranch_vccnz L_qtrig\ns_and_b32 s28, s28, 0xffff")
    stamp(5)
    a("L_qfetch:")
    for r in range(8):
        a(f"""s_bitcmp1_b32 s16, {r}
        s_cbranch_scc0 L_qs{r}
        s_add_u32 m0, s13, {1024*r}
        s_add_u32 s15, s12, {1024*r}
        buffer_load_dwordx4 v{8+r}, {sr(SW)}, s15 offen sc1 lds
        L_qs{r}:""")
    def mlp_loads():
        for t in range(16):
            a(f"buffer_load_dwordx4 {vr(192+4*t)}, v20, {sr(SC)}, s19 offen nt")
            if t < 15: a("s_add_u32 s19, s19, s39")
    if P["mlp_pos"] == "q":
        a("s_cmp_eq_u32 s38, 0\ns_cbranch_scc1 L_nomlp\ns_mov_b32 s38, 0")
        mlp_loads()
        a("s_waitcnt vmcnt(16)\ns_branch L_qchk\nL_nomlp:\ns_waitcnt vmcnt(0)\nL_qchk:")
    else: a("s_waitcnt vmcnt(0)")
    def mlp_bars():
        if P["mlp_pos"] == "b0": mlp_loads()
        a("s_barrier\ns_barrier")
        if P["mlp_pos"] == "bc": mlp_loads()
    for r in range(8):
        a(f"ds_read_b128 {vr(64+4*r)}, v5 offset:{1024*r}")
    a("s_mov_b32 s16, 0")
    for r in range(8):
        a(f"s_waitcnt lgkmcnt({7-r})")
        check(7, 64+4*r, 4, sB, True)
        a(f"v_and_b32 v7, v6, v7\nv_cmp_ne_u32 vcc, 0, v7\ns_cmp_lg_u64 vcc, 0\ns_cselect_b32 s17, {1<<r}, 0\ns_or_b32 s16, s16, s17")
    spin("L_qfetch", "s_cbranch_scc1", "s_cmp_lg_u32 s16, 0")
    stamp(6)
    a("s_barrier")
    if P["mlp_pos"] in ("w", "g"): a("s_cmp_lt_u32 s3, 6\ns_cbranch_scc1 L_exit")
    else: a("s_cmp_eq_u32 s3, 4\ns_cbranch_scc1 L_MLP1\ns_cmp_eq_u32 s3, 5\ns_cbranch_scc1 L_MLP2")
    a("s_cmp_eq_u32 s3, 6\ns_cbranch_scc1 L_FIN")
    a(f"""v_and_b32 v4, 31, v0
    v_lshlrev_b32 v5, 5, v4
    v_add_u32 v5, {X+8192}, v5
    v_lshlrev_b32 v6, 4, v0
    s_setprio 3
    v_mov_b32 v17, s{sF}
    v_mov_b32 v19, s{sF}
    v_mov_b32 v8, {f2u(1/128)}
    s_lshl_b32 s12, s9, 9
    s_add_u32 s12, s12, {ST}
    s_barrier
    s_barrier
    ds_read_b128 v[80:83], v5
    ds_read_b128 v[84:87], v5 offset:16
    ds_read_b128 v[88:91], v5 offset:1024
    ds_read_b128 v[92:95], v5 offset:1040
    s_waitcnt lgkmcnt(2)
    v_max3_f32 v4, v80, v81, v82
    v_max3_f32 v5, v83, v84, v85
    v_max3_f32 v4, v4, v86, v87
    v_max_f32 v4, v4, v5
    v_mul_f32 v16, v4, v8""")
    for x in range(8): a(f"v_fma_f32 v{80+x}, v{80+x}, v8, -v16")
    for x in range(8): a(f"v_exp_f32 v{80+x}, v{80+x}")
    a("s_waitcnt lgkmcnt(0)\nv_mul_f32 v18, v80, v88")
    for x in range(1, 8): a(f"v_fmac_f32 v18, v{80+x}, v{88+x}")
    a(f"""
    s_mov_b32 exec_hi, 0
    buffer_store_dwordx4 v[16:19], v6, {sr(SW)}, s12 offen sc1
    s_mov_b64 exec, -1""")
    stamp(7)
    a("s_branch L_exit")

    a("L_FIN:")
    a(f"""s_cmp_lt_u32 s5, 12
    s_cbranch_scc1 L_exit
    s_barrier
    s_barrier
    s_load_dwordx2 s[{SC}:{SC+1}], s[0:1], 80
    s_load_dwordx2 s[{SQ}:{SQ+1}], s[0:1], 88
    s_sub_u32 s10, s5, 12
    s_lshl2_add_u32 s10, s4, s10
    s_lshl_b32 s11, s10, 6
    s_lshl_b32 s16, s10, 5
    v_lshrrev_b32 v4, 2, v0
    v_and_b32 v5, 3, v0
    v_lshlrev_b32 v4, 11, v4
    v_lshl_add_u32 v4, v5, 4, v4
    v_lshlrev_b32 v5, 3, v5
    v_mov_b32 v6, 0xff""")
    srd(SX, 1024); srd(SC, 1024); srd(SQ, 1024)
    a(f"""s_waitcnt lgkmcnt(0)
    buffer_load_dwordx2 v[8:9], v5, {sr(SX)}, s16 offen
    buffer_load_dwordx2 v[10:11], v5, {sr(SC)}, s16 offen""")
    def fin_gather(label, first, n, dst):
        a(f"s_add_u32 s13, s11, {DP + first*2048}\ns_mul_i32 s14, s10, 3")
        shint(label + "_h", hint_offs(P["fhint"], 14, 63, 11, 13, 29), 'f')
        a(f"{label}:\ns_mov_b32 s12, s13")
        for x in range(n):
            a(f"buffer_load_dwordx4 {vr(64+4*x)}, v4, {sr(SW)}, s12 offen sc1")
            if x < n-1: a("s_add_u32 s12, s12, 0x8000")
        for x in range(n):
            a(f"s_waitcnt vmcnt({n-1-x})")
            check(7, 64+4*x, 4, sF, x == 0)
            if x == 1:
                for q in range(0, 4, 2): a(f"v_pk_add_f32 {vr(dst+q,2)}, {vr(64+q,2)}, {vr(68+q,2)}")
            elif x > 1:
                for q in range(0, 4, 2): a(f"v_pk_add_f32 {vr(dst+q,2)}, {vr(dst+q,2)}, {vr(64+4*x+q,2)}")
        a("v_and_b32 v7, v6, v7\nv_cmp_ne_u32 vcc, 0, v7")
        spin(label, "s_cbranch_vccnz")
        for r in (4, 8):
            for q in range(4): a(f"v_add_f32_dpp v{dst+q}, v{dst+q}, v{dst+q} row_ror:{r} {DPPM}")
        for sw in ("v_permlane16_swap_b32", "v_permlane32_swap_b32"):
            for q in range(4): a(f"v_mov_b32 v{64+q}, v{dst+q}")
            for q in range(4): a(f"{sw} v{64+q}, v{dst+q}")
            for q in range(0, 4, 2): a(f"v_pk_add_f32 {vr(dst+q,2)}, {vr(dst+q,2)}, {vr(64+q,2)}")
    def round4(d):
        a(f"v_cvt_pk_bf16_f32 v12, v{d}, v{d+1}\nv_cvt_pk_bf16_f32 v13, v{d+2}, v{d+3}")
        unpack2(d, 12); unpack2(d+2, 13)
    fin_gather("L_fin_mlp", 128, 7, 16)
    stamp(7)
    round4(16)
    unpack2(20, 10); unpack2(22, 11); unpack2(24, 8); unpack2(26, 9)
    for q in range(0, 4, 2): a(f"v_pk_add_f32 {vr(16+q,2)}, {vr(16+q,2)}, {vr(20+q,2)}")
    round4(16)
    fin_gather("L_fin_att", 0, 8, 20)
    stamp(8)
    round4(20)
    for q in range(0, 4, 2): a(f"v_pk_add_f32 {vr(20+q,2)}, {vr(20+q,2)}, {vr(24+q,2)}")
    round4(20)
    for q in range(0, 4, 2): a(f"v_pk_add_f32 {vr(20+q,2)}, {vr(20+q,2)}, {vr(16+q,2)}")
    a(f"""v_cvt_pk_bf16_f32 v12, v20, v21
    v_cvt_pk_bf16_f32 v13, v22, v23
    s_mov_b64 exec, 15
    buffer_store_dwordx2 v[12:13], v5, {sr(SQ)}, s16 offen {P['out_pol']}
    s_cmp_lg_u32 s10, 0
    s_cbranch_scc1 L_fin_done
    s_mov_b64 exec, 1
    v_mov_b32 v14, s{sF}
    buffer_store_dword v14, v5, {sr(SW)}, 0 offen offset:{EP} {P['out_pol']}
    L_fin_done:
    s_mov_b64 exec, -1""")
    if P["calib"]:
        a(f"""s_add_u32 s80, s80, {P['calib']}
        L_cal:
        s_memrealtime s[82:83]
        s_waitcnt lgkmcnt(0)
        s_sub_u32 s83, s82, s80
        s_cmp_lt_i32 s83, 0
        s_cbranch_scc1 L_cal""")
    if diag:
        a("s_waitcnt vmcnt(0)"); stamp(9)
    a("s_branch L_exit")

    def mlp2_tail(seed=18, tp=14):
        shint("L_hhint", hint_offs(P["hhint"], seed, 7, 9, 13, 3), 'f')
        a(f"""L_hp_poll:
        buffer_load_dwordx4 v[16:19], v6, {sr(SW)}, s13 offen sc1
        s_waitcnt vmcnt(0)""")
        check(7, 16, 4, sF, True)
        a("v_and_b32 v7, v40, v7\nv_cmp_ne_u32 vcc, 0, v7")
        spin("L_hp_poll", "s_cbranch_vccnz")
        for r in (1, 2, 4):
            for q in range(4): a(f"v_add_f32_dpp v{16+q}, v{16+q}, v{16+q} row_ror:{r} {DPPM}")
        a(f"v_cvt_pk_bf16_f32 v{tp}, v16, v17\nv_cvt_pk_bf16_f32 v{tp+1}, v18, v19")
        unpack2(16, tp); unpack2(18, tp+1); unpack2(20, 48); unpack2(22, 49)
        for q in range(4): a(f"v_add_f32 v{16+q}, v{16+q}, v{20+q}")
        for q in range(4): rnd_bf16(16+q, 16+q)
        for q in range(4): a(f"v_max_f32 v{16+q}, 0, v{16+q}\nv_mul_f32 v{16+q}, v{16+q}, v{16+q}\nv_cvt_pk_bf16_f32 v{16+q}, v{16+q}, v{16+q}")
        for rq in range(4):
            for dw in range(4):
                a(f"v_and_b32 v{64+4*rq+dw}, v{16+rq}, v{32+dw}")
        for rq in range(4):
            for cb in range(4):
                a(f"v_mfma_f32_16x16x32_bf16 {vr(96+4*cb)}, {vr(64+4*rq)}, {vr(192+16*rq+4*cb)}, {'0' if rq == 0 else vr(96+4*cb)}")
        for cb in range(4):
            for r in range(4): a(f"v_bfi_b32 v{96+4*cb+r}, v40, s{sF+r}, v{96+4*cb+r}")
        a("s_mov_b32 exec_hi, 0")
        for cb in range(4):
            a(f"buffer_store_dwordx4 {vr(96+4*cb)}, v41, {sr(SW)}, s12 offen offset:{512*cb} sc1")
        a("s_mov_b64 exec, -1")
    if P["mlp_pos"] not in ("w", "g"):
        a("L_MLP1:")
        a(f"""s_cmp_ge_u32 s18, 14
        s_cbranch_scc1 L_exit
        s_lshl3_add_u32 s10, s18, s29
        s_lshl_b32 s10, s10, 9
        s_add_u32 s10, s10, {HP}""")
        mlp_bars()
        delta_gemv16(192)
        stamp(7)
        a("s_branch L_exit")
        a("L_MLP2:")
        a(f"""s_cmp_ge_u32 s5, 14
        s_cbranch_scc1 L_exit
        s_lshr_b32 s13, s18, 3
        s_lshl_b32 s13, s13, 12
        s_and_b32 s14, s18, 7
        s_lshl_b32 s14, s14, 6
        s_add_u32 s13, s13, s14
        s_add_u32 s13, s13, {HP}
        v_and_b32 v6, 7, v0
        v_lshlrev_b32 v6, 9, v6
        v_lshl_add_u32 v6, v3, 4, v6
        s_lshl_b32 s12, s18, 11
        s_add_u32 s12, s12, {DP + 128*2048}""")
        mlp_bars()
        mlp2_tail()
        stamp(7)
        a("s_branch L_exit")
    a("L_WGT_other:")
    a("s_waitcnt lgkmcnt(0)")
    ep_load()
    a(f"""s_load_dwordx2 s[{SG}:{SG+1}], s[0:1], 32
    s_cmp_eq_u32 s3, 7
    s_cbranch_scc0 L_S1
    s_waitcnt lgkmcnt(0)""")
    tags(False)
    a("s_barrier\ns_branch L_WO")
    a("L_S1:")
    a("s_waitcnt lgkmcnt(0)")
    tags(True)
    if P["mlp_pos"] == "w":
        md = P["mlp_depth"]
        a("s_cmp_lg_u32 s3, 0\ns_cbranch_scc1 L_notm1")
        a(f"""s_load_dwordx2 s[{SQ}:{SQ+1}], s[0:1], 56
        s_and_b32 s29, s5, 7
        s_lshr_b32 s9, s5, 3
        s_lshl1_add_u32 s9, s4, s9
        s_lshl_b32 s11, s29, 7
        v_lshlrev_b32 v4, 4, v0
        v_lshlrev_b32 v5, 1, v0""")
        srd(SX, 1024); srd(SQ, 512*1792*2)
        a(f"""buffer_load_dwordx4 v[8:11], v4, {sr(SX)}, 0 offen
        buffer_load_ushort v12, v5, {sr(SX)}, s11 offen""")
        xn_operands(0)
        a(f"""s_mul_i32 s11, s29, {64*3584}
        s_lshl_b32 s12, s9, 8
        s_add_u32 s11, s11, s12
        v_mul_u32_u24 v6, {16*3584}, v3
        v_lshl_add_u32 v6, v2, 4, v6
        s_movk_i32 s12, 3584
        s_lshl3_add_u32 s10, s9, s29
        s_lshl_b32 s10, s10, 9
        s_add_u32 s10, s10, {HP}
        s_waitcnt lgkmcnt(0)
        s_barrier
        s_barrier
        s_cmp_ge_u32 s9, 14
        s_cbranch_scc1 L_S1b""")
        for t in range(16):
            if t >= md: a(f"s_waitcnt vmcnt({md-1})")
            a(f"buffer_load_dwordx4 {vr(64+4*t)}, v6, {sr(SQ)}, s11 offen nt")
            if t < 15: a("s_add_u32 s11, s11, s12")
        delta_gemv16()
        stamp(8)
        a("s_branch L_S1b")
        a("L_notm1:")
        a("s_cmp_lg_u32 s3, 1\ns_cbranch_scc1 L_notm2")
        a(f"""s_load_dwordx2 s[{SQ}:{SQ+1}], s[0:1], 72
        s_load_dwordx2 s[{SK}:{SK+1}], s[0:1], 64
        s_mul_i32 s18, s4, 14
        s_add_u32 s18, s18, s5
        s_lshl_b32 s11, s18, 5
        s_lshl_b32 s10, s18, 14
        v_lshlrev_b32 v5, 12, v3
        v_lshl_add_u32 v5, v2, 4, v5
        v_lshlrev_b32 v7, 3, v3
        s_lshr_b32 s13, s18, 3
        s_lshl_b32 s13, s13, 12
        s_and_b32 s14, s18, 7
        s_lshl_b32 s14, s14, 6
        s_add_u32 s13, s13, s14
        s_add_u32 s13, s13, {HP}
        v_and_b32 v6, 7, v0
        v_lshlrev_b32 v6, 9, v6
        v_lshl_add_u32 v6, v3, 4, v6
        v_mov_b32 v40, 0xff
        s_lshl_b32 s12, s18, 11
        s_add_u32 s12, s12, {DP + 128*2048}""")
        srd(SQ, 1792*512*2); srd(SK, 1792*2)
        delta_masks(32, 36)
        a(f"""s_waitcnt lgkmcnt(0)
        s_barrier
        s_barrier
        s_cmp_ge_u32 s5, 14
        s_cbranch_scc1 L_S1b
        buffer_load_dwordx2 v[48:49], v7, {sr(SK)}, s11 offen""")
        for t in range(16):
            if t >= md: a(f"s_waitcnt vmcnt({md-1})")
            a(f"buffer_load_dwordx4 {vr(192+4*t)}, v5, {sr(SQ)}, s10 offen offset:{256*t} nt")
        mlp2_tail()
        stamp(9)
        a("s_branch L_S1b")
        a("L_notm2:\ns_barrier\ns_barrier")
        a("L_S1b:")
    if P["mlp_pos"] == "g":
        a(f"""s_cmp_eq_u32 s3, 0
        s_cselect_b32 s15, 56, 72
        s_load_dwordx2 s[{SQ}:{SQ+1}], s[0:1], s15
        s_load_dwordx2 s[{SK}:{SK+1}], s[0:1], 64
        s_cbranch_scc0 L_g2
        s_and_b32 s29, s5, 7
        s_lshr_b32 s9, s5, 3
        s_lshl1_add_u32 s9, s4, s9
        s_lshl_b32 s11, s29, 7
        v_lshlrev_b32 v4, 4, v0
        v_lshlrev_b32 v5, 1, v0""")
        srd(SX, 1024)
        a(f"""buffer_load_dwordx4 v[8:11], v4, {sr(SX)}, 0 offen
        buffer_load_ushort v12, v5, {sr(SX)}, s11 offen""")
        xn_operands(0)
        a(f"""s_mul_i32 s36, s29, {64*3584}
        s_lshl_b32 s12, s9, 8
        s_add_u32 s36, s36, s12
        v_mul_u32_u24 v52, {16*3584}, v3
        s_movk_i32 s37, 3584
        s_lshl3_add_u32 s39, s9, s29
        s_lshl_b32 s39, s39, 9
        s_add_u32 s39, s39, {HP}
        s_cmp_lt_u32 s9, 14
        s_cselect_b32 s38, 1, 0
        s_branch L_g3
        L_g2:
        s_mul_i32 s29, s4, 14
        s_add_u32 s29, s29, s5
        s_lshl_b32 s36, s29, 14
        v_lshlrev_b32 v52, 12, v3
        s_movk_i32 s37, 256
        s_cmp_lt_u32 s5, 14
        s_cselect_b32 s38, 2, 0
        s_cmp_eq_u32 s3, 1
        s_cselect_b32 s38, s38, 0
        v_mov_b32 v40, 0xff
        L_g3:
        v_lshl_add_u32 v52, v2, 4, v52
        v_lshlrev_b32 v53, 3, v3
        s_lshl_b32 s11, s29, 5""")
        srd(SQ, 512*1792*2); srd(SK, 1792*2)
        a(f"s_waitcnt lgkmcnt(0)\nbuffer_load_dwordx2 v[48:49], v53, {sr(SK)}, s11 offen")
    srd(SG, 4 << 20)
    delta_masks(32, 36)
    a(f"""v_lshlrev_b32 v5, 17, v3
    v_lshlrev_b32 v6, 2, v3
    v_xor_b32 v6, v6, v2
    v_lshl_add_u32 v4, v6, 4, v5
    v_xor_b32 v26, 32, v4
    s_lshl_b32 s10, s8, 5
    s_add_u32 s10, s10, s3
    s_lshl_b32 s10, s10, 15
    s_lshl_b32 s11, s7, 8
    s_add_u32 s10, s10, s11
    s_lshl_b32 s11, s3, 13
    s_add_u32 s11, s11, {X}""")
    a(f"""v_bfe_u32 v6, v0, 2, 2
    v_bfe_u32 v7, v0, 4, 1
    v_bfe_u32 v5, v0, 1, 1
    v_lshl_or_b32 v7, v7, 1, v5
    v_lshl_or_b32 v7, v6, 2, v7
    s_lshl_b32 s12, s3, 2
    v_xor_b32 v7, s12, v7
    v_lshlrev_b32 v7, 4, v7
    v_lshlrev_b32 v6, 8, v6
    v_lshl_add_u32 v6, v3, 11, v6
    v_and_b32 v5, 1, v0
    v_lshl_add_u32 v6, v5, 3, v6
    v_add_u32 v6, {X}, v6
    v_add_u32 v8, v6, v7
    v_xor_b32 v9, 32, v8""")
    a(f"""v_and_b32 v5, 7, v0
    v_lshl_add_u32 v5, v5, 2, v3
    v_lshlrev_b32 v10, 9, v5
    v_lshlrev_b32 v11, 4, v0
    v_lshlrev_b32 v5, 4, v2
    v_lshl_add_u32 v5, v3, 3, v5
    s_lshl_b32 s12, s3, 6
    s_add_u32 s13, s12, s11
    v_add_u32 v12, s13, v5
    v_and_b32 v5, 3, v0
    v_mul_u32_u24 v5, {8192+64}, v5
    v_lshl_add_u32 v5, v3, 4, v5
    v_add_u32 v13, {X}, v5
    v_and_b32 v5, 31, v0
    s_add_u32 s13, s12, {X+2048}
    v_lshl_add_u32 v14, v5, 1, s13
    v_mov_b32 v15, s11
    v_mov_b32 v31, {X}
    v_mov_b32 v30, 0x10001
    v_bfe_u32 v5, v0, 4, 1
    v_cmp_eq_u32 s[18:19], 1, v5
    s_mov_b32 m0, s11
    s_and_b32 s30, s5, {12 if P["go_common"] else 15}
    s_lshl4_add_u32 s30, s4, s30
    s_lshl_b32 s30, s30, 7
    s_add_u32 s30, s30, {GO}""")
    if P["mlp_pos"] != "w": a("s_barrier\ns_barrier")
    if P["cpf"]:
        srd(SC, 16 << 20)
        a(f"""s_lshl4_add_u32 s14, s4, s5
        s_lshl2_add_u32 s14, s14, s3
        s_lshl_b32 s14, s14, 15
        v_lshrrev_b32 v5, 1, v0
        v_and_b32 v6, 1, v0
        v_lshlrev_b32 v5, 10, v5
        v_lshl_add_u32 v5, v6, 7, v5""")
        for tau in range(4 - P["cpf"], 4):
            a(f"buffer_load_dword v{250+tau}, v5, {sr(SC)}, s14 offen offset:{256*tau}")
    if P["go_at"] is not None:
        a("s_cmp_lg_u32 s3, 2\ns_cbranch_scc1 L_go_done")
        shint("L_go", [30], 't')
        a("L_go_done:\ns_barrier")
    stamp(1)
    def g_loads():
        for t in range(16):
            a(f"buffer_load_dwordx4 {vr(192+4*t)}, v52, {sr(SQ)}, s36 offen nt")
            if t < 15: a("s_add_u32 s36, s36, s37")
    if P["mlp_pos"] == "g":
        a("s_cmp_lg_u32 s38, 1\ns_cbranch_scc1 L_g4")
        g_loads()
        a("L_g4:")
    for q in range(8):
        a(f"buffer_load_dwordx4 v{26 if (q>>1)&1 else 4}, {sr(SG)}, s10 offen nt lds")
        if q < 7: a(f"s_add_u32 m0, m0, 1024\ns_add_u32 s10, s10, {(64*8192 if q & 1 == 0 else (1-64)*8192) & 0xffffffff}")
    a(f"""s_lshl_b32 s12, s3, 13
    s_lshl2_add_u32 s16, s7, s8
    s_lshl_b32 s13, s16, 15
    s_add_u32 s13, s13, s12
    s_add_u32 s13, s13, {BP}
    s_lshl_b32 s12, s12, 1
    s_lshl4_add_u32 s12, s7, s12
    s_add_u32 s12, s12, {ST}""")
    if P["mlp_pos"] == "g":
        a("s_cmp_eq_u32 s38, 0\ns_cbranch_scc1 L_g6\ns_cmp_eq_u32 s38, 1\ns_cbranch_scc1 L_g5")
        g_loads()
        a("s_waitcnt vmcnt(16)\ns_branch L_g7\nL_g5:\ns_mov_b32 s10, s39")
        delta_gemv16(192, lambda t: 23 - t)
        stamp(8)
        a("s_waitcnt vmcnt(1)\ns_branch L_g7\nL_g6:\ns_waitcnt vmcnt(0)\nL_g7:")
    else: a("s_waitcnt vmcnt(0)")
    a("s_barrier")
    for n in range(2):
        for t in range(4):
            for sec in range(2):
                a(f"ds_read_b64_tr_b16 {vr(160+16*n+4*t+2*sec,2)}, v{8+n} offset:{8192*t + 1024*sec}")
    a("s_waitcnt lgkmcnt(0)\ns_barrier")
    if P["mlp_pos"] == "g":
        a(f"""s_cmp_lg_u32 s38, 2
        s_cbranch_scc1 L_g8
        s_mov_b32 s36, s12
        s_mov_b32 s37, s13
        s_mov_b32 s17, s29
        s_lshr_b32 s13, s29, 3
        s_lshl_b32 s13, s13, 12
        s_and_b32 s14, s29, 7
        s_lshl_b32 s14, s14, 6
        s_add_u32 s13, s13, s14
        s_add_u32 s13, s13, {HP}
        v_and_b32 v6, 7, v0
        v_lshlrev_b32 v6, 9, v6
        v_lshl_add_u32 v6, v3, 4, v6
        s_lshl_b32 s12, s29, 11
        s_add_u32 s12, s12, {DP + 128*2048}""")
        mlp2_tail(17, 50)
        stamp(9)
        a("s_mov_b32 s12, s36\ns_mov_b32 s13, s37\nL_g8:")
    stamp(2)
    if "bwait" in P["abl"]: a("s_barrier")
    nh = P["bhint"]
    for x in range(nh): a(f"s_add_u32 s{30+x}, s13, {(32*x//nh + 3)*256 + 128}")
    shint("L_bhint", [30+x for x in range(nh)], 'b')
    stamp(3)
    a("s_add_u32 s14, s13, 4096\nL_bfetch:")
    a(f"buffer_load_dwordx4 v[16:19], v10, {sr(SW)}, s12 offen sc1")
    for t in range(8):
        a(f"buffer_load_dwordx4 {vr(64+4*t)}, v11, {sr(SW)}, s{13 + (t>>2)} offen offset:{1024*(t&3)} sc1")
    a(f"""s_waitcnt vmcnt(8)""")
    stamp(4)
    a(f"""v_xor_b32 v17, s{sF}, v17
    v_bitop3_b32 v17, v17, v19, s{sF} bitop3:0xf6
    v_mov_b32 v24, v16""")
    allreduce("v_max_f32", 24, 20)
    a("""v_sub_f32 v16, v16, v24
    v_exp_f32 v16, v16
    v_cvt_pk_bf16_f32 v16, v16, v16""")
    for t in range(8):
        for dw in range(4):
            a(f"v_and_b32_dpp v{128+4*t+dw}, v16, v{32+dw} row_newbcast:{t} {DPPM}")
    a("v_and_b32 v25, 0xffff0000, v16\nv_mul_f32 v25, v25, v18")
    allreduce("v_add_f32", 25, 20)
    a("v_mul_f32 v25, 0.5, v25\nds_write_b64 v15, v[24:25] offset:1024")
    stamp(5)
    for t in range(8):
        a(f"s_waitcnt vmcnt({7-t})")
        a(f"v_mfma_f32_16x16x32_bf16 v[40:43], {vr(128+4*t)}, {vr(64+4*t)}, {'0' if t == 0 else 'v[40:43]'}")
        check(7, 64+4*t, 4, sB, t == 0)
    a("v_and_or_b32 v7, v30, v7, v17\nv_cmp_ne_u32 vcc, 0, v7")
    spin("L_bfetch", "s_cbranch_vccnz")
    stamp(6)
    a("""v_cvt_pk_bf16_f32 v44, v40, v41
    v_cvt_pk_bf16_f32 v45, v42, v43
    s_mov_b32 exec_hi, 0
    ds_write_b64 v12, v[44:45]
    s_mov_b64 exec, -1
    s_waitcnt lgkmcnt(0)
    s_barrier""")
    for u in range(4): a(f"ds_read_b64 {vr(80+2*u,2)}, v31 offset:{8192*u + 1024}")
    for t in range(4): a(f"ds_read_b128 {vr(64+4*t)}, v13 offset:{64*t}")
    sm = """v_max3_f32 v4, v80, v82, v84
    v_max_f32 v4, v4, v86
    v_sub_f32 v80, v80, v4
    v_sub_f32 v82, v82, v4
    v_sub_f32 v84, v84, v4
    v_sub_f32 v86, v86, v4
    v_exp_f32 v80, v80
    v_exp_f32 v82, v82
    v_exp_f32 v84, v84
    v_exp_f32 v86, v86
    v_mul_f32 v5, v80, v81
    v_fmac_f32 v5, v82, v83
    v_fmac_f32 v5, v84, v85
    v_fmac_f32 v5, v86, v87
    v_rcp_f32 v5, v5""".split("\n")
    for t in range(4):
        a(f"s_waitcnt lgkmcnt({3-t})")
        for n in range(2):
            a(f"v_mfma_f32_16x16x32_bf16 {vr(40+4*n)}, {vr(64+4*t)}, {vr(160+16*n+4*t)}, {'0' if t == 0 else vr(40+4*n)}")
            a(sm.pop(0))
    for l in sm: a(l)
    for r in range(4): a(f"v_cndmask_b32 v{40+r}, v{40+r}, v{44+r}, s[18:19]")
    a("""v_mul_f32 v6, v40, v80
    v_fmac_f32 v6, v41, v82
    v_fmac_f32 v6, v42, v84
    v_fmac_f32 v6, v43, v86
    v_mul_f32 v6, v6, v5
    v_cvt_pk_bf16_f32 v6, v6, v6
    ds_write_b16 v14, v6
    s_waitcnt lgkmcnt(0)""")
    stamp(7)
    a("s_barrier\ns_branch L_exit")

    a("L_WO:")
    a(f"s_load_dwordx2 s[{SG}:{SG+1}], s[0:1], 40\ns_setprio 0\ns_barrier")
    srd(SG, 4 << 20)
    a(f"""s_sub_u32 s9, s3, 4
    s_lshl_b32 s10, s7, 17
    s_lshl_b32 s11, s9, 8
    s_add_u32 s10, s10, s11
    s_lshl_b32 s11, s9, 15
    v_lshlrev_b32 v4, 2, v3
    v_xor_b32 v4, v4, v2
    v_lshlrev_b32 v4, 4, v4
    v_lshl_add_u32 v4, v3, 10, v4
    v_xor_b32 v5, 32, v4
    s_mov_b32 m0, s11""")
    if P["wo_rot"]:
        a("s_lshl_b32 s13, s8, 15\ns_add_u32 s10, s10, s13")
        for tau in range(3):
            a(f"s_cmp_eq_u32 s8, {3-tau}\ns_cselect_b32 s{36+tau}, -31, 1\ns_lshl_b32 s{36+tau}, s{36+tau}, 12")
    a(f"""v_bfe_u32 v6, v0, 2, 2
    v_bfe_u32 v7, v0, 4, 1
    v_bfe_u32 v16, v0, 1, 1
    v_lshl_or_b32 v7, v7, 1, v16
    v_lshl_or_b32 v7, v6, 2, v7
    v_lshlrev_b32 v7, 4, v7
    v_lshlrev_b32 v6, 8, v6
    v_lshl_add_u32 v6, v3, 11, v6
    v_and_b32 v16, 1, v0
    v_lshl_add_u32 v6, v16, 3, v6
    v_add_u32 v6, s11, v6""")
    for n in range(8):
        a(f"v_xor_b32 v16, {32*n}, v7\nv_add_u32 v{8+n}, v6, v16")
    a(f"""v_lshlrev_b32 v16, 4, v3
    v_add_u32 v16, {X+2048}, v16
    v_lshlrev_b32 v17, 6, v2
    v_lshl_add_u32 v17, v3, 4, v17
    v_mov_b32 v18, 0xff
    s_lshl2_add_u32 s12, s7, s8
    s_lshl_b32 s12, s12, 11
    s_lshl_b32 s13, s9, 9
    s_add_u32 s12, s12, s13
    s_add_u32 s12, s12, {DP}""")
    for t in range(4):
        if P["wo_rot"]: a(f"s_add_u32 s13, s8, {t}\ns_and_b32 s13, s13, 3\ns_lshl_b32 s13, s13, 6\nv_add_u32 v{36+t}, s13, v16")
        else: a(f"v_add_u32 v{36+t}, {64*t}, v16")
    for n in range(1, 8):
        a(f"s_mov_b32 s{40+2*n}, {0x01010101 << n}\ns_mov_b32 s{41+2*n}, {0x01010101 << n}")
    a("s_waitcnt lgkmcnt(0)")
    def wo_read(t):
        for n in range(8):
            for sec in range(2):
                a(f"ds_read_b64_tr_b16 {vr(128+32*t+4*n+2*sec,2)}, v{8+n} offset:{8192*t + 1024*sec}")
    nxt = 0
    for rg in range(32):
        if rg == P["wo_early"] and P["go_at"] is not None: a("s_barrier")
        wd = P["wo_edepth"] if rg < P["wo_early"] else P["wo_depth"]
        if rg >= wd:
            a(f"s_waitcnt vmcnt({wd-1})")
            landed = rg - wd + 1
            if landed >= 8*(nxt+1):
                if nxt == 0: stamp(5)
                if "noread" not in P["abl"]: wo_read(nxt)
                nxt += 1
        a(f"buffer_load_dwordx4 v{4+((rg>>1)&1)}, {sr(SG)}, s10 offen {P['wo_pol']} lds")
        if rg in P["wo_bar"]: a("s_barrier")
        if rg < 31:
            if P["wo_rot"] and rg & 7 == 7: a(f"s_add_u32 m0, m0, 1024\ns_add_u32 s10, s10, s{36+(rg>>3)}")
            else: a("s_add_u32 m0, m0, 1024\ns_add_u32 s10, s10, 4096")
    while nxt < 4:
        a(f"s_waitcnt vmcnt({24 - 8*nxt})")
        wo_read(nxt); nxt += 1
    stamp(6)
    if "bwait" in P["abl"]: a("s_barrier")
    a("s_barrier\ns_barrier")
    stamp(7)
    for t in range(4): a(f"ds_read_b128 {vr(20+4*t)}, v{36+t}")
    a("s_waitcnt lgkmcnt(0)")
    for n in range(8):
        for t in range(4):
            a(f"v_mfma_f32_16x16x32_bf16 {vr(64+4*n)}, {vr(128+32*t+4*n)}, {vr(20+4*t)}, {'0' if t == 0 else vr(64+4*n)}")
            if n >= 3:
                m = n - 2
                a(f"v_cndmask_b32 v{64+t}, v{64+t}, v{64+4*m+t}, s[{40+2*m}:{41+2*m}]")
    for m in (6, 7):
        for t in range(4): a(f"v_cndmask_b32 v{64+t}, v{64+t}, v{64+4*m+t}, s[{40+2*m}:{41+2*m}]")
    for r in range(4): a(f"v_bfi_b32 v{64+r}, v18, s{sF+r}, v{64+r}")
    a(f"""s_mov_b32 exec_lo, 0x00ff00ff
    s_mov_b32 exec_hi, 0x00ff00ff
    buffer_store_dwordx4 v[64:67], v17, {sr(SW)}, s12 offen sc1
    s_mov_b64 exec, -1""")
    stamp(8)
    if diag:
        a("s_waitcnt vmcnt(0)"); stamp(9)

    a("L_exit:")
    if diag:
        a(f"""s_mov_b64 exec, -1
        s_waitcnt lgkmcnt(0)
        s_lshl3_add_u32 s10, s2, s3
        s_lshl_b32 s10, s10, 7
        s_add_u32 s10, s10, {STAMP}
        v_mov_b32 v4, 0""")
        for k in range(10):
            a(f"v_mov_b32 v5, s{80+2*k}\nbuffer_store_dword v5, v4, {sr(SW)}, s10 offen offset:{4*k}")
        a(f"v_mov_b32 v5, s28\nbuffer_store_dword v5, v4, {sr(SW)}, s10 offen offset:40")
        a(f"s_getreg_b32 s11, hwreg(HW_REG_XCC_ID)\nv_mov_b32 v5, s11\nbuffer_store_dword v5, v4, {sr(SW)}, s10 offen offset:44")
        a(f"s_getreg_b32 s11, hwreg(HW_REG_HW_ID)\nv_mov_b32 v5, s11\nbuffer_store_dword v5, v4, {sr(SW)}, s10 offen offset:48")
    a("L_end:\ns_endpgm\nL_codeend:")

    lines = a.lines
    if diag:
        pre = [f"s_mov_b32 s{80+2*k}, 0" for k in range(1, 10)]
        lines = lines[:1] + pre + lines[1:]
    lines, nins = insert_waits(lines)
    b = Asm(); b.lines = lines
    head = f"""; fused MLA decode attention (absorbed form) + squared-relu MLP, one persistent launch, 256 workgroups
; @launch grid=(256,1,1) block=(512,1,1) lds=163840
.amdgcn_target "amdgcn-amd-amdhsa--gfx950"
.text
.globl {KNAME}
.p2align 8
.type {KNAME},@function
{KNAME}:
"""
    foot = f"""
.section .rodata,"a"
.p2align 6
.amdhsa_kernel {KNAME}
  .amdhsa_next_free_vgpr 256
  .amdhsa_next_free_sgpr 102
  .amdhsa_accum_offset 256
  .amdhsa_group_segment_fixed_size 0
  .amdhsa_kernarg_size 112
  .amdhsa_user_sgpr_count 2
  .amdhsa_user_sgpr_kernarg_segment_ptr 1
  .amdhsa_system_sgpr_workgroup_id_x 1
  .amdhsa_float_denorm_mode_32 3
.end_amdhsa_kernel
"""
    txt = b.text()
    if P["pol"] != "nt":
        txt = txt.replace(" nt lds", f" {P['pol']} lds").replace(" nt\n", f" {P['pol']}\n")
    return head + txt + foot

if __name__ == "__main__":
    import json
    kw = json.loads(sys.argv[2]) if len(sys.argv) > 2 else {}
    open(sys.argv[1], "w").write(gen(**kw))
```

```python
import sys, math, struct
from asmlib import Asm, insert_waits
from gen_common import KNAME

EP, QP, QL, GO, ST, HP, DP, BP, STAMP = 0, 0x1000, 0x40000, 0x48000, 0x50000, 0x60000, 0x80000, 0x100000, 0x800000
WS_REC = 0x1000000
X = 131072
SPIN = 1 << 17

def f2u(x): return struct.unpack("<I", struct.pack("<f", x))[0]
def vr(a, n=4): return f"v[{a}:{a+n-1}]"
def sr(a, n=4): return f"s[{a}:{a+n-1}]"

SX, SC, SQ, SK, SW, SG = 40, 44, 48, 52, 56, 60
sF, sB = 20, 24
HINT = 64
DPPM = "row_mask:0xf bank_mask:0xf"

DEFAULT = dict(diag=False, c_ramp=((0,1),(1,6),(3,10)), uk_pre=0, phint=0, pf_wgs=16, bi_at=2, mlp_pos='g', cw_at=10, sm_pre=3, pv_fill=2, cyc=False, mlp_depth=16, ukpf=1, ukpf_wait=True, cpf=0, cpf_depth=4, wo_depth=8, wo_early=0, wo_edepth=2, wuv_depth=8, wo_rot=True, wo_bar=(15, 21), abl=(), go_common=True, prio=True,
               go_at=31, out_pol="sc1", fhint=2, qhint=0, lhint=1, bhint=4, hhint=0, prefetch=True, role_bit=0,
               wo_pol="", x_pol="", mlp_late=False, pol="nt", calib=0, probe=None, q_at=31, hsleep=0, pretouch=True, st_poll=False)

def gen(**kw):
    P = dict(DEFAULT); P.update(kw)
    diag = P["diag"]
    a = Asm()
    sect = ["entry"]
    def stamp(k):
        if diag: a(f"{'s_memtime' if P['cyc'] else 's_memrealtime'} s[{80+2*k}:{81+2*k}]")
        if P["probe"] and P["probe"][0] == f"{sect[0]}{k}":
            a("s_memrealtime s[84:85]")
    def srd(base, size):
        a(f"s_mov_b32 s{base+2}, {size}\ns_mov_b32 s{base+3}, 0x20000")
    def ep_load(): a(f"s_load_dword s35, s[{SW}:{SW+1}], {EP}")
    def tags(need_b=True):
        for q in range(4): a(f"s_add_u32 s{sF+q}, s35, {q+1}")
        if need_b:
            for q in range(4): a(f"s_and_b32 s{sB+q}, s{sF+q}, 3\ns_mul_i32 s{sB+q}, s{sB+q}, 0x8001")
    def allreduce(op, v, t1):
        for r in (1, 2, 4, 8):
            a(f"{op}_dpp v{v}, v{v}, v{v} row_ror:{r} {DPPM}")
        for sw in ("v_permlane16_swap_b32", "v_permlane32_swap_b32"):
            a(f"v_mov_b32 v{t1}, v{v}\n{sw} v{t1}, v{v}\n{op} v{v}, v{v}, v{t1}")
    def rnd_bf16(d, s):
        a(f"v_cvt_pk_bf16_f32 v{d}, v{s}, v{s}\nv_and_b32 v{d}, 0xffff0000, v{d}")
    def unpack2(d, s):
        a(f"v_lshlrev_b32 v{d}, 16, v{s}\nv_and_b32 v{d+1}, 0xffff0000, v{s}")
    def ln_stats(xr, f, t):
        for i in range(4): unpack2(f+2*i, xr+i)
        a(f"v_add_f32 v{t}, v{f}, v{f+1}\nv_add_f32 v{t+1}, v{f+2}, v{f+3}\nv_add_f32 v{t+2}, v{f+4}, v{f+5}\nv_add_f32 v{t+3}, v{f+6}, v{f+7}")
        a(f"v_add_f32 v{t}, v{t}, v{t+1}\nv_add_f32 v{t+2}, v{t+2}, v{t+3}\nv_add_f32 v{t}, v{t}, v{t+2}")
        allreduce("v_add_f32", t, t+2)
        a(f"v_mul_f32 v{t}, {f2u(1/512)}, v{t}")
        a(f"v_sub_f32 v{t+2}, v{f}, v{t}\nv_mul_f32 v{t+1}, v{t+2}, v{t+2}")
        for i in range(1, 8):
            a(f"v_sub_f32 v{t+2+(i&1)}, v{f+i}, v{t}\nv_fmac_f32 v{t+1}, v{t+2+(i&1)}, v{t+2+(i&1)}")
        allreduce("v_add_f32", t+1, t+2)
        a(f"v_mul_f32 v{t+1}, {f2u(1/512)}, v{t+1}")
        rnd_bf16(t, t)
        rnd_bf16(t+1, t+1)
        a(f"v_add_f32 v{t+1}, {f2u(1e-5)}, v{t+1}")
        rnd_bf16(t+1, t+1)
        a(f"v_sqrt_f32 v{t+1}, v{t+1}")
        rnd_bf16(t+1, t+1)
        a(f"v_rcp_f32 v{t+1}, v{t+1}")
    def delta_masks(m, t):
        a(f"""v_and_b32 v{t}, 1, v0
        v_lshlrev_b32 v{t}, 4, v{t}
        v_mov_b32 v{t+1}, 0xffff
        v_lshlrev_b32 v{t}, v{t}, v{t+1}
        v_bfe_u32 v{t+1}, v0, 1, 3""")
        for dw in range(4):
            a(f"v_cmp_eq_u32 vcc, {dw}, v{t+1}\nv_cndmask_b32 v{m+dw}, 0, v{t}, vcc")
    def check(acc, first, n, tagbase, start):
        for i in range(n):
            if start and i == 0: a(f"v_xor_b32 v{acc}, s{tagbase}, v{first}")
            else: a(f"v_bitop3_b32 v{acc}, v{acc}, v{first+i}, s{tagbase+(i&3)} bitop3:0xf6")
    def spin(label, cond_branch, pre=""):
        a(f"""s_add_u32 s28, s28, 1
        s_cmp_gt_u32 s28, {SPIN}
        s_cbranch_scc1 L_exit
        {pre}
        {cond_branch} {label}""")
    def shint(label, offs, kind):
        if not offs: return
        a(f"{label}:")
        if P["hsleep"]: a(f"s_sleep {P['hsleep']}")
        n = len(offs)
        if kind == 'd':
            for x, o in enumerate(offs): a(f"s_load_dword s{HINT+x}, s[{SW}:{SW+1}], s{o} glc")
            a("s_waitcnt lgkmcnt(0)")
            for x in range(n):
                a(f"s_xor_b32 s{HINT+x}, s{HINT+x}, s{sF}")
                if x: a(f"s_or_b32 s{HINT}, s{HINT}, s{HINT+x}")
            fin = f"s_and_b32 s{HINT}, s{HINT}, 0xff"
        elif kind == 't':
            for x, o in enumerate(offs): a(f"s_load_dwordx2 {sr(HINT+2*x,2)}, s[{SW}:{SW+1}], s{o} glc")
            a("s_waitcnt lgkmcnt(0)")
            for x in range(n):
                a(f"s_xor_b32 s{HINT+2*x+1}, s{HINT+2*x+1}, s{sF}")
                if x: a(f"s_or_b32 s{HINT+1}, s{HINT+1}, s{HINT+2*x+1}")
            fin = f"s_cmp_lg_u32 s{HINT+1}, 0"
        else:
            tb, mask = (sB, 0x10001) if kind == 'b' else (sF, 0xff)
            for x, o in enumerate(offs): a(f"s_load_dwordx4 {sr(HINT+4*x)}, s[{SW}:{SW+1}], s{o} glc")
            a("s_waitcnt lgkmcnt(0)")
            for x in range(4*n):
                a(f"s_xor_b32 s{HINT+x}, s{HINT+x}, s{tb+(x&3)}")
                if x: a(f"s_or_b32 s{HINT}, s{HINT}, s{HINT+x}")
            fin = f"s_and_b32 s{HINT}, s{HINT}, {mask}"
        spin(label, "s_cbranch_scc1", fin)
    def hint_offs(n, seed, modmask, shift, base, spread):
        for x in range(n):
            a(f"s_add_u32 s{30+x}, s{seed}, {x*spread}\ns_and_b32 s{30+x}, s{30+x}, {modmask}\ns_lshl_b32 s{30+x}, s{30+x}, {shift}\ns_add_u32 s{30+x}, s{30+x}, s{base}")
        return [30+x for x in range(n)]

    stamp(0)
    if P["calib"] or P["probe"]: a("s_memrealtime s[80:81]")
    if P["probe"]: a("s_mov_b32 s84, 0\ns_mov_b32 s88, 0")
    a(f"""s_load_dwordx2 s[{SX}:{SX+1}], s[0:1], 0""")
    if P["prefetch"]:
        a(f"""s_cmp_ge_u32 s2, {P['pf_wgs']}
        s_cbranch_scc1 L_nopf
        s_getpc_b64 s[10:11]
        L_pc:
        v_lshlrev_b32 v4, 6, v0
        v_min_u32 v4, L_codeend - L_pc - 4, v4
        global_load_dword v255, v4, s[10:11]
        L_nopf:""")
    a(f"""s_load_dwordx2 s[{SQ}:{SQ+1}], s[0:1], 16
    s_load_dwordx2 s[{SK}:{SK+1}], s[0:1], 24
    s_load_dwordx2 s[{SC}:{SC+1}], s[0:1], 8
    s_load_dwordx2 s[{SW}:{SW+1}], s[0:1], 104
    v_lshrrev_b32 v1, 6, v0
    s_cmp_ge_u32 s2, 256
    s_cbranch_scc1 L_end
    v_readfirstlane_b32 s3, v1
    v_and_b32 v0, 63, v0
    s_and_b32 s4, s2, 7""")
    if P["role_bit"] == 0:
        a("s_bfe_u32 s6, s2, 0x10003\ns_lshr_b32 s5, s2, 4")
    else:
        a("s_lshr_b32 s6, s2, 7\ns_bfe_u32 s5, s2, 0x40003")
    a(f"""s_lshr_b32 s7, s5, 2
    s_lshl2_add_u32 s7, s4, s7
    s_and_b32 s8, s5, 3
    s_mov_b32 s28, 0""")
    srd(SW, WS_REC)
    a(f"""v_and_b32 v2, 15, v0
    v_lshrrev_b32 v3, 4, v0
    v_lshlrev_b32 v41, 5, v2
    v_lshl_add_u32 v41, v3, 4, v41
    s_cmp_eq_u32 s6, 1
    s_cbranch_scc1 L_ATT
    s_sub_u32 s9, s3, 5
    s_cmp_lt_u32 s9, 2
    s_cbranch_scc0 L_WGT""")

    def xn_operands(nout, st=None):
        delta_masks(32, 36)
        a(f"v_mov_b32 v40, 0xff\ns_waitcnt vmcnt({nout})")
        if st is not None: stamp(st)
        ln_stats(8, 16, 24)
        a("v_lshlrev_b32 v12, 16, v12\nv_sub_f32 v12, v12, v24")
        rnd_bf16(12, 12)
        a("v_mul_f32 v12, v12, v25\nv_cvt_pk_bf16_f32 v12, v12, v12")
        for t in range(16):
            for dw in range(4):
                a(f"v_and_b32_dpp v{128+4*t+dw}, v12, v{32+dw} row_newbcast:{t} {DPPM}")
    def delta_gemv16(db=64, waits=None, between=None):
        for t in range(16):
            a(f"s_waitcnt vmcnt({15-t if waits is None else waits(t)})")
            if between: between(t)
            a(f"v_mfma_f32_16x16x32_bf16 v[44:47], {vr(128+4*t)}, {vr(db+4*t)}, {'0' if t == 0 else 'v[44:47]'}")
        for r in range(4):
            a(f"v_bfi_b32 v{44+r}, v40, s{sF+r}, v{44+r}")
        a(f"""s_mov_b32 exec_hi, 0
        buffer_store_dwordx4 v[44:47], v41, {sr(SW)}, s10 offen sc1
        s_mov_b64 exec, -1""")

    sect[0] = "A"
    a("L_A12:")
    srd(SX, 1024); srd(SQ, 4 << 20)
    a(f"""s_lshl1_add_u32 s29, s8, s9
    s_lshl_b32 s10, s29, 19
    s_lshl_b32 s11, s7, 8
    s_add_u32 s10, s10, s11
    s_mov_b32 s13, s10
    s_lshl_b32 s11, s29, 7
    v_lshlrev_b32 v4, 4, v0
    v_lshlrev_b32 v5, 1, v0
    v_lshlrev_b32 v6, 17, v3
    v_lshl_add_u32 v6, v2, 4, v6
    s_movk_i32 s12, 0x2000
    s_waitcnt lgkmcnt(0)
    buffer_load_dwordx4 v[8:11], v4, {sr(SX)}, 0 offen {P['x_pol']}
    buffer_load_ushort v12, v5, {sr(SX)}, s11 offen {P['x_pol']}""")
    for t in range(16):
        a(f"buffer_load_dwordx4 {vr(64+4*t)}, v6, {sr(SQ)}, s10 offen nt")
        if t < 15: a("s_add_u32 s10, s10, s12")
    srd(SK, 4 << 20)
    a(f"""s_lshl_b32 s12, s9, 14
    s_add_u32 s12, s12, {X}
    s_mov_b32 m0, s12
    v_lshlrev_b32 v4, 2, v3
    v_xor_b32 v4, v4, v2
    v_lshlrev_b32 v4, 4, v4
    v_lshl_add_u32 v48, v3, 13, v4
    v_xor_b32 v49, 16, v48
    v_xor_b32 v50, 32, v48
    v_xor_b32 v51, 48, v48
    s_mov_b32 s14, 0x8000""")
    def uk_load(rg):
        a(f"buffer_load_dwordx4 v{48+(rg&3)}, {sr(SK)}, s13 offen nt lds")
        if rg < 15: a("s_add_u32 m0, m0, 1024\ns_add_u32 s13, s13, s14")
    up = P["uk_pre"]
    for rg in range(up): uk_load(rg)
    ep_load()
    stamp(1)
    a(f"""s_lshl3_add_u32 s10, s7, s29
    s_lshl_b32 s10, s10, 9
    s_add_u32 s10, s10, {QP}""")
    xn_operands(16 + up)
    a("s_waitcnt lgkmcnt(0)")
    tags(False)
    delta_gemv16(64, lambda t: 15 - t + min(16, up + t), lambda t: uk_load(up + t) if up + t < 16 else None)
    stamp(2)
    a(f"""v_and_b32 v4, 3, v0
    v_bfe_u32 v5, v0, 2, 2
    v_lshl_or_b32 v6, v4, 2, v5
    v_xor_b32 v6, v6, v3
    v_lshlrev_b32 v6, 4, v6
    v_lshlrev_b32 v5, 10, v5
    v_lshl_add_u32 v5, v4, 8, v5
    v_add_u32 v5, s12, v5""")
    for t in range(4):
        a(f"v_xor_b32 v4, {64*t}, v6\nv_add_u32 v{10+t}, v5, v4")
    a(f"""s_add_u32 s13, s9, 1
    s_lshl_b32 s13, s13, 15
    v_lshl_add_u32 v5, v3, 4, s13
    s_lshl_b32 s10, s7, 10
    s_add_u32 s10, s10, s11
    s_add_u32 s10, s10, {QL}
    v_lshlrev_b32 v4, 1, v0
    v_cmp_eq_u32 s[14:15], 1, v3
    v_cmp_eq_u32 s[16:17], 2, v3
    v_cmp_eq_u32 s[18:19], 3, v3
    v_bfe_u32 v7, v0, 1, 2
    v_add_u32 v7, s{sF}, v7
    v_and_b32 v8, 1, v0
    v_lshrrev_b32 v7, v8, v7
    v_and_b32 v7, 1, v7
    v_xor_b32 v8, 1, v7
    v_lshlrev_b32 v8, 16, v8""")
    for T in range(4):
        a(f"s_waitcnt vmcnt({13-4*T})")
        for t in range(4):
            a(f"ds_read_b128 {vr(64+16*T+4*t)}, v{10+t} offset:{4096*T}")
    a("s_waitcnt lgkmcnt(0)")
    stamp(3)
    a("s_barrier")
    for t in range(4):
        a(f"ds_read_b128 {vr(16+4*t)}, v5 offset:{64*t}")
    for t in range(4):
        a(f"s_waitcnt lgkmcnt({3-t})")
        for T in range(4):
            a(f"v_mfma_f32_16x16x32_bf16 {vr(32+4*T)}, {vr(16+4*t)}, {vr(64+16*T+4*t)}, {'0' if t == 0 else vr(32+4*T)}")
    qs = math.log2(math.e) / math.sqrt(128.0)
    a(f"""v_cndmask_b32 v9, v32, v36, s[14:15]
    v_cndmask_b32 v9, v9, v40, s[16:17]
    v_cndmask_b32 v9, v9, v44, s[18:19]
    v_mul_f32 v9, {f2u(qs)}, v9
    v_add_u32 v9, v9, v8
    v_lshrrev_b32 v9, 17, v9
    v_lshl_or_b32 v9, v9, 1, v7
    buffer_store_short v9, v4, {sr(SW)}, s10 offen sc1""")
    stamp(4)
    a("s_branch L_WO")

    sect[0] = "G"
    a(f"""L_WGT:
    s_cmp_eq_u32 s3, 4
    s_cbranch_scc0 L_WGT_other
    s_lshl_b32 s10, s7, 12
    s_add_u32 s10, s10, {QP}
    v_lshlrev_b32 v4, 4, v0
    s_waitcnt lgkmcnt(0)""")
    ep_load()
    a(f"""v_lshrrev_b32 v5, 5, v0
    v_and_b32 v6, 31, v0
    v_lshlrev_b32 v5, 15, v5
    v_lshl_add_u32 v5, v6, 3, v5
    v_add_u32 v5, 32768, v5
    v_mov_b32 v40, 0xff
    s_lshl_b32 s11, s8, 7
    s_add_u32 s11, s11, s10
    s_waitcnt lgkmcnt(0)""")
    tags(False)
    np_ = P["phint"]
    for x in range(np_): a(f"s_add_u32 s{72+x}, s11, {512*(x*8//np_)}")
    shint("L_phint", [72+x for x in range(np_)], 'd')
    stamp(1)
    a("L_qp_poll:")
    for u in range(4):
        a(f"buffer_load_dwordx4 {vr(64+4*u)}, v4, {sr(SW)}, s10 offen offset:{1024*u} sc1")
    a("s_waitcnt vmcnt(0)")
    stamp(2)
    check(13, 64, 16, sF, True)
    a("v_and_b32 v13, v40, v13\nv_cmp_ne_u32 vcc, 0, v13")
    for q in range(4):
        a(f"v_add_f32 v{64+q}, v{64+q}, v{68+q}\nv_add_f32 v{72+q}, v{72+q}, v{76+q}")
    spin("L_qp_poll", "s_cbranch_vccnz")
    for q in range(4):
        a(f"v_add_f32 v{64+q}, v{64+q}, v{72+q}\nv_mov_b32 v{68+q}, v{64+q}")
    for q in range(4):
        a(f"v_permlane32_swap_b32 v{68+q}, v{64+q}")
    for q in range(4):
        a(f"v_add_f32 v{64+q}, v{64+q}, v{68+q}")
    a("""v_cvt_pk_bf16_f32 v64, v64, v65
    v_cvt_pk_bf16_f32 v65, v66, v67
    ds_write_b64 v5, v[64:65]
    s_waitcnt lgkmcnt(0)""")
    stamp(3)
    a("s_barrier\ns_branch L_WO")

    sect[0] = "C"
    a("L_ATT:")
    a(f"""s_lshl4_add_u32 s9, s4, s5
    s_cmp_ge_u32 s3, 4
    s_cbranch_scc1 L_ATT_help""")
    srd(SC, 16 << 20)
    a(f"""s_lshl2_add_u32 s10, s9, s3
    s_lshl_b32 s10, s10, 15
    s_lshl_b32 s11, s3, 13
    v_lshlrev_b32 v4, 2, v3
    v_xor_b32 v4, v4, v2
    v_lshlrev_b32 v4, 4, v4
    v_lshl_add_u32 v32, v3, 10, v4
    v_xor_b32 v33, 32, v32
    s_mov_b32 m0, s11
    s_movk_i32 s15, 0x1000
    s_waitcnt lgkmcnt(0)""")
    ramp = P["c_ramp"]
    def tdepth(l): return [d for (k, d) in ramp if k <= l][-1]
    seq = []
    def go_store():
        a(f"s_mov_b64 exec, 1\nbuffer_store_dwordx2 v[122:123], v124, {sr(SW)}, s14 offen sc1\ns_mov_b64 exec, -1")
        seq.append("go")
    def c_load(n):
        cb, rg = n >> 3, n & 7
        a(f"buffer_load_dwordx4 v{32+(rg&1)}, {sr(SC)}, s10 offen nt lds")
        seq.append(n)
        if n < 31:
            if rg < 7: a("s_addk_i32 m0, 0x400\ns_add_u32 s10, s10, s15")
            else: a(f"s_addk_i32 m0, {32768 - 7*1024}\ns_sub_u32 s10, s10, {7*4096 - 256}")
        if n == P["q_at"]:
            a("ds_write_b32 v125, v2")
        if n == P["go_at"]: go_store()
    def c_wait(n):
        a(f"s_waitcnt vmcnt({len(seq) - 1 - seq.index(n)})")
    issued = 0
    for n in range(tdepth(0)): c_load(n); issued += 1
    a(f"""s_add_u32 s16, s11, {X}
    v_mov_b32 v125, s16
    v_mov_b32 v124, 0
    ds_write_b32 v125, v124""")
    ep_load()
    stamp(1)
    a(f"""v_and_b32 v4, 3, v0
    v_lshrrev_b32 v1, 5, v0
    v_bfe_u32 v5, v0, 2, 2
    v_lshl_or_b32 v5, v4, 2, v5
    v_xor_b32 v5, v5, v1
    v_lshlrev_b32 v5, 4, v5
    v_and_b32 v7, 31, v0
    v_lshl_add_u32 v7, v7, 10, v5
    v_add_u32 v16, {X}, v7
    v_bfe_u32 v5, v0, 2, 1
    v_lshl_or_b32 v5, v4, 1, v5
    v_lshl_or_b32 v5, v5, 1, v1
    v_lshlrev_b32 v5, 4, v5
    v_bfe_u32 v6, v0, 2, 3
    v_lshl_add_u32 v5, v6, 10, v5
    v_lshl_add_u32 v5, v4, 8, v5
    v_add_u32 v8, s11, v5""")
    for x in range(1, 8):
        a(f"v_xor_b32 v{8+x}, {32*x}, v8\nv_xor_b32 v{16+x}, {32*x}, v16")
    a(f"""v_bfe_u32 v4, v0, 2, 2
    v_bfe_u32 v5, v0, 4, 1
    v_bfe_u32 v6, v0, 1, 1
    v_lshl_or_b32 v6, v5, 1, v6
    v_lshl_or_b32 v6, v4, 2, v6
    v_lshlrev_b32 v6, 4, v6
    v_lshl_add_u32 v6, v4, 8, v6
    v_lshl_add_u32 v6, v5, 10, v6
    v_lshl_add_u32 v6, v1, 12, v6
    v_and_b32 v4, 1, v0
    v_lshl_add_u32 v6, v4, 3, v6
    s_lshl_b32 s12, s3, 15
    v_add_u32 v24, s12, v6""")
    for n in range(1, 8):
        a(f"v_xor_b32 v{24+n}, {32*n}, v24")
    a(f"""v_lshlrev_b32 v6, 5, v2
    v_lshl_add_u32 v6, v5, 4, v6
    v_add_u32 v96, {X+8192}, v6
    v_xor_b32 v116, 16, v96
    v_and_b32 v4, 31, v0
    v_lshlrev_b32 v6, 5, v4
    v_lshl_add_u32 v6, v1, 4, v6
    s_lshl2_add_u32 s13, s3, {X+8192}
    v_add_u32 v97, s13, v6
    v_lshlrev_b32 v6, 4, v2
    v_lshl_add_u32 v7, v5, 9, v6
    v_lshl_add_u32 v7, v1, 10, v7
    v_add_u32 v98, {X}, v7
    s_lshl_b32 s13, s3, 11
    s_add_u32 s13, s13, {X}
    v_lshl_add_u32 v99, v0, 4, s13
    v_lshl_add_u32 v3, v3, 19, v6
    s_lshl_b32 s13, s9, 8
    s_add_u32 s12, s12, s13
    s_add_u32 s12, s12, {BP}
    s_lshl_b32 s14, s9, 7
    s_add_u32 s14, s14, {GO}
    s_cmp_eq_u32 s3, 0
    s_cselect_b32 s14, s14, 0x7ffffff0
    s_waitcnt lgkmcnt(0)""")
    tags(True)
    a(f"""v_mov_b32 v2, 0x10001
    v_mov_b32 v122, s{sF}
    v_mov_b32 v123, s{sF}""")
    for hh in range(2):
        for r in range(4):
            a(f"s_add_u32 s{64+4*hh+r}, s12, {(16*hh + r)*131072}")
    lq = []
    def lop(text, key): a(text); lq.append(key)
    def lwait(items):
        last = max([i for i, x in enumerate(lq) if x in items], default=-1)
        if last >= 0: a(f"s_waitcnt lgkmcnt({min(15, len(lq) - 1 - last)})")
        del lq[:last+1]
    def c_read(t):
        lop(f"ds_read_b128 {vr(128+4*t)}, v{8+(t&7)} offset:{32768*((t>>3)&1)}", ("C", t))
        if t >> 3 == 1: a(f"v_add_u32 v{8+(t&7)}, 0x10000, v{8+(t&7)}")
    landed = 0; pre = 0
    while issued < 32:
        c_wait(landed); landed += 1
        while issued < 32 and issued - landed < tdepth(landed):
            c_load(issued); issued += 1
        if landed == P["bi_at"]: a("s_barrier")
        if landed >= 8*(pre+1):
            for t in range(8*pre, 8*pre+8): c_read(t)
            pre += 1
    stamp(2)
    while pre < 3:
        c_wait(8*pre + 7)
        for t in range(8*pre, 8*pre+8): c_read(t)
        pre += 1
    a("s_barrier")
    if P["go_at"] == "B0": go_store()
    stamp(3)
    def qslot(t):
        k = t % 12
        return 32 + 4*k if k < 8 else 100 + 4*(k - 8)
    def q_read(t): lop(f"ds_read_b128 {vr(qslot(t))}, v{16+(t&7)} offset:{256*(t>>3)}", ("Q", t))
    def pv_read(n, w):
        base = 128 + 16*n + 4*w
        for sec in range(2):
            lop(f"ds_read_b64_tr_b16 {vr(base+2*sec,2)}, v{24+n} offset:{8192*w + 2048*sec}", ("F", n, w))
    pv0 = [(n, w) for w in range(4) for n in range(4)]
    pv1 = [(n, w) for n in range(4, 8) for w in range(4)]
    rd = 0
    TB = 23
    for t in range(32):
        tgt = t + 5 if t < 16 else min(32, t + 5 + 2*(t - 15))
        tgt = min(tgt, t + 11, 32)
        while rd < tgt: q_read(rd); rd += 1
        if t == P["cw_at"]:
            c_wait(31)
            if P["go_at"] == "CL": go_store()
        if P["cw_at"] <= t < P["cw_at"] + 4: c_read(24 + 2*(t - P["cw_at"])); c_read(25 + 2*(t - P["cw_at"]))
        if t == TB:
            a("s_waitcnt lgkmcnt(0)"); del lq[:]
            stamp(4)
            a("s_barrier")
        lwait([("Q", t), ("C", t)])
        a(f"v_mfma_f32_32x32x16_bf16 {vr(64,16)}, {vr(128+4*t)}, {vr(qslot(t))}, {'0' if t == 0 else vr(64,16)}")
        if t >= TB:
            for _ in range(2):
                if pv0: pv_read(*pv0.pop(0))
    assert not pv0
    for _ in range(P["sm_pre"]): pv_read(*pv1.pop(0))
    a(f"""v_max3_f32 v4, v64, v65, v66
    v_max3_f32 v5, v67, v68, v69
    v_max3_f32 v6, v70, v71, v72
    v_max3_f32 v7, v73, v74, v75
    v_max3_f32 v4, v4, v76, v77
    v_max3_f32 v5, v5, v78, v79
    v_max3_f32 v4, v4, v5, v6
    v_max_f32 v4, v4, v7
    v_ceil_f32 v20, v4""")
    for r in range(0, 16, 2):
        a(f"v_pk_add_f32 {vr(64+r,2)}, {vr(64+r,2)}, v[20:21] op_sel_hi:[1,0] neg_lo:[0,1] neg_hi:[0,1]")
    a(f"v_mul_f32 v20, {f2u(128.0)}, v20\nds_write_b32 v97, v20")
    for r in range(16):
        a(f"v_exp_f32 v{64+r}, v{64+r}")
        if r >= 3 and r & 1: a(f"v_cvt_pk_bf16_f32 v{80+(r-3)//2}, v{64+r-3}, v{64+r-2}")
        if r == 9: a("ds_write_b128 v99, v[80:83]")
    a("v_pk_add_f32 v[64:65], v[64:65], v[66:67]\nv_cvt_pk_bf16_f32 v87, v78, v79\nds_write_b128 v99, v[84:87] offset:1024")
    a("""v_pk_add_f32 v[68:69], v[68:69], v[70:71]
    v_pk_add_f32 v[72:73], v[72:73], v[74:75]
    v_pk_add_f32 v[76:77], v[76:77], v[78:79]
    v_pk_add_f32 v[64:65], v[64:65], v[68:69]
    v_pk_add_f32 v[72:73], v[72:73], v[76:77]
    v_pk_add_f32 v[64:65], v[64:65], v[72:73]
    v_add_f32 v64, v64, v65
    ds_write_b32 v97, v64 offset:1024
    s_waitcnt lgkmcnt(0)""")
    del lq[:]
    stamp(5)
    a("s_barrier")
    def m_read(hh):
        lop(f"ds_read_b128 {vr(8+8*hh)}, v96 offset:{512*hh}", ("M", hh))
        lop(f"ds_read_b128 {vr(12+8*hh)}, v116 offset:{512*hh}", ("M", hh))
    def p_read(hh, w): lop(f"ds_read_b128 {vr(32+16*hh+4*w)}, v98 offset:{2048*w + 256*hh}", ("P", hh, w))
    m_read(0)
    for w in range(4): p_read(0, w)
    m_read(1)
    for w in range(4): p_read(1, w)
    def dcalc(hh):
        o, x = 8 + 8*hh, 12 + 8*hh
        return [f"v_max3_f32 v{x}, v{x}, v{x+1}, v{x+2}", f"v_max3_f32 v{x+1}, v{o}, v{o+1}, v{o+2}",
                f"v_max3_f32 v{x}, v{x}, v{x+3}, v{o+3}", f"v_max_f32 v{x}, v{x}, v{x+1}",
                f"v_pk_add_f32 {vr(o,2)}, {vr(x,2)}, {vr(o,2)} op_sel_hi:[0,1] neg_lo:[0,1] neg_hi:[0,1]",
                f"v_cvt_u32_f32 v{o}, v{o}", f"v_cvt_u32_f32 v{o+1}, v{o+1}", f"v_cvt_pk_u16_u32 v{4+2*hh}, v{o}, v{o+1}",
                f"v_pk_add_f32 {vr(o+2,2)}, {vr(x,2)}, {vr(o+2,2)} op_sel_hi:[0,1] neg_lo:[0,1] neg_hi:[0,1]",
                f"v_cvt_u32_f32 v{o+2}, v{o+2}", f"v_cvt_u32_f32 v{o+3}, v{o+3}", f"v_cvt_pk_u16_u32 v{5+2*hh}, v{o+2}, v{o+3}"]
    def pscale(hh, w):
        d = 4 + 2*hh + (w >> 1); sel = w & 1
        return [f"v_pk_sub_u16 v{32+16*hh+4*w+q}, v{32+16*hh+4*w+q}, v{d} op_sel:[0,{sel}] op_sel_hi:[1,{sel}] clamp" for q in range(4)]
    def outblk(hh, r): return (8 if hh == 0 else 64) + 4*r
    def pack(hh, q):
        L = []
        for r in range(4):
            o = outblk(hh, r) + q
            L += [f"v_cvt_pk_bf16_f32 v{o}, v{64+32*hh+8*q+r}, v{64+32*hh+8*q+4+r}", f"v_bfi_b32 v{o}, v2, s{sB+q}, v{o}"]
        return L
    def ostore(hh, r): return f"buffer_store_dwordx4 {vr(outblk(hh, r))}, v3, {sr(SW)}, s{64+4*hh+r} offen sc1"
    order = []
    for hh in range(2):
        if hh == 0:
            order += [(0, n, w) for w in range(4) for n in range(4)] + [(0, n, w) for n in range(4, 8) for w in range(4)]
        else:
            order += [(1, n, w) for n in range(8) for w in range(4)]
    pos_last = {}
    for i, (hh, n, w) in enumerate(order): pos_last[(hh, n)] = i
    F = []
    d0 = dcalc(0)
    lwait([("M", 0)])
    for l in d0[:8]: a(l)
    lwait([("P", 0, 0)])
    for l in pscale(0, 0): a(l)
    F += [(0, 3, "w", [("P", 0, 1)])] + [(0, 3, "i", l) for l in pscale(0, 1)]
    F += [(0, 7, "i", l) for l in d0[8:]] + [(0, 7, "w", [("P", 0, 2)])] + [(0, 7, "i", l) for l in pscale(0, 2)]
    F += [(0, 11, "w", [("P", 0, 3)])] + [(0, 11, "i", l) for l in pscale(0, 3)]
    for (n, w) in pv1: F.append((0, 16 + 4*(n-4) + w - 5, "r", (n, w)))
    F += [(0, 30, "w", [("M", 1), ("P", 1, 3)])] + [(0, 30, "i", l) for l in dcalc(1)]
    for w in range(4): F += [(0, 30, "i", l) for l in pscale(1, w)]
    GAP = 3
    for q in range(4): F += [(pos_last[(0, 2*q+1)] + GAP, 99, "i", l) for l in pack(0, q)]
    for r in range(4): F.append((0, 99, "i", ostore(0, r)))
    for q in range(3): F += [(pos_last[(1, 2*q+1)] + GAP, 99, "i", l) for l in pack(1, q)]
    def emit(f):
        if f[2] == "i": a(f[3]); return 1
        if f[2] == "w": lwait(f[3]); return 0
        pv_read(*f[3]); return 2
    for i, (hh, n, w) in enumerate(order):
        lwait([("F", n, w)])
        acc = 64 + 32*hh + 4*n
        a(f"v_mfma_f32_16x16x32_bf16 {vr(acc)}, {vr(32+16*hh+4*w)}, {vr(128+16*n+4*w)}, {'0' if w == 0 else vr(acc)}")
        used = 0
        while F and F[0][0] <= i and (used < P["pv_fill"] or any(f[1] <= i for f in F)):
            used += emit(F.pop(0))
    stamp(6)
    while F: emit(F.pop(0))
    pk = pack(1, 3)
    for r in range(4):
        a(pk[2*r]); a(pk[2*r+1]); a(ostore(1, r))
    stamp(7)
    if diag:
        a("s_waitcnt vmcnt(0)"); stamp(8)
    a("s_branch L_exit")

    sect[0] = "H"
    a("L_ATT_help:")
    a("s_waitcnt lgkmcnt(0)")
    ep_load()
    if P["ukpf"]:
        srd(SK, 4 << 20)
        a(f"""s_sub_u32 s10, s3, 4
        s_lshl2_add_u32 s10, s8, s10
        s_lshl_b32 s10, s10, 18
        s_lshl_b32 s11, s7, 8
        s_add_u32 s10, s10, s11
        v_lshrrev_b32 v4, 1, v0
        v_and_b32 v5, 1, v0
        v_lshlrev_b32 v4, 13, v4
        v_lshl_add_u32 v4, v5, 7, v4""")
        if P["ukpf_wait"]: a("s_waitcnt lgkmcnt(0)")
        a(f"buffer_load_dword v254, v4, {sr(SK)}, s10 offen")
        if P["ukpf"] == 2: a(f"buffer_load_dword v253, v4, {sr(SK)}, s10 offen offset:64")
    a("s_waitcnt lgkmcnt(0)")
    tags(True)
    if P["mlp_pos"] not in ("w", "g"):
        srd(SX, 1024)
        a(f"""s_and_b32 s29, s5, 7
        s_cmp_ge_u32 s3, 6
        s_cbranch_scc1 L_ATT_help2
        s_lshl_b32 s11, s29, 7
        v_lshlrev_b32 v4, 4, v0
        v_lshlrev_b32 v5, 1, v0
        buffer_load_dwordx4 v[8:11], v4, {sr(SX)}, 0 offen
        buffer_load_ushort v12, v5, {sr(SX)}, s11 offen""")
        xn_operands(0)
    a("L_ATT_help2:")
    a(f"""s_lshl4_add_u32 s9, s4, s5
    s_sub_u32 s10, s3, 4
    s_lshl_b32 s11, s10, 13
    s_add_u32 s12, s11, {QL}
    s_add_u32 s13, s11, {X}
    s_and_b32 s14, s10, 1
    s_lshl_b32 s14, s14, 5
    v_lshlrev_b32 v4, 4, v0
    v_add_u32 v5, s13, v4
    v_xor_b32 v4, s14, v4
    v_mov_b32 v6, 0x10001
    s_movk_i32 s16, 0xff""")
    for r in range(8):
        f = ((r & 3) << 2) | (r >> 2)
        a(f"v_xor_b32 v{8+r}, {16*f}, v4")
    if P["mlp_pos"] not in ("w", "g"):
        a(f"""s_mov_b32 s38, 0
        s_cmp_eq_u32 s3, 4
        s_cselect_b32 s15, 56, 72
        s_load_dwordx2 s[{SC}:{SC+1}], s[0:1], s15
        s_load_dwordx2 s[{SK}:{SK+1}], s[0:1], 64
        v_lshlrev_b32 v21, 3, v3
        s_cbranch_scc0 L_ms2
        s_lshr_b32 s18, s5, 3
        s_lshl1_add_u32 s18, s4, s18
        s_mul_i32 s19, s29, {64*3584}
        s_lshl_b32 s15, s18, 8
        s_add_u32 s19, s19, s15
        v_mul_u32_u24 v20, {16*3584}, v3
        s_movk_i32 s39, 3584
        s_cmp_lt_u32 s18, 14
        s_cselect_b32 s38, 1, 0
        s_branch L_ms3
        L_ms2:
        s_mul_i32 s18, s4, 14
        s_add_u32 s18, s18, s5
        s_lshl_b32 s19, s18, 14
        v_lshlrev_b32 v20, 12, v3
        s_movk_i32 s39, 256
        s_cmp_lt_u32 s5, 14
        s_cselect_b32 s38, 1, 0
        s_cmp_eq_u32 s3, 5
        s_cselect_b32 s38, s38, 0
        L_ms3:
        v_lshl_add_u32 v20, v2, 4, v20
        s_lshl_b32 s17, s18, 5""")
        srd(SC, 512*1792*2); srd(SK, 1792*2)
        a(f"s_waitcnt lgkmcnt(0)\nbuffer_load_dwordx2 v[48:49], v21, {sr(SK)}, s17 offen")
    a("s_barrier")
    nh = P["qhint"]
    shint("L_qhint", hint_offs(nh, 9, 63, 7, 12, 64//max(nh,1) + 1), 'b')
    if P["q_at"] is not None:
        a(f"""v_mov_b32 v16, s13
        L_qtrig:
        ds_read_b32 v17, v16
        s_waitcnt lgkmcnt(0)
        v_cmp_eq_u32 vcc, 0, v17
        s_sleep 1""")
        a("s_add_u32 s28, s28, 0x10000\ns_cbranch_scc1 L_exit\ns_cbranch_vccnz L_qtrig\ns_and_b32 s28, s28, 0xffff")
    stamp(5)
    a("L_qfetch:")
    for r in range(8):
        a(f"""s_bitcmp1_b32 s16, {r}
        s_cbranch_scc0 L_qs{r}
        s_add_u32 m0, s13, {1024*r}
        s_add_u32 s15, s12, {1024*r}
        buffer_load_dwordx4 v{8+r}, {sr(SW)}, s15 offen sc1 lds
        L_qs{r}:""")
    def mlp_loads():
        for t in range(16):
            a(f"buffer_load_dwordx4 {vr(192+4*t)}, v20, {sr(SC)}, s19 offen nt")
            if t < 15: a("s_add_u32 s19, s19, s39")
    if P["mlp_pos"] == "q":
        a("s_cmp_eq_u32 s38, 0\ns_cbranch_scc1 L_nomlp\ns_mov_b32 s38, 0")
        mlp_loads()
        a("s_waitcnt vmcnt(16)\ns_branch L_qchk\nL_nomlp:\ns_waitcnt vmcnt(0)\nL_qchk:")
    else: a("s_waitcnt vmcnt(0)")
    def mlp_bars():
        if P["mlp_pos"] == "b0": mlp_loads()
        a("s_barrier\ns_barrier")
        if P["mlp_pos"] == "bc": mlp_loads()
    for r in range(8):
        a(f"ds_read_b128 {vr(64+4*r)}, v5 offset:{1024*r}")
    a("s_mov_b32 s16, 0")
    for r in range(8):
        a(f"s_waitcnt lgkmcnt({7-r})")
        check(7, 64+4*r, 4, sB, True)
        a(f"v_and_b32 v7, v6, v7\nv_cmp_ne_u32 vcc, 0, v7\ns_cmp_lg_u64 vcc, 0\ns_cselect_b32 s17, {1<<r}, 0\ns_or_b32 s16, s16, s17")
    spin("L_qfetch", "s_cbranch_scc1", "s_cmp_lg_u32 s16, 0")
    stamp(6)
    a("s_barrier")
    if P["mlp_pos"] in ("w", "g"): a("s_cmp_lt_u32 s3, 6\ns_cbranch_scc1 L_exit")
    else: a("s_cmp_eq_u32 s3, 4\ns_cbranch_scc1 L_MLP1\ns_cmp_eq_u32 s3, 5\ns_cbranch_scc1 L_MLP2")
    a("s_cmp_eq_u32 s3, 6\ns_cbranch_scc1 L_FIN")
    a(f"""v_and_b32 v4, 31, v0
    v_lshlrev_b32 v5, 5, v4
    v_add_u32 v5, {X+8192}, v5
    v_lshlrev_b32 v6, 4, v0
    s_setprio 3
    v_mov_b32 v17, s{sF}
    v_mov_b32 v19, s{sF}
    v_mov_b32 v8, {f2u(1/128)}
    s_lshl_b32 s12, s9, 9
    s_add_u32 s12, s12, {ST}
    s_barrier
    s_barrier
    ds_read_b128 v[80:83], v5
    ds_read_b128 v[84:87], v5 offset:16
    ds_read_b128 v[88:91], v5 offset:1024
    ds_read_b128 v[92:95], v5 offset:1040
    s_waitcnt lgkmcnt(2)
    v_max3_f32 v4, v80, v81, v82
    v_max3_f32 v5, v83, v84, v85
    v_max3_f32 v4, v4, v86, v87
    v_max_f32 v4, v4, v5
    v_mul_f32 v16, v4, v8""")
    for x in range(8): a(f"v_fma_f32 v{80+x}, v{80+x}, v8, -v16")
    for x in range(8): a(f"v_exp_f32 v{80+x}, v{80+x}")
    a("s_waitcnt lgkmcnt(0)\nv_mul_f32 v18, v80, v88")
    for x in range(1, 8): a(f"v_fmac_f32 v18, v{80+x}, v{88+x}")
    a(f"""
    s_mov_b32 exec_hi, 0
    buffer_store_dwordx4 v[16:19], v6, {sr(SW)}, s12 offen sc1
    s_mov_b64 exec, -1""")
    stamp(7)
    a("s_branch L_exit")

    sect[0] = "F"
    a("L_FIN:")
    a(f"""s_cmp_lt_u32 s5, 12
    s_cbranch_scc1 L_exit
    s_barrier
    s_barrier
    s_load_dwordx2 s[{SC}:{SC+1}], s[0:1], 80
    s_load_dwordx2 s[{SQ}:{SQ+1}], s[0:1], 88
    s_sub_u32 s10, s5, 12
    s_lshl2_add_u32 s10, s4, s10
    s_lshl_b32 s11, s10, 6
    s_lshl_b32 s16, s10, 5
    v_lshrrev_b32 v4, 2, v0
    v_and_b32 v5, 3, v0
    v_lshlrev_b32 v4, 11, v4
    v_lshl_add_u32 v4, v5, 4, v4
    v_lshlrev_b32 v5, 3, v5
    v_mov_b32 v6, 0xff""")
    srd(SX, 1024); srd(SC, 1024); srd(SQ, 1024)
    a(f"""s_waitcnt lgkmcnt(0)
    buffer_load_dwordx2 v[8:9], v5, {sr(SX)}, s16 offen
    buffer_load_dwordx2 v[10:11], v5, {sr(SC)}, s16 offen""")
    def fin_gather(label, first, n, dst):
        a(f"s_add_u32 s13, s11, {DP + first*2048}\ns_mul_i32 s14, s10, 3")
        shint(label + "_h", hint_offs(P["fhint"], 14, 63, 11, 13, 29), 'f')
        a(f"{label}:\ns_mov_b32 s12, s13")
        for x in range(n):
            a(f"buffer_load_dwordx4 {vr(64+4*x)}, v4, {sr(SW)}, s12 offen sc1")
            if x < n-1: a("s_add_u32 s12, s12, 0x8000")
        for x in range(n):
            a(f"s_waitcnt vmcnt({n-1-x})")
            check(7, 64+4*x, 4, sF, x == 0)
            if x == 1:
                for q in range(0, 4, 2): a(f"v_pk_add_f32 {vr(dst+q,2)}, {vr(64+q,2)}, {vr(68+q,2)}")
            elif x > 1:
                for q in range(0, 4, 2): a(f"v_pk_add_f32 {vr(dst+q,2)}, {vr(dst+q,2)}, {vr(64+4*x+q,2)}")
        a("v_and_b32 v7, v6, v7\nv_cmp_ne_u32 vcc, 0, v7")
        spin(label, "s_cbranch_vccnz")
        for r in (4, 8):
            for q in range(4): a(f"v_add_f32_dpp v{dst+q}, v{dst+q}, v{dst+q} row_ror:{r} {DPPM}")
        for sw in ("v_permlane16_swap_b32", "v_permlane32_swap_b32"):
            for q in range(4): a(f"v_mov_b32 v{64+q}, v{dst+q}")
            for q in range(4): a(f"{sw} v{64+q}, v{dst+q}")
            for q in range(0, 4, 2): a(f"v_pk_add_f32 {vr(dst+q,2)}, {vr(dst+q,2)}, {vr(64+q,2)}")
    def round4(d):
        a(f"v_cvt_pk_bf16_f32 v12, v{d}, v{d+1}\nv_cvt_pk_bf16_f32 v13, v{d+2}, v{d+3}")
        unpack2(d, 12); unpack2(d+2, 13)
    fin_gather("L_fin_mlp", 128, 7, 16)
    stamp(7)
    round4(16)
    unpack2(20, 10); unpack2(22, 11); unpack2(24, 8); unpack2(26, 9)
    for q in range(0, 4, 2): a(f"v_pk_add_f32 {vr(16+q,2)}, {vr(16+q,2)}, {vr(20+q,2)}")
    round4(16)
    fin_gather("L_fin_att", 0, 8, 20)
    stamp(8)
    round4(20)
    for q in range(0, 4, 2): a(f"v_pk_add_f32 {vr(20+q,2)}, {vr(20+q,2)}, {vr(24+q,2)}")
    round4(20)
    for q in range(0, 4, 2): a(f"v_pk_add_f32 {vr(20+q,2)}, {vr(20+q,2)}, {vr(16+q,2)}")
    a(f"""v_cvt_pk_bf16_f32 v12, v20, v21
    v_cvt_pk_bf16_f32 v13, v22, v23
    s_mov_b64 exec, 15
    buffer_store_dwordx2 v[12:13], v5, {sr(SQ)}, s16 offen {P['out_pol']}
    s_cmp_lg_u32 s10, 0
    s_cbranch_scc1 L_fin_done
    s_mov_b64 exec, 1
    {"s_mov_b32 s88, 1" if P["probe"] else ""}
    v_mov_b32 v14, s{sF}
    buffer_store_dword v14, v5, {sr(SW)}, 0 offen offset:{EP} {P['out_pol']}
    L_fin_done:
    s_mov_b64 exec, -1""")
    if P["calib"]:
        a(f"""s_add_u32 s80, s80, {P['calib']}
        L_cal:
        s_memrealtime s[82:83]
        s_waitcnt lgkmcnt(0)
        s_sub_u32 s83, s82, s80
        s_cmp_lt_i32 s83, 0
        s_cbranch_scc1 L_cal""")
    if diag:
        a("s_waitcnt vmcnt(0)"); stamp(9)
    a("s_branch L_exit")

    def mlp2_tail(seed=18, tp=14):
        shint("L_hhint", hint_offs(P["hhint"], seed, 7, 9, 13, 3), 'f')
        a(f"""L_hp_poll:
        buffer_load_dwordx4 v[16:19], v6, {sr(SW)}, s13 offen sc1
        s_waitcnt vmcnt(0)""")
        check(7, 16, 4, sF, True)
        a("v_and_b32 v7, v40, v7\nv_cmp_ne_u32 vcc, 0, v7")
        spin("L_hp_poll", "s_cbranch_vccnz")
        for r in (1, 2, 4):
            for q in range(4): a(f"v_add_f32_dpp v{16+q}, v{16+q}, v{16+q} row_ror:{r} {DPPM}")
        a(f"v_cvt_pk_bf16_f32 v{tp}, v16, v17\nv_cvt_pk_bf16_f32 v{tp+1}, v18, v19")
        unpack2(16, tp); unpack2(18, tp+1); unpack2(20, 48); unpack2(22, 49)
        for q in range(4): a(f"v_add_f32 v{16+q}, v{16+q}, v{20+q}")
        for q in range(4): rnd_bf16(16+q, 16+q)
        for q in range(4): a(f"v_max_f32 v{16+q}, 0, v{16+q}\nv_mul_f32 v{16+q}, v{16+q}, v{16+q}\nv_cvt_pk_bf16_f32 v{16+q}, v{16+q}, v{16+q}")
        for rq in range(4):
            for dw in range(4):
                a(f"v_and_b32 v{64+4*rq+dw}, v{16+rq}, v{32+dw}")
        for rq in range(4):
            for cb in range(4):
                a(f"v_mfma_f32_16x16x32_bf16 {vr(96+4*cb)}, {vr(64+4*rq)}, {vr(192+16*rq+4*cb)}, {'0' if rq == 0 else vr(96+4*cb)}")
        for cb in range(4):
            for r in range(4): a(f"v_bfi_b32 v{96+4*cb+r}, v40, s{sF+r}, v{96+4*cb+r}")
        a("s_mov_b32 exec_hi, 0")
        for cb in range(4):
            a(f"buffer_store_dwordx4 {vr(96+4*cb)}, v41, {sr(SW)}, s12 offen offset:{512*cb} sc1")
        a("s_mov_b64 exec, -1")
    if P["mlp_pos"] not in ("w", "g"):
        a("L_MLP1:")
        a(f"""s_cmp_ge_u32 s18, 14
        s_cbranch_scc1 L_exit
        s_lshl3_add_u32 s10, s18, s29
        s_lshl_b32 s10, s10, 9
        s_add_u32 s10, s10, {HP}""")
        mlp_bars()
        delta_gemv16(192)
        stamp(7)
        a("s_branch L_exit")
        a("L_MLP2:")
        a(f"""s_cmp_ge_u32 s5, 14
        s_cbranch_scc1 L_exit
        s_lshr_b32 s13, s18, 3
        s_lshl_b32 s13, s13, 12
        s_and_b32 s14, s18, 7
        s_lshl_b32 s14, s14, 6
        s_add_u32 s13, s13, s14
        s_add_u32 s13, s13, {HP}
        v_and_b32 v6, 7, v0
        v_lshlrev_b32 v6, 9, v6
        v_lshl_add_u32 v6, v3, 4, v6
        s_lshl_b32 s12, s18, 11
        s_add_u32 s12, s12, {DP + 128*2048}""")
        mlp_bars()
        mlp2_tail()
        stamp(7)
        a("s_branch L_exit")
    sect[0] = "S"
    a("L_WGT_other:")
    a("s_waitcnt lgkmcnt(0)")
    ep_load()
    a(f"""s_load_dwordx2 s[{SG}:{SG+1}], s[0:1], 32
    s_cmp_eq_u32 s3, 7
    s_cbranch_scc0 L_S1
    s_waitcnt lgkmcnt(0)""")
    tags(False)
    a("s_barrier\ns_branch L_WO")
    a("L_S1:")
    a("s_waitcnt lgkmcnt(0)")
    tags(True)
    if P["mlp_pos"] == "w":
        md = P["mlp_depth"]
        a("s_cmp_lg_u32 s3, 0\ns_cbranch_scc1 L_notm1")
        a(f"""s_load_dwordx2 s[{SQ}:{SQ+1}], s[0:1], 56
        s_and_b32 s29, s5, 7
        s_lshr_b32 s9, s5, 3
        s_lshl1_add_u32 s9, s4, s9
        s_lshl_b32 s11, s29, 7
        v_lshlrev_b32 v4, 4, v0
        v_lshlrev_b32 v5, 1, v0""")
        srd(SX, 1024); srd(SQ, 512*1792*2)
        a(f"""buffer_load_dwordx4 v[8:11], v4, {sr(SX)}, 0 offen
        buffer_load_ushort v12, v5, {sr(SX)}, s11 offen""")
        xn_operands(0)
        a(f"""s_mul_i32 s11, s29, {64*3584}
        s_lshl_b32 s12, s9, 8
        s_add_u32 s11, s11, s12
        v_mul_u32_u24 v6, {16*3584}, v3
        v_lshl_add_u32 v6, v2, 4, v6
        s_movk_i32 s12, 3584
        s_lshl3_add_u32 s10, s9, s29
        s_lshl_b32 s10, s10, 9
        s_add_u32 s10, s10, {HP}
        s_waitcnt lgkmcnt(0)
        s_barrier
        s_barrier
        s_cmp_ge_u32 s9, 14
        s_cbranch_scc1 L_S1b""")
        for t in range(16):
            if t >= md: a(f"s_waitcnt vmcnt({md-1})")
            a(f"buffer_load_dwordx4 {vr(64+4*t)}, v6, {sr(SQ)}, s11 offen nt")
            if t < 15: a("s_add_u32 s11, s11, s12")
        delta_gemv16()
        stamp(8)
        a("s_branch L_S1b")
        a("L_notm1:")
        a("s_cmp_lg_u32 s3, 1\ns_cbranch_scc1 L_notm2")
        a(f"""s_load_dwordx2 s[{SQ}:{SQ+1}], s[0:1], 72
        s_load_dwordx2 s[{SK}:{SK+1}], s[0:1], 64
        s_mul_i32 s18, s4, 14
        s_add_u32 s18, s18, s5
        s_lshl_b32 s11, s18, 5
        s_lshl_b32 s10, s18, 14
        v_lshlrev_b32 v5, 12, v3
        v_lshl_add_u32 v5, v2, 4, v5
        v_lshlrev_b32 v7, 3, v3
        s_lshr_b32 s13, s18, 3
        s_lshl_b32 s13, s13, 12
        s_and_b32 s14, s18, 7
        s_lshl_b32 s14, s14, 6
        s_add_u32 s13, s13, s14
        s_add_u32 s13, s13, {HP}
        v_and_b32 v6, 7, v0
        v_lshlrev_b32 v6, 9, v6
        v_lshl_add_u32 v6, v3, 4, v6
        v_mov_b32 v40, 0xff
        s_lshl_b32 s12, s18, 11
        s_add_u32 s12, s12, {DP + 128*2048}""")
        srd(SQ, 1792*512*2); srd(SK, 1792*2)
        delta_masks(32, 36)
        a(f"""s_waitcnt lgkmcnt(0)
        s_barrier
        s_barrier
        s_cmp_ge_u32 s5, 14
        s_cbranch_scc1 L_S1b
        buffer_load_dwordx2 v[48:49], v7, {sr(SK)}, s11 offen""")
        for t in range(16):
            if t >= md: a(f"s_waitcnt vmcnt({md-1})")
            a(f"buffer_load_dwordx4 {vr(192+4*t)}, v5, {sr(SQ)}, s10 offen offset:{256*t} nt")
        mlp2_tail()
        stamp(9)
        a("s_branch L_S1b")
        a("L_notm2:\ns_barrier\ns_barrier")
        a("L_S1b:")
    if P["mlp_pos"] == "g":
        a(f"""s_cmp_eq_u32 s3, 0
        s_cselect_b32 s15, 56, 72
        s_load_dwordx2 s[{SQ}:{SQ+1}], s[0:1], s15
        s_load_dwordx2 s[{SK}:{SK+1}], s[0:1], 64
        s_cbranch_scc0 L_g2
        s_and_b32 s29, s5, 7
        s_lshr_b32 s9, s5, 3
        s_lshl1_add_u32 s9, s4, s9
        s_lshl_b32 s11, s29, 7
        v_lshlrev_b32 v4, 4, v0
        v_lshlrev_b32 v5, 1, v0""")
        srd(SX, 1024)
        a(f"""buffer_load_dwordx4 v[8:11], v4, {sr(SX)}, 0 offen
        buffer_load_ushort v12, v5, {sr(SX)}, s11 offen""")
        xn_operands(0)
        a(f"""s_mul_i32 s36, s29, {64*3584}
        s_lshl_b32 s12, s9, 8
        s_add_u32 s36, s36, s12
        v_mul_u32_u24 v52, {16*3584}, v3
        s_movk_i32 s37, 3584
        s_lshl3_add_u32 s39, s9, s29
        s_lshl_b32 s39, s39, 9
        s_add_u32 s39, s39, {HP}
        s_cmp_lt_u32 s9, 14
        s_cselect_b32 s38, 1, 0
        s_branch L_g3
        L_g2:
        s_mul_i32 s29, s4, 14
        s_add_u32 s29, s29, s5
        s_lshl_b32 s36, s29, 14
        v_lshlrev_b32 v52, 12, v3
        s_movk_i32 s37, 256
        s_cmp_lt_u32 s5, 14
        s_cselect_b32 s38, 2, 0
        s_cmp_eq_u32 s3, 1
        s_cselect_b32 s38, s38, 0
        v_mov_b32 v40, 0xff
        L_g3:
        v_lshl_add_u32 v52, v2, 4, v52
        v_lshlrev_b32 v53, 3, v3
        s_lshl_b32 s11, s29, 5""")
        srd(SQ, 512*1792*2); srd(SK, 1792*2)
        a(f"s_waitcnt lgkmcnt(0)\nbuffer_load_dwordx2 v[48:49], v53, {sr(SK)}, s11 offen")
    srd(SG, 4 << 20)
    delta_masks(32, 36)
    a(f"""v_lshlrev_b32 v5, 17, v3
    v_lshlrev_b32 v6, 2, v3
    v_xor_b32 v6, v6, v2
    v_lshl_add_u32 v4, v6, 4, v5
    v_xor_b32 v26, 32, v4
    s_lshl_b32 s10, s8, 5
    s_add_u32 s10, s10, s3
    s_lshl_b32 s10, s10, 15
    s_lshl_b32 s11, s7, 8
    s_add_u32 s10, s10, s11
    s_lshl_b32 s11, s3, 13
    s_add_u32 s11, s11, {X}""")
    a(f"""v_bfe_u32 v6, v0, 2, 2
    v_bfe_u32 v7, v0, 4, 1
    v_bfe_u32 v5, v0, 1, 1
    v_lshl_or_b32 v7, v7, 1, v5
    v_lshl_or_b32 v7, v6, 2, v7
    s_lshl_b32 s12, s3, 2
    v_xor_b32 v7, s12, v7
    v_lshlrev_b32 v7, 4, v7
    v_lshlrev_b32 v6, 8, v6
    v_lshl_add_u32 v6, v3, 11, v6
    v_and_b32 v5, 1, v0
    v_lshl_add_u32 v6, v5, 3, v6
    v_add_u32 v6, {X}, v6
    v_add_u32 v8, v6, v7
    v_xor_b32 v9, 32, v8""")
    a(f"""v_and_b32 v5, 7, v0
    v_lshl_add_u32 v5, v5, 2, v3
    v_lshlrev_b32 v10, 9, v5
    v_lshlrev_b32 v11, 4, v0
    v_lshlrev_b32 v5, 4, v2
    v_lshl_add_u32 v5, v3, 3, v5
    s_lshl_b32 s12, s3, 6
    s_add_u32 s13, s12, s11
    v_add_u32 v12, s13, v5
    v_and_b32 v5, 3, v0
    v_mul_u32_u24 v5, {8192+64}, v5
    v_lshl_add_u32 v5, v3, 4, v5
    v_add_u32 v13, {X}, v5
    v_and_b32 v5, 31, v0
    s_add_u32 s13, s12, {X+2048}
    v_lshl_add_u32 v14, v5, 1, s13
    v_mov_b32 v15, s11
    v_mov_b32 v31, {X}
    v_mov_b32 v30, 0x10001
    v_bfe_u32 v5, v0, 4, 1
    v_cmp_eq_u32 s[18:19], 1, v5
    s_mov_b32 m0, s11
    s_and_b32 s30, s5, {12 if P["go_common"] else 15}
    s_lshl4_add_u32 s30, s4, s30
    s_lshl_b32 s30, s30, 7
    s_add_u32 s30, s30, {GO}""")
    if P["mlp_pos"] != "w": a("s_barrier\ns_barrier")
    if P["cpf"]:
        srd(SC, 16 << 20)
        a(f"""s_lshl4_add_u32 s14, s4, s5
        s_lshl2_add_u32 s14, s14, s3
        s_lshl_b32 s14, s14, 15
        v_lshrrev_b32 v5, 1, v0
        v_and_b32 v6, 1, v0
        v_lshlrev_b32 v5, 10, v5
        v_lshl_add_u32 v5, v6, 7, v5""")
        for tau in range(4 - P["cpf"], 4):
            a(f"buffer_load_dword v{250+tau}, v5, {sr(SC)}, s14 offen offset:{256*tau}")
    if P["go_at"] is not None:
        a("s_cmp_lg_u32 s3, 2\ns_cbranch_scc1 L_go_done")
        shint("L_go", [30], 't')
        a("L_go_done:\ns_barrier")
    stamp(1)
    def g_loads():
        for t in range(16):
            a(f"buffer_load_dwordx4 {vr(192+4*t)}, v52, {sr(SQ)}, s36 offen nt")
            if t < 15: a("s_add_u32 s36, s36, s37")
    if P["mlp_pos"] == "g":
        a("s_cmp_lg_u32 s38, 1\ns_cbranch_scc1 L_g4")
        g_loads()
        a("L_g4:")
    for q in range(8):
        a(f"buffer_load_dwordx4 v{26 if (q>>1)&1 else 4}, {sr(SG)}, s10 offen nt lds")
        if q < 7: a(f"s_add_u32 m0, m0, 1024\ns_add_u32 s10, s10, {(64*8192 if q & 1 == 0 else (1-64)*8192) & 0xffffffff}")
    a(f"""s_lshl_b32 s12, s3, 13
    s_lshl2_add_u32 s16, s7, s8
    s_lshl_b32 s13, s16, 15
    s_add_u32 s13, s13, s12
    s_add_u32 s13, s13, {BP}
    s_lshl_b32 s12, s12, 1
    s_lshl4_add_u32 s12, s7, s12
    s_add_u32 s12, s12, {ST}""")
    if P["mlp_pos"] == "g":
        a("s_cmp_eq_u32 s38, 0\ns_cbranch_scc1 L_g6\ns_cmp_eq_u32 s38, 1\ns_cbranch_scc1 L_g5")
        g_loads()
        a("s_waitcnt vmcnt(16)\ns_branch L_g7\nL_g5:\ns_mov_b32 s10, s39")
        delta_gemv16(192, lambda t: 23 - t)
        stamp(8)
        a("s_waitcnt vmcnt(1)\ns_branch L_g7\nL_g6:\ns_waitcnt vmcnt(0)\nL_g7:")
    else: a("s_waitcnt vmcnt(0)")
    a("s_barrier")
    for n in range(2):
        for t in range(4):
            for sec in range(2):
                a(f"ds_read_b64_tr_b16 {vr(160+16*n+4*t+2*sec,2)}, v{8+n} offset:{8192*t + 1024*sec}")
    a("s_waitcnt lgkmcnt(0)\ns_barrier")
    if P["mlp_pos"] == "g":
        a(f"""s_cmp_lg_u32 s38, 2
        s_cbranch_scc1 L_g8
        s_mov_b32 s36, s12
        s_mov_b32 s37, s13
        s_mov_b32 s17, s29
        s_lshr_b32 s13, s29, 3
        s_lshl_b32 s13, s13, 12
        s_and_b32 s14, s29, 7
        s_lshl_b32 s14, s14, 6
        s_add_u32 s13, s13, s14
        s_add_u32 s13, s13, {HP}
        v_and_b32 v6, 7, v0
        v_lshlrev_b32 v6, 9, v6
        v_lshl_add_u32 v6, v3, 4, v6
        s_lshl_b32 s12, s29, 11
        s_add_u32 s12, s12, {DP + 128*2048}""")
        mlp2_tail(17, 50)
        stamp(9)
        a("s_mov_b32 s12, s36\ns_mov_b32 s13, s37\nL_g8:")
    stamp(2)
    if "bwait" in P["abl"]: a("s_barrier")
    nh = P["bhint"]
    for x in range(nh): a(f"s_add_u32 s{30+x}, s13, {(32*x//nh + 3)*256 + 128}")
    shint("L_bhint", [30+x for x in range(nh)], 'b')
    stamp(3)
    a("s_add_u32 s14, s13, 4096\nL_bfetch:")
    a(f"buffer_load_dwordx4 v[16:19], v10, {sr(SW)}, s12 offen sc1")
    for t in range(8):
        a(f"buffer_load_dwordx4 {vr(64+4*t)}, v11, {sr(SW)}, s{13 + (t>>2)} offen offset:{1024*(t&3)} sc1")
    a(f"""s_waitcnt vmcnt(8)""")
    stamp(4)
    a(f"""v_xor_b32 v17, s{sF}, v17
    v_bitop3_b32 v17, v17, v19, s{sF} bitop3:0xf6
    v_mov_b32 v24, v16""")
    allreduce("v_max_f32", 24, 20)
    a("""v_sub_f32 v16, v16, v24
    v_exp_f32 v16, v16
    v_cvt_pk_bf16_f32 v16, v16, v16""")
    for t in range(8):
        for dw in range(4):
            a(f"v_and_b32_dpp v{128+4*t+dw}, v16, v{32+dw} row_newbcast:{t} {DPPM}")
    a("v_and_b32 v25, 0xffff0000, v16\nv_mul_f32 v25, v25, v18")
    allreduce("v_add_f32", 25, 20)
    a("v_mul_f32 v25, 0.5, v25\nds_write_b64 v15, v[24:25] offset:1024")
    stamp(5)
    for t in range(8):
        a(f"s_waitcnt vmcnt({7-t})")
        a(f"v_mfma_f32_16x16x32_bf16 v[40:43], {vr(128+4*t)}, {vr(64+4*t)}, {'0' if t == 0 else 'v[40:43]'}")
        check(7, 64+4*t, 4, sB, t == 0)
    a("v_and_or_b32 v7, v30, v7, v17\nv_cmp_ne_u32 vcc, 0, v7")
    spin("L_bfetch", "s_cbranch_vccnz")
    stamp(6)
    a("""v_cvt_pk_bf16_f32 v44, v40, v41
    v_cvt_pk_bf16_f32 v45, v42, v43
    s_mov_b32 exec_hi, 0
    ds_write_b64 v12, v[44:45]
    s_mov_b64 exec, -1
    s_waitcnt lgkmcnt(0)
    s_barrier""")
    for u in range(4): a(f"ds_read_b64 {vr(80+2*u,2)}, v31 offset:{8192*u + 1024}")
    for t in range(4): a(f"ds_read_b128 {vr(64+4*t)}, v13 offset:{64*t}")
    sm = """v_max3_f32 v4, v80, v82, v84
    v_max_f32 v4, v4, v86
    v_sub_f32 v80, v80, v4
    v_sub_f32 v82, v82, v4
    v_sub_f32 v84, v84, v4
    v_sub_f32 v86, v86, v4
    v_exp_f32 v80, v80
    v_exp_f32 v82, v82
    v_exp_f32 v84, v84
    v_exp_f32 v86, v86
    v_mul_f32 v5, v80, v81
    v_fmac_f32 v5, v82, v83
    v_fmac_f32 v5, v84, v85
    v_fmac_f32 v5, v86, v87
    v_rcp_f32 v5, v5""".split("\n")
    for t in range(4):
        a(f"s_waitcnt lgkmcnt({3-t})")
        for n in range(2):
            a(f"v_mfma_f32_16x16x32_bf16 {vr(40+4*n)}, {vr(64+4*t)}, {vr(160+16*n+4*t)}, {'0' if t == 0 else vr(40+4*n)}")
            a(sm.pop(0))
    for l in sm: a(l)
    for r in range(4): a(f"v_cndmask_b32 v{40+r}, v{40+r}, v{44+r}, s[18:19]")
    a("""v_mul_f32 v6, v40, v80
    v_fmac_f32 v6, v41, v82
    v_fmac_f32 v6, v42, v84
    v_fmac_f32 v6, v43, v86
    v_mul_f32 v6, v6, v5
    v_cvt_pk_bf16_f32 v6, v6, v6
    ds_write_b16 v14, v6
    s_waitcnt lgkmcnt(0)""")
    stamp(7)
    a("s_barrier\ns_branch L_exit")

    sect[0] = "O"
    a("L_WO:")
    a(f"s_load_dwordx2 s[{SG}:{SG+1}], s[0:1], 40\ns_setprio 0\ns_barrier")
    srd(SG, 4 << 20)
    a(f"""s_sub_u32 s9, s3, 4
    s_lshl_b32 s10, s7, 17
    s_lshl_b32 s11, s9, 8
    s_add_u32 s10, s10, s11
    s_lshl_b32 s11, s9, 15
    v_lshlrev_b32 v4, 2, v3
    v_xor_b32 v4, v4, v2
    v_lshlrev_b32 v4, 4, v4
    v_lshl_add_u32 v4, v3, 10, v4
    v_xor_b32 v5, 32, v4
    s_mov_b32 m0, s11""")
    if P["wo_rot"]:
        a("s_lshl_b32 s13, s8, 15\ns_add_u32 s10, s10, s13")
        for tau in range(3):
            a(f"s_cmp_eq_u32 s8, {3-tau}\ns_cselect_b32 s{36+tau}, -31, 1\ns_lshl_b32 s{36+tau}, s{36+tau}, 12")
    a(f"""v_bfe_u32 v6, v0, 2, 2
    v_bfe_u32 v7, v0, 4, 1
    v_bfe_u32 v16, v0, 1, 1
    v_lshl_or_b32 v7, v7, 1, v16
    v_lshl_or_b32 v7, v6, 2, v7
    v_lshlrev_b32 v7, 4, v7
    v_lshlrev_b32 v6, 8, v6
    v_lshl_add_u32 v6, v3, 11, v6
    v_and_b32 v16, 1, v0
    v_lshl_add_u32 v6, v16, 3, v6
    v_add_u32 v6, s11, v6""")
    for n in range(8):
        a(f"v_xor_b32 v16, {32*n}, v7\nv_add_u32 v{8+n}, v6, v16")
    a(f"""v_lshlrev_b32 v16, 4, v3
    v_add_u32 v16, {X+2048}, v16
    v_lshlrev_b32 v17, 6, v2
    v_lshl_add_u32 v17, v3, 4, v17
    v_mov_b32 v18, 0xff
    s_lshl2_add_u32 s12, s7, s8
    s_lshl_b32 s12, s12, 11
    s_lshl_b32 s13, s9, 9
    s_add_u32 s12, s12, s13
    s_add_u32 s12, s12, {DP}""")
    for t in range(4):
        if P["wo_rot"]: a(f"s_add_u32 s13, s8, {t}\ns_and_b32 s13, s13, 3\ns_lshl_b32 s13, s13, 6\nv_add_u32 v{36+t}, s13, v16")
        else: a(f"v_add_u32 v{36+t}, {64*t}, v16")
    for n in range(1, 8):
        a(f"s_mov_b32 s{40+2*n}, {0x01010101 << n}\ns_mov_b32 s{41+2*n}, {0x01010101 << n}")
    a("s_waitcnt lgkmcnt(0)")
    def wo_read(t):
        for n in range(8):
            for sec in range(2):
                a(f"ds_read_b64_tr_b16 {vr(128+32*t+4*n+2*sec,2)}, v{8+n} offset:{8192*t + 1024*sec}")
    nxt = 0
    for rg in range(32):
        if rg == P["wo_early"] and P["go_at"] is not None: a("s_barrier")
        wd = P["wo_edepth"] if rg < P["wo_early"] else P["wo_depth"]
        if rg >= wd:
            a(f"s_waitcnt vmcnt({wd-1})")
            landed = rg - wd + 1
            if landed >= 8*(nxt+1):
                if nxt == 0: stamp(5)
                if "noread" not in P["abl"]: wo_read(nxt)
                nxt += 1
        a(f"buffer_load_dwordx4 v{4+((rg>>1)&1)}, {sr(SG)}, s10 offen {P['wo_pol']} lds")
        if rg in P["wo_bar"]: a("s_barrier")
        if rg < 31:
            if P["wo_rot"] and rg & 7 == 7: a(f"s_add_u32 m0, m0, 1024\ns_add_u32 s10, s10, s{36+(rg>>3)}")
            else: a("s_add_u32 m0, m0, 1024\ns_add_u32 s10, s10, 4096")
    while nxt < 4:
        a(f"s_waitcnt vmcnt({24 - 8*nxt})")
        wo_read(nxt); nxt += 1
    stamp(6)
    if "bwait" in P["abl"]: a("s_barrier")
    a("s_barrier\ns_barrier")
    stamp(7)
    for t in range(4): a(f"ds_read_b128 {vr(20+4*t)}, v{36+t}")
    a("s_waitcnt lgkmcnt(0)")
    for n in range(8):
        for t in range(4):
            a(f"v_mfma_f32_16x16x32_bf16 {vr(64+4*n)}, {vr(128+32*t+4*n)}, {vr(20+4*t)}, {'0' if t == 0 else vr(64+4*n)}")
            if n >= 3:
                m = n - 2
                a(f"v_cndmask_b32 v{64+t}, v{64+t}, v{64+4*m+t}, s[{40+2*m}:{41+2*m}]")
    for m in (6, 7):
        for t in range(4): a(f"v_cndmask_b32 v{64+t}, v{64+t}, v{64+4*m+t}, s[{40+2*m}:{41+2*m}]")
    for r in range(4): a(f"v_bfi_b32 v{64+r}, v18, s{sF+r}, v{64+r}")
    a(f"""s_mov_b32 exec_lo, 0x00ff00ff
    s_mov_b32 exec_hi, 0x00ff00ff
    buffer_store_dwordx4 v[64:67], v17, {sr(SW)}, s12 offen sc1
    s_mov_b64 exec, -1""")
    stamp(8)
    if diag:
        a("s_waitcnt vmcnt(0)"); stamp(9)

    a("L_exit:")
    if P["probe"]:
        a(f"""s_load_dwordx2 s[86:87], s[0:1], 96
        s_mov_b64 exec, 1
        s_waitcnt lgkmcnt(0)
        v_mov_b32 v4, 0
        v_mov_b32 v5, s84
        s_cmp_eq_u32 s84, 0
        s_cbranch_scc1 L_pr1
        global_atomic_umax v4, v5, s[86:87] offset:128
        L_pr1:
        s_cmp_lg_u32 s3, 0
        s_cbranch_scc1 L_pr2
        v_mov_b32 v5, s80
        global_atomic_umax v4, v5, s[86:87]
        v_not_b32 v6, v5
        global_atomic_umax v4, v6, s[86:87] offset:4
        L_pr2:
        s_cmp_lg_u32 s88, 1
        s_cbranch_scc1 L_end
        s_add_u32 s90, s80, 3000
        L_pr3:
        s_memrealtime s[82:83]
        s_waitcnt lgkmcnt(0)
        s_sub_u32 s83, s82, s90
        s_cmp_lt_i32 s83, 0
        s_cbranch_scc1 L_pr3
        global_load_dwordx2 v[8:9], v4, s[86:87] sc1
        global_load_dword v10, v4, s[86:87] offset:128 sc1
        s_waitcnt vmcnt(0)
        v_readfirstlane_b32 s91, v8
        v_readfirstlane_b32 s92, v9
        v_readfirstlane_b32 s93, v10
        s_not_b32 s92, s92""")
        ref = "s92" if P["probe"][1] == "min" else "s91"
        val = {"maxstart": "s91", "none": ref}.get(P["probe"][0], "s93")
        a(f"""s_sub_u32 s94, {val}, {ref}
        s_min_u32 s94, s94, 3000
        s_add_u32 s90, s92, 4000
        s_add_u32 s90, s90, s94
        L_pr4:
        s_memrealtime s[82:83]
        s_waitcnt lgkmcnt(0)
        s_sub_u32 s83, s82, s90
        s_cmp_lt_i32 s83, 0
        s_cbranch_scc1 L_pr4""")
    if diag:
        a(f"""s_mov_b64 exec, -1
        s_waitcnt lgkmcnt(0)
        s_lshl3_add_u32 s10, s2, s3
        s_lshl_b32 s10, s10, 7
        s_add_u32 s10, s10, {STAMP}
        v_mov_b32 v4, 0""")
        for k in range(10):
            a(f"v_mov_b32 v5, s{80+2*k}\nbuffer_store_dword v5, v4, {sr(SW)}, s10 offen offset:{4*k}")
        a(f"v_mov_b32 v5, s28\nbuffer_store_dword v5, v4, {sr(SW)}, s10 offen offset:40")
        a(f"s_getreg_b32 s11, hwreg(HW_REG_XCC_ID)\nv_mov_b32 v5, s11\nbuffer_store_dword v5, v4, {sr(SW)}, s10 offen offset:44")
        a(f"s_getreg_b32 s11, hwreg(HW_REG_HW_ID)\nv_mov_b32 v5, s11\nbuffer_store_dword v5, v4, {sr(SW)}, s10 offen offset:48")
    a("L_end:\ns_endpgm\nL_codeend:")

    lines = a.lines
    if diag:
        pre = [f"s_mov_b32 s{80+2*k}, 0" for k in range(1, 10)]
        lines = lines[:1] + pre + lines[1:]
    lines, nins = insert_waits(lines)
    b = Asm(); b.lines = lines
    head = f"""; fused MLA decode attention (absorbed form) + squared-relu MLP, one persistent launch, 256 workgroups
; @launch grid=(256,1,1) block=(512,1,1) lds=163840
.amdgcn_target "amdgcn-amd-amdhsa--gfx950"
.text
.globl {KNAME}
.p2align 8
.type {KNAME},@function
{KNAME}:
"""
    foot = f"""
.section .rodata,"a"
.p2align 6
.amdhsa_kernel {KNAME}
  .amdhsa_next_free_vgpr 256
  .amdhsa_next_free_sgpr 102
  .amdhsa_accum_offset 256
  .amdhsa_group_segment_fixed_size 0
  .amdhsa_kernarg_size 112
  .amdhsa_user_sgpr_count 2
  .amdhsa_user_sgpr_kernarg_segment_ptr 1
  .amdhsa_system_sgpr_workgroup_id_x 1
  .amdhsa_float_denorm_mode_32 3
.end_amdhsa_kernel
"""
    txt = b.text()
    if P["pol"] != "nt":
        txt = txt.replace(" nt lds", f" {P['pol']} lds").replace(" nt\n", f" {P['pol']}\n")
    return head + txt + foot

if __name__ == "__main__":
    import json
    kw = json.loads(sys.argv[2]) if len(sys.argv) > 2 else {}
    open(sys.argv[1], "w").write(gen(**kw))
```

```python
import sys, math, struct
from asmlib import Asm, insert_waits
from gen_common import KNAME

EP, QP, QL, GO, ST, HP, DP, BP, STAMP = 0, 0x1000, 0x40000, 0x48000, 0x50000, 0x60000, 0x80000, 0x100000, 0x800000
WS_REC = 0x1000000
X = 131072
SPIN = 1 << 17

def f2u(x): return struct.unpack("<I", struct.pack("<f", x))[0]
def vr(a, n=4): return f"v[{a}:{a+n-1}]"
def sr(a, n=4): return f"s[{a}:{a+n-1}]"

SX, SC, SQ, SK, SW, SG = 40, 44, 48, 52, 56, 60
sF, sB = 20, 24
HINT = 64
DPPM = "row_mask:0xf bank_mask:0xf"

DEFAULT = dict(diag=False, cyc=False, fine=False, calib=0, probe=None, abl=(), pol="nt", prefetch=True, pf_wgs=16, role_bit=0,
               pq=True, pk_late="ep", pf_ramp=(0, 4, 10), bi_at=2, q_at=31, qhint=0, cw_at=10, sm_pre=3, pv_fill=2,
               cpf=0, wo_gate=8, ql_pre=None, cpf_depth=2, cpf_tail=1, wq_pol="", wo_pol="", wo_depth=8, wo_depth0=8, wo_bar=(27, 32, 33), wo_rot=True,
               bhint=4, fhint=2, hsleep=0, out_pol="sc1", mlp_at="pf", wpq=False, x_bar=True, wq_bars=(1,), ln_at=3, st_last=False, st_at=44, lhint=0, st_touch=False, h_touch=True, w1_wait=17, w2_late=True, wuv_depth=8, q_prio=True, w1_pre=16, w2_left=0, att_pf=2, out_touch=False, dpp_early=True, go_at=None, cpfq=True, c_ramp=((0,10),), wo_early=0, wo_edepth=2)

def gen(**kw):
    P = dict(DEFAULT); P.update(kw)
    diag = P["diag"]
    a = Asm()
    sect = ["entry"]
    def stamp(k):
        if diag: a(f"{'s_memtime' if P['cyc'] else 's_memrealtime'} s[{80+2*k}:{81+2*k}]")
        if P["probe"] and P["probe"][0] == f"{sect[0]}{k}":
            a("s_memrealtime s[84:85]")
    def srd(base, size):
        a(f"s_mov_b32 s{base+2}, {size}\ns_mov_b32 s{base+3}, 0x20000")
    def ep_load(): a(f"s_load_dword s35, s[{SW}:{SW+1}], {EP}")
    def tags(need_b=True):
        for q in range(4): a(f"s_add_u32 s{sF+q}, s35, {q+1}")
        if need_b:
            for q in range(4): a(f"s_and_b32 s{sB+q}, s{sF+q}, 3\ns_mul_i32 s{sB+q}, s{sB+q}, 0x8001")
    def allreduce(op, v, t1):
        for r in (1, 2, 4, 8):
            a(f"{op}_dpp v{v}, v{v}, v{v} row_ror:{r} {DPPM}")
        for sw in ("v_permlane16_swap_b32", "v_permlane32_swap_b32"):
            a(f"v_mov_b32 v{t1}, v{v}\n{sw} v{t1}, v{v}\n{op} v{v}, v{v}, v{t1}")
    def rnd_bf16(d, s):
        a(f"v_cvt_pk_bf16_f32 v{d}, v{s}, v{s}\nv_and_b32 v{d}, 0xffff0000, v{d}")
    def unpack2(d, s):
        a(f"v_lshlrev_b32 v{d}, 16, v{s}\nv_and_b32 v{d+1}, 0xffff0000, v{s}")
    def ln_stats(xr, f, t):
        for i in range(4): unpack2(f+2*i, xr+i)
        a(f"v_add_f32 v{t}, v{f}, v{f+1}\nv_add_f32 v{t+1}, v{f+2}, v{f+3}\nv_add_f32 v{t+2}, v{f+4}, v{f+5}\nv_add_f32 v{t+3}, v{f+6}, v{f+7}")
        a(f"v_add_f32 v{t}, v{t}, v{t+1}\nv_add_f32 v{t+2}, v{t+2}, v{t+3}\nv_add_f32 v{t}, v{t}, v{t+2}")
        allreduce("v_add_f32", t, t+2)
        a(f"v_mul_f32 v{t}, {f2u(1/512)}, v{t}")
        a(f"v_sub_f32 v{t+2}, v{f}, v{t}\nv_mul_f32 v{t+1}, v{t+2}, v{t+2}")
        for i in range(1, 8):
            a(f"v_sub_f32 v{t+2+(i&1)}, v{f+i}, v{t}\nv_fmac_f32 v{t+1}, v{t+2+(i&1)}, v{t+2+(i&1)}")
        allreduce("v_add_f32", t+1, t+2)
        a(f"v_mul_f32 v{t+1}, {f2u(1/512)}, v{t+1}")
        rnd_bf16(t, t)
        rnd_bf16(t+1, t+1)
        a(f"v_add_f32 v{t+1}, {f2u(1e-5)}, v{t+1}")
        rnd_bf16(t+1, t+1)
        a(f"v_sqrt_f32 v{t+1}, v{t+1}")
        rnd_bf16(t+1, t+1)
        a(f"v_rcp_f32 v{t+1}, v{t+1}")
    def delta_masks(m, t):
        a(f"""v_and_b32 v{t}, 1, v0
        v_lshlrev_b32 v{t}, 4, v{t}
        v_mov_b32 v{t+1}, 0xffff
        v_lshlrev_b32 v{t}, v{t}, v{t+1}
        v_bfe_u32 v{t+1}, v0, 1, 3""")
        for dw in range(4):
            a(f"v_cmp_eq_u32 vcc, {dw}, v{t+1}\nv_cndmask_b32 v{m+dw}, 0, v{t}, vcc")
    def check(acc, first, n, tagbase, start):
        for i in range(n):
            if start and i == 0: a(f"v_xor_b32 v{acc}, s{tagbase}, v{first}")
            else: a(f"v_bitop3_b32 v{acc}, v{acc}, v{first+i}, s{tagbase+(i&3)} bitop3:0xf6")
    def spin(label, cond_branch, pre=""):
        a(f"""s_add_u32 s28, s28, 1
        s_cmp_gt_u32 s28, {SPIN}
        s_cbranch_scc1 L_exit
        {pre}
        {cond_branch} {label}""")
    def shint(label, offs, kind):
        if not offs: return
        a(f"{label}:")
        if P["hsleep"]: a(f"s_sleep {P['hsleep']}")
        n = len(offs)
        if kind == 'd':
            for x, o in enumerate(offs): a(f"s_load_dword s{HINT+x}, s[{SW}:{SW+1}], s{o} glc")
            a("s_waitcnt lgkmcnt(0)")
            for x in range(n):
                a(f"s_xor_b32 s{HINT+x}, s{HINT+x}, s{sF}")
                if x: a(f"s_or_b32 s{HINT}, s{HINT}, s{HINT+x}")
            fin = f"s_and_b32 s{HINT}, s{HINT}, 0xff"
        elif kind == 't':
            for x, o in enumerate(offs): a(f"s_load_dwordx2 {sr(HINT+2*x,2)}, s[{SW}:{SW+1}], s{o} glc")
            a("s_waitcnt lgkmcnt(0)")
            for x in range(n):
                a(f"s_xor_b32 s{HINT+2*x+1}, s{HINT+2*x+1}, s{sF}")
                if x: a(f"s_or_b32 s{HINT+1}, s{HINT+1}, s{HINT+2*x+1}")
            fin = f"s_cmp_lg_u32 s{HINT+1}, 0"
        else:
            tb, mask = (sB, 0x10001) if kind == 'b' else (sF, 0xff)
            for x, o in enumerate(offs): a(f"s_load_dwordx4 {sr(HINT+4*x)}, s[{SW}:{SW+1}], s{o} glc")
            a("s_waitcnt lgkmcnt(0)")
            for x in range(4*n):
                a(f"s_xor_b32 s{HINT+x}, s{HINT+x}, s{tb+(x&3)}")
                if x: a(f"s_or_b32 s{HINT}, s{HINT}, s{HINT+x}")
            fin = f"s_and_b32 s{HINT}, s{HINT}, {mask}"
        spin(label, "s_cbranch_scc1", fin)
    def tdelay(label, ticks):
        a(f"""s_waitcnt lgkmcnt(0)
        s_add_u32 s78, s80, {ticks}
        {label}:
        s_memrealtime s[76:77]
        s_waitcnt lgkmcnt(0)
        s_sub_u32 s77, s76, s78
        s_cmp_lt_i32 s77, 0
        s_cbranch_scc1 {label}""")
    def hint_offs(n, seed, modmask, shift, base, spread):
        for x in range(n):
            a(f"s_add_u32 s{30+x}, s{seed}, {x*spread}\ns_and_b32 s{30+x}, s{30+x}, {modmask}\ns_lshl_b32 s{30+x}, s{30+x}, {shift}\ns_add_u32 s{30+x}, s{30+x}, s{base}")
        return [30+x for x in range(n)]

    stamp(0)
    if P["calib"] or P["probe"]: a("s_memrealtime s[80:81]")
    if P["probe"]: a("s_mov_b32 s84, 0\ns_mov_b32 s88, 0")
    a(f"s_load_dwordx2 s[{SQ}:{SQ+1}], s[0:1], 16")
    if P["prefetch"]:
        a(f"""s_cmp_ge_u32 s2, {P['pf_wgs']}
        s_cbranch_scc1 L_nopf
        s_getpc_b64 s[10:11]
        L_pc:
        v_lshlrev_b32 v4, 6, v0
        v_min_u32 v4, L_codeend - L_pc - 4, v4
        global_load_dword v255, v4, s[10:11]
        L_nopf:""")
    a(f"""s_load_dwordx2 s[{SX}:{SX+1}], s[0:1], 0
    s_load_dwordx2 s[{SK}:{SK+1}], s[0:1], 24
    s_load_dwordx2 s[{SC}:{SC+1}], s[0:1], 8
    s_load_dwordx2 s[{SW}:{SW+1}], s[0:1], 104
    v_lshrrev_b32 v1, 6, v0
    s_cmp_ge_u32 s2, 256
    s_cbranch_scc1 L_end
    v_readfirstlane_b32 s3, v1
    v_and_b32 v0, 63, v0
    s_and_b32 s4, s2, 7""")
    if P["role_bit"] == 0:
        a("s_bfe_u32 s6, s2, 0x10003\ns_lshr_b32 s5, s2, 4")
    else:
        a("s_lshr_b32 s6, s2, 7\ns_bfe_u32 s5, s2, 0x40003")
    a(f"""s_lshr_b32 s7, s5, 2
    s_lshl2_add_u32 s7, s4, s7
    s_and_b32 s8, s5, 3
    s_lshl_b32 s17, s7, 8
    s_mov_b32 s{SQ+2}, {4<<20}
    s_mov_b32 s{SQ+3}, 0x20000
    v_and_b32 v2, 15, v0
    v_lshrrev_b32 v3, 4, v0
    s_cmp_eq_u32 s6, 0
    s_cbranch_scc1 L_WGT
    s_cmp_ge_u32 s3, 4
    s_cbranch_scc1 L_ATT_help""")
    if P["pq"]:
        a(f"""s_lshl_b32 s16, s3, 20
        s_lshl_b32 s18, s8, 15
        s_add_u32 s16, s16, s18
        s_add_u32 s16, s16, s17
        v_lshrrev_b32 v4, 2, v0
        v_lshlrev_b32 v4, 17, v4
        v_bfe_u32 v5, v0, 1, 1
        v_or_b32 v5, 2, v5
        v_lshl_add_u32 v4, v5, 13, v4
        v_and_b32 v5, 1, v0
        v_lshl_add_u32 v4, v5, 7, v4
        s_mov_b32 exec_hi, 0
        s_waitcnt lgkmcnt(0)
        buffer_load_dword v121, v4, {sr(SQ)}, s16 offen
        s_mov_b64 exec, -1""")
    a("s_branch L_ATT")

    def common():
        a("s_mov_b32 s28, 0")
        srd(SW, WS_REC)
        a("v_lshlrev_b32 v41, 5, v2\nv_lshl_add_u32 v41, v3, 4, v41")

    sect[0] = "A"
    PART = 0
    a("L_WGT:")
    srd(SX, 1024)
    a(f"""s_lshl_b32 s10, s3, 19
    s_lshl_b32 s11, s8, 15
    s_add_u32 s10, s10, s11
    s_add_u32 s10, s10, s17
    s_lshl_b32 s11, s3, 7
    v_lshlrev_b32 v4, 4, v0
    v_lshl_add_u32 v5, s8, 2, v2
    v_and_b32 v5, 15, v5
    v_lshl_add_u32 v5, v3, 4, v5
    v_lshlrev_b32 v5, 1, v5
    v_lshlrev_b32 v6, 17, v3
    v_lshl_add_u32 v6, v2, 4, v6
    s_movk_i32 s12, 0x2000""")
    xl = [f"buffer_load_dwordx4 v[8:11], v4, {sr(SX)}, 0 offen", f"buffer_load_ushort v12, v5, {sr(SX)}, s11 offen"]
    if P["wpq"]:
        a(f"""v_bfe_u32 v7, v0, 1, 2
        v_lshlrev_b32 v7, 13, v7
        v_lshl_add_u32 v7, v3, 17, v7
        v_and_b32 v13, 1, v0
        v_lshl_add_u32 v7, v13, 7, v7""")
    a("s_waitcnt lgkmcnt(0)")
    for l in xl: a(l)
    if P["x_bar"]: a("s_barrier")
    if P["wpq"]:
        a(f"""s_mov_b32 exec_lo, {0x000f000f if P["pq"] else 0x00ff00ff}
        s_mov_b32 exec_hi, {0x000f000f if P["pq"] else 0x00ff00ff}
        buffer_load_dword v254, v7, {sr(SQ)}, s10 offen
        s_mov_b64 exec, -1""")
        if P.get("wpq_bar"): a("s_barrier")
    for t in range(16):
        a(f"buffer_load_dwordx4 {vr(64+4*t)}, v6, {sr(SQ)}, s10 offen {P['wq_pol']}")
        if t < 15:
            if t & 3 == 3: a(f"s_cmp_eq_u32 s8, {3-(t>>2)}\ns_cselect_b32 s13, {(-15*8192) & 0xffffffff}, s12\ns_add_u32 s10, s10, s13")
            else: a("s_add_u32 s10, s10, s12")
        if t in P["wq_bars"]: a("s_barrier")
        if t == 3:
            ep_load()
            stamp(1)
            common()
            delta_masks(32, 36)
        if t == P["ln_at"]:
            a(f"s_waitcnt vmcnt({t+1 + (1 if P['wpq'] else 0)})")
            if P["fine"]: stamp(5)
            ln_stats(8, 16, 24)
            a("v_lshlrev_b32 v12, 16, v12\nv_sub_f32 v12, v12, v24")
            rnd_bf16(12, 12)
            a("v_mul_f32 v12, v12, v25\nv_cvt_pk_bf16_f32 v12, v12, v12")
            a("s_cmp_lg_u32 s3, 3\ns_cbranch_scc1 L_noxn")
            for i in range(8): a(f"v_sub_f32 v{16+i}, v{16+i}, v24")
            for i in range(4): a(f"v_cvt_pk_bf16_f32 v{56+i}, v{16+2*i}, v{17+2*i}")
            for i in range(4): unpack2(16+2*i, 56+i)
            for i in range(8): a(f"v_mul_f32 v{16+i}, v{16+i}, v25")
            for i in range(4): a(f"v_cvt_pk_bf16_f32 v{56+i}, v{16+2*i}, v{17+2*i}")
            a("L_noxn:")
            if P["dpp_early"]:
                for t2 in range(16):
                    for dw in range(4):
                        a(f"v_and_b32_dpp v{128+4*t2+dw}, v12, v{32+dw} row_newbcast:{t2} {DPPM}")
    if P["fine"]: stamp(6)
    srd(SK, 4 << 20)
    a(f"""s_lshl3_add_u32 s13, s8, s3
    s_lshl_b32 s13, s13, 17
    s_add_u32 s13, s13, s17
    s_lshl_b32 s12, s3, 12
    s_add_u32 m0, s12, {X}
    v_lshlrev_b32 v4, 2, v3
    v_xor_b32 v4, v4, v2
    v_lshlrev_b32 v4, 4, v4
    v_lshl_add_u32 v48, v3, 13, v4""")
    for rg in range(4):
        if rg: a(f"v_xor_b32 v49, {16*rg}, v48\ns_addk_i32 m0, 0x400\ns_add_u32 s13, s13, 0x8000")
        a(f"buffer_load_dwordx4 v{49 if rg else 48}, {sr(SK)}, s13 offen nt lds")
    a("s_lshl_b32 s12, s3, 9\nv_add_u32 v42, s12, v41")
    for t in range(16):
        for dw in range(4):
            if not P["dpp_early"]: a(f"v_and_b32_dpp v{128+4*t+dw}, v12, v{32+dw} row_newbcast:{t} {DPPM}")
        if t >= 1:
            a(f"s_waitcnt vmcnt({15-(t-1)+4})")
            a(f"v_mfma_f32_16x16x32_bf16 v[44:47], {vr(128+4*(t-1))}, {vr(64+4*(t-1))}, {'0' if t == 1 else 'v[44:47]'}")
    a(f"s_waitcnt vmcnt(4)\nv_mfma_f32_16x16x32_bf16 v[44:47], {vr(128+60)}, {vr(64+60)}, v[44:47]")
    a("s_waitcnt lgkmcnt(0)")
    tags(True)
    a(f"""s_mov_b32 exec_hi, 0
    ds_write_b128 v42, v[44:47] offset:{PART}
    s_mov_b64 exec, -1""")
    stamp(2)
    a("""s_sub_u32 s9, s3, 5
    s_cmp_lt_u32 s9, 2
    s_cbranch_scc1 L_A2
    s_waitcnt vmcnt(0) lgkmcnt(0)
    s_barrier
    s_cmp_lt_u32 s3, 4
    s_cbranch_scc1 L_S1
    s_branch L_WO""")
    a("L_A2:")
    a(f"""s_lshl_b32 s12, s9, 14
    s_add_u32 s12, s12, {X}
    v_and_b32 v4, 3, v0
    v_bfe_u32 v5, v0, 2, 2
    v_lshl_or_b32 v6, v4, 2, v5
    v_xor_b32 v6, v6, v3
    v_lshlrev_b32 v6, 4, v6
    v_lshl_add_u32 v6, v5, 10, v6
    v_lshl_add_u32 v6, v4, 8, v6
    v_add_u32 v10, s12, v6
    v_xor_b32 v11, 64, v10
    v_xor_b32 v12, 0x80, v10
    v_xor_b32 v13, 0xc0, v10
    s_lshl_b32 s13, s9, 8
    s_add_u32 s13, s13, 8192
    v_lshl_add_u32 v5, v3, 4, s13
    v_and_b32 v14, 31, v0
    v_lshl_add_u32 v14, v14, 3, s13
    v_lshlrev_b32 v15, 4, v0
    s_lshl1_add_u32 s11, s8, s9
    s_lshl_b32 s11, s11, 7
    s_lshl_b32 s10, s7, 10
    s_add_u32 s10, s10, s11
    s_add_u32 s10, s10, {QL}
    v_lshlrev_b32 v4, 1, v0
    v_cmp_eq_u32 s[14:15], 1, v3
    v_cmp_eq_u32 s[16:17], 2, v3
    v_cmp_eq_u32 s[18:19], 3, v3
    v_bfe_u32 v7, v0, 1, 2
    v_add_u32 v7, s{sF}, v7
    v_and_b32 v8, 1, v0
    v_lshrrev_b32 v7, v8, v7
    v_and_b32 v7, 1, v7
    v_xor_b32 v8, 1, v7
    v_lshlrev_b32 v8, 16, v8
    s_waitcnt vmcnt(0) lgkmcnt(0)""")
    stamp(3)
    a("s_barrier")
    for u in range(4): a(f"ds_read_b128 {vr(128+4*u)}, v15 offset:{PART + 1024*u}")
    fr = [(T, t) for t in range(4) for T in range(4)]
    for (T, t) in fr[:11]: a(f"ds_read_b128 {vr(64+16*T+4*t)}, v{10+t} offset:{4096*T}")
    a("s_waitcnt lgkmcnt(11)")
    a("""v_pk_add_f32 v[128:129], v[128:129], v[132:133]
    v_pk_add_f32 v[130:131], v[130:131], v[134:135]
    v_pk_add_f32 v[136:137], v[136:137], v[140:141]
    v_pk_add_f32 v[138:139], v[138:139], v[142:143]
    v_pk_add_f32 v[128:129], v[128:129], v[136:137]
    v_pk_add_f32 v[130:131], v[130:131], v[138:139]""")
    for q in range(4): a(f"v_mov_b32 v{132+q}, v{128+q}")
    for q in range(4): a(f"v_permlane32_swap_b32 v{132+q}, v{128+q}")
    a("""v_pk_add_f32 v[128:129], v[128:129], v[132:133]
    v_pk_add_f32 v[130:131], v[130:131], v[134:135]
    v_cvt_pk_bf16_f32 v128, v128, v129
    v_cvt_pk_bf16_f32 v129, v130, v131
    ds_write_b64 v14, v[128:129]""")
    for t in range(4): a(f"ds_read_b128 {vr(16+4*t)}, v5 offset:{64*t}")
    for (T, t) in fr[11:]: a(f"ds_read_b128 {vr(64+16*T+4*t)}, v{10+t} offset:{4096*T}")
    for t in range(4):
        a(f"s_waitcnt lgkmcnt({[8, 7, 4, 0][t]})")
        for T in range(4):
            a(f"v_mfma_f32_16x16x32_bf16 {vr(32+4*T)}, {vr(16+4*t)}, {vr(64+16*T+4*t)}, {'0' if t == 0 else vr(32+4*T)}")
    qs = math.log2(math.e) / math.sqrt(128.0)
    a(f"""v_cndmask_b32 v9, v32, v36, s[14:15]
    v_cndmask_b32 v9, v9, v40, s[16:17]
    v_cndmask_b32 v9, v9, v44, s[18:19]
    v_mul_f32 v9, {f2u(qs)}, v9
    v_add_u32 v9, v9, v8
    v_lshrrev_b32 v9, 17, v9
    v_lshl_or_b32 v9, v9, 1, v7
    buffer_store_short v9, v4, {sr(SW)}, s10 offen sc1""")
    stamp(4)
    a("s_branch L_WO")

    sect[0] = "C"
    a("L_ATT:")
    a("s_lshl4_add_u32 s9, s4, s5")
    srd(SC, 16 << 20); srd(SK, 4 << 20)
    common()
    a(f"""s_lshl2_add_u32 s10, s9, s3
    s_lshl_b32 s10, s10, 15
    s_lshl_b32 s11, s3, 13
    v_lshlrev_b32 v4, 2, v3
    v_xor_b32 v4, v4, v2
    v_lshlrev_b32 v4, 4, v4
    v_lshl_add_u32 v32, v3, 10, v4
    v_xor_b32 v33, 32, v32
    s_mov_b32 m0, s11
    s_movk_i32 s15, 0x1000
    s_lshl2_add_u32 s18, s8, s3
    s_lshl_b32 s18, s18, 18
    s_add_u32 s18, s18, s17
    v_lshrrev_b32 v4, 1, v0
    v_and_b32 v5, 1, v0
    v_lshlrev_b32 v5, 7, v5
    v_lshl_add_u32 v126, v4, 13, v5
    s_waitcnt lgkmcnt(0)""")
    ramp = P["c_ramp"]
    def tdepth(l): return [d for (k, d) in ramp if k <= l][-1]
    seq = []
    def go_store():
        a(f"s_mov_b64 exec, 1\nbuffer_store_dwordx2 v[122:123], v124, {sr(SW)}, s14 offen sc1\ns_mov_b64 exec, -1")
        seq.append("go")
    def c_load(n):
        cb, rg = n >> 3, n & 7
        a(f"buffer_load_dwordx4 v{32+(rg&1)}, {sr(SC)}, s10 offen nt lds")
        seq.append(n)
        if n < 31:
            if rg < 7: a("s_addk_i32 m0, 0x400\ns_add_u32 s10, s10, s15")
            else: a(f"s_addk_i32 m0, {32768 - 7*1024}\ns_sub_u32 s10, s10, {7*4096 - 256}")
        if n == P["q_at"]:
            a("ds_write_b32 v125, v2")
        if n == P["go_at"]: go_store()
    def c_wait(n):
        a(f"s_waitcnt vmcnt({len(seq) - 1 - seq.index(n)})")
    issued = 0
    if P["pq"]: seq.append("pq")
    if not P["pk_late"]:
        a(f"buffer_load_dword v127, v126, {sr(SK)}, s18 offen"); seq.append("pk")
    d00 = P["pf_ramp"][0] if P["cpfq"] else tdepth(0)
    for n in range(d00): c_load(n); issued += 1
    a(f"""s_add_u32 s16, s11, {X}
    v_mov_b32 v125, s16
    v_mov_b32 v124, 0
    ds_write_b32 v125, v124""")
    ep_load()
    stamp(1)
    a(f"""v_and_b32 v4, 3, v0
    v_lshrrev_b32 v1, 5, v0
    v_bfe_u32 v5, v0, 2, 2
    v_lshl_or_b32 v5, v4, 2, v5
    v_xor_b32 v5, v5, v1
    v_lshlrev_b32 v5, 4, v5
    v_and_b32 v7, 31, v0
    v_lshl_add_u32 v7, v7, 10, v5
    v_add_u32 v16, {X}, v7
    v_bfe_u32 v5, v0, 2, 1
    v_lshl_or_b32 v5, v4, 1, v5
    v_lshl_or_b32 v5, v5, 1, v1
    v_lshlrev_b32 v5, 4, v5
    v_bfe_u32 v6, v0, 2, 3
    v_lshl_add_u32 v5, v6, 10, v5
    v_lshl_add_u32 v5, v4, 8, v5
    v_add_u32 v8, s11, v5""")
    for x in range(1, 8):
        a(f"v_xor_b32 v{8+x}, {32*x}, v8\nv_xor_b32 v{16+x}, {32*x}, v16")
    a(f"""v_bfe_u32 v4, v0, 2, 2
    v_bfe_u32 v5, v0, 4, 1
    v_bfe_u32 v6, v0, 1, 1
    v_lshl_or_b32 v6, v5, 1, v6
    v_lshl_or_b32 v6, v4, 2, v6
    v_lshlrev_b32 v6, 4, v6
    v_lshl_add_u32 v6, v4, 8, v6
    v_lshl_add_u32 v6, v5, 10, v6
    v_lshl_add_u32 v6, v1, 12, v6
    v_and_b32 v4, 1, v0
    v_lshl_add_u32 v6, v4, 3, v6
    s_lshl_b32 s12, s3, 15
    v_add_u32 v24, s12, v6""")
    for n in range(1, 8):
        a(f"v_xor_b32 v{24+n}, {32*n}, v24")
    a(f"""v_lshlrev_b32 v6, 5, v2
    v_lshl_add_u32 v6, v5, 4, v6
    v_add_u32 v96, {X+8192}, v6
    v_xor_b32 v116, 16, v96
    v_and_b32 v4, 31, v0
    v_lshlrev_b32 v6, 5, v4
    v_lshl_add_u32 v6, v1, 4, v6
    s_lshl2_add_u32 s13, s3, {X+8192}
    v_add_u32 v97, s13, v6
    v_lshlrev_b32 v6, 4, v2
    v_lshl_add_u32 v7, v5, 9, v6
    v_lshl_add_u32 v7, v1, 10, v7
    v_add_u32 v98, {X}, v7
    s_lshl_b32 s13, s3, 11
    s_add_u32 s13, s13, {X}
    v_lshl_add_u32 v99, v0, 4, s13
    v_lshl_add_u32 v3, v3, 19, v6
    s_lshl_b32 s13, s9, 8
    s_add_u32 s12, s12, s13
    s_add_u32 s12, s12, {BP}
    s_lshl_b32 s14, s9, 7
    s_add_u32 s14, s14, {GO}
    s_cmp_eq_u32 s3, 0
    s_cselect_b32 s14, s14, 0x7ffffff0
    s_waitcnt lgkmcnt(0)""")
    if P["cpfq"] and P["pk_late"] == "ep":
        a(f"buffer_load_dword v127, v126, {sr(SK)}, s18 offen"); seq.append("pk")
    tags(True)
    a(f"""s_lshl2_add_u32 s13, s3, {X+11264}
    v_mov_b32 v1, s13
    v_mov_b32 v2, 0x10001
    v_mov_b32 v122, s{sF}
    v_mov_b32 v123, s{sF}""")
    for hh in range(2):
        for r in range(4):
            a(f"s_add_u32 s{64+4*hh+r}, s12, {(16*hh + r)*131072}")
    lq = []
    def lop(text, key): a(text); lq.append(key)
    def lwait(items):
        last = max([i for i, x in enumerate(lq) if x in items], default=-1)
        if last >= 0: a(f"s_waitcnt lgkmcnt({min(15, len(lq) - 1 - last)})")
        del lq[:last+1]
    def c_read(t):
        lop(f"ds_read_b128 {vr(128+4*t)}, v{8+(t&7)} offset:{32768*((t>>3)&1)}", ("C", t))
        if t >> 3 == 1: a(f"v_add_u32 v{8+(t&7)}, 0x10000, v{8+(t&7)}")
    landed = 0; pre = 0
    if P["cpfq"]:
        for key, d in (("pq", P["pf_ramp"][1]), ("pk", P["pf_ramp"][2])):
            if key in seq: c_wait(key)
            if key == "pq" and P["pk_late"] is True:
                a(f"buffer_load_dword v127, v126, {sr(SK)}, s18 offen"); seq.append("pk")
            if P["fine"]: stamp(4 if key == "pq" else 5)
            while issued < d: c_load(issued); issued += 1
        ramp = ((0, P["pf_ramp"][2]),)
    while issued < 32:
        c_wait(landed); landed += 1
        while issued < 32 and issued - landed < tdepth(landed):
            c_load(issued); issued += 1
        if landed == P["bi_at"]: a("s_barrier")
        if landed >= 8*(pre+1):
            if P["fine"]: stamp(6 + pre)
            for t in range(8*pre, 8*pre+8): c_read(t)
            pre += 1
    stamp(2)
    while pre < 3:
        c_wait(8*pre + 7)
        if P["fine"]: stamp(6 + pre)
        for t in range(8*pre, 8*pre+8): c_read(t)
        pre += 1
    if P["fine"]:
        c_wait(31); stamp(9)
        _stamp = stamp
        def stamp(k):
            if (sect[0] != "C" or k == 3) and not (sect[0] == "O" and k in (5, 6)): _stamp(k)
    a("s_barrier")
    if P["go_at"] == "B0": go_store()
    stamp(3)
    def qslot(t):
        k = t % 12
        return 32 + 4*k if k < 8 else 100 + 4*(k - 8)
    def q_read(t): lop(f"ds_read_b128 {vr(qslot(t))}, v{16+(t&7)} offset:{256*(t>>3)}", ("Q", t))
    def pv_read(n, w):
        base = 128 + 16*n + 4*w
        for sec in range(2):
            lop(f"ds_read_b64_tr_b16 {vr(base+2*sec,2)}, v{24+n} offset:{8192*w + 2048*sec}", ("F", n, w))
    pv0 = [(n, w) for w in range(4) for n in range(4)]
    pv1 = [(n, w) for n in range(4, 8) for w in range(4)]
    rd = 0
    TB = 23
    for t in range(32):
        tgt = t + 5 if t < 16 else min(32, t + 5 + 2*(t - 15))
        tgt = min(tgt, t + 11, 32)
        while rd < tgt: q_read(rd); rd += 1
        if t == P["cw_at"]:
            c_wait(31)
            if P["go_at"] == "CL": go_store()
        if P["cw_at"] <= t < P["cw_at"] + 4: c_read(24 + 2*(t - P["cw_at"])); c_read(25 + 2*(t - P["cw_at"]))
        if t == TB:
            a("s_waitcnt lgkmcnt(0)"); del lq[:]
            stamp(4)
            a("s_barrier")
        lwait([("Q", t), ("C", t)])
        a(f"v_mfma_f32_32x32x16_bf16 {vr(64,16)}, {vr(128+4*t)}, {vr(qslot(t))}, {'0' if t == 0 else vr(64,16)}")
        if t >= TB:
            for _ in range(2):
                if pv0: pv_read(*pv0.pop(0))
    assert not pv0
    for _ in range(P["sm_pre"]): pv_read(*pv1.pop(0))
    a(f"""v_max3_f32 v4, v64, v65, v66
    v_max3_f32 v5, v67, v68, v69
    v_max3_f32 v6, v70, v71, v72
    v_max3_f32 v7, v73, v74, v75
    v_max3_f32 v4, v4, v76, v77
    v_max3_f32 v5, v5, v78, v79
    v_max3_f32 v4, v4, v5, v6
    v_max_f32 v4, v4, v7
    v_ceil_f32 v20, v4""")
    for r in range(0, 16, 2):
        a(f"v_pk_add_f32 {vr(64+r,2)}, {vr(64+r,2)}, v[20:21] op_sel_hi:[1,0] neg_lo:[0,1] neg_hi:[0,1]")
    a(f"v_mul_f32 v20, {f2u(128.0)}, v20\nds_write_b32 v97, v20")
    for r in range(16):
        a(f"v_exp_f32 v{64+r}, v{64+r}")
        if r >= 3 and r & 1: a(f"v_cvt_pk_bf16_f32 v{80+(r-3)//2}, v{64+r-3}, v{64+r-2}")
        if r == 9: a("ds_write_b128 v99, v[80:83]")
    a("v_pk_add_f32 v[64:65], v[64:65], v[66:67]\nv_cvt_pk_bf16_f32 v87, v78, v79\nds_write_b128 v99, v[84:87] offset:1024")
    a("""v_pk_add_f32 v[68:69], v[68:69], v[70:71]
    v_pk_add_f32 v[72:73], v[72:73], v[74:75]
    v_pk_add_f32 v[76:77], v[76:77], v[78:79]
    v_pk_add_f32 v[64:65], v[64:65], v[68:69]
    v_pk_add_f32 v[72:73], v[72:73], v[76:77]
    v_pk_add_f32 v[64:65], v[64:65], v[72:73]
    v_add_f32 v64, v64, v65
    ds_write_b32 v97, v64 offset:1024
    s_waitcnt lgkmcnt(0)""")
    del lq[:]
    stamp(5)
    a("s_barrier")
    def m_read(hh):
        lop(f"ds_read_b128 {vr(8+8*hh)}, v96 offset:{512*hh}", ("M", hh))
        lop(f"ds_read_b128 {vr(12+8*hh)}, v116 offset:{512*hh}", ("M", hh))
    def p_read(hh, w): lop(f"ds_read_b128 {vr(32+16*hh+4*w)}, v98 offset:{2048*w + 256*hh}", ("P", hh, w))
    m_read(0)
    for w in range(4): p_read(0, w)
    m_read(1)
    for w in range(4): p_read(1, w)
    def dcalc(hh):
        o, x = 8 + 8*hh, 12 + 8*hh
        return [f"v_max3_f32 v{x}, v{x}, v{x+1}, v{x+2}", f"v_max3_f32 v{x+1}, v{o}, v{o+1}, v{o+2}",
                f"v_max3_f32 v{x}, v{x}, v{x+3}, v{o+3}", f"v_max_f32 v{x}, v{x}, v{x+1}",
                f"v_pk_add_f32 {vr(o,2)}, {vr(x,2)}, {vr(o,2)} op_sel_hi:[0,1] neg_lo:[0,1] neg_hi:[0,1]",
                f"v_cvt_u32_f32 v{o}, v{o}", f"v_cvt_u32_f32 v{o+1}, v{o+1}", f"v_cvt_pk_u16_u32 v{4+2*hh}, v{o}, v{o+1}",
                f"v_pk_add_f32 {vr(o+2,2)}, {vr(x,2)}, {vr(o+2,2)} op_sel_hi:[0,1] neg_lo:[0,1] neg_hi:[0,1]",
                f"v_cvt_u32_f32 v{o+2}, v{o+2}", f"v_cvt_u32_f32 v{o+3}, v{o+3}", f"v_cvt_pk_u16_u32 v{5+2*hh}, v{o+2}, v{o+3}"]
    def pscale(hh, w):
        d = 4 + 2*hh + (w >> 1); sel = w & 1
        return [f"v_pk_sub_u16 v{32+16*hh+4*w+q}, v{32+16*hh+4*w+q}, v{d} op_sel:[0,{sel}] op_sel_hi:[1,{sel}] clamp" for q in range(4)]
    def outblk(hh, r): return (8 if hh == 0 else 64) + 4*r
    def pack(hh, q):
        L = []
        for r in range(4):
            o = outblk(hh, r) + q
            L += [f"v_cvt_pk_bf16_f32 v{o}, v{64+32*hh+8*q+r}, v{64+32*hh+8*q+4+r}", f"v_bfi_b32 v{o}, v2, s{sB+q}, v{o}"]
        return L
    def ostore(hh, r): return f"buffer_store_dwordx4 {vr(outblk(hh, r))}, v3, {sr(SW)}, s{64+4*hh+r} offen sc1"
    order = []
    for hh in range(2):
        if hh == 0:
            order += [(0, n, w) for w in range(4) for n in range(4)] + [(0, n, w) for n in range(4, 8) for w in range(4)]
        else:
            order += [(1, n, w) for n in range(8) for w in range(4)]
    pos_last = {}
    for i, (hh, n, w) in enumerate(order): pos_last[(hh, n)] = i
    F = []
    d0 = dcalc(0)
    lwait([("M", 0)])
    for l in d0[:8]: a(l)
    lwait([("P", 0, 0)])
    for l in pscale(0, 0): a(l)
    F += [(0, 3, "w", [("P", 0, 1)])] + [(0, 3, "i", l) for l in pscale(0, 1)]
    F += [(0, 7, "i", l) for l in d0[8:]] + [(0, 7, "w", [("P", 0, 2)])] + [(0, 7, "i", l) for l in pscale(0, 2)]
    F += [(0, 11, "w", [("P", 0, 3)])] + [(0, 11, "i", l) for l in pscale(0, 3)]
    for (n, w) in pv1: F.append((0, 16 + 4*(n-4) + w - 5, "r", (n, w)))
    F += [(0, 30, "w", [("M", 1), ("P", 1, 3)])] + [(0, 30, "i", l) for l in dcalc(1)]
    for w in range(4): F += [(0, 30, "i", l) for l in pscale(1, w)]
    GAP = 3
    for q in range(4): F += [(pos_last[(0, 2*q+1)] + GAP, 99, "i", l) for l in pack(0, q)]
    for r in range(4): F.append((0, 99, "i", ostore(0, r)))
    for q in range(3): F += [(pos_last[(1, 2*q+1)] + GAP, 99, "i", l) for l in pack(1, q)]
    def emit(f):
        if f[2] == "i": a(f[3]); return 1
        if f[2] == "w": lwait(f[3]); return 0
        pv_read(*f[3]); return 2
    for i, (hh, n, w) in enumerate(order):
        lwait([("F", n, w)])
        acc = 64 + 32*hh + 4*n
        a(f"v_mfma_f32_16x16x32_bf16 {vr(acc)}, {vr(32+16*hh+4*w)}, {vr(128+16*n+4*w)}, {'0' if w == 0 else vr(acc)}")
        used = 0
        if P["st_last"] and i == P["st_at"]: a("ds_write_b32 v1, v2"); used = 1
        while F and F[0][0] <= i and (used < P["pv_fill"] or any(f[1] <= i for f in F)):
            used += emit(F.pop(0))
    stamp(6)
    while F: emit(F.pop(0))
    pk = pack(1, 3)
    for r in range(4):
        a(pk[2*r]); a(pk[2*r+1]); a(ostore(1, r))
    if P["st_last"] and P["st_at"] >= 64: a("ds_write_b32 v1, v2")
    stamp(7)
    if diag:
        a("s_waitcnt vmcnt(0)"); stamp(8)
    a("s_branch L_exit")

    sect[0] = "H"
    a("L_ATT_help:")
    common()
    a("s_waitcnt lgkmcnt(0)")
    if P["ql_pre"]:
        a(f"""s_cmp_lg_u32 s3, 4
        s_cbranch_scc1 L_nopre
        s_lshl2_add_u32 s10, s7, s8
        s_lshl_b32 s10, s10, 8
        s_add_u32 s10, s10, {QL}
        v_lshlrev_b32 v4, 2, v0
        v_mov_b32 v5, 0""")
        if P["ql_pre"] == "w": a(f"buffer_store_dword v5, v4, {sr(SW)}, s10 offen sc1")
        else: a(f"buffer_load_dword v101, v4, {sr(SW)}, s10 offen {P['ql_pre'][1:]}")
        a("L_nopre:")
    ep_load()
    a(f"""s_load_dwordx2 s[{SG}:{SG+1}], s[0:1], 32
    s_lshl2_add_u32 s18, s8, s3
    s_sub_u32 s18, s18, 4
    s_lshl_b32 s18, s18, 18
    s_add_u32 s18, s18, s17
    v_lshrrev_b32 v4, 1, v0
    v_and_b32 v5, 1, v0
    v_lshlrev_b32 v5, 7, v5
    v_lshl_add_u32 v20, v4, 13, v5""")
    srd(SG, 4 << 20)
    a("s_lshl4_add_u32 s9, s4, s5\ns_waitcnt lgkmcnt(0)")
    tags(True)
    a("L_ATT_help2:")
    a(f"""s_sub_u32 s10, s3, 4
    s_lshl_b32 s11, s10, 13
    s_add_u32 s12, s11, {QL}
    s_add_u32 s13, s11, {X}
    s_and_b32 s14, s10, 1
    s_lshl_b32 s14, s14, 5
    v_lshlrev_b32 v4, 4, v0
    v_add_u32 v5, s13, v4
    v_xor_b32 v4, s14, v4
    v_mov_b32 v6, 0x10001
    s_movk_i32 s16, 0xff""")
    for r in range(8):
        f = ((r & 3) << 2) | (r >> 2)
        a(f"v_xor_b32 v{8+r}, {16*f}, v4")
    a("s_barrier")
    nh = P["qhint"]
    ho = hint_offs(nh, 9, 63, 7, 12, 64//max(nh,1))
    a(f"""v_mov_b32 v16, s13
    L_qtrig:
    ds_read_b32 v17, v16
    s_waitcnt lgkmcnt(0)
    v_cmp_eq_u32 vcc, 0, v17
    s_sleep 1
    s_add_u32 s28, s28, 0x10000
    s_cbranch_scc1 L_exit
    s_cbranch_vccnz L_qtrig
    s_and_b32 s28, s28, 0xffff""")
    stamp(4)
    shint("L_qhint", ho, 'b')
    stamp(5)
    if P["q_prio"]: a("s_setprio 3")
    a("L_qfetch:")
    for r in range(8):
        a(f"""s_bitcmp1_b32 s16, {r}
        s_cbranch_scc0 L_qs{r}
        s_add_u32 m0, s13, {1024*r}
        s_add_u32 s15, s12, {1024*r}
        buffer_load_dwordx4 v{8+r}, {sr(SW)}, s15 offen sc1 lds
        L_qs{r}:""")
    a("s_waitcnt vmcnt(0)")
    for r in range(8):
        a(f"ds_read_b128 {vr(64+4*r)}, v5 offset:{1024*r}")
    a("s_mov_b32 s16, 0")
    for r in range(8):
        a(f"s_waitcnt lgkmcnt({7-r})")
        check(7, 64+4*r, 4, sB, True)
        a(f"v_and_b32 v7, v6, v7\nv_cmp_ne_u32 vcc, 0, v7\ns_cmp_lg_u64 vcc, 0\ns_cselect_b32 s17, {1<<r}, 0\ns_or_b32 s16, s16, s17")
    spin("L_qfetch", "s_cbranch_scc1", "s_cmp_lg_u32 s16, 0")
    stamp(6)
    if P["att_pf"] == 1: a(f"buffer_load_dword v100, v20, {sr(SG)}, s18 offen")
    a("s_setprio 0\ns_barrier")
    if P["att_pf"] == 2: a(f"buffer_load_dword v100, v20, {sr(SG)}, s18 offen")
    a("""s_cmp_eq_u32 s3, 6
    s_cbranch_scc1 L_FIN
    s_cmp_eq_u32 s3, 7
    s_cbranch_scc1 L_STAT
    s_barrier
    s_barrier
    s_branch L_exit
    L_STAT:""")
    a(f"""v_and_b32 v4, 31, v0
    v_lshlrev_b32 v5, 5, v4
    v_add_u32 v5, {X+8192}, v5
    v_lshlrev_b32 v6, 4, v0
    s_setprio 3
    v_mov_b32 v17, s{sF}
    v_mov_b32 v19, s{sF}
    v_mov_b32 v8, {f2u(1/128)}
    s_lshl_b32 s12, s9, 9
    s_add_u32 s12, s12, {ST}
    v_mov_b32 v9, {X+11264}
    v_mov_b32 v12, 0
    v_mov_b32 v13, 0
    v_mov_b32 v14, 0
    v_mov_b32 v15, 0
    s_barrier
    ds_write_b128 v9, v[12:15]
    ds_write_b128 v9, v[12:15] offset:16
    s_waitcnt lgkmcnt(0)
    s_barrier
    ds_read_b128 v[80:83], v5
    ds_read_b128 v[84:87], v5 offset:16
    ds_read_b128 v[88:91], v5 offset:1024
    ds_read_b128 v[92:95], v5 offset:1040
    s_waitcnt lgkmcnt(2)
    v_max3_f32 v4, v80, v81, v82
    v_max3_f32 v5, v83, v84, v85
    v_max3_f32 v4, v4, v86, v87
    v_max_f32 v4, v4, v5
    v_mul_f32 v16, v4, v8""")
    for x in range(8): a(f"v_fma_f32 v{80+x}, v{80+x}, v8, -v16")
    for x in range(8): a(f"v_exp_f32 v{80+x}, v{80+x}")
    a("s_waitcnt lgkmcnt(0)\nv_mul_f32 v18, v80, v88")
    for x in range(1, 8): a(f"v_fmac_f32 v18, v{80+x}, v{88+x}")
    if P["st_last"]:
        a("""s_setprio 0
        L_stw:
        s_sleep 1
        ds_read_b128 v[12:15], v9
        s_waitcnt lgkmcnt(0)
        v_and_b32 v12, v12, v13
        v_and_b32 v14, v14, v15
        v_and_b32 v12, v12, v14
        v_cmp_eq_u32 vcc, 0, v12
        s_add_u32 s28, s28, 0x10000
        s_cbranch_scc1 L_exit
        s_cbranch_vccnz L_stw
        s_and_b32 s28, s28, 0xffff""")
    a(f"""
    s_mov_b32 exec_hi, 0
    buffer_store_dwordx4 v[16:19], v6, {sr(SW)}, s12 offen sc1
    s_mov_b64 exec, -1""")
    stamp(7)
    a("s_branch L_exit")

    sect[0] = "F"
    a("L_FIN:")
    a(f"""s_barrier
    s_barrier
    s_cmp_lt_u32 s5, 12
    s_cbranch_scc1 L_exit
    s_load_dwordx2 s[{SC}:{SC+1}], s[0:1], 80
    s_load_dwordx2 s[{SQ}:{SQ+1}], s[0:1], 88
    s_sub_u32 s10, s5, 12
    s_lshl2_add_u32 s10, s4, s10
    s_lshl_b32 s11, s10, 6
    s_lshl_b32 s16, s10, 5
    v_lshrrev_b32 v4, 2, v0
    v_and_b32 v5, 3, v0
    v_lshlrev_b32 v4, 11, v4
    v_lshl_add_u32 v4, v5, 4, v4
    v_lshlrev_b32 v5, 3, v5
    v_mov_b32 v6, 0xff""")
    srd(SX, 1024); srd(SC, 1024); srd(SQ, 1024)
    a(f"""s_waitcnt lgkmcnt(0)
    buffer_load_dwordx2 v[8:9], v5, {sr(SX)}, s16 offen
    buffer_load_dwordx2 v[10:11], v5, {sr(SC)}, s16 offen""")
    if P["out_touch"]: a(f"buffer_load_dwordx2 v[30:31], v5, {sr(SQ)}, s16 offen {P['out_touch']}")
    def fin_gather(label, first, n, dst):
        a(f"s_add_u32 s13, s11, {DP + first*2048}\ns_mul_i32 s14, s10, 3")
        shint(label + "_h", hint_offs(P["fhint"], 14, 63, 11, 13, 29), 'f')
        a(f"{label}:\ns_mov_b32 s12, s13")
        for x in range(n):
            a(f"buffer_load_dwordx4 {vr(64+4*x)}, v4, {sr(SW)}, s12 offen sc1")
            if x < n-1: a("s_add_u32 s12, s12, 0x8000")
        for x in range(n):
            a(f"s_waitcnt vmcnt({n-1-x})")
            check(7, 64+4*x, 4, sF, x == 0)
            if x == 1:
                for q in range(0, 4, 2): a(f"v_pk_add_f32 {vr(dst+q,2)}, {vr(64+q,2)}, {vr(68+q,2)}")
            elif x > 1:
                for q in range(0, 4, 2): a(f"v_pk_add_f32 {vr(dst+q,2)}, {vr(dst+q,2)}, {vr(64+4*x+q,2)}")
        a("v_and_b32 v7, v6, v7\nv_cmp_ne_u32 vcc, 0, v7")
        spin(label, "s_cbranch_vccnz")
        for r in (4, 8):
            for q in range(4): a(f"v_add_f32_dpp v{dst+q}, v{dst+q}, v{dst+q} row_ror:{r} {DPPM}")
        for sw in ("v_permlane16_swap_b32", "v_permlane32_swap_b32"):
            for q in range(4): a(f"v_mov_b32 v{64+q}, v{dst+q}")
            for q in range(4): a(f"{sw} v{64+q}, v{dst+q}")
            for q in range(0, 4, 2): a(f"v_pk_add_f32 {vr(dst+q,2)}, {vr(dst+q,2)}, {vr(64+q,2)}")
    def round4(d):
        a(f"v_cvt_pk_bf16_f32 v12, v{d}, v{d+1}\nv_cvt_pk_bf16_f32 v13, v{d+2}, v{d+3}")
        unpack2(d, 12); unpack2(d+2, 13)
    a("s_waitcnt vmcnt(0)")
    unpack2(16, 10); unpack2(18, 11); unpack2(24, 8); unpack2(26, 9)
    for q in range(0, 4, 2): a(f"v_pk_add_f32 {vr(16+q,2)}, {vr(16+q,2)}, {vr(24+q,2)}")
    fin_gather("L_fin_att", 0, 8, 20)
    stamp(8)
    for q in range(0, 4, 2): a(f"v_pk_add_f32 {vr(20+q,2)}, {vr(20+q,2)}, {vr(16+q,2)}")
    a(f"""v_cvt_pk_bf16_f32 v12, v20, v21
    v_cvt_pk_bf16_f32 v13, v22, v23
    s_mov_b64 exec, 15
    buffer_store_dwordx2 v[12:13], v5, {sr(SQ)}, s16 offen {P['out_pol']}
    s_cmp_lg_u32 s10, 0
    s_cbranch_scc1 L_fin_done
    s_mov_b64 exec, 1
    {"s_mov_b32 s88, 1" if P["probe"] else ""}
    v_mov_b32 v14, s{sF}
    buffer_store_dword v14, v5, {sr(SW)}, 0 offen offset:{EP} {P['out_pol']}
    L_fin_done:
    s_mov_b64 exec, -1""")
    if P["calib"]:
        a(f"""s_add_u32 s80, s80, {P['calib']}
        L_cal:
        s_memrealtime s[82:83]
        s_waitcnt lgkmcnt(0)
        s_sub_u32 s83, s82, s80
        s_cmp_lt_i32 s83, 0
        s_cbranch_scc1 L_cal""")
    if diag:
        a("s_waitcnt vmcnt(0)"); stamp(9)
    a("s_branch L_exit")

    sect[0] = "S"
    a("L_S1:")
    a(f"""s_load_dwordx2 s[{SG}:{SG+1}], s[0:1], 32
    s_load_dwordx2 s[{SX}:{SX+1}], s[0:1], 56
    s_load_dwordx2 s[{SQ}:{SQ+1}], s[0:1], 72
    s_load_dwordx2 s[{SK}:{SK+1}], s[0:1], 64""")
    srd(SX, 512*1792*2); srd(SQ, 1792*512*2); srd(SK, 1792*2)
    srd(SG, 4 << 20)
    a(f"""v_lshlrev_b32 v5, 17, v3
    v_lshlrev_b32 v6, 2, v3
    v_xor_b32 v6, v6, v2
    v_lshl_add_u32 v4, v6, 4, v5
    v_xor_b32 v26, 32, v4
    s_lshl_b32 s10, s8, 5
    s_add_u32 s10, s10, s3
    s_lshl_b32 s10, s10, 15
    s_lshl_b32 s11, s7, 8
    s_add_u32 s10, s10, s11
    s_lshl_b32 s11, s3, 13
    s_add_u32 s11, s11, {X}""")
    a(f"""v_bfe_u32 v6, v0, 2, 2
    v_bfe_u32 v7, v0, 4, 1
    v_bfe_u32 v5, v0, 1, 1
    v_lshl_or_b32 v7, v7, 1, v5
    v_lshl_or_b32 v7, v6, 2, v7
    s_lshl_b32 s12, s3, 2
    v_xor_b32 v7, s12, v7
    v_lshlrev_b32 v7, 4, v7
    v_lshlrev_b32 v6, 8, v6
    v_lshl_add_u32 v6, v3, 11, v6
    v_and_b32 v5, 1, v0
    v_lshl_add_u32 v6, v5, 3, v6
    v_add_u32 v6, {X}, v6
    v_add_u32 v8, v6, v7
    v_xor_b32 v9, 32, v8""")
    a(f"""v_and_b32 v5, 7, v0
    v_lshl_add_u32 v5, v5, 2, v3
    v_lshlrev_b32 v10, 9, v5
    v_lshlrev_b32 v11, 4, v0
    v_lshlrev_b32 v5, 4, v2
    v_lshl_add_u32 v5, v3, 3, v5
    s_lshl_b32 s12, s3, 6
    s_add_u32 s13, s12, s11
    v_add_u32 v12, s13, v5
    v_and_b32 v5, 3, v0
    v_mul_u32_u24 v5, {8192+64}, v5
    v_lshl_add_u32 v5, v3, 4, v5
    v_add_u32 v13, {X}, v5
    v_and_b32 v5, 31, v0
    s_add_u32 s13, s12, {X+2048}
    v_lshl_add_u32 v14, v5, 1, s13
    v_mov_b32 v15, s11
    v_mov_b32 v31, {X}
    v_mov_b32 v30, 0x10001
    v_bfe_u32 v5, v0, 4, 1
    v_cmp_eq_u32 s[18:19], 1, v5
    s_mov_b32 m0, s11
    s_nop 0""")
    a(f"""s_lshl2_add_u32 s15, s8, s3
    s_mul_i32 s15, s15, {32*3584}
    s_lshl_b32 s16, s7, 7
    s_add_u32 s15, s15, s16
    v_mul_u32_u24 v20, 3584, v0
    s_lshl4_add_u32 s9, s4, s5
    s_waitcnt lgkmcnt(0)
    s_barrier""")
    if P["h_touch"] and P["bhint"]:
        a(f"""s_lshl_b32 s12, s3, 13
        s_lshl_b32 s13, s9, 15
        s_add_u32 s13, s13, s12""")
        for x in range(P["bhint"]):
            a(f"s_add_u32 s12, s13, {BP + (32*x//P['bhint'] + 3)*256 + 128}\ns_load_dword s{HINT+x}, s[{SW}:{SW+1}], s12 glc")
    for r in range(16): a(f"v_mov_b32 v{96+r}, 0")
    a(f"""s_cmp_eq_u32 s4, 7
    s_cbranch_scc1 L_nomlp
    s_mov_b32 exec_hi, 0
    buffer_load_dword v239, v20, {sr(SX)}, s15 offen
    s_mov_b64 exec, -1
    s_cmp_lg_u32 s3, 3
    s_cbranch_scc1 L_nomlp
    s_lshl_b32 s15, s9, 5
    s_lshl_b32 s16, s9, 14
    v_lshlrev_b32 v21, 12, v3
    v_lshl_add_u32 v21, v2, 4, v21
    v_lshlrev_b32 v22, 1, v2
    buffer_load_ushort v48, v22, {sr(SK)}, s15 offen""")
    a(f"""v_mov_b32 v27, v21
    v_lshrrev_b32 v20, 1, v0
    v_mul_u32_u24 v20, 3584, v20
    v_and_b32 v21, 1, v0
    v_lshl_add_u32 v20, v21, 4, v20
    v_lshlrev_b32 v21, 4, v0
    v_add_u32 v21, {X}, v21
    ds_write_b128 v21, v[56:59]
    v_lshlrev_b32 v21, 4, v3
    v_add_u32 v21, {X}, v21
    v_lshlrev_b32 v22, 8, v3
    v_lshl_add_u32 v22, v2, 3, v22
    v_add_u32 v22, {X+16384}, v22
    v_lshl_add_u32 v23, v3, 2, v2
    v_and_b32 v23, 15, v23
    v_lshlrev_b32 v23, 2, v23
    s_mov_b32 m0, {X+16384}""")
    for t in range(16): a(f"ds_read_b128 {vr(64+4*t)}, v21 offset:{64*t}")
    a("s_waitcnt vmcnt(0)")
    for q in range(16):
        a(f"buffer_load_dwordx4 v20, {sr(SX)}, s15 offen lds")
        if q < 15: a(f"s_addk_i32 m0, 0x400\ns_add_u32 s15, s15, {32*3584}")
    if P["wo_gate"] is not None: a(f"s_waitcnt vmcnt({P['wo_gate']})\ns_barrier")
    for t in range(16): a(f"buffer_load_dwordx4 {vr(192+4*t)}, v27, {sr(SQ)}, s16 offen offset:{256*t} nt")
    a("s_waitcnt vmcnt(16)")
    stamp(8)
    for t in range(16):
        a(f"ds_read_b64_tr_b16 {vr(128+4*t,2)}, v22 offset:{1024*t}\nds_read_b64_tr_b16 {vr(130+4*t,2)}, v22 offset:{1024*t+128}")
    a("s_waitcnt lgkmcnt(0)")
    for t in range(16):
        a(f"v_mfma_f32_16x16x32_bf16 v[16:19], {vr(64+4*t)}, {vr(128+4*t)}, {'0' if t == 0 else 'v[16:19]'}")
    rnd_bf16(20, 16)
    a("v_lshlrev_b32 v48, 16, v48\nv_add_f32 v20, v20, v48")
    rnd_bf16(20, 20)
    a("""v_max_f32 v20, 0, v20
    v_mul_f32 v20, v20, v20
    v_cvt_pk_bf16_f32 v20, v20, v20
    ds_bpermute_b32 v21, v23, v20
    s_waitcnt lgkmcnt(0)""")
    for rq in range(4):
        for dw in range(4):
            a(f"v_and_b32_dpp v{64+4*rq+dw}, v21, v{32+dw} row_newbcast:{rq} {DPPM}")
    def wuv_loads():
        a("s_mov_b32 m0, s11\ns_barrier")
        stamp(1)
        for q in range(8):
            a(f"buffer_load_dwordx4 v{26 if (q>>1)&1 else 4}, {sr(SG)}, s10 offen nt lds")
            if q < 7: a(f"s_add_u32 m0, m0, 1024\ns_add_u32 s10, s10, {(64*8192 if q & 1 == 0 else (1-64)*8192) & 0xffffffff}")
    wuv_loads()
    a("s_waitcnt vmcnt(8)")
    for rq in range(4):
        for cb in range(4):
            a(f"v_mfma_f32_16x16x32_bf16 {vr(96+4*cb)}, {vr(64+4*rq)}, {vr(192+16*rq+4*cb)}, {'0' if rq == 0 else vr(96+4*cb)}")
    a("s_nop 7\ns_branch L_wuv_done\nL_nomlp:")
    if P["wo_gate"] is not None: a("s_barrier")
    wuv_loads()
    a("L_wuv_done:")
    a(f"""s_lshl_b32 s12, s3, 13
    s_lshl2_add_u32 s16, s7, s8
    s_lshl_b32 s13, s16, 15
    s_add_u32 s13, s13, s12
    s_add_u32 s13, s13, {BP}
    s_lshl_b32 s12, s12, 1
    s_lshl4_add_u32 s12, s7, s12
    s_add_u32 s12, s12, {ST}""")
    if P["st_touch"]: a(f"buffer_load_dwordx4 v[16:19], v10, {sr(SW)}, s12 offen sc1")
    a("""s_waitcnt vmcnt(0)
    s_barrier""")
    for n in range(2):
        for t in range(4):
            for sec in range(2):
                a(f"ds_read_b64_tr_b16 {vr(160+16*n+4*t+2*sec,2)}, v{8+n} offset:{8192*t + 1024*sec}")
    a("s_waitcnt lgkmcnt(0)\ns_barrier")
    a(f"""s_cmp_lg_u32 s3, 3
    s_cbranch_scc1 L_nomw
    v_add_u32 v20, {X+4096}, v41
    s_mov_b32 exec_hi, 0""")
    for cb in range(4): a(f"ds_write_b128 v20, {vr(96+4*cb)} offset:{512*cb}")
    a("s_mov_b64 exec, -1\nL_nomw:")
    stamp(2)
    nh = P["lhint"]
    shint("L_lhint", hint_offs(nh, 16, 31, 9, 12, 32//max(nh,1)), 't')
    nh = P["bhint"]
    for x in range(nh): a(f"s_add_u32 s{30+x}, s13, {(32*x//nh + 3)*256 + 128}")
    shint("L_bhint", [30+x for x in range(nh)], 'b')
    stamp(3)
    a("s_add_u32 s14, s13, 4096")
    def st_check():
        a(f"""v_xor_b32 v17, s{sF}, v17
        v_bitop3_b32 v17, v17, v19, s{sF} bitop3:0xf6""")
    if P["st_last"]:
        a(f"L_stp:\nbuffer_load_dwordx4 v[16:19], v10, {sr(SW)}, s12 offen sc1\ns_waitcnt vmcnt(0)")
        st_check()
        a("v_cmp_ne_u32 vcc, 0, v17")
        spin("L_stp", "s_cbranch_vccnz")
        stamp(4)
        a("v_mov_b32 v27, v16")
    a("L_bfetch:")
    if not P["st_last"]: a(f"buffer_load_dwordx4 v[16:19], v10, {sr(SW)}, s12 offen sc1")
    for t in range(8):
        a(f"buffer_load_dwordx4 {vr(64+4*t)}, v11, {sr(SW)}, s{13 + (t>>2)} offen offset:{1024*(t&3)} sc1")
    if not P["st_last"]:
        a("s_waitcnt vmcnt(8)")
        stamp(4)
        st_check()
    else: a("v_mov_b32 v16, v27")
    a("v_mov_b32 v24, v16")
    allreduce("v_max_f32", 24, 20)
    a("""v_sub_f32 v16, v16, v24
    v_exp_f32 v16, v16
    v_cvt_pk_bf16_f32 v16, v16, v16""")
    for t in range(8):
        for dw in range(4):
            a(f"v_and_b32_dpp v{128+4*t+dw}, v16, v{32+dw} row_newbcast:{t} {DPPM}")
    a("v_and_b32 v25, 0xffff0000, v16\nv_mul_f32 v25, v25, v18")
    allreduce("v_add_f32", 25, 20)
    a("v_mul_f32 v25, 0.5, v25\nds_write_b64 v15, v[24:25] offset:1024")
    stamp(5)
    for t in range(8):
        a(f"s_waitcnt vmcnt({7-t})")
        a(f"v_mfma_f32_16x16x32_bf16 v[40:43], {vr(128+4*t)}, {vr(64+4*t)}, {'0' if t == 0 else 'v[40:43]'}")
        check(7, 64+4*t, 4, sB, t == 0)
    a("v_and_or_b32 v7, v30, v7, v17\nv_cmp_ne_u32 vcc, 0, v7")
    spin("L_bfetch", "s_cbranch_vccnz")
    stamp(6)
    a("""v_cvt_pk_bf16_f32 v44, v40, v41
    v_cvt_pk_bf16_f32 v45, v42, v43
    s_mov_b32 exec_hi, 0
    ds_write_b64 v12, v[44:45]
    s_mov_b64 exec, -1
    s_waitcnt lgkmcnt(0)
    s_barrier""")
    for u in range(4): a(f"ds_read_b64 {vr(80+2*u,2)}, v31 offset:{8192*u + 1024}")
    for t in range(4): a(f"ds_read_b128 {vr(64+4*t)}, v13 offset:{64*t}")
    sm = """v_max3_f32 v4, v80, v82, v84
    v_max_f32 v4, v4, v86
    v_sub_f32 v80, v80, v4
    v_sub_f32 v82, v82, v4
    v_sub_f32 v84, v84, v4
    v_sub_f32 v86, v86, v4
    v_exp_f32 v80, v80
    v_exp_f32 v82, v82
    v_exp_f32 v84, v84
    v_exp_f32 v86, v86
    v_mul_f32 v5, v80, v81
    v_fmac_f32 v5, v82, v83
    v_fmac_f32 v5, v84, v85
    v_fmac_f32 v5, v86, v87
    v_rcp_f32 v5, v5""".split("\n")
    for t in range(4):
        a(f"s_waitcnt lgkmcnt({3-t})")
        for n in range(2):
            a(f"v_mfma_f32_16x16x32_bf16 {vr(40+4*n)}, {vr(64+4*t)}, {vr(160+16*n+4*t)}, {'0' if t == 0 else vr(40+4*n)}")
            a(sm.pop(0))
    for l in sm: a(l)
    for r in range(4): a(f"v_cndmask_b32 v{40+r}, v{40+r}, v{44+r}, s[18:19]")
    a("""v_mul_f32 v6, v40, v80
    v_fmac_f32 v6, v41, v82
    v_fmac_f32 v6, v42, v84
    v_fmac_f32 v6, v43, v86
    v_mul_f32 v6, v6, v5
    v_cvt_pk_bf16_f32 v6, v6, v6
    ds_write_b16 v14, v6
    s_waitcnt lgkmcnt(0)""")
    stamp(7)
    a("s_barrier\ns_branch L_exit")

    sect[0] = "O"
    a("L_WO:")
    a(f"s_load_dwordx2 s[{SG}:{SG+1}], s[0:1], 40\ns_barrier")
    srd(SC, 16 << 20)
    a(f"""s_lshl4_add_u32 s14, s4, s5
    s_lshl2_add_u32 s14, s14, s3
    s_sub_u32 s14, s14, 4
    s_lshl_b32 s14, s14, 15
    v_lshrrev_b32 v5, 1, v0
    v_and_b32 v6, 1, v0
    v_lshlrev_b32 v5, 10, v5
    v_lshl_add_u32 v5, v6, 7, v5""")
    for x in range(P["cpf"]):
        if x >= P["cpf_depth"]: a(f"s_waitcnt vmcnt({P['cpf_depth']-1})")
        a(f"""s_mov_b32 exec_{'lo' if x & 1 == 0 else 'hi'}, 0
        buffer_load_dword v{100+x}, v5, {sr(SC)}, s14 offen offset:{256*(3 - x//2)}
        s_mov_b64 exec, -1""")
    srd(SG, 4 << 20)
    a(f"""s_sub_u32 s9, s3, 4
    s_lshl_b32 s10, s7, 17
    s_lshl_b32 s11, s9, 8
    s_add_u32 s10, s10, s11
    s_lshl_b32 s11, s9, 15
    v_lshlrev_b32 v4, 2, v3
    v_xor_b32 v4, v4, v2
    v_lshlrev_b32 v4, 4, v4
    v_lshl_add_u32 v4, v3, 10, v4
    v_xor_b32 v5, 32, v4
    s_mov_b32 m0, s11""")
    if P["wo_rot"]:
        a("s_lshl_b32 s13, s8, 15\ns_add_u32 s10, s10, s13")
        for tau in range(3):
            a(f"s_cmp_eq_u32 s8, {3-tau}\ns_cselect_b32 s{36+tau}, -31, 1\ns_lshl_b32 s{36+tau}, s{36+tau}, 12")
    a(f"""v_bfe_u32 v6, v0, 2, 2
    v_bfe_u32 v7, v0, 4, 1
    v_bfe_u32 v16, v0, 1, 1
    v_lshl_or_b32 v7, v7, 1, v16
    v_lshl_or_b32 v7, v6, 2, v7
    v_lshlrev_b32 v7, 4, v7
    v_lshlrev_b32 v6, 8, v6
    v_lshl_add_u32 v6, v3, 11, v6
    v_and_b32 v16, 1, v0
    v_lshl_add_u32 v6, v16, 3, v6
    v_add_u32 v6, s11, v6""")
    for n in range(8):
        a(f"v_xor_b32 v16, {32*n}, v7\nv_add_u32 v{8+n}, v6, v16")
    a(f"""v_lshlrev_b32 v16, 4, v3
    v_add_u32 v16, {X+2048}, v16
    v_lshlrev_b32 v17, 6, v2
    v_lshl_add_u32 v17, v3, 4, v17
    v_mov_b32 v18, 0xff
    s_lshl2_add_u32 s12, s7, s8
    s_lshl_b32 s12, s12, 11
    s_lshl_b32 s13, s9, 9
    s_add_u32 s12, s12, s13
    s_add_u32 s12, s12, {DP}""")
    for t in range(4):
        if P["wo_rot"]: a(f"s_add_u32 s13, s8, {t}\ns_and_b32 s13, s13, 3\ns_lshl_b32 s13, s13, 6\nv_add_u32 v{36+t}, s13, v16")
        else: a(f"v_add_u32 v{36+t}, {64*t}, v16")
    for n in range(1, 8):
        a(f"s_mov_b32 s{40+2*n}, {0x01010101 << n}\ns_mov_b32 s{41+2*n}, {0x01010101 << n}")
    a("s_waitcnt lgkmcnt(0)")
    def wo_read(t):
        for n in range(8):
            for sec in range(2):
                a(f"ds_read_b64_tr_b16 {vr(128+32*t+4*n+2*sec,2)}, v{8+n} offset:{8192*t + 1024*sec}")
    nxt = 0
    for rg in range(32):
        if rg == 0 and P["cpf"]: a(f"s_waitcnt vmcnt({P['cpf_tail']})")
        if rg == 0 and P["wo_gate"] is not None: a("s_barrier")
        if rg == 0 and not P["fine"]: stamp(1)
        wd = P["wo_edepth"] if rg < P["wo_early"] else (P["wo_depth0"] if rg < 8 + P["wo_depth0"] else P["wo_depth"])
        if rg >= wd:
            a(f"s_waitcnt vmcnt({wd-1})")
            landed = rg - wd + 1
            if landed >= 8*(nxt+1):
                if nxt == 0: stamp(5)
                if "noread" not in P["abl"]: wo_read(nxt)
                nxt += 1
        a(f"buffer_load_dwordx4 v{4+((rg>>1)&1)}, {sr(SG)}, s10 offen {P['wo_pol']} lds")
        if rg in P["wo_bar"]: a("s_barrier")
        if rg < 31:
            if P["wo_rot"] and rg & 7 == 7: a(f"s_add_u32 m0, m0, 1024\ns_add_u32 s10, s10, s{36+(rg>>3)}")
            else: a("s_add_u32 m0, m0, 1024\ns_add_u32 s10, s10, 4096")
    while nxt < 4:
        a(f"s_waitcnt vmcnt({24 - 8*nxt})")
        wo_read(nxt); nxt += 1
    for x in P["wo_bar"]:
        if x >= 32: a("s_barrier")
    stamp(6)
    if "bwait" in P["abl"]: a("s_barrier")
    a(f"s_lshl_b32 s13, s9, 9\ns_add_u32 s13, s13, {X+4096}\nv_and_b32 v19, 0x1ff, v17\nv_add_u32 v19, s13, v19")
    a("s_barrier\nds_read_b128 v[40:43], v19\ns_barrier")
    stamp(7)
    for t in range(4): a(f"ds_read_b128 {vr(20+4*t)}, v{36+t}")
    a("s_waitcnt lgkmcnt(0)")
    for n in range(8):
        for t in range(4):
            a(f"v_mfma_f32_16x16x32_bf16 {vr(64+4*n)}, {vr(128+32*t+4*n)}, {vr(20+4*t)}, {'0' if t == 0 else vr(64+4*n)}")
            if n >= 3:
                m = n - 2
                a(f"v_cndmask_b32 v{64+t}, v{64+t}, v{64+4*m+t}, s[{40+2*m}:{41+2*m}]")
    for m in (6, 7):
        for t in range(4): a(f"v_cndmask_b32 v{64+t}, v{64+t}, v{64+4*m+t}, s[{40+2*m}:{41+2*m}]")
    a("v_pk_add_f32 v[64:65], v[64:65], v[40:41]\nv_pk_add_f32 v[66:67], v[66:67], v[42:43]")
    for r in range(4): a(f"v_bfi_b32 v{64+r}, v18, s{sF+r}, v{64+r}")
    a(f"""s_mov_b32 exec_lo, 0x00ff00ff
    s_mov_b32 exec_hi, 0x00ff00ff
    buffer_store_dwordx4 v[64:67], v17, {sr(SW)}, s12 offen sc1
    s_mov_b64 exec, -1""")
    stamp(8)
    if diag:
        a("s_waitcnt vmcnt(0)"); stamp(9)

    a("L_exit:")
    if P["probe"]:
        a(f"""s_load_dwordx2 s[86:87], s[0:1], 96
        s_mov_b64 exec, 1
        s_waitcnt lgkmcnt(0)
        v_mov_b32 v4, 0
        v_mov_b32 v5, s84
        s_cmp_eq_u32 s84, 0
        s_cbranch_scc1 L_pr1
        global_atomic_umax v4, v5, s[86:87] offset:128
        L_pr1:
        s_cmp_lg_u32 s3, 0
        s_cbranch_scc1 L_pr2
        v_mov_b32 v5, s80
        global_atomic_umax v4, v5, s[86:87]
        v_not_b32 v6, v5
        global_atomic_umax v4, v6, s[86:87] offset:4
        L_pr2:
        s_cmp_lg_u32 s88, 1
        s_cbranch_scc1 L_end
        s_add_u32 s90, s80, 3000
        L_pr3:
        s_memrealtime s[82:83]
        s_waitcnt lgkmcnt(0)
        s_sub_u32 s83, s82, s90
        s_cmp_lt_i32 s83, 0
        s_cbranch_scc1 L_pr3
        global_load_dwordx2 v[8:9], v4, s[86:87] sc1
        global_load_dword v10, v4, s[86:87] offset:128 sc1
        s_waitcnt vmcnt(0)
        v_readfirstlane_b32 s91, v8
        v_readfirstlane_b32 s92, v9
        v_readfirstlane_b32 s93, v10
        s_not_b32 s92, s92""")
        ref = "s92" if P["probe"][1] == "min" else "s91"
        val = {"maxstart": "s91", "none": ref}.get(P["probe"][0], "s93")
        a(f"""s_sub_u32 s94, {val}, {ref}
        s_min_u32 s94, s94, 3000
        s_add_u32 s90, s92, 4000
        s_add_u32 s90, s90, s94
        L_pr4:
        s_memrealtime s[82:83]
        s_waitcnt lgkmcnt(0)
        s_sub_u32 s83, s82, s90
        s_cmp_lt_i32 s83, 0
        s_cbranch_scc1 L_pr4""")
    if diag:
        a(f"""s_mov_b64 exec, -1
        s_waitcnt lgkmcnt(0)
        s_lshl3_add_u32 s10, s2, s3
        s_lshl_b32 s10, s10, 7
        s_add_u32 s10, s10, {STAMP}
        v_mov_b32 v4, 0""")
        for k in range(10):
            a(f"v_mov_b32 v5, s{80+2*k}\nbuffer_store_dword v5, v4, {sr(SW)}, s10 offen offset:{4*k}")
        a(f"v_mov_b32 v5, s28\nbuffer_store_dword v5, v4, {sr(SW)}, s10 offen offset:40")
        a(f"s_getreg_b32 s11, hwreg(HW_REG_XCC_ID)\nv_mov_b32 v5, s11\nbuffer_store_dword v5, v4, {sr(SW)}, s10 offen offset:44")
        a(f"s_getreg_b32 s11, hwreg(HW_REG_HW_ID)\nv_mov_b32 v5, s11\nbuffer_store_dword v5, v4, {sr(SW)}, s10 offen offset:48")
    a("L_end:\ns_endpgm\nL_codeend:")

    lines = a.lines
    if diag:
        pre = [f"s_mov_b32 s{80+2*k}, 0" for k in range(1, 10)]
        lines = lines[:1] + pre + lines[1:]
    lines, nins = insert_waits(lines)
    b = Asm(); b.lines = lines
    head = f"""; fused MLA decode attention (absorbed form) + squared-relu MLP, one persistent launch, 256 workgroups
; @launch grid=(256,1,1) block=(512,1,1) lds=163840
.amdgcn_target "amdgcn-amd-amdhsa--gfx950"
.text
.globl {KNAME}
.p2align 8
.type {KNAME},@function
{KNAME}:
"""
    foot = f"""
.section .rodata,"a"
.p2align 6
.amdhsa_kernel {KNAME}
  .amdhsa_next_free_vgpr 256
  .amdhsa_next_free_sgpr 102
  .amdhsa_accum_offset 256
  .amdhsa_group_segment_fixed_size 0
  .amdhsa_kernarg_size 112
  .amdhsa_user_sgpr_count 2
  .amdhsa_user_sgpr_kernarg_segment_ptr 1
  .amdhsa_system_sgpr_workgroup_id_x 1
  .amdhsa_float_denorm_mode_32 3
.end_amdhsa_kernel
"""
    txt = b.text()
    if P["pol"] != "nt":
        txt = txt.replace(" nt lds", f" {P['pol']} lds").replace(" nt\n", f" {P['pol']}\n")
    return head + txt + foot

if __name__ == "__main__":
    import json
    kw = json.loads(sys.argv[2]) if len(sys.argv) > 2 else {}
    open(sys.argv[1], "w").write(gen(**kw))
```

```python
import sys, math, struct
from asmlib import Asm, insert_waits
from gen_common import KNAME

EP, QP, QL, GO, ST, HP, DP, BP, STAMP = 0, 0x1000, 0x40000, 0x48000, 0x50000, 0x60000, 0x80000, 0x100000, 0x800000
WS_REC = 0x1000000
X = 131072
SPIN = 1 << 17

def f2u(x): return struct.unpack("<I", struct.pack("<f", x))[0]
def vr(a, n=4): return f"v[{a}:{a+n-1}]"
def sr(a, n=4): return f"s[{a}:{a+n-1}]"

SX, SC, SQ, SK, SW, SG = 40, 44, 48, 52, 56, 60
sF, sB = 20, 24
HINT = 64
DPPM = "row_mask:0xf bank_mask:0xf"

DEFAULT = dict(lite=False, diag=False, cyc=False, fine=False, calib=0, probe=None, abl=(), pol="nt", prefetch=True, pf_wgs=16, role_bit=0,
               pq=True, pk_late="ep", pf_ramp=(0, 4, 10), bi_at=2, q_at=31, qhint=0, cw_at=-1, sm_pre=4, bb_at=6, st_gap=4, optx=False, pf_pol='', first_pol='', uk_pol='nt', x_n=8, x_left=0, pv_fill=2,
               cpf=0, wo_gate=8, ql_pre=None, cpf_depth=2, cpf_tail=1, wq_pol="", wo_pol="", wo_depth=8, wo_depth0=8, wo_bar=(7, 23, 29), wo_rot=True,
               bhint=4, fhint=0, hsleep=0, out_pol="sc1", mlp_at="pf", wpq=False, x_bar=True, wq_bars=(1,), ln_at=3, st_last=True, st_at=10, w2_early=False, uv_pf=0, w1_att=False, cpf_wait=None, lhint=0, st_touch=False, h_touch=True, hmap=1, pk_mix=False, cpf_late=False, c_keep=0, ql_delay=0, fin_pol='sc1', pl_pol='sc1', st_pol='sc1', rgmajor=4, hpipe=True, brounds=1, re_sleep=0, w1_wait=17, w2_late=True, wuv_depth=8, q_prio=True, q_fast=True, w1_pre=16, w2_left=0, att_pf=0, out_touch='sc1', dpp_early=True, go_at=None, cpfq=True, c_ramp=((0,10),), wo_early=0, wo_edepth=2)

def gen(**kw):
    P = dict(DEFAULT); P.update(kw)
    diag = P["diag"]
    a = Asm()
    sect = ["entry"]
    def stamp(k):
        if diag: a(f"{'s_memtime' if P['cyc'] else 's_memrealtime'} s[{80+2*k}:{81+2*k}]")
        if P["probe"] and P["probe"][0] == f"{sect[0]}{k}":
            a("s_memrealtime s[84:85]")
    def srd(base, size):
        a(f"s_mov_b32 s{base+2}, {size}\ns_mov_b32 s{base+3}, 0x20000")
    def ep_load(): a(f"s_load_dword s35, s[{SW}:{SW+1}], {EP}")
    def tags(need_b=True):
        for q in range(4): a(f"s_add_u32 s{sF+q}, s35, {q+1}")
        if need_b:
            for q in range(4): a(f"s_and_b32 s{sB+q}, s{sF+q}, 3\ns_mul_i32 s{sB+q}, s{sB+q}, 0x8001")
    def allreduce(op, v, t1):
        for r in (1, 2, 4, 8):
            a(f"{op}_dpp v{v}, v{v}, v{v} row_ror:{r} {DPPM}")
        for sw in ("v_permlane16_swap_b32", "v_permlane32_swap_b32"):
            a(f"v_mov_b32 v{t1}, v{v}\n{sw} v{t1}, v{v}\n{op} v{v}, v{v}, v{t1}")
    def rnd_bf16(d, s):
        a(f"v_cvt_pk_bf16_f32 v{d}, v{s}, v{s}\nv_and_b32 v{d}, 0xffff0000, v{d}")
    def unpack2(d, s):
        a(f"v_lshlrev_b32 v{d}, 16, v{s}\nv_and_b32 v{d+1}, 0xffff0000, v{s}")
    def ln_stats(xr, f, t):
        for i in range(4): unpack2(f+2*i, xr+i)
        a(f"v_add_f32 v{t}, v{f}, v{f+1}\nv_add_f32 v{t+1}, v{f+2}, v{f+3}\nv_add_f32 v{t+2}, v{f+4}, v{f+5}\nv_add_f32 v{t+3}, v{f+6}, v{f+7}")
        a(f"v_add_f32 v{t}, v{t}, v{t+1}\nv_add_f32 v{t+2}, v{t+2}, v{t+3}\nv_add_f32 v{t}, v{t}, v{t+2}")
        allreduce("v_add_f32", t, t+2)
        a(f"v_mul_f32 v{t}, {f2u(1/512)}, v{t}")
        a(f"v_sub_f32 v{t+2}, v{f}, v{t}\nv_mul_f32 v{t+1}, v{t+2}, v{t+2}")
        for i in range(1, 8):
            a(f"v_sub_f32 v{t+2+(i&1)}, v{f+i}, v{t}\nv_fmac_f32 v{t+1}, v{t+2+(i&1)}, v{t+2+(i&1)}")
        allreduce("v_add_f32", t+1, t+2)
        a(f"v_mul_f32 v{t+1}, {f2u(1/512)}, v{t+1}")
        rnd_bf16(t, t)
        rnd_bf16(t+1, t+1)
        a(f"v_add_f32 v{t+1}, {f2u(1e-5)}, v{t+1}")
        rnd_bf16(t+1, t+1)
        a(f"v_sqrt_f32 v{t+1}, v{t+1}")
        rnd_bf16(t+1, t+1)
        a(f"v_rcp_f32 v{t+1}, v{t+1}")
    def delta_masks(m, t):
        a(f"""v_and_b32 v{t}, 1, v0
        v_lshlrev_b32 v{t}, 4, v{t}
        v_mov_b32 v{t+1}, 0xffff
        v_lshlrev_b32 v{t}, v{t}, v{t+1}
        v_bfe_u32 v{t+1}, v0, 1, 3""")
        for dw in range(4):
            a(f"v_cmp_eq_u32 vcc, {dw}, v{t+1}\nv_cndmask_b32 v{m+dw}, 0, v{t}, vcc")
    def check(acc, first, n, tagbase, start):
        for i in range(n):
            if start and i == 0: a(f"v_xor_b32 v{acc}, s{tagbase}, v{first}")
            else: a(f"v_bitop3_b32 v{acc}, v{acc}, v{first+i}, s{tagbase+(i&3)} bitop3:0xf6")
    def spin(label, cond_branch, pre=""):
        a(f"""s_add_u32 s28, s28, 1
        s_cmp_gt_u32 s28, {SPIN}
        s_cbranch_scc1 L_exit
        {pre}
        {cond_branch} {label}""")
    def shint(label, offs, kind):
        if not offs: return
        a(f"{label}:")
        if P["hsleep"]: a(f"s_sleep {P['hsleep']}")
        n = len(offs)
        if kind == 'c':
            for x, o in enumerate(offs): a(f"s_load_dwordx2 {sr(HINT+2*x,2)}, s[36:37], {o} glc")
            a(f"{label}_chk:\ns_waitcnt lgkmcnt(0)")
            for x in range(n):
                a(f"s_xor_b64 {sr(HINT+2*x,2)}, {sr(HINT+2*x,2)}, {sr(sB,2)}")
                if x: a(f"s_or_b64 {sr(HINT,2)}, {sr(HINT,2)}, {sr(HINT+2*x,2)}")
            a(f"s_or_b32 s{HINT}, s{HINT}, s{HINT+1}")
            fin = f"s_and_b32 s{HINT}, s{HINT}, 0x10001"
        elif kind == 'd':
            for x, o in enumerate(offs): a(f"s_load_dword s{HINT+x}, s[{SW}:{SW+1}], s{o} glc")
            a("s_waitcnt lgkmcnt(0)")
            for x in range(n):
                a(f"s_xor_b32 s{HINT+x}, s{HINT+x}, s{sF}")
                if x: a(f"s_or_b32 s{HINT}, s{HINT}, s{HINT+x}")
            fin = f"s_and_b32 s{HINT}, s{HINT}, 0xff"
        elif kind == 't':
            for x, o in enumerate(offs): a(f"s_load_dwordx2 {sr(HINT+2*x,2)}, s[{SW}:{SW+1}], s{o} glc")
            a("s_waitcnt lgkmcnt(0)")
            for x in range(n):
                a(f"s_xor_b32 s{HINT+2*x+1}, s{HINT+2*x+1}, s{sF}")
                if x: a(f"s_or_b32 s{HINT+1}, s{HINT+1}, s{HINT+2*x+1}")
            fin = f"s_cmp_lg_u32 s{HINT+1}, 0"
        else:
            tb, mask = (sB, 0x10001) if kind == 'b' else (sF, 0xff)
            for x, o in enumerate(offs): a(f"s_load_dwordx4 {sr(HINT+4*x)}, s[{SW}:{SW+1}], s{o} glc")
            a("s_waitcnt lgkmcnt(0)")
            for x in range(4*n):
                a(f"s_xor_b32 s{HINT+x}, s{HINT+x}, s{tb+(x&3)}")
                if x: a(f"s_or_b32 s{HINT}, s{HINT}, s{HINT+x}")
            fin = f"s_and_b32 s{HINT}, s{HINT}, {mask}"
        spin(label, "s_cbranch_scc1", fin)
    def tdelay(label, ticks):
        a(f"""s_waitcnt lgkmcnt(0)
        s_add_u32 s78, s80, {ticks}
        {label}:
        s_memrealtime s[76:77]
        s_waitcnt lgkmcnt(0)
        s_sub_u32 s77, s76, s78
        s_cmp_lt_i32 s77, 0
        s_cbranch_scc1 {label}""")
    def hint_offs(n, seed, modmask, shift, base, spread):
        for x in range(n):
            a(f"s_add_u32 s{30+x}, s{seed}, {x*spread}\ns_and_b32 s{30+x}, s{30+x}, {modmask}\ns_lshl_b32 s{30+x}, s{30+x}, {shift}\ns_add_u32 s{30+x}, s{30+x}, s{base}")
        return [30+x for x in range(n)]

    stamp(0)
    if P["calib"] or P["probe"] or P["lite"]: a("s_memrealtime s[80:81]")
    if P["probe"]: a("s_mov_b32 s84, 0\ns_mov_b32 s88, 0")
    a(f"s_load_dwordx2 s[{SQ}:{SQ+1}], s[0:1], 16")
    if P["prefetch"]:
        a(f"""s_cmp_ge_u32 s2, {P['pf_wgs']}
        s_cbranch_scc1 L_nopf
        s_getpc_b64 s[10:11]
        L_pc:
        v_lshlrev_b32 v4, 6, v0
        v_min_u32 v4, L_codeend - L_pc - 4, v4
        global_load_dword v255, v4, s[10:11]
        L_nopf:""")
    a(f"""s_load_dwordx2 s[{SX}:{SX+1}], s[0:1], 0
    s_load_dwordx2 s[{SK}:{SK+1}], s[0:1], 24
    s_load_dwordx2 s[{SC}:{SC+1}], s[0:1], 8
    s_load_dwordx2 s[{SW}:{SW+1}], s[0:1], 104
    v_lshrrev_b32 v1, 6, v0
    s_cmp_ge_u32 s2, 256
    s_cbranch_scc1 L_end
    v_readfirstlane_b32 s3, v1
    v_and_b32 v0, 63, v0
    s_and_b32 s4, s2, 7""")
    if P["role_bit"] == 0:
        a("s_bfe_u32 s6, s2, 0x10003\ns_lshr_b32 s5, s2, 4")
    elif P["role_bit"] == 2:
        a("s_bfe_u32 s6, s2, 0x10005\ns_bfe_u32 s5, s2, 0x20003\ns_lshr_b32 s7, s2, 6\ns_lshl2_add_u32 s5, s7, s5")
    else:
        a("s_lshr_b32 s6, s2, 7\ns_bfe_u32 s5, s2, 0x40003")
    a("s_lshr_b32 s7, s5, 2")
    if P["hmap"] == 0: a("s_lshl2_add_u32 s7, s4, s7")
    elif P["hmap"] == 1: a("s_lshl3_add_u32 s7, s7, s4")
    elif isinstance(P["hmap"], (list, tuple)):
        qp = list(P["hmap"]); xp = [p for p in range(5) if p not in qp]
        a("s_mov_b32 s9, s7\ns_mov_b32 s7, 0")
        for i, p in enumerate(xp): a(f"s_bfe_u32 s8, s4, {0x10000+i}\ns_lshl_b32 s8, s8, {p}\ns_or_b32 s7, s7, s8")
        for i, p in enumerate(qp): a(f"s_bfe_u32 s8, s9, {0x10000+i}\ns_lshl_b32 s8, s8, {p}\ns_or_b32 s7, s7, s8")
    elif P["hmap"] == 2: a("s_and_b32 s8, s7, 1\ns_lshr_b32 s7, s7, 1\ns_lshl3_add_u32 s7, s7, s4\ns_lshl1_add_u32 s7, s7, s8")
    a(f"""s_and_b32 s8, s5, 3
    s_lshl_b32 s17, s7, 8
    s_mov_b32 s{SQ+2}, {4<<20}
    s_mov_b32 s{SQ+3}, 0x20000
    v_and_b32 v2, 15, v0
    v_lshrrev_b32 v3, 4, v0
    s_cmp_eq_u32 s6, 0
    s_cbranch_scc1 L_WGT
    s_cmp_ge_u32 s3, 4
    s_cbranch_scc1 L_ATT_help""")
    if P["pq"]:
        a(f"""s_lshl_b32 s16, s3, 20
        s_lshl_b32 s18, s8, 15
        s_add_u32 s16, s16, s18
        s_add_u32 s16, s16, s17
        v_lshrrev_b32 v4, 2, v0
        v_lshlrev_b32 v4, 17, v4
        v_bfe_u32 v5, v0, 1, 1
        v_or_b32 v5, 2, v5
        v_lshl_add_u32 v4, v5, 13, v4
        v_and_b32 v5, 1, v0
        v_lshl_add_u32 v4, v5, 7, v4
        s_mov_b32 exec_hi, 0
        s_waitcnt lgkmcnt(0)
        buffer_load_dword v121, v4, {sr(SQ)}, s16 offen {P['pf_pol']}
        s_mov_b64 exec, -1""")
    a("s_branch L_ATT")

    def common():
        a("s_mov_b32 s28, 0")
        srd(SW, WS_REC)
        a("v_lshlrev_b32 v41, 5, v2\nv_lshl_add_u32 v41, v3, 4, v41")

    sect[0] = "A"
    PART = 0
    a("L_WGT:")
    srd(SX, 1024)
    a(f"""s_lshl_b32 s10, s3, 19
    s_lshl_b32 s11, s8, 15
    s_add_u32 s10, s10, s11
    s_add_u32 s10, s10, s17
    s_lshl_b32 s11, s3, 7
    v_lshlrev_b32 v4, 4, v0
    v_lshl_add_u32 v5, s8, 2, v2
    v_and_b32 v5, 15, v5
    v_lshl_add_u32 v5, v3, 4, v5
    v_lshlrev_b32 v5, 1, v5
    v_lshlrev_b32 v6, 17, v3
    v_lshl_add_u32 v6, v2, 4, v6
    s_movk_i32 s12, 0x2000""")
    xl = [f"buffer_load_dwordx4 v[8:11], v4, {sr(SX)}, 0 offen", f"buffer_load_ushort v12, v5, {sr(SX)}, s11 offen"]
    if P["wpq"]:
        a(f"""v_bfe_u32 v7, v0, 1, 2
        v_lshlrev_b32 v7, 13, v7
        v_lshl_add_u32 v7, v3, 17, v7
        v_and_b32 v13, 1, v0
        v_lshl_add_u32 v7, v13, 7, v7""")
    a("s_waitcnt lgkmcnt(0)")
    for l in xl: a(l)
    if P["x_bar"]: a("s_barrier")
    if P["wpq"]:
        a(f"""s_mov_b32 exec_lo, {0x000f000f if P["pq"] else 0x00ff00ff}
        s_mov_b32 exec_hi, {0x000f000f if P["pq"] else 0x00ff00ff}
        buffer_load_dword v254, v7, {sr(SQ)}, s10 offen
        s_mov_b64 exec, -1""")
        if P.get("wpq_bar"): a("s_barrier")
    for t in range(16):
        a(f"buffer_load_dwordx4 {vr(64+4*t)}, v6, {sr(SQ)}, s10 offen {P['first_pol'] if t < (2 if P['pq'] else 4) else P['wq_pol']}")
        if t < 15:
            if t & 3 == 3: a(f"s_cmp_eq_u32 s8, {3-(t>>2)}\ns_cselect_b32 s13, {(-15*8192) & 0xffffffff}, s12\ns_add_u32 s10, s10, s13")
            else: a("s_add_u32 s10, s10, s12")
        if t in P["wq_bars"]: a("s_barrier")
        if t == 3:
            ep_load()
            stamp(1)
            common()
            delta_masks(32, 36)
        if t == P["ln_at"]:
            a(f"s_waitcnt vmcnt({t+1 + (1 if P['wpq'] else 0)})")
            if P["fine"]: stamp(5)
            ln_stats(8, 16, 24)
            a("v_lshlrev_b32 v12, 16, v12\nv_sub_f32 v12, v12, v24")
            rnd_bf16(12, 12)
            a("v_mul_f32 v12, v12, v25\nv_cvt_pk_bf16_f32 v12, v12, v12")
            a("s_cmp_lg_u32 s3, 3\ns_cbranch_scc1 L_noxn")
            for i in range(8): a(f"v_sub_f32 v{16+i}, v{16+i}, v24")
            for i in range(4): a(f"v_cvt_pk_bf16_f32 v{56+i}, v{16+2*i}, v{17+2*i}")
            for i in range(4): unpack2(16+2*i, 56+i)
            for i in range(8): a(f"v_mul_f32 v{16+i}, v{16+i}, v25")
            for i in range(4): a(f"v_cvt_pk_bf16_f32 v{56+i}, v{16+2*i}, v{17+2*i}")
            a("L_noxn:")
            if P["dpp_early"]:
                for t2 in range(16):
                    for dw in range(4):
                        a(f"v_and_b32_dpp v{128+4*t2+dw}, v12, v{32+dw} row_newbcast:{t2} {DPPM}")
    if P["fine"]: stamp(6)
    srd(SK, 4 << 20)
    a(f"""s_lshl3_add_u32 s13, s8, s3
    s_lshl_b32 s13, s13, 17
    s_add_u32 s13, s13, s17
    s_lshl_b32 s12, s3, 12
    s_add_u32 m0, s12, {X}
    v_lshlrev_b32 v4, 2, v3
    v_xor_b32 v4, v4, v2
    v_lshlrev_b32 v4, 4, v4
    v_lshl_add_u32 v48, v3, 13, v4""")
    for rg in range(4):
        if rg: a(f"v_xor_b32 v49, {16*rg}, v48\ns_addk_i32 m0, 0x400\ns_add_u32 s13, s13, 0x8000")
        a(f"buffer_load_dwordx4 v{49 if rg else 48}, {sr(SK)}, s13 offen {P['uk_pol']} lds")
    a("s_lshl_b32 s12, s3, 9\nv_add_u32 v42, s12, v41")
    for t in range(16):
        for dw in range(4):
            if not P["dpp_early"]: a(f"v_and_b32_dpp v{128+4*t+dw}, v12, v{32+dw} row_newbcast:{t} {DPPM}")
        if t >= 1:
            a(f"s_waitcnt vmcnt({15-(t-1)+4})")
            a(f"v_mfma_f32_16x16x32_bf16 v[44:47], {vr(128+4*(t-1))}, {vr(64+4*(t-1))}, {'0' if t == 1 else 'v[44:47]'}")
    a(f"s_waitcnt vmcnt(4)\nv_mfma_f32_16x16x32_bf16 v[44:47], {vr(128+60)}, {vr(64+60)}, v[44:47]")
    a("s_waitcnt lgkmcnt(0)")
    tags(True)
    a(f"""s_mov_b32 exec_hi, 0
    ds_write_b128 v42, v[44:47] offset:{PART}
    s_mov_b64 exec, -1""")
    stamp(2)
    a("""s_sub_u32 s9, s3, 5
    s_cmp_lt_u32 s9, 2
    s_cbranch_scc1 L_A2
    s_waitcnt vmcnt(0) lgkmcnt(0)
    s_barrier
    s_cmp_lt_u32 s3, 4
    s_cbranch_scc1 L_S1
    s_branch L_WO""")
    a("L_A2:")
    a(f"""s_lshl_b32 s12, s9, 14
    s_add_u32 s12, s12, {X}
    v_and_b32 v4, 3, v0
    v_bfe_u32 v5, v0, 2, 2
    v_lshl_or_b32 v6, v4, 2, v5
    v_xor_b32 v6, v6, v3
    v_lshlrev_b32 v6, 4, v6
    v_lshl_add_u32 v6, v5, 10, v6
    v_lshl_add_u32 v6, v4, 8, v6
    v_add_u32 v10, s12, v6
    v_xor_b32 v11, 64, v10
    v_xor_b32 v12, 0x80, v10
    v_xor_b32 v13, 0xc0, v10
    s_lshl_b32 s13, s9, 8
    s_add_u32 s13, s13, 8192
    v_lshl_add_u32 v5, v3, 4, s13
    v_and_b32 v14, 31, v0
    v_lshl_add_u32 v14, v14, 3, s13
    v_lshlrev_b32 v15, 4, v0
    s_lshl1_add_u32 s11, s8, s9
    s_lshl_b32 s11, s11, 7
    s_lshl_b32 s10, s7, 10
    s_add_u32 s10, s10, s11
    s_add_u32 s10, s10, {QL}
    v_lshlrev_b32 v4, 1, v0
    v_cmp_eq_u32 s[14:15], 1, v3
    v_cmp_eq_u32 s[16:17], 2, v3
    v_cmp_eq_u32 s[18:19], 3, v3
    v_bfe_u32 v7, v0, 1, 2
    v_add_u32 v7, s{sF}, v7
    v_and_b32 v8, 1, v0
    v_lshrrev_b32 v7, v8, v7
    v_and_b32 v7, 1, v7
    v_xor_b32 v8, 1, v7
    v_lshlrev_b32 v8, 16, v8
    s_waitcnt vmcnt(0) lgkmcnt(0)""")
    stamp(3)
    a("s_barrier")
    for u in range(4): a(f"ds_read_b128 {vr(128+4*u)}, v15 offset:{PART + 1024*u}")
    fr = [(T, t) for t in range(4) for T in range(4)]
    for (T, t) in fr[:11]: a(f"ds_read_b128 {vr(64+16*T+4*t)}, v{10+t} offset:{4096*T}")
    a("s_waitcnt lgkmcnt(11)")
    a("""v_pk_add_f32 v[128:129], v[128:129], v[132:133]
    v_pk_add_f32 v[130:131], v[130:131], v[134:135]
    v_pk_add_f32 v[136:137], v[136:137], v[140:141]
    v_pk_add_f32 v[138:139], v[138:139], v[142:143]
    v_pk_add_f32 v[128:129], v[128:129], v[136:137]
    v_pk_add_f32 v[130:131], v[130:131], v[138:139]""")
    for q in range(4): a(f"v_mov_b32 v{132+q}, v{128+q}")
    for q in range(4): a(f"v_permlane32_swap_b32 v{132+q}, v{128+q}")
    a("""v_pk_add_f32 v[128:129], v[128:129], v[132:133]
    v_pk_add_f32 v[130:131], v[130:131], v[134:135]
    v_cvt_pk_bf16_f32 v128, v128, v129
    v_cvt_pk_bf16_f32 v129, v130, v131
    ds_write_b64 v14, v[128:129]""")
    for t in range(4): a(f"ds_read_b128 {vr(16+4*t)}, v5 offset:{64*t}")
    for (T, t) in fr[11:]: a(f"ds_read_b128 {vr(64+16*T+4*t)}, v{10+t} offset:{4096*T}")
    for t in range(4):
        a(f"s_waitcnt lgkmcnt({[8, 7, 4, 0][t]})")
        for T in range(4):
            a(f"v_mfma_f32_16x16x32_bf16 {vr(32+4*T)}, {vr(16+4*t)}, {vr(64+16*T+4*t)}, {'0' if t == 0 else vr(32+4*T)}")
    qs = math.log2(math.e) / math.sqrt(128.0)
    a(f"""v_cndmask_b32 v9, v32, v36, s[14:15]
    v_cndmask_b32 v9, v9, v40, s[16:17]
    v_cndmask_b32 v9, v9, v44, s[18:19]
    v_mul_f32 v9, {f2u(qs)}, v9
    v_add_u32 v9, v9, v8
    v_lshrrev_b32 v9, 17, v9
    v_lshl_or_b32 v9, v9, 1, v7
    s_nop 0""")
    if P["ql_delay"]:
        a("s_barrier")
        for _ in range(P["ql_delay"]): a("s_sleep 8")
    a(f"buffer_store_short v9, v4, {sr(SW)}, s10 offen sc1")
    stamp(4)
    if P["ql_delay"]: a(f"s_load_dwordx2 s[{SG}:{SG+1}], s[0:1], 40\ns_branch L_WO1")
    a("s_branch L_WO")

    sect[0] = "C"
    a("L_ATT:")
    a("s_lshl4_add_u32 s9, s4, s5")
    srd(SC, 16 << 20); srd(SK, 4 << 20)
    common()
    a(f"""s_lshl2_add_u32 s10, s9, s3
    s_lshl_b32 s10, s10, 15
    s_lshl_b32 s11, s3, 13
    v_lshlrev_b32 v4, 2, v3
    v_xor_b32 v4, v4, v2
    v_lshlrev_b32 v4, 4, v4
    v_lshl_add_u32 v32, v3, 10, v4
    v_xor_b32 v33, 32, v32
    s_mov_b32 m0, s11
    s_movk_i32 s15, 0x1000
    s_lshl2_add_u32 s18, s8, s3
    s_lshl_b32 s18, s18, 18
    s_add_u32 s18, s18, s17
    v_lshrrev_b32 v4, 1, v0
    v_and_b32 v5, 1, v0
    v_lshlrev_b32 v5, 7, v5
    v_lshl_add_u32 v126, v4, 13, v5""")
    if P["pk_mix"]:
        assert P["hmap"] == 0 and P["att_pf"] != 3
        a("""s_lshl2_add_u32 s18, s5, s3
        s_lshl_b32 s18, s18, 16
        s_lshl_b32 s16, s4, 10
        s_add_u32 s18, s18, s16
        v_lshrrev_b32 v4, 3, v0
        v_and_b32 v5, 7, v0
        v_lshlrev_b32 v5, 7, v5
        v_lshl_add_u32 v126, v4, 13, v5""")
    a("s_waitcnt lgkmcnt(0)")
    ramp = P["c_ramp"]
    def tdepth(l): return [d for (k, d) in ramp if k <= l][-1]
    seq = []
    def go_store():
        a(f"s_mov_b64 exec, 1\nbuffer_store_dwordx2 v[122:123], v124, {sr(SW)}, s14 offen sc1\ns_mov_b64 exec, -1")
        seq.append("go")
    def c_pos(n):
        G = P["rgmajor"]
        if not G: return n >> 3, n & 7
        return (n // (8*G))*G + n % G, (n % (8*G)) // G
    def c_load(n):
        cb, rg = c_pos(n)
        a(f"buffer_load_dwordx4 v{32+(rg&1)}, {sr(SC)}, s10 offen {'nt' if n < 32 - P['c_keep'] else ''} lds")
        seq.append(n)
        if n < 31:
            cb2, rg2 = c_pos(n+1)
            dm = (cb2-cb)*32768 + (rg2-rg)*1024; dg = (cb2-cb)*256 + (rg2-rg)*4096
            a(f"s_addk_i32 m0, {dm}" if -32768 <= dm < 32768 else f"s_add_u32 m0, m0, {dm & 0xffffffff}")
            a("s_add_u32 s10, s10, s15" if dg == 4096 else f"s_addk_i32 s10, {dg}")
        if n == P["q_at"]:
            a("ds_write_b32 v125, v2")
        if n == P["go_at"]: go_store()
    def c_wait(n):
        a(f"s_waitcnt vmcnt({len(seq) - 1 - seq.index(n)})")
    issued = 0
    if P["pq"]: seq.append("pq")
    if not P["pk_late"]:
        a(f"buffer_load_dword v127, v126, {sr(SK)}, s18 offen {P['pf_pol']}"); seq.append("pk")
    d00 = P["pf_ramp"][0] if P["cpfq"] else tdepth(0)
    for n in range(d00): c_load(n); issued += 1
    a(f"""s_add_u32 s16, s11, {X}
    v_mov_b32 v125, s16
    v_mov_b32 v124, 0
    ds_write_b32 v125, v124""")
    ep_load()
    if P["w1_att"]:
        assert P["att_pf"] != 3
        a(f"""s_load_dwordx2 s[{SX}:{SX+1}], s[0:1], 56
        s_lshl2_add_u32 s19, s8, s3
        s_mul_i32 s19, s19, {32*3584}
        s_lshr_b32 s16, s5, 2
        s_lshl2_add_u32 s16, s4, s16
        s_lshl_b32 s16, s16, 7
        s_add_u32 s19, s19, s16
        s_cmp_eq_u32 s4, 7
        s_cselect_b32 s19, 0x7fff0000, s19
        v_mul_u32_u24 v120, 3584, v0""")
        srd(SX, 512*1792*2)
    if P["att_pf"] == 3:
        a(f"""s_load_dwordx2 s[{SG}:{SG+1}], s[0:1], 32
        s_load_dwordx2 s[{SX}:{SX+1}], s[0:1], 72
        s_lshl2_add_u32 s19, s9, s3
        s_lshl_b32 s19, s19, 12
        v_lshlrev_b32 v120, 7, v0""")
        srd(SG, 4 << 20); srd(SX, 1792*512*2)
    stamp(1)
    a(f"""v_and_b32 v4, 3, v0
    v_lshrrev_b32 v1, 5, v0
    v_bfe_u32 v5, v0, 2, 2
    v_lshl_or_b32 v5, v4, 2, v5
    v_xor_b32 v5, v5, v1
    v_lshlrev_b32 v5, 4, v5
    v_and_b32 v7, 31, v0
    v_lshl_add_u32 v7, v7, 10, v5
    v_add_u32 v16, {X}, v7
    v_bfe_u32 v5, v0, 2, 1
    v_lshl_or_b32 v5, v4, 1, v5
    v_lshl_or_b32 v5, v5, 1, v1
    v_lshlrev_b32 v5, 4, v5
    v_bfe_u32 v6, v0, 2, 3
    v_lshl_add_u32 v5, v6, 10, v5
    v_lshl_add_u32 v5, v4, 8, v5
    v_add_u32 v8, s11, v5""")
    for x in range(1, 8):
        a(f"v_xor_b32 v{8+x}, {32*x}, v8\nv_xor_b32 v{16+x}, {32*x}, v16")
    a(f"""v_bfe_u32 v4, v0, 2, 2
    v_bfe_u32 v5, v0, 4, 1
    v_bfe_u32 v6, v0, 1, 1
    v_lshl_or_b32 v6, v5, 1, v6
    v_lshl_or_b32 v6, v4, 2, v6
    v_lshlrev_b32 v6, 4, v6
    v_lshl_add_u32 v6, v4, 8, v6
    v_lshl_add_u32 v6, v5, 10, v6
    v_lshl_add_u32 v6, v1, 12, v6
    v_and_b32 v4, 1, v0
    v_lshl_add_u32 v6, v4, 3, v6
    s_lshl_b32 s12, s3, 15
    v_add_u32 v24, s12, v6""")
    for n in range(1, 8):
        a(f"v_xor_b32 v{24+n}, {32*n}, v24")
    a(f"""v_and_b32 v4, 31, v0
    v_lshlrev_b32 v6, 5, v4
    v_add_u32 v96, {X+8192}, v6
    v_lshl_add_u32 v6, v1, 4, v6
    s_lshl2_add_u32 s13, s3, {X+8192}
    v_add_u32 v97, s13, v6
    v_lshlrev_b32 v6, 4, v2
    v_lshl_add_u32 v7, v5, 9, v6
    v_lshl_add_u32 v7, v1, 10, v7
    v_add_u32 v98, {X}, v7
    s_lshl_b32 s13, s3, 11
    s_add_u32 s13, s13, {X}
    v_lshl_add_u32 v99, v0, 4, s13
    v_lshl_add_u32 v3, v3, 19, v6
    s_lshl_b32 s13, s9, 8
    s_add_u32 s12, s12, s13
    s_add_u32 s12, s12, {BP}
    s_lshl_b32 s14, s9, 7
    s_add_u32 s14, s14, {GO}
    s_cmp_eq_u32 s3, 0
    s_cselect_b32 s14, s14, 0x7ffffff0
    s_waitcnt lgkmcnt(0)""")
    if P["cpfq"] and P["pk_late"] == "ep":
        a(f"buffer_load_dword v127, v126, {sr(SK)}, s18 offen {P['pf_pol']}"); seq.append("pk")
    tags(True)
    a(f"""s_lshl2_add_u32 s13, s3, {X+11264}
    v_mov_b32 v1, s13
    v_mov_b32 v2, 0x10001
    v_mov_b32 v122, s{sF}
    v_mov_b32 v123, s{sF}""")
    for hh in range(2):
        for r in range(4):
            a(f"s_add_u32 s{64+4*hh+r}, s12, {(16*hh + r)*131072}")
    lq = []
    def lop(text, key): a(text); lq.append(key)
    def lwait(items):
        last = max([i for i, x in enumerate(lq) if x in items], default=-1)
        if last >= 0: a(f"s_waitcnt lgkmcnt({min(15, len(lq) - 1 - last)})")
        del lq[:last+1]
    def c_read(t):
        lop(f"ds_read_b128 {vr(128+4*t)}, v{8+(t&7)} offset:{32768*((t>>3)&1)}", ("C", t))
        if t >> 3 == 1: a(f"v_add_u32 v{8+(t&7)}, 0x10000, v{8+(t&7)}")
    def blk_done(b): return max(n for n in range(32) if c_pos(n)[0] == b) + 1 if b < 4 else 99
    landed = 0; pre = 0
    if P["cpfq"]:
        for key, d in (("pq", P["pf_ramp"][1]), ("pk", P["pf_ramp"][2])):
            if key in seq: c_wait(key)
            if key == "pq" and P["pk_late"] is True:
                a(f"buffer_load_dword v127, v126, {sr(SK)}, s18 offen {P['pf_pol']}"); seq.append("pk")
            if key == P["w1_att"]:
                a(f"s_mov_b32 exec_hi, 0\nbuffer_load_dword v121, v120, {sr(SX)}, s19 offen\ns_mov_b64 exec, -1"); seq.append("p1")
            if P["fine"]: stamp(4 if key == "pq" else 5)
            while issued < d: c_load(issued); issued += 1
        ramp = ((0, P["pf_ramp"][2]),)
    while issued < 32:
        c_wait(landed); landed += 1
        while issued < 32 and issued - landed < tdepth(landed):
            c_load(issued); issued += 1
        if landed == P["bi_at"]: a("s_barrier")
        if landed >= blk_done(pre):
            if P["fine"]: stamp(6 + pre)
            for t in range(8*pre, 8*pre+8): c_read(t)
            pre += 1
    stamp(2)
    if P["att_pf"] == 3:
        a("s_barrier")
        a(f"buffer_load_dword v0, v126, {sr(SG)}, s18 offen"); seq.append("pv")
        a(f"s_mov_b32 exec_hi, 0\nbuffer_load_dword v0, v120, {sr(SX)}, s19 offen\ns_mov_b64 exec, -1"); seq.append("p2")
    while pre < (4 if P["cw_at"] < 0 else 3):
        c_wait(blk_done(pre) - 1)
        if P["fine"]: stamp(6 + pre)
        for t in range(8*pre, 8*pre+8): c_read(t)
        pre += 1
    if P["fine"]:
        c_wait(31); stamp(9)
        _stamp = stamp
        def stamp(k):
            if (sect[0] != "C" or k == 3) and not (sect[0] == "O" and k in (5, 6)): _stamp(k)
    a("s_barrier")
    if P["go_at"] == "B0": go_store()
    stamp(3)
    def qslot(t):
        k = t % 12
        return 32 + 4*k if k < 8 else 100 + 4*(k - 8)
    def q_read(t): lop(f"ds_read_b128 {vr(qslot(t))}, v{16+(t&7)} offset:{256*(t>>3)}", ("Q", t))
    def pv_read(n, w):
        base = 128 + 16*n + 4*w
        for sec in range(2):
            lop(f"ds_read_b64_tr_b16 {vr(base+2*sec,2)}, v{24+n} offset:{8192*w + 2048*sec}", ("F", n, w))
    pv0 = [(n, w) for w in range(4) for n in range(4)]
    pv1 = [(n, w) for n in range(4, 8) for w in range(4)]
    rd = 0
    TB = 23
    for t in range(32):
        tgt = t + 5 if t < 16 else min(32, t + 5 + 2*(t - 15))
        tgt = min(tgt, t + 11, 32)
        while rd < tgt: q_read(rd); rd += 1
        if t == P["cw_at"]:
            c_wait(31)
            if P["go_at"] == "CL": go_store()
        if 0 <= P["cw_at"] <= t < P["cw_at"] + 4: c_read(24 + 2*(t - P["cw_at"])); c_read(25 + 2*(t - P["cw_at"]))
        if t == TB:
            a("s_waitcnt lgkmcnt(0)"); del lq[:]
            stamp(4)
            a("s_barrier")
        lwait([("Q", t), ("C", t)])
        a(f"v_mfma_f32_32x32x16_bf16 {vr(64,16)}, {vr(128+4*t)}, {vr(qslot(t))}, {'0' if t == 0 else vr(64,16)}")
        if t >= TB:
            for _ in range(2):
                if pv0: pv_read(*pv0.pop(0))
    assert not pv0
    for _ in range(P["sm_pre"]): pv_read(*pv1.pop(0))
    a(f"""v_max3_f32 v4, v64, v65, v66
    v_max3_f32 v5, v67, v68, v69
    v_max3_f32 v6, v70, v71, v72
    v_max3_f32 v7, v73, v74, v75
    v_max3_f32 v4, v4, v76, v77
    v_max3_f32 v5, v5, v78, v79
    v_max3_f32 v4, v4, v5, v6
    v_max_f32 v20, v4, v7
    ds_write_b32 v97, v20""")
    for r in range(0, 16, 2):
        a(f"v_pk_add_f32 {vr(64+r,2)}, {vr(64+r,2)}, v[20:21] op_sel_hi:[1,0] neg_lo:[0,1] neg_hi:[0,1]")
    for r in range(16):
        if r == P["bb_at"]:
            a("s_waitcnt lgkmcnt(0)\ns_barrier\nds_read_b128 v[8:11], v96\nds_read_b128 v[12:15], v96 offset:16")
        a(f"v_exp_f32 v{64+r}, v{64+r}")
    a("""s_waitcnt lgkmcnt(0)
    v_max3_f32 v4, v8, v9, v10
    v_max3_f32 v5, v11, v12, v13
    v_max3_f32 v4, v4, v14, v15
    v_max_f32 v4, v4, v5
    v_sub_f32 v20, v20, v4
    v_exp_f32 v20, v20""")
    for hf in range(2):
        for r in range(8*hf, 8*hf+8, 2):
            a(f"v_pk_mul_f32 {vr(64+r,2)}, {vr(64+r,2)}, v[20:21] op_sel_hi:[1,0]")
        for r in range(8*hf, 8*hf+8, 2):
            a(f"v_cvt_pk_bf16_f32 v{80+r//2}, v{64+r}, v{65+r}")
        a(f"ds_write_b128 v99, {vr(80+4*hf)} offset:{1024*hf}")
    a("""v_pk_add_f32 v[64:65], v[64:65], v[66:67]
    v_pk_add_f32 v[68:69], v[68:69], v[70:71]
    v_pk_add_f32 v[72:73], v[72:73], v[74:75]
    v_pk_add_f32 v[76:77], v[76:77], v[78:79]
    v_pk_add_f32 v[64:65], v[64:65], v[68:69]
    v_pk_add_f32 v[72:73], v[72:73], v[76:77]
    v_pk_add_f32 v[64:65], v[64:65], v[72:73]
    v_add_f32 v64, v64, v65
    ds_write_b32 v97, v64 offset:1024
    s_waitcnt lgkmcnt(0)""")
    del lq[:]
    stamp(5)
    a("s_barrier")
    def p_read(hh, w): lop(f"ds_read_b128 {vr(32+16*hh+4*w)}, v98 offset:{2048*w + 256*hh}", ("P", hh, w))
    for w in range(3): p_read(0, w)
    def outblk(hh, r): return (8 if hh == 0 else 64) + 4*r
    def pack(hh, q):
        L = []
        for r in range(4):
            o = outblk(hh, r) + q
            L += [f"v_cvt_pk_bf16_f32 v{o}, v{64+32*hh+8*q+r}, v{64+32*hh+8*q+4+r}", f"v_bfi_b32 v{o}, v2, s{sB+q}, v{o}"]
        return L
    def ostore(hh, r): return f"buffer_store_dwordx4 {vr(outblk(hh, r))}, v3, {sr(SW)}, s{64+4*hh+r} offen sc1"
    order = []
    for hh in range(2):
        if hh == 0:
            order += [(0, n, w) for w in range(4) for n in range(4)] + [(0, n, w) for n in range(4, 8) for w in range(4)]
        else:
            order += [(1, n, w) for n in range(8) for w in range(4)]
    pos_last = {}
    for i, (hh, n, w) in enumerate(order): pos_last[(hh, n)] = i
    F = []
    F.append((0, 99, "p", (0, 3)))
    for (n, w) in pv1: F.append((0, 99, "r", (n, w)))
    for w in range(4): F.append((0, 99, "p", (1, w)))
    GAP = 3
    for q in range(3): F += [(pos_last[(0, 2*q+1)] + GAP, 99, "i", l) for l in pack(0, q)]
    for r in range(4):
        F += [(pos_last[(0, 7)] + GAP + P["st_gap"]*r, 99, "i", l) for l in pack(0, 3)[2*r:2*r+2]]
        F.append((0, 99, "s", ostore(0, r)))
    for q in range(3): F += [(pos_last[(1, 2*q+1)] + GAP, 99, "i", l) for l in pack(1, q)]
    def emit(f):
        if f[2] == "i":
            if any(x in f[3] for x in P["abl"]): return 1
            a(f[3]); return 1
        if f[2] == "s": a(f[3]); return 0
        if f[2] == "p": p_read(*f[3]); return 1
        if f[2] == "w": lwait(f[3]); return 0
        pv_read(*f[3]); return 2
    for i, (hh, n, w) in enumerate(order):
        if i == 20 and not any(f[2] in "pr" for f in F): a("s_waitcnt lgkmcnt(0)"); del lq[:]
        lwait([("F", n, w), ("P", hh, w)])
        acc = 64 + 32*hh + 4*n
        a(f"v_mfma_f32_16x16x32_bf16 {vr(acc)}, {vr(32+16*hh+4*w)}, {vr(128+16*n+4*w)}, {'0' if w == 0 else vr(acc)}")
        used = 0
        if P["cyc"] and i in (0, 31): stamp(1 if i == 0 else 2)
        if P["st_last"] and i == P["st_at"]: a("ds_write_b32 v1, v2"); used = 1
        while F and F[0][0] <= i and (used < P["pv_fill"] or any(f[1] <= i for f in F)):
            used += emit(F.pop(0))
    stamp(6)
    while F: emit(F.pop(0))
    pk = pack(1, 3)
    for r in range(4):
        a(pk[2*r]); a(pk[2*r+1]); a(ostore(1, r))
    if P["st_last"] and P["st_at"] >= 64: a("ds_write_b32 v1, v2")
    stamp(7)
    if diag:
        a("s_waitcnt vmcnt(0)"); stamp(8)
    a("s_branch L_exit")

    sect[0] = "H"
    a("L_ATT_help:")
    common()
    a("s_waitcnt lgkmcnt(0)")
    if P["ql_pre"]:
        a(f"""s_cmp_lg_u32 s3, 4
        s_cbranch_scc1 L_nopre
        s_lshl2_add_u32 s10, s7, s8
        s_lshl_b32 s10, s10, 8
        s_add_u32 s10, s10, {QL}
        v_lshlrev_b32 v4, 2, v0
        v_mov_b32 v5, 0""")
        if P["ql_pre"] == "w": a(f"buffer_store_dword v5, v4, {sr(SW)}, s10 offen sc1")
        else: a(f"buffer_load_dword v101, v4, {sr(SW)}, s10 offen {P['ql_pre'][1:]}")
        a("L_nopre:")
    ep_load()
    a(f"""s_load_dwordx2 s[{SG}:{SG+1}], s[0:1], 32
    s_lshl2_add_u32 s18, s8, s3
    s_sub_u32 s18, s18, 4
    s_lshl_b32 s18, s18, 18
    s_add_u32 s18, s18, s17
    v_lshrrev_b32 v4, 1, v0
    v_and_b32 v5, 1, v0
    v_lshlrev_b32 v5, 7, v5
    v_lshl_add_u32 v20, v4, 13, v5""")
    srd(SG, 4 << 20)
    a("s_lshl4_add_u32 s9, s4, s5\ns_waitcnt lgkmcnt(0)")
    tags(True)
    a("L_ATT_help2:")
    a(f"""s_sub_u32 s10, s3, 4
    s_lshl_b32 s11, s10, 13
    s_add_u32 s12, s11, {QL}
    s_add_u32 s13, s11, {X}
    s_and_b32 s14, s10, 1
    s_lshl_b32 s14, s14, 5
    v_lshlrev_b32 v4, 4, v0
    v_add_u32 v5, s13, v4
    v_xor_b32 v4, s14, v4
    v_mov_b32 v6, 0x10001
    s_movk_i32 s16, 0xff""")
    for r in range(8):
        f = ((r & 3) << 2) | (r >> 2)
        a(f"v_xor_b32 v{8+r}, {16*f}, v4")
    a("s_barrier")
    nh = P["qhint"]
    ho = hint_offs(nh, 9, 63, 7, 12, 64//max(nh,1))
    a(f"""v_mov_b32 v16, s13
    L_qtrig:
    ds_read_b32 v17, v16
    s_waitcnt lgkmcnt(0)
    v_cmp_eq_u32 vcc, 0, v17
    s_sleep 1
    s_add_u32 s28, s28, 0x10000
    s_cbranch_scc1 L_exit
    s_cbranch_vccnz L_qtrig
    s_and_b32 s28, s28, 0xffff""")
    stamp(4)
    shint("L_qhint", ho, 'b')
    stamp(5)
    if P["q_prio"]: a("s_setprio 3")
    if P["q_fast"]:
        for r in range(8):
            a(f"s_add_u32 m0, s13, {1024*r}\ns_add_u32 s15, s12, {1024*r}\nbuffer_load_dwordx4 v{8+r}, {sr(SW)}, s15 offen sc1 lds")
        if P["att_pf"] == 3: a("s_barrier")
        for r in range(8):
            a(f"s_waitcnt vmcnt({7-r})\nds_read_b128 {vr(64+4*r)}, v5 offset:{1024*r}")
            if r: a("s_waitcnt lgkmcnt(1)"); check(7, 64+4*(r-1), 4, sB, r == 1)
        a("s_waitcnt lgkmcnt(0)")
        check(7, 64+28, 4, sB, False)
        a("v_and_b32 v7, v6, v7\nv_cmp_ne_u32 vcc, 0, v7\ns_cbranch_vccz L_qok\ns_mov_b32 s16, 0")
    a("L_qfetch:")
    for r in range(8):
        a(f"""s_bitcmp1_b32 s16, {r}
        s_cbranch_scc0 L_qs{r}
        s_add_u32 m0, s13, {1024*r}
        s_add_u32 s15, s12, {1024*r}
        buffer_load_dwordx4 v{8+r}, {sr(SW)}, s15 offen sc1 lds
        L_qs{r}:""")
    a("s_waitcnt vmcnt(0)")
    for r in range(8):
        a(f"ds_read_b128 {vr(64+4*r)}, v5 offset:{1024*r}")
    a("s_mov_b32 s16, 0")
    for r in range(8):
        a(f"s_waitcnt lgkmcnt({7-r})")
        check(7, 64+4*r, 4, sB, True)
        a(f"v_and_b32 v7, v6, v7\nv_cmp_ne_u32 vcc, 0, v7\ns_cmp_lg_u64 vcc, 0\ns_cselect_b32 s17, {1<<r}, 0\ns_or_b32 s16, s16, s17")
    spin("L_qfetch", "s_cbranch_scc1", "s_cmp_lg_u32 s16, 0")
    a("L_qok:")
    stamp(6)
    if P["att_pf"] == 1: a(f"buffer_load_dword v100, v20, {sr(SG)}, s18 offen")
    a("s_setprio 0\ns_barrier")
    if P["att_pf"] == 2: a(f"buffer_load_dword v100, v20, {sr(SG)}, s18 offen")
    a(f"""s_cmp_eq_u32 s3, 6
    s_cbranch_scc1 L_FIN
    s_cmp_eq_u32 s3, 7
    s_cbranch_scc1 L_STAT
    {"s_barrier" if P["att_pf"] in (1, 2) or diag else ""}
    {"s_barrier" if P["att_pf"] in (1, 2) or diag else ""}
    {"s_barrier" if P["att_pf"] in (1, 2) or diag else ""}
    s_branch L_exit
    L_STAT:""")
    a(f"""v_and_b32 v4, 31, v0
    v_lshlrev_b32 v5, 5, v4
    v_add_u32 v5, {X+8192}, v5
    v_lshlrev_b32 v6, 4, v0
    s_setprio 3
    v_mov_b32 v17, s{sF}
    v_mov_b32 v19, s{sF}
    v_mov_b32 v8, {f2u(1/128)}
    s_lshl_b32 s12, s9, 9
    s_add_u32 s12, s12, {ST}
    v_mov_b32 v9, {X+11264}
    v_mov_b32 v12, 0
    v_mov_b32 v13, 0
    v_mov_b32 v14, 0
    v_mov_b32 v15, 0
    s_barrier
    ds_write_b128 v9, v[12:15]
    s_waitcnt lgkmcnt(0)
    s_barrier
    ds_read_b128 v[80:83], v5
    ds_read_b128 v[84:87], v5 offset:16
    s_waitcnt lgkmcnt(0)
    v_max3_f32 v4, v80, v81, v82
    v_max3_f32 v7, v83, v84, v85
    v_max3_f32 v4, v4, v86, v87
    v_max_f32 v16, v4, v7
    s_barrier
    ds_read_b128 v[88:91], v5 offset:1024
    ds_read_b128 v[92:95], v5 offset:1040
    s_waitcnt lgkmcnt(0)
    v_pk_add_f32 v[88:89], v[88:89], v[90:91]
    v_pk_add_f32 v[92:93], v[92:93], v[94:95]
    v_pk_add_f32 v[88:89], v[88:89], v[92:93]
    v_add_f32 v18, v88, v89""")
    if P["st_last"]:
        a("""s_setprio 0
        L_stw:
        s_sleep 1
        ds_read_b128 v[12:15], v9
        s_waitcnt lgkmcnt(0)
        v_and_b32 v12, v12, v13
        v_and_b32 v14, v14, v15
        v_and_b32 v12, v12, v14
        v_cmp_eq_u32 vcc, 0, v12
        s_add_u32 s28, s28, 0x10000
        s_cbranch_scc1 L_exit
        s_cbranch_vccnz L_stw
        s_and_b32 s28, s28, 0xffff""")
    a(f"""
    s_mov_b32 exec_hi, 0
    buffer_store_dwordx4 v[16:19], v6, {sr(SW)}, s12 offen sc1
    s_mov_b64 exec, -1""")
    stamp(7)
    a("s_branch L_exit")

    sect[0] = "F"
    a("L_FIN:")
    a(f"""s_barrier
    s_barrier
    s_barrier
    s_cmp_lt_u32 s5, 12
    s_cbranch_scc1 L_exit
    s_load_dwordx2 s[{SC}:{SC+1}], s[0:1], 80
    s_load_dwordx2 s[{SQ}:{SQ+1}], s[0:1], 88
    s_sub_u32 s10, s5, 12
    s_lshl2_add_u32 s10, s4, s10
    s_lshl_b32 s11, s10, 6
    s_lshl_b32 s16, s10, 5
    v_lshrrev_b32 v4, 2, v0
    v_and_b32 v5, 3, v0
    v_lshlrev_b32 v4, 11, v4
    v_lshl_add_u32 v4, v5, 4, v4
    v_lshlrev_b32 v5, 3, v5
    v_mov_b32 v6, 0xff""")
    srd(SX, 1024); srd(SC, 1024); srd(SQ, 1024)
    a(f"""s_waitcnt lgkmcnt(0)
    buffer_load_dwordx2 v[8:9], v5, {sr(SX)}, s16 offen
    buffer_load_dwordx2 v[10:11], v5, {sr(SC)}, s16 offen""")
    if P["out_touch"]: a(f"buffer_load_dwordx2 v[30:31], v5, {sr(SQ)}, s16 offen {P['out_touch']}")
    def fin_gather(label, first, n, dst):
        a(f"s_add_u32 s13, s11, {DP + first*2048}\ns_mul_i32 s14, s10, 3")
        shint(label + "_h", hint_offs(P["fhint"], 14, 63, 11, 13, 29), 'f')
        a(f"{label}:\ns_mov_b32 s12, s13")
        for x in range(n):
            a(f"buffer_load_dwordx4 {vr(64+4*x)}, v4, {sr(SW)}, s12 offen {P['fin_pol']}")
            if x < n-1: a("s_add_u32 s12, s12, 0x8000")
        for x in range(n):
            a(f"s_waitcnt vmcnt({n-1-x})")
            check(7, 64+4*x, 4, sF, x == 0)
            if x == 1:
                for q in range(0, 4, 2): a(f"v_pk_add_f32 {vr(dst+q,2)}, {vr(64+q,2)}, {vr(68+q,2)}")
            elif x > 1:
                for q in range(0, 4, 2): a(f"v_pk_add_f32 {vr(dst+q,2)}, {vr(dst+q,2)}, {vr(64+4*x+q,2)}")
        a("v_and_b32 v7, v6, v7\nv_cmp_ne_u32 vcc, 0, v7")
        spin(label, "s_cbranch_vccnz")
        for r in (4, 8):
            for q in range(4): a(f"v_add_f32_dpp v{dst+q}, v{dst+q}, v{dst+q} row_ror:{r} {DPPM}")
        for sw in ("v_permlane16_swap_b32", "v_permlane32_swap_b32"):
            for q in range(4): a(f"v_mov_b32 v{64+q}, v{dst+q}")
            for q in range(4): a(f"{sw} v{64+q}, v{dst+q}")
            for q in range(0, 4, 2): a(f"v_pk_add_f32 {vr(dst+q,2)}, {vr(dst+q,2)}, {vr(64+q,2)}")
    def round4(d):
        a(f"v_cvt_pk_bf16_f32 v12, v{d}, v{d+1}\nv_cvt_pk_bf16_f32 v13, v{d+2}, v{d+3}")
        unpack2(d, 12); unpack2(d+2, 13)
    a("s_waitcnt vmcnt(0)")
    unpack2(16, 10); unpack2(18, 11); unpack2(24, 8); unpack2(26, 9)
    for q in range(0, 4, 2): a(f"v_pk_add_f32 {vr(16+q,2)}, {vr(16+q,2)}, {vr(24+q,2)}")
    fin_gather("L_fin_att", 0, 8, 20)
    stamp(8)
    for q in range(0, 4, 2): a(f"v_pk_add_f32 {vr(20+q,2)}, {vr(20+q,2)}, {vr(16+q,2)}")
    a(f"""v_cvt_pk_bf16_f32 v12, v20, v21
    v_cvt_pk_bf16_f32 v13, v22, v23
    s_mov_b64 exec, 15
    buffer_store_dwordx2 v[12:13], v5, {sr(SQ)}, s16 offen {P['out_pol']}
    s_cmp_lg_u32 s10, 0
    s_cbranch_scc1 L_fin_done
    s_mov_b64 exec, 1
    {"s_mov_b32 s88, 1" if P["probe"] else ""}
    v_mov_b32 v14, s{sF}
    buffer_store_dword v14, v5, {sr(SW)}, 0 offen offset:{EP} {P['out_pol']}
    L_fin_done:
    s_mov_b64 exec, -1""")
    if P["lite"]:
        a(f"""s_waitcnt vmcnt(0)
        s_memrealtime s[82:83]
        s_lshl_b32 s10, s10, 3
        s_add_u32 s10, s10, {STAMP}
        s_waitcnt lgkmcnt(0)
        v_mov_b32 v4, 0
        v_mov_b32 v6, s80
        v_mov_b32 v7, s82
        buffer_store_dwordx2 v[6:7], v4, {sr(SW)}, s10 offen""")
    if P["calib"]:
        a(f"""s_add_u32 s80, s80, {P['calib']}
        L_cal:
        s_memrealtime s[82:83]
        s_waitcnt lgkmcnt(0)
        s_sub_u32 s83, s82, s80
        s_cmp_lt_i32 s83, 0
        s_cbranch_scc1 L_cal""")
    if diag:
        a("s_waitcnt vmcnt(0)"); stamp(9)
    a("s_branch L_exit")

    sect[0] = "S"
    a("L_S1:")
    a(f"""s_load_dwordx2 s[{SG}:{SG+1}], s[0:1], 32
    s_load_dwordx2 s[{SX}:{SX+1}], s[0:1], 56
    s_load_dwordx2 s[{SQ}:{SQ+1}], s[0:1], 72
    s_load_dwordx2 s[{SK}:{SK+1}], s[0:1], 64""")
    srd(SX, 512*1792*2); srd(SQ, 1792*512*2); srd(SK, 1792*2)
    srd(SG, 4 << 20)
    a(f"""v_lshlrev_b32 v5, 17, v3
    v_lshlrev_b32 v6, 2, v3
    v_xor_b32 v6, v6, v2
    v_lshl_add_u32 v4, v6, 4, v5
    v_xor_b32 v26, 32, v4
    s_lshl_b32 s10, s8, 5
    s_add_u32 s10, s10, s3
    s_lshl_b32 s10, s10, 15
    s_lshl_b32 s11, s7, 8
    s_add_u32 s10, s10, s11
    s_lshl_b32 s11, s3, 13
    s_add_u32 s11, s11, {X}""")
    a(f"""v_bfe_u32 v6, v0, 2, 2
    v_bfe_u32 v7, v0, 4, 1
    v_bfe_u32 v5, v0, 1, 1
    v_lshl_or_b32 v7, v7, 1, v5
    v_lshl_or_b32 v7, v6, 2, v7
    s_lshl_b32 s12, s3, 2
    v_xor_b32 v7, s12, v7
    v_lshlrev_b32 v7, 4, v7
    v_lshlrev_b32 v6, 8, v6
    v_lshl_add_u32 v6, v3, 11, v6
    v_and_b32 v5, 1, v0
    v_lshl_add_u32 v6, v5, 3, v6
    v_add_u32 v6, {X}, v6
    v_add_u32 v8, v6, v7
    v_xor_b32 v9, 32, v8""")
    a(f"""v_and_b32 v5, 7, v0
    v_lshl_add_u32 v5, v5, 2, v3
    v_lshlrev_b32 v10, 9, v5
    v_lshlrev_b32 v11, 4, v0
    v_lshlrev_b32 v5, 4, v2
    v_lshl_add_u32 v5, v3, 3, v5
    s_lshl_b32 s12, s3, 6
    s_add_u32 s13, s12, s11
    v_add_u32 v12, s13, v5
    v_and_b32 v5, 3, v0
    v_mul_u32_u24 v5, {8192+64}, v5
    v_lshl_add_u32 v5, v3, 4, v5
    v_add_u32 v13, {X}, v5
    v_and_b32 v5, 31, v0
    s_add_u32 s13, s12, {X+2048}
    v_lshl_add_u32 v14, v5, 1, s13
    v_mov_b32 v15, s11
    v_mov_b32 v31, {X}
    v_mov_b32 v30, 0x10001
    v_bfe_u32 v5, v0, 4, 1
    v_cmp_eq_u32 s[18:19], 1, v5
    s_mov_b32 m0, s11
    s_nop 0""")
    a(f"""s_lshl2_add_u32 s15, s8, s3
    s_mul_i32 s15, s15, {32*3584}
    s_lshr_b32 s16, s5, 2
    s_lshl2_add_u32 s16, s4, s16
    s_lshl_b32 s16, s16, 7
    s_add_u32 s15, s15, s16
    v_mul_u32_u24 v20, 3584, v0
    s_lshl4_add_u32 s9, s4, s5
    s_waitcnt lgkmcnt(0)
    s_barrier""")
    if P["h_touch"] and P["bhint"]:
        a(f"""s_lshl_b32 s12, s3, 13
        s_lshl2_add_u32 s13, s7, s8
        s_lshl_b32 s13, s13, 15
        s_add_u32 s13, s13, s12""")
        for rnd in range(P["brounds"]):
            for x in range(P["bhint"]):
                a(f"s_add_u32 s12, s13, {BP + ((32*x//P['bhint'] + 3 - rnd) % 32)*256 + 128}\ns_load_dword s{HINT+x}, s[{SW}:{SW+1}], s12 glc")
    for r in range(16): a(f"v_mov_b32 v{96+r}, 0")
    if P["uv_pf"]:
        a(f"""s_lshl2_add_u32 s12, s8, s3
        s_lshl_b32 s12, s12, 18
        s_lshl_b32 s13, s7, 8
        s_add_u32 s12, s12, s13
        v_lshrrev_b32 v21, 1, v0
        v_and_b32 v22, 1, v0
        v_lshlrev_b32 v22, 7, v22
        v_lshl_add_u32 v21, v21, 13, v22
        {"s_mov_b32 exec_hi, 0" if P["uv_pf"] == 1 else ""}
        buffer_load_dword v238, v21, {sr(SG)}, s12 offen
        s_mov_b64 exec, -1""")
    a(f"""s_cmp_eq_u32 s4, 7
    s_cbranch_scc1 L_nomlp
    s_mov_b32 exec_hi, 0
    {"" if P["w1_att"] else f"buffer_load_dword v239, v20, {sr(SX)}, s15 offen"}
    s_mov_b64 exec, -1
    s_cmp_lg_u32 s3, 3
    s_cbranch_scc1 L_nomlp
    s_lshl_b32 s15, s9, 5
    s_lshl_b32 s16, s9, 14
    v_lshlrev_b32 v21, 12, v3
    v_lshl_add_u32 v21, v2, 4, v21
    v_lshlrev_b32 v22, 1, v2
    buffer_load_ushort v48, v22, {sr(SK)}, s15 offen""")
    a(f"""v_mov_b32 v27, v21
    v_lshrrev_b32 v20, 1, v0
    v_mul_u32_u24 v20, 3584, v20
    v_and_b32 v21, 1, v0
    v_lshl_add_u32 v20, v21, 4, v20
    v_lshlrev_b32 v21, 4, v0
    v_add_u32 v21, {X}, v21
    ds_write_b128 v21, v[56:59]
    v_lshlrev_b32 v21, 4, v3
    v_add_u32 v21, {X}, v21
    v_lshlrev_b32 v22, 8, v3
    v_lshl_add_u32 v22, v2, 3, v22
    v_add_u32 v22, {X+16384}, v22
    v_lshl_add_u32 v23, v3, 2, v2
    v_and_b32 v23, 15, v23
    v_lshlrev_b32 v23, 2, v23
    s_mov_b32 m0, {X+16384}""")
    def w2_loads():
        for t in range(16): a(f"buffer_load_dwordx4 {vr(192+4*t)}, v27, {sr(SQ)}, s16 offen offset:{256*t} nt")
    if P["w2_early"]: w2_loads()
    for t in range(16): a(f"ds_read_b128 {vr(64+4*t)}, v21 offset:{64*t}")
    if not P["w1_att"]: a("s_waitcnt vmcnt(0)")
    if P["optx"]: a("s_barrier")
    for q in range(16):
        a(f"buffer_load_dwordx4 v20, {sr(SX)}, s15 offen lds")
        if q < 15: a(f"s_addk_i32 m0, 0x400\ns_add_u32 s15, s15, {32*3584}")
    if P["optx"]: a("s_waitcnt vmcnt(0)")
    else:
        a(f"s_waitcnt vmcnt({P['wo_gate']})\ns_barrier")
        if P["w2_early"]: a("s_waitcnt vmcnt(0)")
        else:
            w2_loads()
            a("s_waitcnt vmcnt(16)")
    stamp(8)
    for t in range(16):
        a(f"ds_read_b64_tr_b16 {vr(128+4*t,2)}, v22 offset:{1024*t}\nds_read_b64_tr_b16 {vr(130+4*t,2)}, v22 offset:{1024*t+128}")
    a("s_waitcnt lgkmcnt(0)")
    for t in range(16):
        a(f"v_mfma_f32_16x16x32_bf16 v[16:19], {vr(64+4*t)}, {vr(128+4*t)}, {'0' if t == 0 else 'v[16:19]'}")
    rnd_bf16(20, 16)
    a("v_lshlrev_b32 v48, 16, v48\nv_add_f32 v20, v20, v48")
    rnd_bf16(20, 20)
    a("""v_max_f32 v20, 0, v20
    v_mul_f32 v20, v20, v20
    v_cvt_pk_bf16_f32 v20, v20, v20
    ds_bpermute_b32 v21, v23, v20
    s_waitcnt lgkmcnt(0)""")
    for rq in range(4):
        for dw in range(4):
            a(f"v_and_b32_dpp v{64+4*rq+dw}, v21, v{32+dw} row_newbcast:{rq} {DPPM}")
    def wuv_loads():
        a("s_mov_b32 m0, s11\ns_barrier")
        stamp(1)
        for q in range(8):
            a(f"buffer_load_dwordx4 v{26 if (q>>1)&1 else 4}, {sr(SG)}, s10 offen nt lds")
            if q < 7: a(f"s_add_u32 m0, m0, 1024\ns_add_u32 s10, s10, {(64*8192 if q & 1 == 0 else (1-64)*8192) & 0xffffffff}")
    wuv_loads()
    if P["optx"] and not P["w2_early"]:
        w2_loads()
        a("s_waitcnt vmcnt(0)")
    else: a("s_waitcnt vmcnt(8)")
    for rq in range(4):
        for cb in range(4):
            a(f"v_mfma_f32_16x16x32_bf16 {vr(96+4*cb)}, {vr(64+4*rq)}, {vr(192+16*rq+4*cb)}, {'0' if rq == 0 else vr(96+4*cb)}")
    a("s_nop 7\ns_branch L_wuv_done\nL_nomlp:")
    if P["wo_gate"] is not None: a("s_barrier")
    wuv_loads()
    a("L_wuv_done:")
    a(f"""s_lshl_b32 s12, s3, 13
    s_lshl2_add_u32 s16, s7, s8
    s_lshl_b32 s13, s16, 15
    s_add_u32 s13, s13, s12
    s_add_u32 s13, s13, {BP}
    s_lshl_b32 s12, s12, 1
    s_lshl4_add_u32 s12, s7, s12
    s_add_u32 s12, s12, {ST}""")
    if P["st_touch"]: a(f"buffer_load_dwordx4 v[16:19], v10, {sr(SW)}, s12 offen {P['st_pol']}")
    a("s_waitcnt vmcnt(0)")
    a(f"s_add_u32 s36, s{SW}, s13\ns_addc_u32 s37, s{SW+1}, 0")
    boffs = [((32*x//P["bhint"] + 3) % 32)*256 + 128 for x in range(P["bhint"])]
    if P["hpipe"]:
        for x, o in enumerate(boffs): a(f"s_load_dwordx2 {sr(HINT+2*x,2)}, s[36:37], {o} glc")
    a("s_barrier")
    for n in range(2):
        for t in range(4):
            for sec in range(2):
                a(f"ds_read_b64_tr_b16 {vr(160+16*n+4*t+2*sec,2)}, v{8+n} offset:{8192*t + 1024*sec}")
    a("s_waitcnt lgkmcnt(0)\ns_barrier")
    a(f"""s_cmp_lg_u32 s3, 3
    s_cbranch_scc1 L_nomw
    v_add_u32 v20, {X+4096}, v41
    s_mov_b32 exec_hi, 0""")
    for cb in range(4): a(f"ds_write_b128 v20, {vr(96+4*cb)} offset:{512*cb}")
    a("s_mov_b64 exec, -1\nL_nomw:")
    stamp(2)
    nh = P["lhint"]
    shint("L_lhint", hint_offs(nh, 16, 31, 9, 12, 32//max(nh,1)), 't')
    nh = P["bhint"]
    if P["hpipe"]: a("s_branch L_bhint0_chk")
    for rnd in range(P["brounds"]):
        shint(f"L_bhint{rnd}", [((32*x//nh + 3 - rnd) % 32)*256 + 128 for x in range(nh)], 'c')
    stamp(3)
    a("s_add_u32 s14, s13, 4096")
    def st_check():
        a(f"""v_xor_b32 v17, s{sF}, v17
        v_bitop3_b32 v17, v17, v19, s{sF} bitop3:0xf6""")
    if P["st_last"]:
        a(f"L_stp:\nbuffer_load_dwordx4 v[16:19], v10, {sr(SW)}, s12 offen {P['st_pol']}\ns_waitcnt vmcnt(0)")
        st_check()
        a("v_cmp_ne_u32 vcc, 0, v17")
        spin("L_stp", "s_cbranch_vccnz")
        stamp(4)
    def pl_load(t): a(f"buffer_load_dwordx4 {vr(64+4*t)}, v11, {sr(SW)}, s{13 + (t>>2)} offen offset:{1024*(t&3)} {P['pl_pol']}")
    def ops():
        a("v_mov_b32 v24, v16")
        allreduce("v_max_f32", 24, 20)
        a("""v_sub_f32 v16, v16, v24
        v_exp_f32 v16, v16
        v_cvt_pk_bf16_f32 v16, v16, v16""")
        for t in range(8):
            for dw in range(4):
                a(f"v_and_b32_dpp v{128+4*t+dw}, v16, v{32+dw} row_newbcast:{t} {DPPM}")
        a("v_and_b32 v25, 0xffff0000, v16\nv_mul_f32 v25, v25, v18")
        allreduce("v_add_f32", 25, 20)
        a("v_mul_f32 v25, 0.5, v25\nds_write_b64 v15, v[24:25] offset:1024")
    def mf(t): a(f"v_mfma_f32_16x16x32_bf16 v[40:43], {vr(128+4*t)}, {vr(64+4*t)}, {'0' if t == 0 else 'v[40:43]'}")
    if not P["st_last"]: a(f"buffer_load_dwordx4 v[16:19], v10, {sr(SW)}, s12 offen {P['st_pol']}")
    for t in range(8): pl_load(t)
    if not P["st_last"]:
        a("s_waitcnt vmcnt(8)")
        stamp(4)
        st_check()
        a("v_cmp_ne_u32 vcc, 0, v17\ns_cbranch_vccz L_stok")
        a(f"L_stp:\nbuffer_load_dwordx4 v[16:19], v10, {sr(SW)}, s12 offen {P['st_pol']}\ns_waitcnt vmcnt(0)")
        st_check()
        a("v_cmp_ne_u32 vcc, 0, v17")
        spin("L_stp", "s_cbranch_vccnz")
        a("L_stok:")
    ops()
    stamp(5)
    for t in range(8):
        a(f"s_waitcnt vmcnt({7-t})")
        mf(t)
        check(48+t, 64+4*t, 4, sB, True)
        if t == 2: a("v_or3_b32 v7, v48, v49, v50")
        if t in (4, 6): a(f"v_or3_b32 v7, v7, v{47+t}, v{48+t}")
    a("v_or_b32 v7, v7, v55\nv_and_b32 v7, v30, v7\nv_cmp_ne_u32 vcc, 0, v7\ns_cbranch_vccz L_bok")
    a("L_bre:")
    if P["re_sleep"]: a(f"s_sleep {P['re_sleep']}")
    for t in range(8):
        a(f"v_and_b32 v7, v30, v{48+t}\nv_cmp_ne_u32 vcc, 0, v7\ns_cbranch_vccz L_br{t}")
        pl_load(t)
        a(f"L_br{t}:")
    a("s_waitcnt vmcnt(0)")
    for t in range(8):
        mf(t)
        check(48+t, 64+4*t, 4, sB, True)
        if t == 2: a("v_or3_b32 v7, v48, v49, v50")
        if t in (4, 6): a(f"v_or3_b32 v7, v7, v{47+t}, v{48+t}")
    a("v_or_b32 v7, v7, v55\nv_and_b32 v7, v30, v7\nv_cmp_ne_u32 vcc, 0, v7\ns_add_u32 s28, s28, 99")
    spin("L_bre", "s_cbranch_vccnz")
    a("L_bok:\ns_nop 1")
    stamp(6)
    a("""v_cvt_pk_bf16_f32 v44, v40, v41
    v_cvt_pk_bf16_f32 v45, v42, v43
    s_mov_b32 exec_hi, 0
    ds_write_b64 v12, v[44:45]
    s_mov_b64 exec, -1
    s_waitcnt lgkmcnt(0)
    s_barrier""")
    for u in range(4): a(f"ds_read_b64 {vr(80+2*u,2)}, v31 offset:{8192*u + 1024}")
    for t in range(4): a(f"ds_read_b128 {vr(64+4*t)}, v13 offset:{64*t}")
    sm = """v_max3_f32 v4, v80, v82, v84
    v_max_f32 v4, v4, v86
    v_sub_f32 v80, v80, v4
    v_sub_f32 v82, v82, v4
    v_sub_f32 v84, v84, v4
    v_sub_f32 v86, v86, v4
    v_exp_f32 v80, v80
    v_exp_f32 v82, v82
    v_exp_f32 v84, v84
    v_exp_f32 v86, v86
    v_mul_f32 v5, v80, v81
    v_fmac_f32 v5, v82, v83
    v_fmac_f32 v5, v84, v85
    v_fmac_f32 v5, v86, v87
    v_rcp_f32 v5, v5""".split("\n")
    for t in range(4):
        a(f"s_waitcnt lgkmcnt({3-t})")
        for n in range(2):
            a(f"v_mfma_f32_16x16x32_bf16 {vr(40+4*n)}, {vr(64+4*t)}, {vr(160+16*n+4*t)}, {'0' if t == 0 else vr(40+4*n)}")
            a(sm.pop(0))
    for l in sm: a(l)
    for r in range(4): a(f"v_cndmask_b32 v{40+r}, v{40+r}, v{44+r}, s[18:19]")
    a("""v_mul_f32 v6, v40, v80
    v_fmac_f32 v6, v41, v82
    v_fmac_f32 v6, v42, v84
    v_fmac_f32 v6, v43, v86
    v_mul_f32 v6, v6, v5
    v_cvt_pk_bf16_f32 v6, v6, v6
    ds_write_b16 v14, v6
    s_waitcnt lgkmcnt(0)""")
    stamp(7)
    a("s_barrier\ns_branch L_exit")

    sect[0] = "O"
    a("L_WO:")
    a(f"s_load_dwordx2 s[{SG}:{SG+1}], s[0:1], 40\ns_barrier\nL_WO1:")
    srd(SC, 16 << 20)
    a(f"""s_lshl4_add_u32 s14, s4, s5
    s_lshl2_add_u32 s14, s14, s3
    s_sub_u32 s14, s14, 4
    s_lshl_b32 s14, s14, 15
    v_lshrrev_b32 v5, 1, v0
    v_and_b32 v6, 1, v0
    v_lshlrev_b32 v5, 10, v5
    v_lshl_add_u32 v5, v6, 7, v5""")
    a("v_mov_b32 v44, v5\ns_mov_b32 s30, s14")
    def ckv_pf():
        for x in range(P["cpf"]):
            if x >= P["cpf_depth"]: a(f"s_waitcnt vmcnt({P['cpf_depth']-1})")
            if P["rgmajor"] == 4:
                a(f"""s_add_u32 s31, s30, {4096*(7-x)}
                v_lshlrev_b32 v44, 7, v0
                s_mov_b32 exec_hi, 0
                buffer_load_dword v{100+x}, v44, {sr(SC)}, s31 offen
                s_mov_b64 exec, -1""")
            else:
                a(f"""s_mov_b32 exec_{'lo' if x & 1 == 0 else 'hi'}, 0
                buffer_load_dword v{100+x}, v44, {sr(SC)}, s30 offen offset:{256*(3 - x//2)}
                s_mov_b64 exec, -1""")
    if not P["cpf_late"]: ckv_pf()
    srd(SG, 4 << 20)
    a(f"""s_sub_u32 s9, s3, 4
    s_lshl_b32 s10, s7, 17
    s_lshl_b32 s11, s9, 8
    s_add_u32 s10, s10, s11
    s_lshl_b32 s11, s9, 15
    v_lshlrev_b32 v4, 2, v3
    v_xor_b32 v4, v4, v2
    v_lshlrev_b32 v4, 4, v4
    v_lshl_add_u32 v4, v3, 10, v4
    v_xor_b32 v5, 32, v4
    s_mov_b32 m0, s11""")
    if P["wo_rot"]:
        a("s_lshl_b32 s13, s8, 15\ns_add_u32 s10, s10, s13")
        for tau in range(3):
            a(f"s_cmp_eq_u32 s8, {3-tau}\ns_cselect_b32 s{36+tau}, -31, 1\ns_lshl_b32 s{36+tau}, s{36+tau}, 12")
    a(f"""v_bfe_u32 v6, v0, 2, 2
    v_bfe_u32 v7, v0, 4, 1
    v_bfe_u32 v16, v0, 1, 1
    v_lshl_or_b32 v7, v7, 1, v16
    v_lshl_or_b32 v7, v6, 2, v7
    v_lshlrev_b32 v7, 4, v7
    v_lshlrev_b32 v6, 8, v6
    v_lshl_add_u32 v6, v3, 11, v6
    v_and_b32 v16, 1, v0
    v_lshl_add_u32 v6, v16, 3, v6
    v_add_u32 v6, s11, v6""")
    for n in range(8):
        a(f"v_xor_b32 v16, {32*n}, v7\nv_add_u32 v{8+n}, v6, v16")
    a(f"""v_lshlrev_b32 v16, 4, v3
    v_add_u32 v16, {X+2048}, v16
    v_lshlrev_b32 v17, 6, v2
    v_lshl_add_u32 v17, v3, 4, v17
    v_mov_b32 v18, 0xff
    s_lshl2_add_u32 s12, s7, s8
    s_lshl_b32 s12, s12, 11
    s_lshl_b32 s13, s9, 9
    s_add_u32 s12, s12, s13
    s_add_u32 s12, s12, {DP}""")
    for t in range(4):
        if P["wo_rot"]: a(f"s_add_u32 s13, s8, {t}\ns_and_b32 s13, s13, 3\ns_lshl_b32 s13, s13, 6\nv_add_u32 v{36+t}, s13, v16")
        else: a(f"v_add_u32 v{36+t}, {64*t}, v16")
    a("s_waitcnt lgkmcnt(0)")
    def wo_read(t):
        for n in range(8):
            for sec in range(2):
                a(f"ds_read_b64_tr_b16 {vr(128+32*t+4*n+2*sec,2)}, v{8+n} offset:{8192*t + 1024*sec}")
    nxt = 0
    for rg in range(32):
        if rg == 0 and P["cpf"] and not P["cpf_late"]: a(f"s_waitcnt vmcnt({P['cpf_tail']})")
        if rg == 0 and not P["optx"]: a("s_barrier")
        if rg == P["x_n"] and P["optx"]: a(f"s_waitcnt vmcnt({P['x_left']})\ns_barrier")
        if rg == 0 and P["cpf_late"]:
            ckv_pf()
            if P["cpf_wait"] is not None: a(f"s_waitcnt vmcnt({P['cpf_wait']})")
        if rg == 0 and not P["fine"]: stamp(1)
        wd = P["wo_edepth"] if rg < P["wo_early"] else (P["wo_depth0"] if rg < 8 + P["wo_depth0"] else P["wo_depth"])
        if rg >= wd:
            a(f"s_waitcnt vmcnt({wd-1})")
            landed = rg - wd + 1
            if landed >= 8*(nxt+1):
                if nxt == 0: stamp(5)
                if "noread" not in P["abl"]: wo_read(nxt)
                nxt += 1
        a(f"buffer_load_dwordx4 v{4+((rg>>1)&1)}, {sr(SG)}, s10 offen {P['first_pol'] if rg < 8 else P['wo_pol']} lds")
        if rg in P["wo_bar"]: a("s_barrier")
        if rg < 31:
            if P["wo_rot"] and rg & 7 == 7: a(f"s_add_u32 m0, m0, 1024\ns_add_u32 s10, s10, s{36+(rg>>3)}")
            else: a("s_add_u32 m0, m0, 1024\ns_add_u32 s10, s10, 4096")
    while nxt < 4:
        a(f"s_waitcnt vmcnt({24 - 8*nxt})")
        wo_read(nxt); nxt += 1
    for n in range(1, 8):
        a(f"s_mov_b32 s{40+2*n}, {0x01010101 << n}\ns_mov_b32 s{41+2*n}, {0x01010101 << n}")
    for x in P["wo_bar"]:
        if x >= 32: a("s_barrier")
    stamp(6)
    if "bwait" in P["abl"]: a("s_barrier")
    a(f"s_lshl_b32 s13, s9, 9\ns_add_u32 s13, s13, {X+4096}\nv_and_b32 v19, 0x1ff, v17\nv_add_u32 v19, s13, v19")
    a("s_barrier\nds_read_b128 v[40:43], v19\ns_barrier")
    stamp(7)
    for t in range(4): a(f"ds_read_b128 {vr(20+4*t)}, v{36+t}")
    a("s_waitcnt lgkmcnt(0)")
    for n in range(8):
        for t in range(4):
            a(f"v_mfma_f32_16x16x32_bf16 {vr(64+4*n)}, {vr(128+32*t+4*n)}, {vr(20+4*t)}, {'0' if t == 0 else vr(64+4*n)}")
            if n >= 3:
                m = n - 2
                a(f"v_cndmask_b32 v{64+t}, v{64+t}, v{64+4*m+t}, s[{40+2*m}:{41+2*m}]")
    for m in (6, 7):
        for t in range(4): a(f"v_cndmask_b32 v{64+t}, v{64+t}, v{64+4*m+t}, s[{40+2*m}:{41+2*m}]")
    a("v_pk_add_f32 v[64:65], v[64:65], v[40:41]\nv_pk_add_f32 v[66:67], v[66:67], v[42:43]")
    for r in range(4): a(f"v_bfi_b32 v{64+r}, v18, s{sF+r}, v{64+r}")
    a(f"""s_mov_b32 exec_lo, 0x00ff00ff
    s_mov_b32 exec_hi, 0x00ff00ff
    buffer_store_dwordx4 v[64:67], v17, {sr(SW)}, s12 offen sc1
    s_mov_b64 exec, -1""")
    stamp(8)
    if diag:
        a("s_waitcnt vmcnt(0)"); stamp(9)

    a("L_exit:")
    if P["probe"]:
        a(f"""s_load_dwordx2 s[86:87], s[0:1], 96
        s_mov_b64 exec, 1
        s_waitcnt lgkmcnt(0)
        v_mov_b32 v4, 0
        v_mov_b32 v5, s84
        s_cmp_eq_u32 s84, 0
        s_cbranch_scc1 L_pr1
        global_atomic_umax v4, v5, s[86:87] offset:128
        L_pr1:
        s_cmp_lg_u32 s3, 0
        s_cbranch_scc1 L_pr2
        v_mov_b32 v5, s80
        global_atomic_umax v4, v5, s[86:87]
        v_not_b32 v6, v5
        global_atomic_umax v4, v6, s[86:87] offset:4
        L_pr2:
        s_cmp_lg_u32 s88, 1
        s_cbranch_scc1 L_end
        s_add_u32 s90, s80, 3000
        L_pr3:
        s_memrealtime s[82:83]
        s_waitcnt lgkmcnt(0)
        s_sub_u32 s83, s82, s90
        s_cmp_lt_i32 s83, 0
        s_cbranch_scc1 L_pr3
        global_load_dwordx2 v[8:9], v4, s[86:87] sc1
        global_load_dword v10, v4, s[86:87] offset:128 sc1
        s_waitcnt vmcnt(0)
        v_readfirstlane_b32 s91, v8
        v_readfirstlane_b32 s92, v9
        v_readfirstlane_b32 s93, v10
        s_not_b32 s92, s92""")
        ref = "s92" if P["probe"][1] == "min" else "s91"
        val = {"maxstart": "s91", "none": ref}.get(P["probe"][0], "s93")
        a(f"""s_sub_u32 s94, {val}, {ref}
        s_min_u32 s94, s94, 3000
        s_add_u32 s90, s92, 4000
        s_add_u32 s90, s90, s94
        L_pr4:
        s_memrealtime s[82:83]
        s_waitcnt lgkmcnt(0)
        s_sub_u32 s83, s82, s90
        s_cmp_lt_i32 s83, 0
        s_cbranch_scc1 L_pr4""")
    if diag:
        a(f"""s_mov_b64 exec, -1
        s_waitcnt lgkmcnt(0)
        s_lshl3_add_u32 s10, s2, s3
        s_lshl_b32 s10, s10, 7
        s_add_u32 s10, s10, {STAMP}
        v_mov_b32 v4, 0""")
        for k in range(10):
            a(f"v_mov_b32 v5, s{80+2*k}\nbuffer_store_dword v5, v4, {sr(SW)}, s10 offen offset:{4*k}")
        a(f"v_mov_b32 v5, s28\nbuffer_store_dword v5, v4, {sr(SW)}, s10 offen offset:40")
        a(f"s_getreg_b32 s11, hwreg(HW_REG_XCC_ID)\nv_mov_b32 v5, s11\nbuffer_store_dword v5, v4, {sr(SW)}, s10 offen offset:44")
        a(f"s_getreg_b32 s11, hwreg(HW_REG_HW_ID)\nv_mov_b32 v5, s11\nbuffer_store_dword v5, v4, {sr(SW)}, s10 offen offset:48")
    a("L_end:\ns_endpgm\nL_codeend:")

    lines = a.lines
    if diag:
        pre = [f"s_mov_b32 s{80+2*k}, 0" for k in range(1, 10)]
        lines = lines[:1] + pre + lines[1:]
    lines, nins = insert_waits(lines)
    b = Asm(); b.lines = lines
    head = f"""; fused MLA decode attention (absorbed form) + squared-relu MLP, one persistent launch, 256 workgroups
; @launch grid=(256,1,1) block=(512,1,1) lds=163840
.amdgcn_target "amdgcn-amd-amdhsa--gfx950"
.text
.globl {KNAME}
.p2align 8
.type {KNAME},@function
{KNAME}:
"""
    foot = f"""
.section .rodata,"a"
.p2align 6
.amdhsa_kernel {KNAME}
  .amdhsa_next_free_vgpr 256
  .amdhsa_next_free_sgpr 102
  .amdhsa_accum_offset 256
  .amdhsa_group_segment_fixed_size 0
  .amdhsa_kernarg_size 112
  .amdhsa_user_sgpr_count 2
  .amdhsa_user_sgpr_kernarg_segment_ptr 1
  .amdhsa_system_sgpr_workgroup_id_x 1
  .amdhsa_float_denorm_mode_32 3
.end_amdhsa_kernel
"""
    txt = b.text()
    if P["pol"] != "nt":
        txt = txt.replace(" nt lds", f" {P['pol']} lds").replace(" nt\n", f" {P['pol']}\n")
    return head + txt + foot

if __name__ == "__main__":
    import json
    kw = json.loads(sys.argv[2]) if len(sys.argv) > 2 else {}
    open(sys.argv[1], "w").write(gen(**kw))
```

```python
import sys, math, struct
from asmlib import Asm, insert_waits
from gen_common import KNAME

EP, QP, QL, GO, ST, HP, DP, BP, STAMP = 0, 0x1000, 0x40000, 0x48000, 0x50000, 0x60000, 0x80000, 0x100000, 0x800000
WS_REC = 0x1000000
X = 131072
SPIN = 1 << 17

def f2u(x): return struct.unpack("<I", struct.pack("<f", x))[0]
def vr(a, n=4): return f"v[{a}:{a+n-1}]"
def sr(a, n=4): return f"s[{a}:{a+n-1}]"

SX, SC, SQ, SK, SW, SG = 40, 44, 48, 52, 56, 60
sF, sB = 20, 24
HINT = 64
DPPM = "row_mask:0xf bank_mask:0xf"

DEFAULT = dict(lite=False, diag=False, cyc=False, fine=False, calib=0, probe=None, abl=(), pol="nt", prefetch=True, pf_wgs=16, role_bit=0,
               pq=True, pk_late="ep", pf_ramp=(0, 4, 10), bi_at=2, q_at=31, qhint=0, cw_at=-1, sm_pre=4, bb_at=1, ba_at=28, q_ah=5, bd_at=8, l_pre=6, fin=1, tlb=False, zpf=0, uv_slow=0, w2_at='g', st_sleep=0, st_first=False, uk_first=False, tr_pre=0, pv_prio=0, qk_prio=2, qk_fill=(2, 2), tr_split=(20, 26), pv_bar=(10, 24), st_gap=4, optx=False, pf_pol='', first_pol='', uk_pol='nt', x_n=8, x_left=0, pv_fill=2,
               cpf=0, wo_gate=8, ql_pre=None, cpf_depth=2, cpf_tail=1, wq_pol="", wo_pol="", wo_depth=8, wo_depth0=8, wo_bar=(7, 23, 29), wo_rot=True,
               bhint=4, fhint=0, hsleep=0, out_pol="", mlp_at="pf", wpq=False, x_bar=True, wq_bars=(1,), ln_at=3, st_last=True, st_at=10, w2_early=False, uv_pf=0, w1_att=False, cpf_wait=None, lhint=0, st_touch=False, h_touch=True, hmap=1, pk_mix=False, cpf_late=False, c_keep=0, ql_delay=0, fin_pol='sc1', pl_pol='sc1', st_pol='sc1', rgmajor=4, hpipe=True, brounds=1, re_sleep=0, w1_wait=17, w2_late=True, wuv_depth=8, q_prio=True, q_fast=True, w1_pre=16, w2_left=0, att_pf=0, out_touch='sc1', dpp_early=True, go_at=None, cpfq=True, c_ramp=((0,10),), wo_early=0, wo_edepth=2)

def gen(**kw):
    P = dict(DEFAULT); P.update(kw)
    diag = P["diag"]
    a = Asm()
    sect = ["entry"]
    def fs(k):
        if P['cyc'] == 3: stamp(k, True)
    def stamp(k, force=False):
        if P["cyc"] == 3 and sect[0] in ("C", "F", "H") and not force: return
        if P["cyc"] == 2 and (sect[0], k) not in (("entry", 0), ("C", 3), ("H", 8), ("H", 7), ("S", 6), ("O", 8), ("A", 3), ("A", 4)): return
        if diag: a(f"{'s_memtime' if P['cyc'] else 's_memrealtime'} s[{80+2*k}:{81+2*k}]")
        if P["probe"] and P["probe"][0] == f"{sect[0]}{k}":
            a("s_memrealtime s[84:85]")
    def srd(base, size):
        a(f"s_mov_b32 s{base+2}, {size}\ns_mov_b32 s{base+3}, 0x20000")
    def ep_load(): a(f"s_load_dword s35, s[{SW}:{SW+1}], {EP}")
    def tags(need_b=True):
        for q in range(4): a(f"s_add_u32 s{sF+q}, s35, {q+1}")
        if need_b:
            for q in range(4): a(f"s_and_b32 s{sB+q}, s{sF+q}, 3\ns_mul_i32 s{sB+q}, s{sB+q}, 0x8001")
    def allreduce(op, v, t1):
        for r in (1, 2, 4, 8):
            a(f"{op}_dpp v{v}, v{v}, v{v} row_ror:{r} {DPPM}")
        for sw in ("v_permlane16_swap_b32", "v_permlane32_swap_b32"):
            a(f"v_mov_b32 v{t1}, v{v}\n{sw} v{t1}, v{v}\n{op} v{v}, v{v}, v{t1}")
    def rnd_bf16(d, s):
        a(f"v_cvt_pk_bf16_f32 v{d}, v{s}, v{s}\nv_and_b32 v{d}, 0xffff0000, v{d}")
    def unpack2(d, s):
        a(f"v_lshlrev_b32 v{d}, 16, v{s}\nv_and_b32 v{d+1}, 0xffff0000, v{s}")
    def ln_stats(xr, f, t):
        for i in range(4): unpack2(f+2*i, xr+i)
        a(f"v_add_f32 v{t}, v{f}, v{f+1}\nv_add_f32 v{t+1}, v{f+2}, v{f+3}\nv_add_f32 v{t+2}, v{f+4}, v{f+5}\nv_add_f32 v{t+3}, v{f+6}, v{f+7}")
        a(f"v_add_f32 v{t}, v{t}, v{t+1}\nv_add_f32 v{t+2}, v{t+2}, v{t+3}\nv_add_f32 v{t}, v{t}, v{t+2}")
        allreduce("v_add_f32", t, t+2)
        a(f"v_mul_f32 v{t}, {f2u(1/512)}, v{t}")
        a(f"v_sub_f32 v{t+2}, v{f}, v{t}\nv_mul_f32 v{t+1}, v{t+2}, v{t+2}")
        for i in range(1, 8):
            a(f"v_sub_f32 v{t+2+(i&1)}, v{f+i}, v{t}\nv_fmac_f32 v{t+1}, v{t+2+(i&1)}, v{t+2+(i&1)}")
        allreduce("v_add_f32", t+1, t+2)
        a(f"v_mul_f32 v{t+1}, {f2u(1/512)}, v{t+1}")
        rnd_bf16(t, t)
        rnd_bf16(t+1, t+1)
        a(f"v_add_f32 v{t+1}, {f2u(1e-5)}, v{t+1}")
        rnd_bf16(t+1, t+1)
        a(f"v_sqrt_f32 v{t+1}, v{t+1}")
        rnd_bf16(t+1, t+1)
        a(f"v_rcp_f32 v{t+1}, v{t+1}")
    def delta_masks(m, t):
        a(f"""v_and_b32 v{t}, 1, v0
        v_lshlrev_b32 v{t}, 4, v{t}
        v_mov_b32 v{t+1}, 0xffff
        v_lshlrev_b32 v{t}, v{t}, v{t+1}
        v_bfe_u32 v{t+1}, v0, 1, 3""")
        for dw in range(4):
            a(f"v_cmp_eq_u32 vcc, {dw}, v{t+1}\nv_cndmask_b32 v{m+dw}, 0, v{t}, vcc")
    def check(acc, first, n, tagbase, start):
        for i in range(n):
            if start and i == 0: a(f"v_xor_b32 v{acc}, s{tagbase}, v{first}")
            else: a(f"v_bitop3_b32 v{acc}, v{acc}, v{first+i}, s{tagbase+(i&3)} bitop3:0xf6")
    def spin(label, cond_branch, pre=""):
        a(f"""s_add_u32 s28, s28, 1
        s_cmp_gt_u32 s28, {SPIN}
        s_cbranch_scc1 L_exit
        {pre}
        {cond_branch} {label}""")
    def shint(label, offs, kind):
        if not offs: return
        a(f"{label}:")
        if P["hsleep"]: a(f"s_sleep {P['hsleep']}")
        n = len(offs)
        if kind == 'c':
            for x, o in enumerate(offs): a(f"s_load_dwordx2 {sr(HINT+2*x,2)}, s[36:37], {o} glc")
            a(f"{label}_chk:\ns_waitcnt lgkmcnt(0)")
            for x in range(n):
                a(f"s_xor_b64 {sr(HINT+2*x,2)}, {sr(HINT+2*x,2)}, {sr(sB,2)}")
                if x: a(f"s_or_b64 {sr(HINT,2)}, {sr(HINT,2)}, {sr(HINT+2*x,2)}")
            a(f"s_or_b32 s{HINT}, s{HINT}, s{HINT+1}")
            fin = f"s_and_b32 s{HINT}, s{HINT}, 0x10001"
        elif kind == 'd':
            for x, o in enumerate(offs): a(f"s_load_dword s{HINT+x}, s[{SW}:{SW+1}], s{o} glc")
            a("s_waitcnt lgkmcnt(0)")
            for x in range(n):
                a(f"s_xor_b32 s{HINT+x}, s{HINT+x}, s{sF}")
                if x: a(f"s_or_b32 s{HINT}, s{HINT}, s{HINT+x}")
            fin = f"s_and_b32 s{HINT}, s{HINT}, 0xff"
        elif kind == 't':
            for x, o in enumerate(offs): a(f"s_load_dwordx2 {sr(HINT+2*x,2)}, s[{SW}:{SW+1}], s{o} glc")
            a("s_waitcnt lgkmcnt(0)")
            for x in range(n):
                a(f"s_xor_b32 s{HINT+2*x+1}, s{HINT+2*x+1}, s{sF}")
                if x: a(f"s_or_b32 s{HINT+1}, s{HINT+1}, s{HINT+2*x+1}")
            fin = f"s_cmp_lg_u32 s{HINT+1}, 0"
        else:
            tb, mask = (sB, 0x10001) if kind == 'b' else (sF, 0xff)
            for x, o in enumerate(offs): a(f"s_load_dwordx4 {sr(HINT+4*x)}, s[{SW}:{SW+1}], s{o} glc")
            a("s_waitcnt lgkmcnt(0)")
            for x in range(4*n):
                a(f"s_xor_b32 s{HINT+x}, s{HINT+x}, s{tb+(x&3)}")
                if x: a(f"s_or_b32 s{HINT}, s{HINT}, s{HINT+x}")
            fin = f"s_and_b32 s{HINT}, s{HINT}, {mask}"
        spin(label, "s_cbranch_scc1", fin)
    def tdelay(label, ticks):
        a(f"""s_waitcnt lgkmcnt(0)
        s_add_u32 s78, s80, {ticks}
        {label}:
        s_memrealtime s[76:77]
        s_waitcnt lgkmcnt(0)
        s_sub_u32 s77, s76, s78
        s_cmp_lt_i32 s77, 0
        s_cbranch_scc1 {label}""")
    def hint_offs(n, seed, modmask, shift, base, spread):
        for x in range(n):
            a(f"s_add_u32 s{30+x}, s{seed}, {x*spread}\ns_and_b32 s{30+x}, s{30+x}, {modmask}\ns_lshl_b32 s{30+x}, s{30+x}, {shift}\ns_add_u32 s{30+x}, s{30+x}, s{base}")
        return [30+x for x in range(n)]

    stamp(0)
    if P["calib"] or P["probe"] or P["lite"]: a("s_memrealtime s[80:81]")
    if P["probe"]: a("s_mov_b32 s84, 0\ns_mov_b32 s88, 0")
    a(f"s_load_dwordx2 s[{SQ}:{SQ+1}], s[0:1], 16")
    if P["prefetch"]:
        a(f"""s_cmp_ge_u32 s2, {P['pf_wgs']}
        s_cbranch_scc1 L_nopf
        s_getpc_b64 s[10:11]
        L_pc:
        v_lshlrev_b32 v4, 6, v0
        v_min_u32 v4, L_codeend - L_pc - 4, v4
        global_load_dword v255, v4, s[10:11]
        L_nopf:""")
    a(f"""s_load_dwordx2 s[{SX}:{SX+1}], s[0:1], 0
    s_load_dwordx2 s[{SK}:{SK+1}], s[0:1], 24
    s_load_dwordx2 s[{SC}:{SC+1}], s[0:1], 8
    s_load_dwordx2 s[{SW}:{SW+1}], s[0:1], 104
    v_lshrrev_b32 v1, 6, v0
    s_cmp_ge_u32 s2, 256
    s_cbranch_scc1 L_end
    v_readfirstlane_b32 s3, v1
    v_and_b32 v0, 63, v0
    s_and_b32 s4, s2, 7""")
    if P["role_bit"] == 0:
        a("s_bfe_u32 s6, s2, 0x10003\ns_lshr_b32 s5, s2, 4")
    elif P["role_bit"] == 2:
        a("s_bfe_u32 s6, s2, 0x10005\ns_bfe_u32 s5, s2, 0x20003\ns_lshr_b32 s7, s2, 6\ns_lshl2_add_u32 s5, s7, s5")
    else:
        a("s_lshr_b32 s6, s2, 7\ns_bfe_u32 s5, s2, 0x40003")
    a("s_lshr_b32 s7, s5, 2")
    if P["hmap"] == 0: a("s_lshl2_add_u32 s7, s4, s7")
    elif P["hmap"] == 1: a("s_lshl3_add_u32 s7, s7, s4")
    elif isinstance(P["hmap"], (list, tuple)):
        qp = list(P["hmap"]); xp = [p for p in range(5) if p not in qp]
        a("s_mov_b32 s9, s7\ns_mov_b32 s7, 0")
        for i, p in enumerate(xp): a(f"s_bfe_u32 s8, s4, {0x10000+i}\ns_lshl_b32 s8, s8, {p}\ns_or_b32 s7, s7, s8")
        for i, p in enumerate(qp): a(f"s_bfe_u32 s8, s9, {0x10000+i}\ns_lshl_b32 s8, s8, {p}\ns_or_b32 s7, s7, s8")
    elif P["hmap"] == 2: a("s_and_b32 s8, s7, 1\ns_lshr_b32 s7, s7, 1\ns_lshl3_add_u32 s7, s7, s4\ns_lshl1_add_u32 s7, s7, s8")
    a(f"""s_and_b32 s8, s5, 3
    s_lshl_b32 s17, s7, 8
    s_mov_b32 s{SQ+2}, {4<<20}
    s_mov_b32 s{SQ+3}, 0x20000
    v_and_b32 v2, 15, v0
    v_lshrrev_b32 v3, 4, v0
    s_cmp_eq_u32 s6, 0
    s_cbranch_scc1 L_WGT
    s_cmp_ge_u32 s3, 4
    s_cbranch_scc1 L_ATT_help""")
    if P["pq"]:
        a(f"""s_lshl_b32 s16, s3, 20
        s_lshl_b32 s18, s8, 15
        s_add_u32 s16, s16, s18
        s_add_u32 s16, s16, s17
        v_lshrrev_b32 v4, {3 if P["uk_first"] else 2}, v0
        v_lshlrev_b32 v4, 17, v4
        v_bfe_u32 v5, v0, 1, {2 if P["uk_first"] else 1}
        {"" if P["uk_first"] else "v_or_b32 v5, 2, v5"}
        v_lshl_add_u32 v4, v5, 13, v4
        v_and_b32 v5, 1, v0
        v_lshl_add_u32 v4, v5, 7, v4
        {"" if P["uk_first"] else "s_mov_b32 exec_hi, 0"}
        s_waitcnt lgkmcnt(0)
        buffer_load_dword v121, v4, {sr(SQ)}, s16 offen {P['pf_pol']}
        s_mov_b64 exec, -1""")
    a("s_branch L_ATT")

    def common():
        a("s_mov_b32 s28, 0")
        srd(SW, WS_REC)
        a("v_lshlrev_b32 v41, 5, v2\nv_lshl_add_u32 v41, v3, 4, v41")

    sect[0] = "A"
    PART = 0
    a("L_WGT:")
    srd(SX, 1024)
    a(f"""s_lshl_b32 s10, s3, 19
    s_lshl_b32 s11, s8, 15
    s_add_u32 s10, s10, s11
    s_add_u32 s10, s10, s17
    s_lshl_b32 s11, s3, 7
    v_lshlrev_b32 v4, 4, v0
    v_lshl_add_u32 v5, s8, 2, v2
    v_and_b32 v5, 15, v5
    v_lshl_add_u32 v5, v3, 4, v5
    v_lshlrev_b32 v5, 1, v5
    v_lshlrev_b32 v6, 17, v3
    v_lshl_add_u32 v6, v2, 4, v6
    s_movk_i32 s12, 0x2000""")
    def uk_loads():
        srd(SK, 4 << 20)
        a(f"""s_lshl3_add_u32 s13, s8, s3
        s_lshl_b32 s13, s13, 17
        s_add_u32 s13, s13, s17
        s_lshl_b32 s14, s3, 12
        s_add_u32 m0, s14, {X}
        v_lshlrev_b32 v50, 2, v3
        v_xor_b32 v50, v50, v2
        v_lshlrev_b32 v50, 4, v50
        v_lshl_add_u32 v48, v3, 13, v50""")
        for rg in range(4):
            if rg: a(f"v_xor_b32 v49, {16*rg}, v48\ns_addk_i32 m0, 0x400\ns_add_u32 s13, s13, 0x8000")
            a(f"buffer_load_dwordx4 v{49 if rg else 48}, {sr(SK)}, s13 offen {P['uk_pol']} lds")
    UK = 0 if P["uk_first"] else 4
    xl = [f"buffer_load_dwordx4 v[8:11], v4, {sr(SX)}, 0 offen", f"buffer_load_ushort v12, v5, {sr(SX)}, s11 offen"]
    if P["wpq"]:
        a(f"""v_bfe_u32 v7, v0, 1, 2
        v_lshlrev_b32 v7, 13, v7
        v_lshl_add_u32 v7, v3, 17, v7
        v_and_b32 v13, 1, v0
        v_lshl_add_u32 v7, v13, 7, v7""")
    a("s_waitcnt lgkmcnt(0)")
    for l in xl: a(l)
    if P["x_bar"]: a("s_barrier")
    if P["uk_first"]:
        uk_loads()
        if P["uk_first"] == 2: a("s_barrier")
    if P["wpq"]:
        a(f"""s_mov_b32 exec_lo, {0x000f000f if P["pq"] else 0x00ff00ff}
        s_mov_b32 exec_hi, {0x000f000f if P["pq"] else 0x00ff00ff}
        buffer_load_dword v254, v7, {sr(SQ)}, s10 offen
        s_mov_b64 exec, -1""")
        if P.get("wpq_bar"): a("s_barrier")
    for t in range(16):
        a(f"buffer_load_dwordx4 {vr(64+4*t)}, v6, {sr(SQ)}, s10 offen {P['first_pol'] if t < (2 if P['pq'] else 4) else P['wq_pol']}")
        if t < 15:
            if t & 3 == 3: a(f"s_cmp_eq_u32 s8, {3-(t>>2)}\ns_cselect_b32 s13, {(-15*8192) & 0xffffffff}, s12\ns_add_u32 s10, s10, s13")
            else: a("s_add_u32 s10, s10, s12")
        if t in P["wq_bars"]: a("s_barrier")
        if t == min(3, P["ln_at"]):
            ep_load()
            stamp(1)
            common()
            delta_masks(32, 36)
        if t == P["ln_at"]:
            a(f"s_waitcnt vmcnt({t+1 + (1 if P['wpq'] else 0) + 4 - UK})")
            if P["fine"]: stamp(5)
            ln_stats(8, 16, 24)
            a("v_lshlrev_b32 v12, 16, v12\nv_sub_f32 v12, v12, v24")
            rnd_bf16(12, 12)
            a("v_mul_f32 v12, v12, v25\nv_cvt_pk_bf16_f32 v12, v12, v12")
            a("s_cmp_lg_u32 s3, 3\ns_cbranch_scc1 L_noxn")
            for i in range(8): a(f"v_sub_f32 v{16+i}, v{16+i}, v24")
            for i in range(4): a(f"v_cvt_pk_bf16_f32 v{56+i}, v{16+2*i}, v{17+2*i}")
            for i in range(4): unpack2(16+2*i, 56+i)
            for i in range(8): a(f"v_mul_f32 v{16+i}, v{16+i}, v25")
            for i in range(4): a(f"v_cvt_pk_bf16_f32 v{56+i}, v{16+2*i}, v{17+2*i}")
            a("L_noxn:")
            if P["dpp_early"]:
                for t2 in range(16):
                    for dw in range(4):
                        a(f"v_and_b32_dpp v{128+4*t2+dw}, v12, v{32+dw} row_newbcast:{t2} {DPPM}")
    if P["fine"]: stamp(6)
    if not P["uk_first"]: uk_loads()
    a("s_lshl_b32 s12, s3, 9\nv_add_u32 v42, s12, v41")
    for t in range(16):
        for dw in range(4):
            if not P["dpp_early"]: a(f"v_and_b32_dpp v{128+4*t+dw}, v12, v{32+dw} row_newbcast:{t} {DPPM}")
        if t >= 1:
            a(f"s_waitcnt vmcnt({15-(t-1)+UK})")
            a(f"v_mfma_f32_16x16x32_bf16 v[44:47], {vr(128+4*(t-1))}, {vr(64+4*(t-1))}, {'0' if t == 1 else 'v[44:47]'}")
    a(f"s_waitcnt vmcnt({UK})\nv_mfma_f32_16x16x32_bf16 v[44:47], {vr(128+60)}, {vr(64+60)}, v[44:47]")
    a("s_waitcnt lgkmcnt(0)")
    tags(True)
    a(f"""s_mov_b32 exec_hi, 0
    ds_write_b128 v42, v[44:47] offset:{PART}
    s_mov_b64 exec, -1""")
    stamp(2)
    a("""s_sub_u32 s9, s3, 5
    s_cmp_lt_u32 s9, 2
    s_cbranch_scc1 L_A2
    s_waitcnt vmcnt(0) lgkmcnt(0)
    s_barrier
    s_cmp_lt_u32 s3, 4
    s_cbranch_scc1 L_S1
    s_branch L_WO""")
    a("L_A2:")
    a(f"""s_lshl_b32 s12, s9, 14
    s_add_u32 s12, s12, {X}
    v_and_b32 v4, 3, v0
    v_bfe_u32 v5, v0, 2, 2
    v_lshl_or_b32 v6, v4, 2, v5
    v_xor_b32 v6, v6, v3
    v_lshlrev_b32 v6, 4, v6
    v_lshl_add_u32 v6, v5, 10, v6
    v_lshl_add_u32 v6, v4, 8, v6
    v_add_u32 v10, s12, v6
    v_xor_b32 v11, 64, v10
    v_xor_b32 v12, 0x80, v10
    v_xor_b32 v13, 0xc0, v10
    s_lshl_b32 s13, s9, 8
    s_add_u32 s13, s13, 8192
    v_lshl_add_u32 v5, v3, 4, s13
    v_and_b32 v14, 31, v0
    v_lshl_add_u32 v14, v14, 3, s13
    v_lshlrev_b32 v15, 4, v0
    s_lshl1_add_u32 s11, s8, s9
    s_lshl_b32 s11, s11, 7
    s_lshl_b32 s10, s7, 10
    s_add_u32 s10, s10, s11
    s_add_u32 s10, s10, {QL}
    v_lshlrev_b32 v4, 1, v0
    v_cmp_eq_u32 s[14:15], 1, v3
    v_cmp_eq_u32 s[16:17], 2, v3
    v_cmp_eq_u32 s[18:19], 3, v3
    v_bfe_u32 v7, v0, 1, 2
    v_add_u32 v7, s{sF}, v7
    v_and_b32 v8, 1, v0
    v_lshrrev_b32 v7, v8, v7
    v_and_b32 v7, 1, v7
    v_xor_b32 v8, 1, v7
    v_lshlrev_b32 v8, 16, v8
    s_waitcnt vmcnt(0) lgkmcnt(0)""")
    stamp(3)
    a("s_barrier")
    for u in range(4): a(f"ds_read_b128 {vr(128+4*u)}, v15 offset:{PART + 1024*u}")
    fr = [(T, t) for t in range(4) for T in range(4)]
    for (T, t) in fr[:11]: a(f"ds_read_b128 {vr(64+16*T+4*t)}, v{10+t} offset:{4096*T}")
    a("s_waitcnt lgkmcnt(11)")
    a("""v_pk_add_f32 v[128:129], v[128:129], v[132:133]
    v_pk_add_f32 v[130:131], v[130:131], v[134:135]
    v_pk_add_f32 v[136:137], v[136:137], v[140:141]
    v_pk_add_f32 v[138:139], v[138:139], v[142:143]
    v_pk_add_f32 v[128:129], v[128:129], v[136:137]
    v_pk_add_f32 v[130:131], v[130:131], v[138:139]""")
    for q in range(4): a(f"v_mov_b32 v{132+q}, v{128+q}")
    for q in range(4): a(f"v_permlane32_swap_b32 v{132+q}, v{128+q}")
    a("""v_pk_add_f32 v[128:129], v[128:129], v[132:133]
    v_pk_add_f32 v[130:131], v[130:131], v[134:135]
    v_cvt_pk_bf16_f32 v128, v128, v129
    v_cvt_pk_bf16_f32 v129, v130, v131
    ds_write_b64 v14, v[128:129]""")
    for t in range(4): a(f"ds_read_b128 {vr(16+4*t)}, v5 offset:{64*t}")
    for (T, t) in fr[11:]: a(f"ds_read_b128 {vr(64+16*T+4*t)}, v{10+t} offset:{4096*T}")
    for t in range(4):
        a(f"s_waitcnt lgkmcnt({[8, 7, 4, 0][t]})")
        for T in range(4):
            a(f"v_mfma_f32_16x16x32_bf16 {vr(32+4*T)}, {vr(16+4*t)}, {vr(64+16*T+4*t)}, {'0' if t == 0 else vr(32+4*T)}")
    qs = math.log2(math.e) / math.sqrt(128.0)
    a(f"""v_cndmask_b32 v9, v32, v36, s[14:15]
    v_cndmask_b32 v9, v9, v40, s[16:17]
    v_cndmask_b32 v9, v9, v44, s[18:19]
    v_mul_f32 v9, {f2u(qs)}, v9
    v_add_u32 v9, v9, v8
    v_lshrrev_b32 v9, 17, v9
    v_lshl_or_b32 v9, v9, 1, v7
    s_nop 0""")
    if P["ql_delay"]:
        a("s_barrier")
        for _ in range(P["ql_delay"]): a("s_sleep 8")
    a(f"buffer_store_short v9, v4, {sr(SW)}, s10 offen sc1")
    stamp(4)
    if P["ql_delay"]: a(f"s_load_dwordx2 s[{SG}:{SG+1}], s[0:1], 40\ns_branch L_WO1")
    a("s_branch L_WO")

    sect[0] = "C"
    PX, MX, LX, FX = X, X + 8192, X + 9216, X + 12288
    a("L_ATT:")
    a("s_lshl4_add_u32 s9, s4, s5")
    srd(SC, 16 << 20); srd(SK, 4 << 20)
    common()
    a(f"""s_lshl2_add_u32 s10, s9, s3
    s_lshl_b32 s10, s10, 15
    s_lshl_b32 s11, s3, 13
    v_lshlrev_b32 v4, 2, v3
    v_xor_b32 v4, v4, v2
    v_lshlrev_b32 v4, 4, v4
    v_lshl_add_u32 v32, v3, 10, v4
    v_xor_b32 v33, 32, v32
    v_xor_b32 v34, 16, v32
    v_xor_b32 v35, 48, v32
    s_mov_b32 m0, s11
    s_lshl2_add_u32 s18, s8, s3
    s_lshl_b32 s18, s18, 18
    s_add_u32 s18, s18, s17
    v_lshrrev_b32 v4, 1, v0
    v_and_b32 v5, 1, v0
    v_lshlrev_b32 v5, 7, v5
    v_lshl_add_u32 v126, v4, 13, v5
    s_waitcnt lgkmcnt(0)""")
    seq = []
    def c_pos(n):
        G = P["rgmajor"]
        return (n // (8*G))*G + n % G, (n % (8*G)) // G
    def c_load(n):
        cb, rg = c_pos(n)
        a(f"buffer_load_dwordx4 v{32+(rg&3)}, {sr(SC)}, s10 offen {'nt' if n < 32 - P['c_keep'] else ''} lds")
        seq.append(n)
        if n < 31:
            cb2, rg2 = c_pos(n+1)
            dm = (cb2-cb)*32768 + (rg2-rg)*1024; dg = (cb2-cb)*256 + (rg2-rg)*4096
            a("s_add_u32 m0, m0, s15" if dm == 32768 else (f"s_addk_i32 m0, {dm}" if -32768 <= dm < 32768 else f"s_add_u32 m0, m0, {dm & 0xffffffff}"))
            a(f"s_addk_i32 s10, {dg}")
        if n == P["q_at"]: a("ds_write_b32 v125, v125")
    def c_wait(n): a(f"s_waitcnt vmcnt({len(seq) - 1 - seq.index(n)})")
    if P["pq"]: seq.append("pq")
    if not P["pk_late"] and not P["uk_first"]:
        a(f"buffer_load_dword v127, v126, {sr(SK)}, s18 offen"); seq.append("pk")
    a("s_mov_b32 s15, 0x8000")
    issued = 0
    for n in range(P["pf_ramp"][0]): c_load(n); issued += 1
    a(f"""s_lshl_b32 s16, s3, 12
    s_add_u32 s16, s16, {X}
    v_mov_b32 v125, s16
    v_mov_b32 v124, 0
    ds_write_b32 v125, v124""")
    ep_load()
    if P["zpf"]:
        a(f"""s_load_dwordx2 s[{SG}:{SG+1}], s[0:1], 40
        s_load_dwordx2 s[{SQ}:{SQ+1}], s[0:1], 72
        s_load_dwordx2 s[72:73], s[0:1], 32
        s_lshl2_add_u32 s19, s9, s3
        s_lshl_b32 s19, s19, 12
        s_lshl2_add_u32 s29, s7, s8
        s_lshl2_add_u32 s29, s29, s3
        s_lshl_b32 s29, s29, 13
        v_lshlrev_b32 v120, 7, v0""")
        srd(SG, 4 << 20); srd(SQ, 1792*512*2); srd(72, 4 << 20)
    stamp(1)
    a(f"""v_and_b32 v4, 3, v0
    v_lshrrev_b32 v1, 5, v0
    v_bfe_u32 v5, v0, 2, 1
    v_lshl_or_b32 v5, v4, 1, v5
    v_bfe_u32 v6, v0, 3, 1
    v_lshl_or_b32 v5, v5, 1, v6
    v_xor_b32 v5, v5, v1
    v_lshlrev_b32 v5, 4, v5
    v_bfe_u32 v6, v0, 2, 3
    v_lshl_add_u32 v5, v6, 10, v5
    v_lshl_add_u32 v5, v4, 8, v5
    v_add_u32 v8, s11, v5
    v_xor_b32 v5, v2, v1
    v_lshlrev_b32 v5, 4, v5
    v_and_b32 v4, 31, v0
    v_lshl_add_u32 v5, v4, 10, v5
    v_add_u32 v16, {X}, v5""")
    for x in range(1, 8): a(f"v_xor_b32 v{8+x}, {32*x}, v8\nv_xor_b32 v{16+x}, {32*x}, v16")
    for x in range(8): a(f"v_add_u32 v{24+x}, 0x10000, v{8+x}")
    a(f"""v_lshlrev_b32 v6, 4, v4
    v_add_u32 v96, {MX}, v6
    v_lshl_add_u32 v6, v1, 9, v6
    s_lshl2_add_u32 s13, s3, {MX}
    v_add_u32 v97, s13, v6
    s_lshl_b32 s13, s3, 11
    s_add_u32 s13, s13, {PX}
    v_lshl_add_u32 v99, v0, 4, s13
    s_waitcnt lgkmcnt(0)""")
    if P["pk_late"] == "ep" and not P["uk_first"]:
        a(f"buffer_load_dword v127, v126, {sr(SK)}, s18 offen"); seq.append("pk")
    tags(False)
    lq = []
    def lop(text, key): a(text); lq.append(key)
    def lwait(items):
        last = max([i for i, x in enumerate(lq) if x in items], default=-1)
        if last >= 0: a(f"s_waitcnt lgkmcnt({min(15, len(lq) - 1 - last)})")
        del lq[:last+1]
    def c_read(cb):
        for t in range(8*cb, 8*cb+8):
            a(f"ds_read_b128 {vr(128+4*t)}, v{(8 if cb < 2 else 24) + (t&7)} offset:{32768*(cb&1)}")
    def blk_done(b): return max(n for n in range(32) if c_pos(n)[0] == b) + 1 if b < 4 else 99
    for key, d in (("pq", P["pf_ramp"][1]), ("pk", P["pf_ramp"][2])):
        if key in seq: c_wait(key)
        while issued < d: c_load(issued); issued += 1
    landed = 0; pre = 0
    while issued < 32:
        c_wait(landed); landed += 1
        while issued < 32 and issued - landed < P["pf_ramp"][2]:
            c_load(issued); issued += 1
        if landed == P["bi_at"]: a("s_barrier")
        if landed >= blk_done(pre): c_read(pre); pre += 1
    stamp(2)
    if P["zpf"]:
        a("s_barrier")
        if P["zpf"] & 1: a(f"buffer_load_dword v121, v120, {sr(SG)}, s29 offen"); seq.append("z1")
        if P["zpf"] & 2: a(f"s_mov_b32 exec_hi, 0\nbuffer_load_dword v122, v120, {sr(SQ)}, s19 offen\ns_mov_b64 exec, -1"); seq.append("z2")
        if P["zpf"] & 4: a(f"buffer_load_dword v123, v126, {sr(72)}, s18 offen"); seq.append("z4")
    while pre < 4:
        c_wait(blk_done(pre) - 1)
        if pre == 3 and P["tr_pre"]: a("s_barrier")
        c_read(pre); pre += 1
    a(f"s_setprio {P['qk_prio']}\ns_barrier")
    stamp(3)
    NS = 8
    def q_read(t): lop(f"ds_read_b128 {vr(32+4*(t % NS))}, v{16+(t&7)} offset:{256*(t>>3)}", ("Q", t))
    rd = 0
    for t in range(32):
        while rd < min(32, t + P["q_ah"] + 1): q_read(rd); rd += 1
        if t == P["ba_at"]:
            assert rd == 32
            a("s_waitcnt lgkmcnt(0)"); del lq[:]
            stamp(4)
            a("s_barrier")
        lwait([("Q", t)])
        a(f"v_mfma_f32_32x32x16_bf16 {vr(64,16)}, {vr(128+4*t)}, {vr(32+4*(t % NS))}, {'0' if t == 0 else vr(64,16)}")
    stamp(5); fs(1)
    a(f"""v_max3_f32 v4, v64, v65, v66
    v_max3_f32 v5, v67, v68, v69
    v_max3_f32 v6, v70, v71, v72
    v_max3_f32 v7, v73, v74, v75
    v_max3_f32 v4, v4, v76, v77
    v_max3_f32 v5, v5, v78, v79
    v_max3_f32 v4, v4, v5, v6
    v_max_f32 v20, v4, v7
    ds_write_b32 v97, v20""")
    fs(2)
    for r in range(0, 16, 2):
        a(f"v_pk_add_f32 {vr(64+r,2)}, {vr(64+r,2)}, v[20:21] op_sel_hi:[1,0] neg_lo:[0,1] neg_hi:[0,1]")
    for r in range(16):
        if r == P["bb_at"]:
            a("s_waitcnt lgkmcnt(0)"); fs(3)
            a("s_barrier"); fs(4)
            a("ds_read_b128 v[8:11], v96\nds_read_b128 v[12:15], v96 offset:512")
        a(f"v_exp_f32 v{64+r}, v{64+r}")
    a("s_waitcnt lgkmcnt(0)"); fs(5)
    a("""v_max3_f32 v4, v8, v9, v10
    v_max3_f32 v5, v11, v12, v13
    v_max3_f32 v4, v4, v14, v15
    v_max_f32 v8, v4, v5
    v_sub_f32 v20, v20, v8
    v_exp_f32 v20, v20""")
    for hf in range(2):
        for r in range(8*hf, 8*hf+8, 2):
            a(f"v_pk_mul_f32 {vr(64+r,2)}, {vr(64+r,2)}, v[20:21] op_sel_hi:[1,0]")
        for r in range(8*hf, 8*hf+8, 2):
            a(f"v_cvt_pk_bf16_f32 v{80+r//2}, v{64+r}, v{65+r}")
        a(f"ds_write_b128 v99, {vr(80+4*hf)} offset:{1024*hf}")
    fs(6)
    a("""v_pk_add_f32 v[64:65], v[64:65], v[66:67]
    v_pk_add_f32 v[68:69], v[68:69], v[70:71]
    v_pk_add_f32 v[72:73], v[72:73], v[74:75]
    v_pk_add_f32 v[76:77], v[76:77], v[78:79]
    v_pk_add_f32 v[64:65], v[64:65], v[68:69]
    v_pk_add_f32 v[72:73], v[72:73], v[76:77]
    s_waitcnt lgkmcnt(0)""")
    fs(7)
    a("""s_setprio 0
    s_barrier""")
    stamp(6); fs(8)
    a("""v_add_f32 v64, v64, v65
    v_add_f32 v72, v72, v73
    v_add_f32 v64, v64, v72
    ds_write_b32 v97, v64 offset:1024
    s_waitcnt lgkmcnt(0)
    s_barrier""")
    a("s_setprio 0\ns_cmp_lg_u32 s3, 0\ns_cbranch_scc1 L_FIN")
    a(f"""ds_read_b128 v[32:35], v96 offset:1024
    ds_read_b128 v[36:39], v96 offset:1536
    v_lshlrev_b32 v5, 4, v0
    v_mov_b32 v9, s{sF}
    v_mov_b32 v11, s{sF}
    s_lshl_b32 s12, s9, 9
    s_add_u32 s12, s12, {ST}
    s_waitcnt lgkmcnt(0)
    v_add_f32 v32, v32, v33
    v_add_f32 v34, v34, v35
    v_add_f32 v36, v36, v37
    v_add_f32 v38, v38, v39
    v_add_f32 v32, v32, v34
    v_add_f32 v36, v36, v38
    v_add_f32 v10, v32, v36
    s_mov_b32 exec_hi, 0
    buffer_store_dwordx4 v[8:11], v5, {sr(SW)}, s12 offen sc1
    s_mov_b64 exec, -1""")
    stamp(7)

    sect[0] = "F"
    a("L_FIN:")
    if P["cyc"]: a("s_barrier")
    if P["fin"] == "old":
        a(f"""s_cmp_lt_u32 s5, 14
        s_cbranch_scc1 L_exit
        s_load_dwordx2 s[{SC}:{SC+1}], s[0:1], 80
        s_load_dwordx2 s[{SQ}:{SQ+1}], s[0:1], 88
        s_sub_u32 s10, s5, 14
        s_lshl1_add_u32 s10, s4, s10
        s_lshl_b32 s11, s10, 7
        s_lshl_b32 s12, s3, 16
        s_add_u32 s11, s11, s12
        s_add_u32 s11, s11, {DP}
        s_add_u32 s12, s11, 0x4000
        s_add_u32 s13, s11, 0x8000
        s_add_u32 s14, s11, 0xc000
        s_lshl_b32 s16, s10, 6
        v_lshrrev_b32 v4, 3, v0
        v_and_b32 v5, 7, v0
        v_lshlrev_b32 v4, 11, v4
        v_lshl_add_u32 v4, v5, 4, v4
        v_lshlrev_b32 v12, 4, v5
        v_add_u32 v12, {FX}, v12
        s_lshl_b32 s17, s3, 7
        v_add_u32 v13, s17, v12
        v_lshlrev_b32 v5, 3, v5
        v_mov_b32 v6, 0xff""")
        srd(SX, 1024); srd(SC, 1024); srd(SQ, 1024)
        a(f"""s_waitcnt lgkmcnt(0)
        buffer_load_dwordx2 v[14:15], v5, {sr(SX)}, s16 offen
        buffer_load_dwordx2 v[16:17], v5, {sr(SC)}, s16 offen""")
        if P["out_touch"]: a(f"buffer_load_dwordx2 v[30:31], v5, {sr(SQ)}, s16 offen {P['out_touch']}")
        a("s_waitcnt vmcnt(0)")
        unpack2(20, 14); unpack2(22, 15); unpack2(24, 16); unpack2(26, 17)
        a("v_pk_add_f32 v[20:21], v[20:21], v[24:25]\nv_pk_add_f32 v[22:23], v[22:23], v[26:27]")
        a("L_fin:")
        for x in range(4): a(f"buffer_load_dwordx4 {vr(64+4*x)}, v4, {sr(SW)}, s{11+x} offen {P['fin_pol']}")
        for x in range(4):
            a(f"s_waitcnt vmcnt({3-x})")
            check(7, 64+4*x, 4, sF, x == 0)
            if x: a(f"v_pk_add_f32 v[64:65], v[64:65], {vr(64+4*x,2)}\nv_pk_add_f32 v[66:67], v[66:67], {vr(66+4*x,2)}")
        a("v_and_b32 v7, v6, v7\nv_cmp_ne_u32 vcc, 0, v7")
        spin("L_fin", "s_cbranch_vccnz")
        for q in range(4): a(f"v_add_f32_dpp v{64+q}, v{64+q}, v{64+q} row_ror:8 {DPPM}")
        for sw in ("v_permlane16_swap_b32", "v_permlane32_swap_b32"):
            for q in range(4): a(f"v_mov_b32 v{68+q}, v{64+q}")
            for q in range(4): a(f"{sw} v{68+q}, v{64+q}")
            a("v_pk_add_f32 v[64:65], v[64:65], v[68:69]\nv_pk_add_f32 v[66:67], v[66:67], v[70:71]")
        a(f"""s_mov_b64 exec, 0xff
        ds_write_b128 v13, v[64:67]
        s_waitcnt lgkmcnt(0)
        s_barrier
        s_cmp_lg_u32 s3, 0
        s_cbranch_scc1 L_exit""")
        for x in range(1, 4): a(f"ds_read_b128 {vr(64+4*x)}, v12 offset:{128*x}")
        a("v_pk_add_f32 v[20:21], v[20:21], v[64:65]\nv_pk_add_f32 v[22:23], v[22:23], v[66:67]\ns_waitcnt lgkmcnt(0)")
        stamp(8)
        a(f"""v_pk_add_f32 v[68:69], v[68:69], v[72:73]
        v_pk_add_f32 v[70:71], v[70:71], v[74:75]
        v_pk_add_f32 v[20:21], v[20:21], v[76:77]
        v_pk_add_f32 v[22:23], v[22:23], v[78:79]
        v_pk_add_f32 v[20:21], v[20:21], v[68:69]
        v_pk_add_f32 v[22:23], v[22:23], v[70:71]
        v_cvt_pk_bf16_f32 v12, v20, v21
        v_cvt_pk_bf16_f32 v13, v22, v23
        buffer_store_dwordx2 v[12:13], v5, {sr(SQ)}, s16 offen {P['out_pol']}
        s_cmp_lg_u32 s10, 0
        s_cbranch_scc1 L_fin_done
        s_mov_b64 exec, 1
        {"s_mov_b32 s88, 1" if P["probe"] else ""}
        v_mov_b32 v14, s{sF}
        buffer_store_dword v14, v5, {sr(SW)}, 0 offen offset:{EP} {P['out_pol']}
        L_fin_done:
        s_mov_b64 exec, -1""")
    else:
        nw = P["fin"]
        k0 = 16 - 4 // nw
        a(f"""s_cmp_lt_u32 s5, {k0}
        s_cbranch_scc1 L_exit
        s_sub_u32 s12, 3, s3
        s_cmp_ge_u32 s12, {nw}
        s_cbranch_scc1 L_exit
        s_load_dwordx2 s[{SC}:{SC+1}], s[0:1], 80
        s_load_dwordx2 s[{SQ}:{SQ+1}], s[0:1], 88
        s_sub_u32 s10, s5, {k0}
        s_mul_i32 s10, s10, {nw}
        s_add_u32 s10, s10, s12
        s_lshl2_add_u32 s10, s4, s10
        s_lshl_b32 s11, s10, 6
        s_add_u32 s64, s11, {DP}""")
        for x in range(1, 8): a(f"s_add_u32 s{64+x}, s64, {0x8000*x}")
        a(f"""s_lshl_b32 s16, s10, 5
        v_lshrrev_b32 v4, 2, v0
        v_and_b32 v5, 3, v0
        v_lshlrev_b32 v4, 11, v4
        v_lshl_add_u32 v4, v5, 4, v4
        v_lshl_add_u32 v5, v5, 2, v3
        v_lshlrev_b32 v5, 1, v5
        v_mov_b32 v6, 0xff""")
        srd(SX, 1024); srd(SC, 1024); srd(SQ, 1024)
        a(f"""s_waitcnt lgkmcnt(0)
        buffer_load_ushort v14, v5, {sr(SX)}, s16 offen
        buffer_load_ushort v15, v5, {sr(SC)}, s16 offen""")
        if P["out_touch"]: a(f"buffer_load_ushort v30, v5, {sr(SQ)}, s16 offen {P['out_touch']}")
        a("""s_waitcnt vmcnt(0)
        v_lshlrev_b32 v14, 16, v14
        v_lshlrev_b32 v15, 16, v15
        v_add_f32 v14, v14, v15
        L_fin:""")
        for x in range(8): a(f"buffer_load_dwordx4 {vr(64+4*x)}, v4, {sr(SW)}, s{64+x} offen {P['fin_pol']}")
        for x in range(8):
            a(f"s_waitcnt vmcnt({7-x})")
            check(7, 64+4*x, 4, sF, x == 0)
            if x: a(f"v_pk_add_f32 v[64:65], v[64:65], {vr(64+4*x,2)}\nv_pk_add_f32 v[66:67], v[66:67], {vr(66+4*x,2)}")
        a("v_and_b32 v7, v6, v7\nv_cmp_ne_u32 vcc, 0, v7")
        a("v_permlane32_swap_b32 v64, v66\nv_permlane32_swap_b32 v65, v67")
        spin("L_fin", "s_cbranch_vccnz")
        stamp(8)
        a(f"""v_pk_add_f32 v[64:65], v[64:65], v[66:67]
        v_permlane16_swap_b32 v64, v65
        v_add_f32 v64, v64, v65
        v_add_f32_dpp v64, v64, v64 row_ror:4 {DPPM}
        v_add_f32_dpp v64, v64, v64 row_ror:8 {DPPM}
        v_add_f32 v64, v64, v14
        v_cvt_pk_bf16_f32 v64, v64, v64
        s_mov_b32 exec_lo, 0x000f000f
        s_mov_b32 exec_hi, 0x000f000f
        buffer_store_short v64, v5, {sr(SQ)}, s16 offen {P['out_pol']}
        s_cmp_lg_u32 s10, 0
        s_cbranch_scc1 L_fin_done
        s_mov_b64 exec, 1
        {"s_mov_b32 s88, 1" if P["probe"] else ""}
        v_mov_b32 v14, s{sF}
        buffer_store_dword v14, v5, {sr(SW)}, 0 offen offset:{EP} {P['out_pol']}
        L_fin_done:
        s_mov_b64 exec, -1""")
    if P["lite"]:
        a(f"""s_waitcnt vmcnt(0)
        s_memrealtime s[82:83]
        s_lshl_b32 s10, s10, {4 if P["fin"] == "old" else 3}
        s_add_u32 s10, s10, {STAMP}
        s_waitcnt lgkmcnt(0)
        v_mov_b32 v4, 0
        v_mov_b32 v8, s80
        v_mov_b32 v9, s82
        v_mov_b32 v10, s80
        v_mov_b32 v11, s82
        {"buffer_store_dwordx4 v[8:11]" if P["fin"] == "old" else "buffer_store_dwordx2 v[8:9]"}, v4, {sr(SW)}, s10 offen""")
    if diag:
        a("s_waitcnt vmcnt(0)"); stamp(9)
    a("s_branch L_exit")

    sect[0] = "H"
    a("L_ATT_help:")
    common()
    a("s_waitcnt lgkmcnt(0)")
    ep_load()
    a(f"""s_lshl4_add_u32 s9, s4, s5
    s_sub_u32 s10, s3, 4
    s_lshl_b32 s11, s10, 12
    s_add_u32 s12, s11, {QL}
    s_add_u32 s13, s11, {X}
    s_lshl_b32 s14, s10, 6
    v_lshlrev_b32 v4, 4, v0
    v_add_u32 v5, s13, v4
    v_xor_b32 v8, s14, v4
    v_xor_b32 v9, 16, v8
    v_xor_b32 v10, 32, v8
    v_xor_b32 v11, 48, v8
    v_mov_b32 v6, 0x10001""")
    a(f"""v_bfe_u32 v4, v0, 2, 2
    v_bfe_u32 v7, v0, 4, 1
    v_bfe_u32 v12, v0, 1, 1
    v_lshl_or_b32 v12, v7, 1, v12
    v_lshl_or_b32 v12, v4, 2, v12
    v_lshlrev_b32 v12, 4, v12
    v_lshl_add_u32 v12, v4, 8, v12
    v_lshl_add_u32 v12, v7, 10, v12
    v_lshrrev_b32 v13, 5, v0
    v_lshl_add_u32 v12, v13, 12, v12
    v_and_b32 v4, 1, v0
    v_lshl_add_u32 v12, v4, 3, v12
    s_lshl_b32 s14, s10, 15
    v_add_u32 v24, s14, v12
    v_lshlrev_b32 v4, 4, v2
    v_lshl_add_u32 v1, v3, 19, v4
    v_lshl_add_u32 v4, v7, 9, v4
    v_lshl_add_u32 v4, v13, 10, v4
    v_add_u32 v98, {PX}, v4
    s_lshl_b32 s15, s9, 8
    s_add_u32 s14, s14, s15
    s_add_u32 s14, s14, {BP}""")
    for n in range(8):
        if n: a(f"v_xor_b32 v{24+n}, {32*n}, v24")
        a(f"v_xor_b32 v{100+n}, {32*n + 16}, v24")
    for hh in range(2):
        for r in range(4):
            a(f"s_add_u32 s{64+4*hh+r}, s14, {(16*hh + r)*131072}")
    a("s_waitcnt lgkmcnt(0)")
    tags(True)
    if P["tlb"]:
        a(f"""v_lshlrev_b32 v4, 20, v0
        s_mov_b64 exec, 15
        buffer_load_dword v110, v4, {sr(SW)}, s64 offen nt
        s_mov_b64 exec, -1""")
    a("s_barrier")
    a(f"""v_mov_b32 v16, s13
    L_qtrig:
    ds_read_b32 v17, v16
    s_waitcnt lgkmcnt(0)
    v_cmp_eq_u32 vcc, 0, v17
    s_sleep 1
    s_add_u32 s28, s28, 0x10000
    s_cbranch_scc1 L_exit
    s_cbranch_vccnz L_qtrig
    s_and_b32 s28, s28, 0xffff""")
    stamp(4)
    if P["q_prio"]: a("s_setprio 3")
    def qoff(r): return 1024*(r & 3) + 16384*(r >> 2)
    def q_dma(r): a(f"s_add_u32 m0, s13, {qoff(r)}\ns_add_u32 s15, s12, {qoff(r)}\nbuffer_load_dwordx4 v{8+(r&3)}, {sr(SW)}, s15 offen sc1 lds")
    for r in range(8): q_dma(r)
    if P["zpf"]: a("s_barrier")
    fr = [(n, w) for n in range(8) for w in range(4)]
    def tr_read(n, w):
        for sec in range(2):
            a(f"ds_read_b64_tr_b16 {vr(128+16*n+4*w+2*sec,2)}, v{(100 if sec else 24)+n} offset:{8192*w + 2048*sec}")
    if P["tr_pre"]:
        a("s_barrier")
        for (n, w) in fr[:P["tr_pre"]]: tr_read(n, w)
    for r in range(8):
        a(f"s_waitcnt vmcnt({7-r})\nds_read_b128 {vr(64+4*r)}, v5 offset:{qoff(r)}")
        if r: a("s_waitcnt lgkmcnt(1)"); check(7, 64+4*(r-1), 4, sB, r == 1)
    a("s_waitcnt lgkmcnt(0)")
    check(7, 64+28, 4, sB, False)
    a("v_and_b32 v7, v6, v7\nv_cmp_ne_u32 vcc, 0, v7\ns_cbranch_vccz L_qok\ns_mov_b32 s16, 0")
    a("L_qfetch:")
    for r in range(8):
        a(f"s_bitcmp1_b32 s16, {r}\ns_cbranch_scc0 L_qs{r}")
        q_dma(r)
        a(f"L_qs{r}:")
    a("s_waitcnt vmcnt(0)")
    for r in range(8): a(f"ds_read_b128 {vr(64+4*r)}, v5 offset:{qoff(r)}")
    a("s_mov_b32 s16, 0")
    for r in range(8):
        a(f"s_waitcnt lgkmcnt({7-r})")
        check(7, 64+4*r, 4, sB, True)
        a(f"v_and_b32 v7, v6, v7\nv_cmp_ne_u32 vcc, 0, v7\ns_cmp_lg_u64 vcc, 0\ns_cselect_b32 s17, {1<<r}, 0\ns_or_b32 s16, s16, s17")
    spin("L_qfetch", "s_cbranch_scc1", "s_cmp_lg_u32 s16, 0")
    a("L_qok:")
    stamp(5)
    a(f"s_setprio {P['pv_prio']}\ns_barrier")
    for i_, (n, w) in enumerate(fr):
        if i_ == P["tr_split"][0]: a("s_barrier")
        if i_ == P["tr_split"][1]: a("s_barrier")
        if i_ >= P["tr_pre"]: tr_read(n, w)
    if P["cyc"]: stamp(2)
    for x in P["tr_split"]:
        if x >= 32: a("s_barrier")
    a("s_setprio 0\ns_waitcnt lgkmcnt(0)\ns_barrier")
    stamp(6)
    del lq[:]
    def p_read(hh, w): lop(f"ds_read_b128 {vr(32+16*hh+4*w)}, v98 offset:{2048*w + 256*hh}", ("P", hh, w))
    for w in range(4): p_read(0, w)
    def outblk(hh, r): return (8 if hh == 0 else 64) + 4*r
    def pack(hh, q):
        L = []
        for r in range(4):
            o = outblk(hh, r) + q
            L += [f"v_cvt_pk_bf16_f32 v{o}, v{64+32*hh+8*q+r}, v{64+32*hh+8*q+4+r}", f"v_bfi_b32 v{o}, v6, s{sB+q}, v{o}"]
        return L
    def ostore(hh, r): return f"buffer_store_dwordx4 {vr(outblk(hh, r))}, v1, {sr(SW)}, s{64+4*hh+r} offen sc1"
    order = [(hh, n, w) for hh in range(2) for n in range(8) for w in range(4)]
    GAP = 3
    F = []
    for q in range(3): F += [(8*q + 7 + GAP, l) for l in pack(0, q)]
    for r in range(4):
        F += [(31 + GAP + P["st_gap"]*r, l) for l in pack(0, 3)[2*r:2*r+2]] + [(0, ostore(0, r))]
    G2 = []
    for q in range(3): G2 += [(32 + 8*q + 7 + GAP, l) for l in pack(1, q)]
    for i_, (hh, n, w) in enumerate(order):
        lwait([("P", hh, w)])
        acc = 64 + 32*hh + 4*n
        a(f"v_mfma_f32_16x16x32_bf16 {vr(acc)}, {vr(32+16*hh+4*w)}, {vr(128+16*n+4*w)}, {'0' if w == 0 else vr(acc)}")
        if i_ == P["bd_at"]: a("s_barrier")
        if 3 <= i_ < 7: p_read(1, i_ - 3)
        if P["cyc"] and i_ == 31: stamp(1)
        used = 0
        while used < 2:
            if F and F[0][0] <= i_:
                l = F.pop(0)[1]; a(l); used += 0 if "store" in l else 1
            elif G2 and G2[0][0] <= i_ and not any("v64," in x[1] or True for x in F if "store" not in x[1] and x[0] <= 31 + GAP - 1):
                a(G2.pop(0)[1]); used += 1
            else: break
    stamp(7)
    for f in F + G2: a(f[1])
    pk = pack(1, 3)
    for r in range(4):
        a(pk[2*r]); a(pk[2*r+1]); a(ostore(1, r))
    stamp(8)
    if diag:
        a("s_waitcnt vmcnt(0)"); stamp(9)
    a("s_branch L_exit")

    sect[0] = "S"
    a("L_S1:")
    a(f"""s_load_dwordx2 s[{SG}:{SG+1}], s[0:1], 32
    s_load_dwordx2 s[{SX}:{SX+1}], s[0:1], 56
    s_load_dwordx2 s[{SQ}:{SQ+1}], s[0:1], 72
    s_load_dwordx2 s[{SK}:{SK+1}], s[0:1], 64""")
    srd(SX, 512*1792*2); srd(SQ, 1792*512*2); srd(SK, 1792*2)
    srd(SG, 4 << 20)
    a(f"""v_lshlrev_b32 v5, 17, v3
    v_lshlrev_b32 v6, 2, v3
    v_xor_b32 v6, v6, v2
    v_lshl_add_u32 v4, v6, 4, v5
    v_xor_b32 v26, 32, v4
    s_lshl_b32 s10, s8, 5
    s_add_u32 s10, s10, s3
    s_lshl_b32 s10, s10, 15
    s_lshl_b32 s11, s7, 8
    s_add_u32 s10, s10, s11
    s_lshl_b32 s11, s3, 13
    s_add_u32 s11, s11, {X}""")
    a(f"""v_bfe_u32 v6, v0, 2, 2
    v_bfe_u32 v7, v0, 4, 1
    v_bfe_u32 v5, v0, 1, 1
    v_lshl_or_b32 v7, v7, 1, v5
    v_lshl_or_b32 v7, v6, 2, v7
    s_lshl_b32 s12, s3, 2
    v_xor_b32 v7, s12, v7
    v_lshlrev_b32 v7, 4, v7
    v_lshlrev_b32 v6, 8, v6
    v_lshl_add_u32 v6, v3, 11, v6
    v_and_b32 v5, 1, v0
    v_lshl_add_u32 v6, v5, 3, v6
    v_add_u32 v6, {X}, v6
    v_add_u32 v8, v6, v7
    v_xor_b32 v9, 32, v8""")
    a(f"""v_and_b32 v5, 7, v0
    v_lshl_add_u32 v5, v5, 2, v3
    v_lshlrev_b32 v10, 9, v5
    v_lshlrev_b32 v11, 4, v0
    v_lshlrev_b32 v5, 4, v2
    v_lshl_add_u32 v5, v3, 3, v5
    s_lshl_b32 s12, s3, 6
    s_add_u32 s13, s12, s11
    v_add_u32 v12, s13, v5
    v_and_b32 v5, 3, v0
    v_mul_u32_u24 v5, {8192+64}, v5
    v_lshl_add_u32 v5, v3, 4, v5
    v_add_u32 v13, {X}, v5
    v_and_b32 v5, 31, v0
    s_add_u32 s13, s12, {X+2048}
    v_lshl_add_u32 v14, v5, 1, s13
    v_mov_b32 v15, s11
    v_mov_b32 v31, {X}
    v_mov_b32 v30, 0x10001
    v_bfe_u32 v5, v0, 4, 1
    v_cmp_eq_u32 s[18:19], 1, v5
    s_mov_b32 m0, s11
    s_nop 0""")
    a(f"""s_lshl2_add_u32 s15, s8, s3
    s_mul_i32 s15, s15, {32*3584}
    s_lshr_b32 s16, s5, 2
    s_lshl2_add_u32 s16, s4, s16
    s_lshl_b32 s16, s16, 7
    s_add_u32 s15, s15, s16
    v_mul_u32_u24 v20, 3584, v0
    s_lshl4_add_u32 s9, s4, s5
    s_waitcnt lgkmcnt(0)""")
    if P["tlb"]:
        a(f"""s_lshl2_add_u32 s12, s7, s8
        s_lshl_b32 s12, s12, 15
        s_add_u32 s12, s12, {BP + 3*256 + 128}
        s_lshl_b32 s13, s9, 14
        v_mov_b32 v21, 0
        s_mov_b64 exec, 1
        buffer_load_dword v237, v21, {sr(SG)}, s10 offen
        buffer_load_dword v237, v21, {sr(SQ)}, s13 offen
        buffer_load_dword v237, v21, {sr(SW)}, s12 offen nt
        s_mov_b64 exec, -1""")
    a("s_barrier")
    if P["h_touch"] and P["bhint"]:
        a(f"""s_lshl_b32 s12, s3, 13
        s_lshl2_add_u32 s13, s7, s8
        s_lshl_b32 s13, s13, 15
        s_add_u32 s13, s13, s12""")
        for rnd in range(P["brounds"]):
            for x in range(P["bhint"]):
                a(f"s_add_u32 s12, s13, {BP + ((32*x//P['bhint'] + 3 - rnd) % 32)*256 + 128}\ns_load_dword s{HINT+x}, s[{SW}:{SW+1}], s12 glc")
    for r in range(16): a(f"v_mov_b32 v{96+r}, 0")
    if P["uv_pf"]:
        a(f"""s_lshl2_add_u32 s12, s8, s3
        s_lshl_b32 s12, s12, 18
        s_lshl_b32 s13, s7, 8
        s_add_u32 s12, s12, s13
        v_lshrrev_b32 v21, 1, v0
        v_and_b32 v22, 1, v0
        v_lshlrev_b32 v22, 7, v22
        v_lshl_add_u32 v21, v21, 13, v22
        {"s_mov_b32 exec_hi, 0" if P["uv_pf"] == 1 else ""}
        buffer_load_dword v238, v21, {sr(SG)}, s12 offen
        s_mov_b64 exec, -1""")
    a(f"""s_cmp_eq_u32 s4, 7
    s_cbranch_scc1 L_nomlp
    s_mov_b32 exec_hi, 0
    {"" if P["w1_att"] else f"buffer_load_dword v239, v20, {sr(SX)}, s15 offen"}
    s_mov_b64 exec, -1
    s_cmp_lg_u32 s3, 3
    s_cbranch_scc1 L_nomlp
    s_lshl_b32 s15, s9, 5
    s_lshl_b32 s16, s9, 14
    v_lshlrev_b32 v21, 12, v3
    v_lshl_add_u32 v21, v2, 4, v21
    v_lshlrev_b32 v22, 1, v2
    buffer_load_ushort v48, v22, {sr(SK)}, s15 offen""")
    a(f"""v_mov_b32 v27, v21
    v_lshrrev_b32 v20, 1, v0
    v_mul_u32_u24 v20, 3584, v20
    v_and_b32 v21, 1, v0
    v_lshl_add_u32 v20, v21, 4, v20
    v_lshlrev_b32 v21, 4, v0
    v_add_u32 v21, {X}, v21
    ds_write_b128 v21, v[56:59]
    v_lshlrev_b32 v21, 4, v3
    v_add_u32 v21, {X}, v21
    v_lshlrev_b32 v22, 8, v3
    v_lshl_add_u32 v22, v2, 3, v22
    v_add_u32 v22, {X+16384}, v22
    v_lshl_add_u32 v23, v3, 2, v2
    v_and_b32 v23, 15, v23
    v_lshlrev_b32 v23, 2, v23
    s_mov_b32 m0, {X+16384}""")
    def w2_loads():
        for t in range(16): a(f"buffer_load_dwordx4 {vr(192+4*t)}, v27, {sr(SQ)}, s16 offen offset:{256*t} nt")
    if P["w2_early"]: w2_loads()
    for t in range(16): a(f"ds_read_b128 {vr(64+4*t)}, v21 offset:{64*t}")
    if not P["w1_att"]: a("s_waitcnt vmcnt(0)")
    if P["optx"]: a("s_barrier")
    for q in range(16):
        a(f"buffer_load_dwordx4 v20, {sr(SX)}, s15 offen lds")
        if q < 15: a(f"s_addk_i32 m0, 0x400\ns_add_u32 s15, s15, {32*3584}")
    if P["optx"]: a("s_waitcnt vmcnt(0)")
    else:
        a(f"s_waitcnt vmcnt({P['wo_gate']})\ns_barrier")
        if P["w2_early"] or P["w2_at"] == "u": a("s_waitcnt vmcnt(0)")
        else:
            w2_loads()
            a("s_waitcnt vmcnt(16)")
    stamp(8)
    for t in range(16):
        a(f"ds_read_b64_tr_b16 {vr(128+4*t,2)}, v22 offset:{1024*t}\nds_read_b64_tr_b16 {vr(130+4*t,2)}, v22 offset:{1024*t+128}")
    a("s_waitcnt lgkmcnt(0)")
    for t in range(16):
        a(f"v_mfma_f32_16x16x32_bf16 v[16:19], {vr(64+4*t)}, {vr(128+4*t)}, {'0' if t == 0 else 'v[16:19]'}")
    rnd_bf16(20, 16)
    a("v_lshlrev_b32 v48, 16, v48\nv_add_f32 v20, v20, v48")
    rnd_bf16(20, 20)
    a("""v_max_f32 v20, 0, v20
    v_mul_f32 v20, v20, v20
    v_cvt_pk_bf16_f32 v20, v20, v20
    ds_bpermute_b32 v21, v23, v20
    s_waitcnt lgkmcnt(0)""")
    for rq in range(4):
        for dw in range(4):
            a(f"v_and_b32_dpp v{64+4*rq+dw}, v21, v{32+dw} row_newbcast:{rq} {DPPM}")
    def wuv_loads():
        a("s_mov_b32 m0, s11\ns_barrier")
        stamp(1)
        for q in range(8):
            if 0 < q <= P["uv_slow"]: a("s_waitcnt vmcnt(0)")
            a(f"buffer_load_dwordx4 v{26 if (q>>1)&1 else 4}, {sr(SG)}, s10 offen nt lds")
            if q < 7: a(f"s_add_u32 m0, m0, 1024\ns_add_u32 s10, s10, {(64*8192 if q & 1 == 0 else (1-64)*8192) & 0xffffffff}")
    wuv_loads()
    if (P["optx"] and not P["w2_early"]) or P["w2_at"] == "u":
        w2_loads()
        a("s_waitcnt vmcnt(0)")
    else: a("s_waitcnt vmcnt(8)")
    for rq in range(4):
        for cb in range(4):
            a(f"v_mfma_f32_16x16x32_bf16 {vr(96+4*cb)}, {vr(64+4*rq)}, {vr(192+16*rq+4*cb)}, {'0' if rq == 0 else vr(96+4*cb)}")
    a("s_nop 7\ns_branch L_wuv_done\nL_nomlp:")
    if P["wo_gate"] is not None: a("s_barrier")
    wuv_loads()
    a("L_wuv_done:")
    a(f"""s_lshl_b32 s12, s3, 13
    s_lshl2_add_u32 s16, s7, s8
    s_lshl_b32 s13, s16, 15
    s_add_u32 s13, s13, s12
    s_add_u32 s13, s13, {BP}
    s_lshl_b32 s12, s12, 1
    s_lshl4_add_u32 s12, s7, s12
    s_add_u32 s12, s12, {ST}""")
    if P["st_touch"]: a(f"buffer_load_dwordx4 v[16:19], v10, {sr(SW)}, s12 offen {P['st_pol']}")
    a("s_waitcnt vmcnt(0)")
    a(f"s_add_u32 s36, s{SW}, s13\ns_addc_u32 s37, s{SW+1}, 0")
    boffs = [((32*x//P["bhint"] + 3) % 32)*256 + 128 for x in range(P["bhint"])]
    if P["hpipe"]:
        for x, o in enumerate(boffs): a(f"s_load_dwordx2 {sr(HINT+2*x,2)}, s[36:37], {o} glc")
    a("s_barrier")
    for n in range(2):
        for t in range(4):
            for sec in range(2):
                a(f"ds_read_b64_tr_b16 {vr(160+16*n+4*t+2*sec,2)}, v{8+n} offset:{8192*t + 1024*sec}")
    a("s_waitcnt lgkmcnt(0)\ns_barrier")
    a(f"""s_cmp_lg_u32 s3, 3
    s_cbranch_scc1 L_nomw
    v_add_u32 v20, {X+4096}, v41
    s_mov_b32 exec_hi, 0""")
    for cb in range(4): a(f"ds_write_b128 v20, {vr(96+4*cb)} offset:{512*cb}")
    a("s_mov_b64 exec, -1\nL_nomw:")
    stamp(2)
    nh = P["lhint"]
    shint("L_lhint", hint_offs(nh, 16, 31, 9, 12, 32//max(nh,1)), 't')
    def st_check():
        a(f"""v_xor_b32 v17, s{sF}, v17
        v_bitop3_b32 v17, v17, v19, s{sF} bitop3:0xf6""")
    def st_loop():
        if P["st_sleep"]: a(f"s_branch L_stp1\nL_stp:\ns_sleep {P['st_sleep']}\nL_stp1:")
        else: a("L_stp:")
        a(f"buffer_load_dwordx4 v[16:19], v10, {sr(SW)}, s12 offen {P['st_pol']}\ns_waitcnt vmcnt(0)")
        st_check()
        a("v_cmp_ne_u32 vcc, 0, v17")
        spin("L_stp", "s_cbranch_vccnz")
        stamp(4)
    if P["st_first"]: st_loop()
    nh = P["bhint"]
    if P["hpipe"]: a("s_branch L_bhint0_chk")
    for rnd in range(P["brounds"]):
        shint(f"L_bhint{rnd}", [((32*x//nh + 3 - rnd) % 32)*256 + 128 for x in range(nh)], 'c')
    stamp(3)
    a("s_add_u32 s14, s13, 4096")
    if P["st_last"] and not P["st_first"]: st_loop()
    def pl_load(t): a(f"buffer_load_dwordx4 {vr(64+4*t)}, v11, {sr(SW)}, s{13 + (t>>2)} offen offset:{1024*(t&3)} {P['pl_pol']}")
    def ops():
        a("v_mov_b32 v24, v16")
        allreduce("v_max_f32", 24, 20)
        a("""v_sub_f32 v16, v16, v24
        v_exp_f32 v16, v16
        v_cvt_pk_bf16_f32 v16, v16, v16""")
        for t in range(8):
            for dw in range(4):
                a(f"v_and_b32_dpp v{128+4*t+dw}, v16, v{32+dw} row_newbcast:{t} {DPPM}")
        a("v_and_b32 v25, 0xffff0000, v16\nv_mul_f32 v25, v25, v18")
        allreduce("v_add_f32", 25, 20)
        a("v_mul_f32 v25, 0.5, v25\nds_write_b64 v15, v[24:25] offset:1024")
    def mf(t): a(f"v_mfma_f32_16x16x32_bf16 v[40:43], {vr(128+4*t)}, {vr(64+4*t)}, {'0' if t == 0 else 'v[40:43]'}")
    if not P["st_last"]: a(f"buffer_load_dwordx4 v[16:19], v10, {sr(SW)}, s12 offen {P['st_pol']}")
    for t in range(8): pl_load(t)
    if not P["st_last"]:
        a("s_waitcnt vmcnt(8)")
        stamp(4)
        st_check()
        a("v_cmp_ne_u32 vcc, 0, v17\ns_cbranch_vccz L_stok")
        a(f"L_stp:\nbuffer_load_dwordx4 v[16:19], v10, {sr(SW)}, s12 offen {P['st_pol']}\ns_waitcnt vmcnt(0)")
        st_check()
        a("v_cmp_ne_u32 vcc, 0, v17")
        spin("L_stp", "s_cbranch_vccnz")
        a("L_stok:")
    ops()
    stamp(5)
    for t in range(8):
        a(f"s_waitcnt vmcnt({7-t})")
        mf(t)
        check(48+t, 64+4*t, 4, sB, True)
        if t == 2: a("v_or3_b32 v7, v48, v49, v50")
        if t in (4, 6): a(f"v_or3_b32 v7, v7, v{47+t}, v{48+t}")
    a("v_or_b32 v7, v7, v55\nv_and_b32 v7, v30, v7\nv_cmp_ne_u32 vcc, 0, v7\ns_cbranch_vccz L_bok")
    a("L_bre:")
    if P["re_sleep"]: a(f"s_sleep {P['re_sleep']}")
    for t in range(8):
        a(f"v_and_b32 v7, v30, v{48+t}\nv_cmp_ne_u32 vcc, 0, v7\ns_cbranch_vccz L_br{t}")
        pl_load(t)
        a(f"L_br{t}:")
    a("s_waitcnt vmcnt(0)")
    for t in range(8):
        mf(t)
        check(48+t, 64+4*t, 4, sB, True)
        if t == 2: a("v_or3_b32 v7, v48, v49, v50")
        if t in (4, 6): a(f"v_or3_b32 v7, v7, v{47+t}, v{48+t}")
    a("v_or_b32 v7, v7, v55\nv_and_b32 v7, v30, v7\nv_cmp_ne_u32 vcc, 0, v7\ns_add_u32 s28, s28, 99")
    spin("L_bre", "s_cbranch_vccnz")
    a("L_bok:\ns_nop 1")
    stamp(6)
    a("""v_cvt_pk_bf16_f32 v44, v40, v41
    v_cvt_pk_bf16_f32 v45, v42, v43
    s_mov_b32 exec_hi, 0
    ds_write_b64 v12, v[44:45]
    s_mov_b64 exec, -1
    s_waitcnt lgkmcnt(0)
    s_barrier""")
    a("ds_read_b128 v[64:67], v13")
    for u in range(2): a(f"ds_read2st64_b64 {vr(80+4*u)}, v31 offset0:{2 + 32*u} offset1:{18 + 32*u}")
    for t in range(1, 4): a(f"ds_read_b128 {vr(64+4*t)}, v13 offset:{64*t}")
    sm = """v_max3_f32 v4, v80, v82, v84
    v_max_f32 v4, v4, v86
    v_sub_f32 v80, v80, v4
    v_sub_f32 v82, v82, v4
    v_sub_f32 v84, v84, v4
    v_sub_f32 v86, v86, v4
    v_exp_f32 v80, v80
    v_exp_f32 v82, v82
    v_exp_f32 v84, v84
    v_exp_f32 v86, v86
    v_mul_f32 v5, v80, v81
    v_fmac_f32 v5, v82, v83
    v_fmac_f32 v5, v84, v85
    v_fmac_f32 v5, v86, v87
    v_rcp_f32 v5, v5
    v_mul_f32 v6, v40, v80
    v_fmac_f32 v6, v41, v82
    v_fmac_f32 v6, v42, v84
    v_fmac_f32 v6, v43, v86""".split("\n")
    fill = [0, 2, 2, 2, 1, 1, 1, 99]
    for x, (n, t) in enumerate([(n, t) for n in range(2) for t in range(4)]):
        if n == 0: a(f"s_waitcnt lgkmcnt({[5, 2, 1, 0][t]})")
        a(f"v_mfma_f32_16x16x32_bf16 {vr(40+4*n)}, {vr(64+4*t)}, {vr(160+16*n+4*t)}, {'0' if t == 0 else vr(40+4*n)}")
        for _ in range(min(fill[x], len(sm))): a(sm.pop(0))
    a("""v_mul_f32 v7, v44, v80
    v_fmac_f32 v7, v45, v82
    v_fmac_f32 v7, v46, v84
    v_fmac_f32 v7, v47, v86
    v_cndmask_b32 v6, v6, v7, s[18:19]
    v_mul_f32 v6, v6, v5
    v_cvt_pk_bf16_f32 v6, v6, v6
    ds_write_b16 v14, v6
    s_waitcnt lgkmcnt(0)""")
    stamp(7)
    a("s_barrier\ns_branch L_exit")

    sect[0] = "O"
    a("L_WO:")
    a(f"s_load_dwordx2 s[{SG}:{SG+1}], s[0:1], 40\ns_barrier\nL_WO1:")
    srd(SC, 16 << 20)
    a(f"""s_lshl4_add_u32 s14, s4, s5
    s_lshl2_add_u32 s14, s14, s3
    s_sub_u32 s14, s14, 4
    s_lshl_b32 s14, s14, 15
    v_lshrrev_b32 v5, 1, v0
    v_and_b32 v6, 1, v0
    v_lshlrev_b32 v5, 10, v5
    v_lshl_add_u32 v5, v6, 7, v5""")
    a("v_mov_b32 v44, v5\ns_mov_b32 s30, s14")
    def ckv_pf():
        for x in range(P["cpf"]):
            if x >= P["cpf_depth"]: a(f"s_waitcnt vmcnt({P['cpf_depth']-1})")
            if P["rgmajor"] == 4:
                a(f"""s_add_u32 s31, s30, {4096*(7-x)}
                v_lshlrev_b32 v44, 7, v0
                s_mov_b32 exec_hi, 0
                buffer_load_dword v{100+x}, v44, {sr(SC)}, s31 offen
                s_mov_b64 exec, -1""")
            else:
                a(f"""s_mov_b32 exec_{'lo' if x & 1 == 0 else 'hi'}, 0
                buffer_load_dword v{100+x}, v44, {sr(SC)}, s30 offen offset:{256*(3 - x//2)}
                s_mov_b64 exec, -1""")
    if not P["cpf_late"]: ckv_pf()
    srd(SG, 4 << 20)
    a(f"""s_sub_u32 s9, s3, 4
    s_lshl_b32 s10, s7, 17
    s_lshl_b32 s11, s9, 8
    s_add_u32 s10, s10, s11
    s_lshl_b32 s11, s9, 15
    v_lshlrev_b32 v4, 2, v3
    v_xor_b32 v4, v4, v2
    v_lshlrev_b32 v4, 4, v4
    v_lshl_add_u32 v4, v3, 10, v4
    v_xor_b32 v5, 32, v4
    s_mov_b32 m0, s11""")
    if P["wo_rot"]:
        a("s_lshl_b32 s13, s8, 15\ns_add_u32 s10, s10, s13")
        for tau in range(3):
            a(f"s_cmp_eq_u32 s8, {3-tau}\ns_cselect_b32 s{36+tau}, -31, 1\ns_lshl_b32 s{36+tau}, s{36+tau}, 12")
    a(f"""v_bfe_u32 v6, v0, 2, 2
    v_bfe_u32 v7, v0, 4, 1
    v_bfe_u32 v16, v0, 1, 1
    v_lshl_or_b32 v7, v7, 1, v16
    v_lshl_or_b32 v7, v6, 2, v7
    v_lshlrev_b32 v7, 4, v7
    v_lshlrev_b32 v6, 8, v6
    v_lshl_add_u32 v6, v3, 11, v6
    v_and_b32 v16, 1, v0
    v_lshl_add_u32 v6, v16, 3, v6
    v_add_u32 v6, s11, v6""")
    for n in range(8):
        a(f"v_xor_b32 v16, {32*n}, v7\nv_add_u32 v{8+n}, v6, v16")
    a(f"""v_lshlrev_b32 v16, 4, v3
    v_add_u32 v16, {X+2048}, v16
    v_lshlrev_b32 v17, 6, v2
    v_lshl_add_u32 v17, v3, 4, v17
    v_mov_b32 v18, 0xff
    s_lshl2_add_u32 s12, s7, s8
    s_lshl_b32 s12, s12, 11
    s_lshl_b32 s13, s9, 9
    s_add_u32 s12, s12, s13
    s_add_u32 s12, s12, {DP}""")
    for t in range(4):
        if P["wo_rot"]: a(f"s_add_u32 s13, s8, {t}\ns_and_b32 s13, s13, 3\ns_lshl_b32 s13, s13, 6\nv_add_u32 v{36+t}, s13, v16")
        else: a(f"v_add_u32 v{36+t}, {64*t}, v16")
    a("s_waitcnt lgkmcnt(0)")
    if P["tlb"]: a(f"v_mov_b32 v45, 0\ns_mov_b64 exec, 1\nbuffer_load_dword v110, v45, {sr(SG)}, s10 offen\ns_mov_b64 exec, -1")
    def wo_read(t):
        for n in range(8):
            for sec in range(2):
                a(f"ds_read_b64_tr_b16 {vr(128+32*t+4*n+2*sec,2)}, v{8+n} offset:{8192*t + 1024*sec}")
    nxt = 0
    for rg in range(32):
        if rg == 0 and P["cpf"] and not P["cpf_late"]: a(f"s_waitcnt vmcnt({P['cpf_tail']})")
        if rg == 0 and not P["optx"]: a("s_barrier")
        if rg == P["x_n"] and P["optx"]: a(f"s_waitcnt vmcnt({P['x_left']})\ns_barrier")
        if rg == 0 and P["cpf_late"]:
            ckv_pf()
            if P["cpf_wait"] is not None: a(f"s_waitcnt vmcnt({P['cpf_wait']})")
        if rg == 0:
            for x in P["wo_bar"]:
                if x < 0: a("s_barrier")
        if rg == 0 and not P["fine"]: stamp(1)
        wd = P["wo_edepth"] if rg < P["wo_early"] else (P["wo_depth0"] if rg < 8 + P["wo_depth0"] else P["wo_depth"])
        if rg >= wd:
            a(f"s_waitcnt vmcnt({wd-1})")
            landed = rg - wd + 1
            if landed >= 8*(nxt+1):
                if nxt == 0: stamp(5)
                if "noread" not in P["abl"]: wo_read(nxt)
                nxt += 1
        a(f"buffer_load_dwordx4 v{4+((rg>>1)&1)}, {sr(SG)}, s10 offen {P['first_pol'] if rg < 8 else P['wo_pol']} lds")
        if rg in P["wo_bar"]: a("s_barrier")
        if rg < 31:
            if P["wo_rot"] and rg & 7 == 7: a(f"s_add_u32 m0, m0, 1024\ns_add_u32 s10, s10, s{36+(rg>>3)}")
            else: a("s_add_u32 m0, m0, 1024\ns_add_u32 s10, s10, 4096")
    while nxt < 4:
        a(f"s_waitcnt vmcnt({24 - 8*nxt})")
        wo_read(nxt); nxt += 1
    for n in range(1, 8):
        a(f"s_mov_b32 s{40+2*n}, {0x01010101 << n}\ns_mov_b32 s{41+2*n}, {0x01010101 << n}")
    for x in P["wo_bar"]:
        if x >= 32: a("s_barrier")
    stamp(6)
    if "bwait" in P["abl"]: a("s_barrier")
    a(f"s_lshl_b32 s13, s9, 9\ns_add_u32 s13, s13, {X+4096}\nv_and_b32 v19, 0x1ff, v17\nv_add_u32 v19, s13, v19")
    a("s_barrier\nds_read_b128 v[40:43], v19\ns_barrier")
    stamp(7)
    for t in range(4): a(f"ds_read_b128 {vr(20+4*t)}, v{36+t}")
    order3 = [(n, t) for t in range(4) for n in range(2)] + [(n, t) for n in range(2, 8) for t in range(4)]
    for x, (n, t) in enumerate(order3):
        if n == 0: a(f"s_waitcnt lgkmcnt({3-t})")
        a(f"v_mfma_f32_16x16x32_bf16 {vr(64+4*n)}, {vr(128+32*t+4*n)}, {vr(20+4*t)}, {'v[40:43]' if t == 0 else vr(64+4*n)}")
        if n >= 4:
            for m in ([n-3] if n < 6 else ([3] if n == 6 else [4])) + ([5] if n == 7 else []):
                a(f"v_cndmask_b32 v{64+t}, v{64+t}, v{64+4*m+t}, s[{40+2*m}:{41+2*m}]")
    for t in range(4): a(f"v_cndmask_b32 v{64+t}, v{64+t}, v{64+24+t}, s[52:53]")
    for r in range(4): a(f"v_bfi_b32 v{64+r}, v18, s{sF+r}, v{64+r}")
    a("s_mov_b64 exec, s[54:55]")
    for r in range(4): a(f"v_bfi_b32 v{64+r}, v18, s{sF+r}, v{92+r}")
    a(f"""s_mov_b32 exec_lo, 0x00ff00ff
    s_mov_b32 exec_hi, 0x00ff00ff
    buffer_store_dwordx4 v[64:67], v17, {sr(SW)}, s12 offen sc1
    s_mov_b64 exec, -1""")
    stamp(8)
    if diag:
        a("s_waitcnt vmcnt(0)"); stamp(9)

    a("L_exit:")
    if P["probe"]:
        a(f"""s_load_dwordx2 s[86:87], s[0:1], 96
        s_mov_b64 exec, 1
        s_waitcnt lgkmcnt(0)
        v_mov_b32 v4, 0
        v_mov_b32 v5, s84
        s_cmp_eq_u32 s84, 0
        s_cbranch_scc1 L_pr1
        global_atomic_umax v4, v5, s[86:87] offset:128
        L_pr1:
        s_cmp_lg_u32 s3, 0
        s_cbranch_scc1 L_pr2
        v_mov_b32 v5, s80
        global_atomic_umax v4, v5, s[86:87]
        v_not_b32 v6, v5
        global_atomic_umax v4, v6, s[86:87] offset:4
        L_pr2:
        s_cmp_lg_u32 s88, 1
        s_cbranch_scc1 L_end
        s_add_u32 s90, s80, 3000
        L_pr3:
        s_memrealtime s[82:83]
        s_waitcnt lgkmcnt(0)
        s_sub_u32 s83, s82, s90
        s_cmp_lt_i32 s83, 0
        s_cbranch_scc1 L_pr3
        global_load_dwordx2 v[8:9], v4, s[86:87] sc1
        global_load_dword v10, v4, s[86:87] offset:128 sc1
        s_waitcnt vmcnt(0)
        v_readfirstlane_b32 s91, v8
        v_readfirstlane_b32 s92, v9
        v_readfirstlane_b32 s93, v10
        s_not_b32 s92, s92""")
        ref = "s92" if P["probe"][1] == "min" else "s91"
        val = {"maxstart": "s91", "none": ref}.get(P["probe"][0], "s93")
        a(f"""s_sub_u32 s94, {val}, {ref}
        s_min_u32 s94, s94, 3000
        s_add_u32 s90, s92, 4000
        s_add_u32 s90, s90, s94
        L_pr4:
        s_memrealtime s[82:83]
        s_waitcnt lgkmcnt(0)
        s_sub_u32 s83, s82, s90
        s_cmp_lt_i32 s83, 0
        s_cbranch_scc1 L_pr4""")
    if diag:
        a(f"""s_mov_b64 exec, -1
        s_waitcnt lgkmcnt(0)
        s_lshl3_add_u32 s10, s2, s3
        s_lshl_b32 s10, s10, 7
        s_add_u32 s10, s10, {STAMP}
        v_mov_b32 v4, 0""")
        for k in range(10):
            a(f"v_mov_b32 v5, s{80+2*k}\nbuffer_store_dword v5, v4, {sr(SW)}, s10 offen offset:{4*k}")
        a(f"v_mov_b32 v5, s28\nbuffer_store_dword v5, v4, {sr(SW)}, s10 offen offset:40")
        a(f"s_getreg_b32 s11, hwreg(HW_REG_XCC_ID)\nv_mov_b32 v5, s11\nbuffer_store_dword v5, v4, {sr(SW)}, s10 offen offset:44")
        a(f"s_getreg_b32 s11, hwreg(HW_REG_HW_ID)\nv_mov_b32 v5, s11\nbuffer_store_dword v5, v4, {sr(SW)}, s10 offen offset:48")
    a("L_end:\ns_endpgm\nL_codeend:")

    lines = a.lines
    if diag:
        pre = [f"s_mov_b32 s{80+2*k}, 0" for k in range(1, 10)]
        lines = lines[:1] + pre + lines[1:]
    lines, nins = insert_waits(lines)
    b = Asm(); b.lines = lines
    head = f"""; fused MLA decode attention (absorbed form) + squared-relu MLP, one persistent launch, 256 workgroups
; @launch grid=(256,1,1) block=(512,1,1) lds=163840
.amdgcn_target "amdgcn-amd-amdhsa--gfx950"
.text
.globl {KNAME}
.p2align 8
.type {KNAME},@function
{KNAME}:
"""
    foot = f"""
.section .rodata,"a"
.p2align 6
.amdhsa_kernel {KNAME}
  .amdhsa_next_free_vgpr 256
  .amdhsa_next_free_sgpr 102
  .amdhsa_accum_offset 256
  .amdhsa_group_segment_fixed_size 0
  .amdhsa_kernarg_size 112
  .amdhsa_user_sgpr_count 2
  .amdhsa_user_sgpr_kernarg_segment_ptr 1
  .amdhsa_system_sgpr_workgroup_id_x 1
  .amdhsa_float_denorm_mode_32 3
.end_amdhsa_kernel
"""
    txt = b.text()
    if P["abl"]:
        L = txt.split("\n"); O = []
        for l in L:
            if "nowo" in P["abl"] and "s[60:63]" in l and "buffer_load" in l: continue
            if "nomlp" in P["abl"] and "s_cmp_eq_u32 s4, 7" in l: l = "    s_cmp_eq_u32 s4, s4"
            if "noqk" in P["abl"] and "32x32x16" in l and ", 0" not in l[-4:]: continue
            if "nos3" in P["abl"] and "16x16x32" in l and ("v[24:27]," in l or "v[28:31]," in l) and "v[32:35], v[" not in l: continue
            O.append(l)
        txt = "\n".join(O)
    if P["pol"] != "nt":
        txt = txt.replace(" nt lds", f" {P['pol']} lds").replace(" nt\n", f" {P['pol']}\n")
    return head + txt + foot

if __name__ == "__main__":
    import json
    kw = json.loads(sys.argv[2]) if len(sys.argv) > 2 else {}
    open(sys.argv[1], "w").write(gen(**kw))
```

```python
import sys, math, struct
from asmlib import Asm, insert_waits
from gen_common import KNAME

EP, QP, QL, GO, ST, HP, DP, BP, STAMP = 0, 0x1000, 0x40000, 0x48000, 0x50000, 0x60000, 0x80000, 0x100000, 0x800000
WS_REC = 0x1000000
X = 131072
SPIN = 1 << 17

def f2u(x): return struct.unpack("<I", struct.pack("<f", x))[0]
def vr(a, n=4): return f"v[{a}:{a+n-1}]"
def sr(a, n=4): return f"s[{a}:{a+n-1}]"

SX, SC, SQ, SK, SW, SG = 40, 44, 48, 52, 56, 60
sF, sB = 20, 24
HINT = 64
DPPM = "row_mask:0xf bank_mask:0xf"

DEFAULT = dict(lite=False, diag=False, cyc=False, fine=False, calib=0, probe=None, abl=(), pol="nt", prefetch=True, pf_wgs=16, role_bit=0,
               pq=True, pk_late="ep", pf_ramp=(0, 4, 10), bi_at=2, q_at=31, qhint=0, cw_at=-1, sm_pre=4, bb_at=1, ba_at=28, q_ah=5, bd_at=8, l_pre=6, fin=1, tlb=False, zpf=0, uv_slow=0, w2_at='g', st_sleep=0, st_first=False, uk_first=False, tr_pre=0, pv_prio=0, qk_prio=2, qk_fill=(2, 2), tr_split=(20, 26), pv_bar=(10, 24), st_gap=4, optx=False, pf_pol='', first_pol='', uk_pol='nt', x_n=8, x_left=0, pv_fill=2,
               cpf=0, wo_gate=8, ql_pre=None, cpf_depth=2, cpf_tail=1, wq_pol="", wo_pol="", wo_depth=8, wo_depth0=8, wo_bar=(7, 23, 29), wo_rot=True,
               bhint=4, fhint=0, hsleep=0, out_pol="", mlp_at="pf", wpq=False, x_bar=True, wq_bars=(1,), ln_at=3, st_last=True, st_at=10, w2_early=False, uv_pf=0, w1_att=False, cpf_wait=None, lhint=0, st_touch=False, h_touch=True, hmap=1, pk_mix=False, cpf_late=False, c_keep=0, ql_delay=0, fin_pol='sc1', pl_pol='sc1', st_pol='sc1', rgmajor=4, hpipe=True, brounds=1, re_sleep=0, w1_wait=17, w2_late=True, wuv_depth=8, q_prio=True, q_fast=True, w1_pre=16, w2_left=0, att_pf=0, out_touch='sc1', dpp_early=True, go_at=None, cpfq=True, c_ramp=((0,10),), wo_early=0, wo_edepth=2)

def gen(**kw):
    P = dict(DEFAULT); P.update(kw)
    diag = P["diag"]
    a = Asm()
    sect = ["entry"]
    def fs(k):
        if P['cyc'] == 3: stamp(k, True)
    def stamp(k, force=False):
        if P["cyc"] == 3 and sect[0] in ("C", "F", "H") and not force: return
        if P["cyc"] == 2 and (sect[0], k) not in (("entry", 0), ("C", 3), ("H", 8), ("H", 7), ("S", 6), ("O", 8), ("A", 3), ("A", 4)): return
        if diag: a(f"{'s_memtime' if P['cyc'] else 's_memrealtime'} s[{80+2*k}:{81+2*k}]")
        if P["probe"] and P["probe"][0] == f"{sect[0]}{k}":
            a("s_memrealtime s[84:85]")
    def srd(base, size):
        a(f"s_mov_b32 s{base+2}, {size}\ns_mov_b32 s{base+3}, 0x20000")
    def ep_load(): a(f"s_load_dword s35, s[{SW}:{SW+1}], {EP}")
    def tags(need_b=True):
        for q in range(4): a(f"s_add_u32 s{sF+q}, s35, {q+1}")
        if need_b:
            for q in range(4): a(f"s_and_b32 s{sB+q}, s{sF+q}, 3\ns_mul_i32 s{sB+q}, s{sB+q}, 0x8001")
    def allreduce(op, v, t1):
        for r in (1, 2, 4, 8):
            a(f"{op}_dpp v{v}, v{v}, v{v} row_ror:{r} {DPPM}")
        for sw in ("v_permlane16_swap_b32", "v_permlane32_swap_b32"):
            a(f"v_mov_b32 v{t1}, v{v}\n{sw} v{t1}, v{v}\n{op} v{v}, v{v}, v{t1}")
    def rnd_bf16(d, s):
        a(f"v_cvt_pk_bf16_f32 v{d}, v{s}, v{s}\nv_and_b32 v{d}, 0xffff0000, v{d}")
    def unpack2(d, s):
        a(f"v_lshlrev_b32 v{d}, 16, v{s}\nv_and_b32 v{d+1}, 0xffff0000, v{s}")
    def ln_stats(xr, f, t):
        for i in range(4): unpack2(f+2*i, xr+i)
        a(f"v_add_f32 v{t}, v{f}, v{f+1}\nv_add_f32 v{t+1}, v{f+2}, v{f+3}\nv_add_f32 v{t+2}, v{f+4}, v{f+5}\nv_add_f32 v{t+3}, v{f+6}, v{f+7}")
        a(f"v_add_f32 v{t}, v{t}, v{t+1}\nv_add_f32 v{t+2}, v{t+2}, v{t+3}\nv_add_f32 v{t}, v{t}, v{t+2}")
        allreduce("v_add_f32", t, t+2)
        a(f"v_mul_f32 v{t}, {f2u(1/512)}, v{t}")
        a(f"v_sub_f32 v{t+2}, v{f}, v{t}\nv_mul_f32 v{t+1}, v{t+2}, v{t+2}")
        for i in range(1, 8):
            a(f"v_sub_f32 v{t+2+(i&1)}, v{f+i}, v{t}\nv_fmac_f32 v{t+1}, v{t+2+(i&1)}, v{t+2+(i&1)}")
        allreduce("v_add_f32", t+1, t+2)
        a(f"v_mul_f32 v{t+1}, {f2u(1/512)}, v{t+1}")
        rnd_bf16(t, t)
        rnd_bf16(t+1, t+1)
        a(f"v_add_f32 v{t+1}, {f2u(1e-5)}, v{t+1}")
        rnd_bf16(t+1, t+1)
        a(f"v_sqrt_f32 v{t+1}, v{t+1}")
        rnd_bf16(t+1, t+1)
        a(f"v_rcp_f32 v{t+1}, v{t+1}")
    def delta_masks(m, t):
        a(f"""v_and_b32 v{t}, 1, v0
        v_lshlrev_b32 v{t}, 4, v{t}
        v_mov_b32 v{t+1}, 0xffff
        v_lshlrev_b32 v{t}, v{t}, v{t+1}
        v_bfe_u32 v{t+1}, v0, 1, 3""")
        for dw in range(4):
            a(f"v_cmp_eq_u32 vcc, {dw}, v{t+1}\nv_cndmask_b32 v{m+dw}, 0, v{t}, vcc")
    def check(acc, first, n, tagbase, start):
        for i in range(n):
            if start and i == 0: a(f"v_xor_b32 v{acc}, s{tagbase}, v{first}")
            else: a(f"v_bitop3_b32 v{acc}, v{acc}, v{first+i}, s{tagbase+(i&3)} bitop3:0xf6")
    def spin(label, cond_branch, pre=""):
        a(f"""s_add_u32 s28, s28, 1
        s_cmp_gt_u32 s28, {SPIN}
        s_cbranch_scc1 L_exit
        {pre}
        {cond_branch} {label}""")
    def shint(label, offs, kind):
        if not offs: return
        a(f"{label}:")
        if P["hsleep"]: a(f"s_sleep {P['hsleep']}")
        n = len(offs)
        if kind == 'c':
            for x, o in enumerate(offs): a(f"s_load_dwordx2 {sr(HINT+2*x,2)}, s[36:37], {o} glc")
            a(f"{label}_chk:\ns_waitcnt lgkmcnt(0)")
            for x in range(n):
                a(f"s_xor_b64 {sr(HINT+2*x,2)}, {sr(HINT+2*x,2)}, {sr(sB,2)}")
                if x: a(f"s_or_b64 {sr(HINT,2)}, {sr(HINT,2)}, {sr(HINT+2*x,2)}")
            a(f"s_or_b32 s{HINT}, s{HINT}, s{HINT+1}")
            fin = f"s_and_b32 s{HINT}, s{HINT}, 0x10001"
        elif kind == 'd':
            for x, o in enumerate(offs): a(f"s_load_dword s{HINT+x}, s[{SW}:{SW+1}], s{o} glc")
            a("s_waitcnt lgkmcnt(0)")
            for x in range(n):
                a(f"s_xor_b32 s{HINT+x}, s{HINT+x}, s{sF}")
                if x: a(f"s_or_b32 s{HINT}, s{HINT}, s{HINT+x}")
            fin = f"s_and_b32 s{HINT}, s{HINT}, 0xff"
        elif kind == 't':
            for x, o in enumerate(offs): a(f"s_load_dwordx2 {sr(HINT+2*x,2)}, s[{SW}:{SW+1}], s{o} glc")
            a("s_waitcnt lgkmcnt(0)")
            for x in range(n):
                a(f"s_xor_b32 s{HINT+2*x+1}, s{HINT+2*x+1}, s{sF}")
                if x: a(f"s_or_b32 s{HINT+1}, s{HINT+1}, s{HINT+2*x+1}")
            fin = f"s_cmp_lg_u32 s{HINT+1}, 0"
        else:
            tb, mask = (sB, 0x10001) if kind == 'b' else (sF, 0xff)
            for x, o in enumerate(offs): a(f"s_load_dwordx4 {sr(HINT+4*x)}, s[{SW}:{SW+1}], s{o} glc")
            a("s_waitcnt lgkmcnt(0)")
            for x in range(4*n):
                a(f"s_xor_b32 s{HINT+x}, s{HINT+x}, s{tb+(x&3)}")
                if x: a(f"s_or_b32 s{HINT}, s{HINT}, s{HINT+x}")
            fin = f"s_and_b32 s{HINT}, s{HINT}, {mask}"
        spin(label, "s_cbranch_scc1", fin)
    def tdelay(label, ticks):
        a(f"""s_waitcnt lgkmcnt(0)
        s_add_u32 s78, s80, {ticks}
        {label}:
        s_memrealtime s[76:77]
        s_waitcnt lgkmcnt(0)
        s_sub_u32 s77, s76, s78
        s_cmp_lt_i32 s77, 0
        s_cbranch_scc1 {label}""")
    def hint_offs(n, seed, modmask, shift, base, spread):
        for x in range(n):
            a(f"s_add_u32 s{30+x}, s{seed}, {x*spread}\ns_and_b32 s{30+x}, s{30+x}, {modmask}\ns_lshl_b32 s{30+x}, s{30+x}, {shift}\ns_add_u32 s{30+x}, s{30+x}, s{base}")
        return [30+x for x in range(n)]

    stamp(0)
    if P["calib"] or P["probe"] or P["lite"]: a("s_memrealtime s[80:81]")
    if P["probe"]: a("s_mov_b32 s84, 0\ns_mov_b32 s88, 0")
    a(f"s_load_dwordx2 s[{SQ}:{SQ+1}], s[0:1], 16")
    if P["prefetch"]:
        a(f"""s_cmp_ge_u32 s2, {P['pf_wgs']}
        s_cbranch_scc1 L_nopf
        s_getpc_b64 s[10:11]
        L_pc:
        v_lshlrev_b32 v4, 6, v0
        v_min_u32 v4, L_codeend - L_pc - 4, v4
        global_load_dword v255, v4, s[10:11]
        L_nopf:""")
    a(f"""s_load_dwordx2 s[{SX}:{SX+1}], s[0:1], 0
    s_load_dwordx2 s[{SK}:{SK+1}], s[0:1], 24
    s_load_dwordx2 s[{SC}:{SC+1}], s[0:1], 8
    s_load_dwordx2 s[{SW}:{SW+1}], s[0:1], 104
    v_lshrrev_b32 v1, 6, v0
    s_cmp_ge_u32 s2, 256
    s_cbranch_scc1 L_end
    v_readfirstlane_b32 s3, v1
    v_and_b32 v0, 63, v0
    s_and_b32 s4, s2, 7""")
    if P["role_bit"] == 0:
        a("s_bfe_u32 s6, s2, 0x10003\ns_lshr_b32 s5, s2, 4")
    elif P["role_bit"] == 2:
        a("s_bfe_u32 s6, s2, 0x10005\ns_bfe_u32 s5, s2, 0x20003\ns_lshr_b32 s7, s2, 6\ns_lshl2_add_u32 s5, s7, s5")
    else:
        a("s_lshr_b32 s6, s2, 7\ns_bfe_u32 s5, s2, 0x40003")
    a("s_lshr_b32 s7, s5, 2")
    if P["hmap"] == 0: a("s_lshl2_add_u32 s7, s4, s7")
    elif P["hmap"] == 1: a("s_lshl3_add_u32 s7, s7, s4")
    elif isinstance(P["hmap"], (list, tuple)):
        qp = list(P["hmap"]); xp = [p for p in range(5) if p not in qp]
        a("s_mov_b32 s9, s7\ns_mov_b32 s7, 0")
        for i, p in enumerate(xp): a(f"s_bfe_u32 s8, s4, {0x10000+i}\ns_lshl_b32 s8, s8, {p}\ns_or_b32 s7, s7, s8")
        for i, p in enumerate(qp): a(f"s_bfe_u32 s8, s9, {0x10000+i}\ns_lshl_b32 s8, s8, {p}\ns_or_b32 s7, s7, s8")
    elif P["hmap"] == 2: a("s_and_b32 s8, s7, 1\ns_lshr_b32 s7, s7, 1\ns_lshl3_add_u32 s7, s7, s4\ns_lshl1_add_u32 s7, s7, s8")
    a(f"""s_and_b32 s8, s5, 3
    s_lshl_b32 s17, s7, 8
    s_mov_b32 s{SQ+2}, {4<<20}
    s_mov_b32 s{SQ+3}, 0x20000
    v_and_b32 v2, 15, v0
    v_lshrrev_b32 v3, 4, v0
    s_cmp_eq_u32 s6, 0
    s_cbranch_scc1 L_WGT
    s_cmp_ge_u32 s3, 4
    s_cbranch_scc1 L_ATT_help""")
    if P["pq"]:
        a(f"""s_lshl_b32 s16, s3, 20
        s_lshl_b32 s18, s8, 15
        s_add_u32 s16, s16, s18
        s_add_u32 s16, s16, s17
        v_lshrrev_b32 v4, {3 if P["uk_first"] else 2}, v0
        v_lshlrev_b32 v4, 17, v4
        v_bfe_u32 v5, v0, 1, {2 if P["uk_first"] else 1}
        {"" if P["uk_first"] else "v_or_b32 v5, 2, v5"}
        v_lshl_add_u32 v4, v5, 13, v4
        v_and_b32 v5, 1, v0
        v_lshl_add_u32 v4, v5, 7, v4
        {"" if P["uk_first"] else "s_mov_b32 exec_hi, 0"}
        s_waitcnt lgkmcnt(0)
        buffer_load_dword v121, v4, {sr(SQ)}, s16 offen {P['pf_pol']}
        s_mov_b64 exec, -1""")
    a("s_branch L_ATT")

    def common():
        a("s_mov_b32 s28, 0")
        srd(SW, WS_REC)
        a("v_lshlrev_b32 v41, 5, v2\nv_lshl_add_u32 v41, v3, 4, v41")

    sect[0] = "A"
    PART = 0
    a("L_WGT:")
    srd(SX, 1024)
    a(f"""s_lshl_b32 s10, s3, 19
    s_lshl_b32 s11, s8, 15
    s_add_u32 s10, s10, s11
    s_add_u32 s10, s10, s17
    s_lshl_b32 s11, s3, 7
    v_lshlrev_b32 v4, 4, v0
    v_lshl_add_u32 v5, s8, 2, v2
    v_and_b32 v5, 15, v5
    v_lshl_add_u32 v5, v3, 4, v5
    v_lshlrev_b32 v5, 1, v5
    v_lshlrev_b32 v6, 17, v3
    v_lshl_add_u32 v6, v2, 4, v6
    s_movk_i32 s12, 0x2000""")
    def uk_loads():
        srd(SK, 4 << 20)
        a(f"""s_lshl3_add_u32 s13, s8, s3
        s_lshl_b32 s13, s13, 17
        s_add_u32 s13, s13, s17
        s_lshl_b32 s14, s3, 12
        s_add_u32 m0, s14, {X}
        v_lshlrev_b32 v50, 2, v3
        v_xor_b32 v50, v50, v2
        v_lshlrev_b32 v50, 4, v50
        v_lshl_add_u32 v48, v3, 13, v50""")
        for rg in range(4):
            if rg: a(f"v_xor_b32 v49, {16*rg}, v48\ns_addk_i32 m0, 0x400\ns_add_u32 s13, s13, 0x8000")
            a(f"buffer_load_dwordx4 v{49 if rg else 48}, {sr(SK)}, s13 offen {P['uk_pol']} lds")
    UK = 0 if P["uk_first"] else 4
    xl = [f"buffer_load_dwordx4 v[8:11], v4, {sr(SX)}, 0 offen", f"buffer_load_ushort v12, v5, {sr(SX)}, s11 offen"]
    if P["wpq"]:
        a(f"""v_bfe_u32 v7, v0, 1, 2
        v_lshlrev_b32 v7, 13, v7
        v_lshl_add_u32 v7, v3, 17, v7
        v_and_b32 v13, 1, v0
        v_lshl_add_u32 v7, v13, 7, v7""")
    a("s_waitcnt lgkmcnt(0)")
    for l in xl: a(l)
    if P["x_bar"]: a("s_barrier")
    if P["uk_first"]:
        uk_loads()
        if P["uk_first"] == 2: a("s_barrier")
    if P["wpq"]:
        a(f"""s_mov_b32 exec_lo, {0x000f000f if P["pq"] else 0x00ff00ff}
        s_mov_b32 exec_hi, {0x000f000f if P["pq"] else 0x00ff00ff}
        buffer_load_dword v254, v7, {sr(SQ)}, s10 offen
        s_mov_b64 exec, -1""")
        if P.get("wpq_bar"): a("s_barrier")
    for t in range(16):
        a(f"buffer_load_dwordx4 {vr(64+4*t)}, v6, {sr(SQ)}, s10 offen {P['first_pol'] if t < (2 if P['pq'] else 4) else P['wq_pol']}")
        if t < 15:
            if t & 3 == 3: a(f"s_cmp_eq_u32 s8, {3-(t>>2)}\ns_cselect_b32 s13, {(-15*8192) & 0xffffffff}, s12\ns_add_u32 s10, s10, s13")
            else: a("s_add_u32 s10, s10, s12")
        if t in P["wq_bars"]: a("s_barrier")
        if t == min(3, P["ln_at"]):
            ep_load()
            stamp(1)
            common()
            delta_masks(32, 36)
        if t == P["ln_at"]:
            a(f"s_waitcnt vmcnt({t+1 + (1 if P['wpq'] else 0) + 4 - UK})")
            if P["fine"]: stamp(5)
            ln_stats(8, 16, 24)
            a("v_lshlrev_b32 v12, 16, v12\nv_sub_f32 v12, v12, v24")
            rnd_bf16(12, 12)
            a("v_mul_f32 v12, v12, v25\nv_cvt_pk_bf16_f32 v12, v12, v12")
            a("s_cmp_lg_u32 s3, 3\ns_cbranch_scc1 L_noxn")
            for i in range(8): a(f"v_sub_f32 v{16+i}, v{16+i}, v24")
            for i in range(4): a(f"v_cvt_pk_bf16_f32 v{56+i}, v{16+2*i}, v{17+2*i}")
            for i in range(4): unpack2(16+2*i, 56+i)
            for i in range(8): a(f"v_mul_f32 v{16+i}, v{16+i}, v25")
            for i in range(4): a(f"v_cvt_pk_bf16_f32 v{56+i}, v{16+2*i}, v{17+2*i}")
            a("L_noxn:")
            if P["dpp_early"]:
                for t2 in range(16):
                    for dw in range(4):
                        a(f"v_and_b32_dpp v{128+4*t2+dw}, v12, v{32+dw} row_newbcast:{t2} {DPPM}")
    if P["fine"]: stamp(6)
    if not P["uk_first"]: uk_loads()
    a("s_lshl_b32 s12, s3, 9\nv_add_u32 v42, s12, v41")
    for t in range(16):
        for dw in range(4):
            if not P["dpp_early"]: a(f"v_and_b32_dpp v{128+4*t+dw}, v12, v{32+dw} row_newbcast:{t} {DPPM}")
        if t >= 1:
            a(f"s_waitcnt vmcnt({15-(t-1)+UK})")
            a(f"v_mfma_f32_16x16x32_bf16 v[44:47], {vr(128+4*(t-1))}, {vr(64+4*(t-1))}, {'0' if t == 1 else 'v[44:47]'}")
    a(f"s_waitcnt vmcnt({UK})\nv_mfma_f32_16x16x32_bf16 v[44:47], {vr(128+60)}, {vr(64+60)}, v[44:47]")
    a("s_waitcnt lgkmcnt(0)")
    tags(True)
    a(f"""s_mov_b32 exec_hi, 0
    ds_write_b128 v42, v[44:47] offset:{PART}
    s_mov_b64 exec, -1""")
    stamp(2)
    a("""s_sub_u32 s9, s3, 5
    s_cmp_lt_u32 s9, 2
    s_cbranch_scc1 L_A2
    s_waitcnt vmcnt(0) lgkmcnt(0)
    s_barrier
    s_cmp_lt_u32 s3, 4
    s_cbranch_scc1 L_S1
    s_branch L_WO""")
    a("L_A2:")
    a(f"""s_lshl_b32 s12, s9, 14
    s_add_u32 s12, s12, {X}
    v_and_b32 v4, 3, v0
    v_bfe_u32 v5, v0, 2, 2
    v_lshl_or_b32 v6, v4, 2, v5
    v_xor_b32 v6, v6, v3
    v_lshlrev_b32 v6, 4, v6
    v_lshl_add_u32 v6, v5, 10, v6
    v_lshl_add_u32 v6, v4, 8, v6
    v_add_u32 v10, s12, v6
    v_xor_b32 v11, 64, v10
    v_xor_b32 v12, 0x80, v10
    v_xor_b32 v13, 0xc0, v10
    s_lshl_b32 s13, s9, 8
    s_add_u32 s13, s13, 8192
    v_lshl_add_u32 v5, v3, 4, s13
    v_and_b32 v14, 31, v0
    v_lshl_add_u32 v14, v14, 3, s13
    v_lshlrev_b32 v15, 4, v0
    s_lshl1_add_u32 s11, s8, s9
    s_lshl_b32 s11, s11, 7
    s_lshl_b32 s10, s7, 10
    s_add_u32 s10, s10, s11
    s_add_u32 s10, s10, {QL}
    v_lshlrev_b32 v4, 1, v0
    v_cmp_eq_u32 s[14:15], 1, v3
    v_cmp_eq_u32 s[16:17], 2, v3
    v_cmp_eq_u32 s[18:19], 3, v3
    v_bfe_u32 v7, v0, 1, 2
    v_add_u32 v7, s{sF}, v7
    v_and_b32 v8, 1, v0
    v_lshrrev_b32 v7, v8, v7
    v_and_b32 v7, 1, v7
    v_xor_b32 v8, 1, v7
    v_lshlrev_b32 v8, 16, v8
    s_waitcnt vmcnt(0) lgkmcnt(0)""")
    stamp(3)
    a("s_barrier")
    for u in range(4): a(f"ds_read_b128 {vr(128+4*u)}, v15 offset:{PART + 1024*u}")
    fr = [(T, t) for t in range(4) for T in range(4)]
    for (T, t) in fr[:11]: a(f"ds_read_b128 {vr(64+16*T+4*t)}, v{10+t} offset:{4096*T}")
    a("s_waitcnt lgkmcnt(11)")
    a("""v_pk_add_f32 v[128:129], v[128:129], v[132:133]
    v_pk_add_f32 v[130:131], v[130:131], v[134:135]
    v_pk_add_f32 v[136:137], v[136:137], v[140:141]
    v_pk_add_f32 v[138:139], v[138:139], v[142:143]
    v_pk_add_f32 v[128:129], v[128:129], v[136:137]
    v_pk_add_f32 v[130:131], v[130:131], v[138:139]""")
    for q in range(4): a(f"v_mov_b32 v{132+q}, v{128+q}")
    for q in range(4): a(f"v_permlane32_swap_b32 v{132+q}, v{128+q}")
    a("""v_pk_add_f32 v[128:129], v[128:129], v[132:133]
    v_pk_add_f32 v[130:131], v[130:131], v[134:135]
    v_cvt_pk_bf16_f32 v128, v128, v129
    v_cvt_pk_bf16_f32 v129, v130, v131
    ds_write_b64 v14, v[128:129]""")
    for t in range(4): a(f"ds_read_b128 {vr(16+4*t)}, v5 offset:{64*t}")
    for (T, t) in fr[11:]: a(f"ds_read_b128 {vr(64+16*T+4*t)}, v{10+t} offset:{4096*T}")
    for t in range(4):
        a(f"s_waitcnt lgkmcnt({[8, 7, 4, 0][t]})")
        for T in range(4):
            a(f"v_mfma_f32_16x16x32_bf16 {vr(32+4*T)}, {vr(16+4*t)}, {vr(64+16*T+4*t)}, {'0' if t == 0 else vr(32+4*T)}")
    qs = math.log2(math.e) / math.sqrt(128.0)
    a(f"""v_cndmask_b32 v9, v32, v36, s[14:15]
    v_cndmask_b32 v9, v9, v40, s[16:17]
    v_cndmask_b32 v9, v9, v44, s[18:19]
    v_mul_f32 v9, {f2u(qs)}, v9
    v_add_u32 v9, v9, v8
    v_lshrrev_b32 v9, 17, v9
    v_lshl_or_b32 v9, v9, 1, v7
    s_nop 0""")
    if P["ql_delay"]:
        a("s_barrier")
        for _ in range(P["ql_delay"]): a("s_sleep 8")
    a(f"buffer_store_short v9, v4, {sr(SW)}, s10 offen sc1")
    stamp(4)
    if P["ql_delay"]: a(f"s_load_dwordx2 s[{SG}:{SG+1}], s[0:1], 40\ns_branch L_WO1")
    a("s_branch L_WO")

    sect[0] = "C"
    PX, MX, LX, FX = X, X + 8192, X + 9216, X + 12288
    a("L_ATT:")
    a("s_lshl4_add_u32 s9, s4, s5")
    srd(SC, 16 << 20); srd(SK, 4 << 20)
    common()
    a(f"""s_lshl2_add_u32 s10, s9, s3
    s_lshl_b32 s10, s10, 15
    s_lshl_b32 s11, s3, 13
    v_lshlrev_b32 v4, 2, v3
    v_xor_b32 v4, v4, v2
    v_lshlrev_b32 v4, 4, v4
    v_lshl_add_u32 v32, v3, 10, v4
    v_xor_b32 v33, 32, v32
    v_xor_b32 v34, 16, v32
    v_xor_b32 v35, 48, v32
    s_mov_b32 m0, s11
    s_lshl2_add_u32 s18, s8, s3
    s_lshl_b32 s18, s18, 18
    s_add_u32 s18, s18, s17
    v_lshrrev_b32 v4, 1, v0
    v_and_b32 v5, 1, v0
    v_lshlrev_b32 v5, 7, v5
    v_lshl_add_u32 v126, v4, 13, v5
    s_waitcnt lgkmcnt(0)""")
    seq = []
    def c_pos(n):
        G = P["rgmajor"]
        return (n // (8*G))*G + n % G, (n % (8*G)) // G
    def c_load(n):
        cb, rg = c_pos(n)
        a(f"buffer_load_dwordx4 v{32+(rg&3)}, {sr(SC)}, s10 offen {'nt' if n < 32 - P['c_keep'] else ''} lds")
        seq.append(n)
        if n < 31:
            cb2, rg2 = c_pos(n+1)
            dm = (cb2-cb)*32768 + (rg2-rg)*1024; dg = (cb2-cb)*256 + (rg2-rg)*4096
            a("s_add_u32 m0, m0, s15" if dm == 32768 else (f"s_addk_i32 m0, {dm}" if -32768 <= dm < 32768 else f"s_add_u32 m0, m0, {dm & 0xffffffff}"))
            a(f"s_addk_i32 s10, {dg}")
        if n == P["q_at"]: a("ds_write_b32 v125, v125")
    def c_wait(n): a(f"s_waitcnt vmcnt({len(seq) - 1 - seq.index(n)})")
    if P["pq"]: seq.append("pq")
    if not P["pk_late"] and not P["uk_first"]:
        a(f"buffer_load_dword v127, v126, {sr(SK)}, s18 offen"); seq.append("pk")
    a("s_mov_b32 s15, 0x8000")
    issued = 0
    for n in range(P["pf_ramp"][0]): c_load(n); issued += 1
    a(f"""s_lshl_b32 s16, s3, 12
    s_add_u32 s16, s16, {X}
    v_mov_b32 v125, s16
    v_mov_b32 v124, 0
    ds_write_b32 v125, v124""")
    ep_load()
    if P["zpf"]:
        a(f"""s_load_dwordx2 s[{SG}:{SG+1}], s[0:1], 40
        s_load_dwordx2 s[{SQ}:{SQ+1}], s[0:1], 72
        s_load_dwordx2 s[72:73], s[0:1], 32
        s_lshl2_add_u32 s19, s9, s3
        s_lshl_b32 s19, s19, 12
        s_lshl2_add_u32 s29, s7, s8
        s_lshl2_add_u32 s29, s29, s3
        s_lshl_b32 s29, s29, 13
        v_lshlrev_b32 v120, 7, v0""")
        srd(SG, 4 << 20); srd(SQ, 1792*512*2); srd(72, 4 << 20)
    stamp(1)
    a(f"""v_and_b32 v4, 3, v0
    v_lshrrev_b32 v1, 5, v0
    v_bfe_u32 v5, v0, 2, 1
    v_lshl_or_b32 v5, v4, 1, v5
    v_bfe_u32 v6, v0, 3, 1
    v_lshl_or_b32 v5, v5, 1, v6
    v_xor_b32 v5, v5, v1
    v_lshlrev_b32 v5, 4, v5
    v_bfe_u32 v6, v0, 2, 3
    v_lshl_add_u32 v5, v6, 10, v5
    v_lshl_add_u32 v5, v4, 8, v5
    v_add_u32 v8, s11, v5
    v_xor_b32 v5, v2, v1
    v_lshlrev_b32 v5, 4, v5
    v_and_b32 v4, 31, v0
    v_lshl_add_u32 v5, v4, 10, v5
    v_add_u32 v16, {X}, v5""")
    for x in range(1, 8): a(f"v_xor_b32 v{8+x}, {32*x}, v8\nv_xor_b32 v{16+x}, {32*x}, v16")
    for x in range(8): a(f"v_add_u32 v{24+x}, 0x10000, v{8+x}")
    a(f"""v_lshlrev_b32 v6, 4, v4
    v_add_u32 v96, {MX}, v6
    v_lshl_add_u32 v6, v1, 9, v6
    s_lshl2_add_u32 s13, s3, {MX}
    v_add_u32 v97, s13, v6
    s_lshl_b32 s13, s3, 11
    s_add_u32 s13, s13, {PX}
    v_lshl_add_u32 v99, v0, 4, s13
    s_waitcnt lgkmcnt(0)""")
    if P["pk_late"] == "ep" and not P["uk_first"]:
        a(f"buffer_load_dword v127, v126, {sr(SK)}, s18 offen"); seq.append("pk")
    tags(False)
    lq = []
    def lop(text, key): a(text); lq.append(key)
    def lwait(items):
        last = max([i for i, x in enumerate(lq) if x in items], default=-1)
        if last >= 0: a(f"s_waitcnt lgkmcnt({min(15, len(lq) - 1 - last)})")
        del lq[:last+1]
    def c_read(cb):
        for t in range(8*cb, 8*cb+8):
            a(f"ds_read_b128 {vr(128+4*t)}, v{(8 if cb < 2 else 24) + (t&7)} offset:{32768*(cb&1)}")
    def blk_done(b): return max(n for n in range(32) if c_pos(n)[0] == b) + 1 if b < 4 else 99
    for key, d in (("pq", P["pf_ramp"][1]), ("pk", P["pf_ramp"][2])):
        if key in seq: c_wait(key)
        while issued < d: c_load(issued); issued += 1
    landed = 0; pre = 0
    while issued < 32:
        c_wait(landed); landed += 1
        while issued < 32 and issued - landed < P["pf_ramp"][2]:
            c_load(issued); issued += 1
        if landed == P["bi_at"]: a("s_barrier")
        if landed >= blk_done(pre): c_read(pre); pre += 1
    stamp(2)
    if P["zpf"]:
        a("s_barrier")
        if P["zpf"] & 1: a(f"buffer_load_dword v121, v120, {sr(SG)}, s29 offen"); seq.append("z1")
        if P["zpf"] & 2: a(f"s_mov_b32 exec_hi, 0\nbuffer_load_dword v122, v120, {sr(SQ)}, s19 offen\ns_mov_b64 exec, -1"); seq.append("z2")
        if P["zpf"] & 4: a(f"buffer_load_dword v123, v126, {sr(72)}, s18 offen"); seq.append("z4")
    while pre < 4:
        c_wait(blk_done(pre) - 1)
        if pre == 3 and P["tr_pre"]: a("s_barrier")
        c_read(pre); pre += 1
    a(f"s_setprio {P['qk_prio']}\ns_barrier")
    stamp(3)
    NS = 8
    def q_read(t): lop(f"ds_read_b128 {vr(32+4*(t % NS))}, v{16+(t&7)} offset:{256*(t>>3)}", ("Q", t))
    rd = 0
    for t in range(32):
        while rd < min(32, t + P["q_ah"] + 1): q_read(rd); rd += 1
        if t == P["ba_at"]:
            assert rd == 32
            a("s_waitcnt lgkmcnt(0)"); del lq[:]
            stamp(4)
            a("s_barrier")
        lwait([("Q", t)])
        a(f"v_mfma_f32_32x32x16_bf16 {vr(64,16)}, {vr(128+4*t)}, {vr(32+4*(t % NS))}, {'0' if t == 0 else vr(64,16)}")
    stamp(5); fs(1)
    a(f"""v_max3_f32 v4, v64, v65, v66
    v_max3_f32 v5, v67, v68, v69
    v_max3_f32 v6, v70, v71, v72
    v_max3_f32 v7, v73, v74, v75
    v_max3_f32 v4, v4, v76, v77
    v_max3_f32 v5, v5, v78, v79
    v_max3_f32 v4, v4, v5, v6
    v_max_f32 v20, v4, v7
    ds_write_b32 v97, v20""")
    fs(2)
    for r in range(0, 16, 2):
        a(f"v_pk_add_f32 {vr(64+r,2)}, {vr(64+r,2)}, v[20:21] op_sel_hi:[1,0] neg_lo:[0,1] neg_hi:[0,1]")
    for r in range(16):
        if r == P["bb_at"]:
            a("s_waitcnt lgkmcnt(0)"); fs(3)
            a("s_barrier"); fs(4)
            a("ds_read_b128 v[8:11], v96\nds_read_b128 v[12:15], v96 offset:512")
        a(f"v_exp_f32 v{64+r}, v{64+r}")
    a("s_waitcnt lgkmcnt(0)"); fs(5)
    a("""v_max3_f32 v4, v8, v9, v10
    v_max3_f32 v5, v11, v12, v13
    v_max3_f32 v4, v4, v14, v15
    v_max_f32 v8, v4, v5
    v_sub_f32 v20, v20, v8
    v_exp_f32 v20, v20""")
    for hf in range(2):
        for r in range(8*hf, 8*hf+8, 2):
            a(f"v_pk_mul_f32 {vr(64+r,2)}, {vr(64+r,2)}, v[20:21] op_sel_hi:[1,0]")
        for r in range(8*hf, 8*hf+8, 2):
            a(f"v_cvt_pk_bf16_f32 v{80+r//2}, v{64+r}, v{65+r}")
        a(f"ds_write_b128 v99, {vr(80+4*hf)} offset:{1024*hf}")
    fs(6)
    a("""v_pk_add_f32 v[64:65], v[64:65], v[66:67]
    v_pk_add_f32 v[68:69], v[68:69], v[70:71]
    v_pk_add_f32 v[72:73], v[72:73], v[74:75]
    v_pk_add_f32 v[76:77], v[76:77], v[78:79]
    v_pk_add_f32 v[64:65], v[64:65], v[68:69]
    v_pk_add_f32 v[72:73], v[72:73], v[76:77]
    s_waitcnt lgkmcnt(0)""")
    fs(7)
    a("""s_setprio 0
    s_barrier""")
    stamp(6); fs(8)
    a("""v_add_f32 v64, v64, v65
    v_add_f32 v72, v72, v73
    v_add_f32 v64, v64, v72
    ds_write_b32 v97, v64 offset:1024
    s_waitcnt lgkmcnt(0)
    s_barrier""")
    a("s_setprio 0\ns_cmp_lg_u32 s3, 0\ns_cbranch_scc1 L_FIN")
    a(f"""ds_read_b128 v[32:35], v96 offset:1024
    ds_read_b128 v[36:39], v96 offset:1536
    v_lshlrev_b32 v5, 4, v0
    v_mov_b32 v9, s{sF}
    v_mov_b32 v11, s{sF}
    s_lshl_b32 s12, s9, 9
    s_add_u32 s12, s12, {ST}
    s_waitcnt lgkmcnt(0)
    v_add_f32 v32, v32, v33
    v_add_f32 v34, v34, v35
    v_add_f32 v36, v36, v37
    v_add_f32 v38, v38, v39
    v_add_f32 v32, v32, v34
    v_add_f32 v36, v36, v38
    v_add_f32 v10, v32, v36
    s_mov_b32 exec_hi, 0
    buffer_store_dwordx4 v[8:11], v5, {sr(SW)}, s12 offen sc1
    s_mov_b64 exec, -1""")
    stamp(7)

    sect[0] = "F"
    a("L_FIN:")
    if P["cyc"]: a("s_barrier")
    if P["fin"] == "old":
        a(f"""s_cmp_lt_u32 s5, 14
        s_cbranch_scc1 L_exit
        s_load_dwordx2 s[{SC}:{SC+1}], s[0:1], 80
        s_load_dwordx2 s[{SQ}:{SQ+1}], s[0:1], 88
        s_sub_u32 s10, s5, 14
        s_lshl1_add_u32 s10, s4, s10
        s_lshl_b32 s11, s10, 7
        s_lshl_b32 s12, s3, 16
        s_add_u32 s11, s11, s12
        s_add_u32 s11, s11, {DP}
        s_add_u32 s12, s11, 0x4000
        s_add_u32 s13, s11, 0x8000
        s_add_u32 s14, s11, 0xc000
        s_lshl_b32 s16, s10, 6
        v_lshrrev_b32 v4, 3, v0
        v_and_b32 v5, 7, v0
        v_lshlrev_b32 v4, 11, v4
        v_lshl_add_u32 v4, v5, 4, v4
        v_lshlrev_b32 v12, 4, v5
        v_add_u32 v12, {FX}, v12
        s_lshl_b32 s17, s3, 7
        v_add_u32 v13, s17, v12
        v_lshlrev_b32 v5, 3, v5
        v_mov_b32 v6, 0xff""")
        srd(SX, 1024); srd(SC, 1024); srd(SQ, 1024)
        a(f"""s_waitcnt lgkmcnt(0)
        buffer_load_dwordx2 v[14:15], v5, {sr(SX)}, s16 offen
        buffer_load_dwordx2 v[16:17], v5, {sr(SC)}, s16 offen""")
        if P["out_touch"]: a(f"buffer_load_dwordx2 v[30:31], v5, {sr(SQ)}, s16 offen {P['out_touch']}")
        a("s_waitcnt vmcnt(0)")
        unpack2(20, 14); unpack2(22, 15); unpack2(24, 16); unpack2(26, 17)
        a("v_pk_add_f32 v[20:21], v[20:21], v[24:25]\nv_pk_add_f32 v[22:23], v[22:23], v[26:27]")
        a("L_fin:")
        for x in range(4): a(f"buffer_load_dwordx4 {vr(64+4*x)}, v4, {sr(SW)}, s{11+x} offen {P['fin_pol']}")
        for x in range(4):
            a(f"s_waitcnt vmcnt({3-x})")
            check(7, 64+4*x, 4, sF, x == 0)
            if x: a(f"v_pk_add_f32 v[64:65], v[64:65], {vr(64+4*x,2)}\nv_pk_add_f32 v[66:67], v[66:67], {vr(66+4*x,2)}")
        a("v_and_b32 v7, v6, v7\nv_cmp_ne_u32 vcc, 0, v7")
        spin("L_fin", "s_cbranch_vccnz")
        for q in range(4): a(f"v_add_f32_dpp v{64+q}, v{64+q}, v{64+q} row_ror:8 {DPPM}")
        for sw in ("v_permlane16_swap_b32", "v_permlane32_swap_b32"):
            for q in range(4): a(f"v_mov_b32 v{68+q}, v{64+q}")
            for q in range(4): a(f"{sw} v{68+q}, v{64+q}")
            a("v_pk_add_f32 v[64:65], v[64:65], v[68:69]\nv_pk_add_f32 v[66:67], v[66:67], v[70:71]")
        a(f"""s_mov_b64 exec, 0xff
        ds_write_b128 v13, v[64:67]
        s_waitcnt lgkmcnt(0)
        s_barrier
        s_cmp_lg_u32 s3, 0
        s_cbranch_scc1 L_exit""")
        for x in range(1, 4): a(f"ds_read_b128 {vr(64+4*x)}, v12 offset:{128*x}")
        a("v_pk_add_f32 v[20:21], v[20:21], v[64:65]\nv_pk_add_f32 v[22:23], v[22:23], v[66:67]\ns_waitcnt lgkmcnt(0)")
        stamp(8)
        a(f"""v_pk_add_f32 v[68:69], v[68:69], v[72:73]
        v_pk_add_f32 v[70:71], v[70:71], v[74:75]
        v_pk_add_f32 v[20:21], v[20:21], v[76:77]
        v_pk_add_f32 v[22:23], v[22:23], v[78:79]
        v_pk_add_f32 v[20:21], v[20:21], v[68:69]
        v_pk_add_f32 v[22:23], v[22:23], v[70:71]
        v_cvt_pk_bf16_f32 v12, v20, v21
        v_cvt_pk_bf16_f32 v13, v22, v23
        buffer_store_dwordx2 v[12:13], v5, {sr(SQ)}, s16 offen {P['out_pol']}
        s_cmp_lg_u32 s10, 0
        s_cbranch_scc1 L_fin_done
        s_mov_b64 exec, 1
        {"s_mov_b32 s88, 1" if P["probe"] else ""}
        v_mov_b32 v14, s{sF}
        buffer_store_dword v14, v5, {sr(SW)}, 0 offen offset:{EP} {P['out_pol']}
        L_fin_done:
        s_mov_b64 exec, -1""")
    else:
        nw = P["fin"]
        k0 = 16 - 4 // nw
        a(f"""s_cmp_lt_u32 s5, {k0}
        s_cbranch_scc1 L_exit
        s_sub_u32 s12, 3, s3
        s_cmp_ge_u32 s12, {nw}
        s_cbranch_scc1 L_exit
        s_load_dwordx2 s[{SC}:{SC+1}], s[0:1], 80
        s_load_dwordx2 s[{SQ}:{SQ+1}], s[0:1], 88
        s_sub_u32 s10, s5, {k0}
        s_mul_i32 s10, s10, {nw}
        s_add_u32 s10, s10, s12
        s_lshl2_add_u32 s10, s4, s10
        s_lshl_b32 s11, s10, 6
        s_add_u32 s64, s11, {DP}""")
        for x in range(1, 8): a(f"s_add_u32 s{64+x}, s64, {0x8000*x}")
        a(f"""s_lshl_b32 s16, s10, 5
        v_lshrrev_b32 v4, 2, v0
        v_and_b32 v5, 3, v0
        v_lshlrev_b32 v4, 11, v4
        v_lshl_add_u32 v4, v5, 4, v4
        v_lshl_add_u32 v5, v5, 2, v3
        v_lshlrev_b32 v5, 1, v5
        v_mov_b32 v6, 0xff""")
        srd(SX, 1024); srd(SC, 1024); srd(SQ, 1024)
        a(f"""s_waitcnt lgkmcnt(0)
        buffer_load_ushort v14, v5, {sr(SX)}, s16 offen
        buffer_load_ushort v15, v5, {sr(SC)}, s16 offen""")
        if P["out_touch"]: a(f"buffer_load_ushort v30, v5, {sr(SQ)}, s16 offen {P['out_touch']}")
        a("""s_waitcnt vmcnt(0)
        v_lshlrev_b32 v14, 16, v14
        v_lshlrev_b32 v15, 16, v15
        v_add_f32 v14, v14, v15
        L_fin:""")
        for x in range(8): a(f"buffer_load_dwordx4 {vr(64+4*x)}, v4, {sr(SW)}, s{64+x} offen {P['fin_pol']}")
        for x in range(8):
            a(f"s_waitcnt vmcnt({7-x})")
            check(7, 64+4*x, 4, sF, x == 0)
            if x: a(f"v_pk_add_f32 v[64:65], v[64:65], {vr(64+4*x,2)}\nv_pk_add_f32 v[66:67], v[66:67], {vr(66+4*x,2)}")
        a("v_and_b32 v7, v6, v7\nv_cmp_ne_u32 vcc, 0, v7")
        a("v_permlane32_swap_b32 v64, v66\nv_permlane32_swap_b32 v65, v67")
        spin("L_fin", "s_cbranch_vccnz")
        stamp(8)
        a(f"""v_pk_add_f32 v[64:65], v[64:65], v[66:67]
        v_permlane16_swap_b32 v64, v65
        v_add_f32 v64, v64, v65
        v_add_f32_dpp v64, v64, v64 row_ror:4 {DPPM}
        v_add_f32_dpp v64, v64, v64 row_ror:8 {DPPM}
        v_add_f32 v64, v64, v14
        v_cvt_pk_bf16_f32 v64, v64, v64
        s_mov_b32 exec_lo, 0x000f000f
        s_mov_b32 exec_hi, 0x000f000f
        buffer_store_short v64, v5, {sr(SQ)}, s16 offen {P['out_pol']}
        s_cmp_lg_u32 s10, 0
        s_cbranch_scc1 L_fin_done
        s_mov_b64 exec, 1
        {"s_mov_b32 s88, 1" if P["probe"] else ""}
        v_mov_b32 v14, s{sF}
        buffer_store_dword v14, v5, {sr(SW)}, 0 offen offset:{EP} {P['out_pol']}
        L_fin_done:
        s_mov_b64 exec, -1""")
    if P["lite"]:
        a(f"""s_waitcnt vmcnt(0)
        s_memrealtime s[82:83]
        s_lshl_b32 s10, s10, {4 if P["fin"] == "old" else 3}
        s_add_u32 s10, s10, {STAMP}
        s_waitcnt lgkmcnt(0)
        v_mov_b32 v4, 0
        v_mov_b32 v8, s80
        v_mov_b32 v9, s82
        v_mov_b32 v10, s80
        v_mov_b32 v11, s82
        {"buffer_store_dwordx4 v[8:11]" if P["fin"] == "old" else "buffer_store_dwordx2 v[8:9]"}, v4, {sr(SW)}, s10 offen""")
    if diag:
        a("s_waitcnt vmcnt(0)"); stamp(9)
    a("s_branch L_exit")

    sect[0] = "H"
    a("L_ATT_help:")
    common()
    a("s_waitcnt lgkmcnt(0)")
    ep_load()
    a(f"""s_lshl4_add_u32 s9, s4, s5
    s_sub_u32 s10, s3, 4
    s_lshl_b32 s11, s10, 12
    s_add_u32 s12, s11, {QL}
    s_add_u32 s13, s11, {X}
    s_lshl_b32 s14, s10, 6
    v_lshlrev_b32 v4, 4, v0
    v_add_u32 v5, s13, v4
    v_xor_b32 v8, s14, v4
    v_xor_b32 v9, 16, v8
    v_xor_b32 v10, 32, v8
    v_xor_b32 v11, 48, v8
    v_mov_b32 v6, 0x10001""")
    a(f"""v_bfe_u32 v4, v0, 2, 2
    v_bfe_u32 v7, v0, 4, 1
    v_bfe_u32 v12, v0, 1, 1
    v_lshl_or_b32 v12, v7, 1, v12
    v_lshl_or_b32 v12, v4, 2, v12
    v_lshlrev_b32 v12, 4, v12
    v_lshl_add_u32 v12, v4, 8, v12
    v_lshl_add_u32 v12, v7, 10, v12
    v_lshrrev_b32 v13, 5, v0
    v_lshl_add_u32 v12, v13, 12, v12
    v_and_b32 v4, 1, v0
    v_lshl_add_u32 v12, v4, 3, v12
    s_lshl_b32 s14, s10, 15
    v_add_u32 v24, s14, v12
    v_lshlrev_b32 v4, 4, v2
    v_lshl_add_u32 v1, v3, 19, v4
    v_lshl_add_u32 v4, v7, 9, v4
    v_lshl_add_u32 v4, v13, 10, v4
    v_add_u32 v98, {PX}, v4
    s_lshl_b32 s15, s9, 8
    s_add_u32 s14, s14, s15
    s_add_u32 s14, s14, {BP}""")
    for n in range(8):
        if n: a(f"v_xor_b32 v{24+n}, {32*n}, v24")
        a(f"v_xor_b32 v{100+n}, {32*n + 16}, v24")
    for hh in range(2):
        for r in range(4):
            a(f"s_add_u32 s{64+4*hh+r}, s14, {(16*hh + r)*131072}")
    a("s_waitcnt lgkmcnt(0)")
    tags(True)
    if P["tlb"]:
        a(f"""v_lshlrev_b32 v4, 20, v0
        s_mov_b64 exec, 15
        buffer_load_dword v110, v4, {sr(SW)}, s64 offen nt
        s_mov_b64 exec, -1""")
    a("s_barrier")
    a(f"""v_mov_b32 v16, s13
    L_qtrig:
    ds_read_b32 v17, v16
    s_waitcnt lgkmcnt(0)
    v_cmp_eq_u32 vcc, 0, v17
    s_sleep 1
    s_add_u32 s28, s28, 0x10000
    s_cbranch_scc1 L_exit
    s_cbranch_vccnz L_qtrig
    s_and_b32 s28, s28, 0xffff""")
    stamp(4)
    if P["q_prio"]: a("s_setprio 3")
    def qoff(r): return 1024*(r & 3) + 16384*(r >> 2)
    def q_dma(r): a(f"s_add_u32 m0, s13, {qoff(r)}\ns_add_u32 s15, s12, {qoff(r)}\nbuffer_load_dwordx4 v{8+(r&3)}, {sr(SW)}, s15 offen sc1 lds")
    for r in range(8): q_dma(r)
    if P["zpf"]: a("s_barrier")
    fr = [(n, w) for n in range(8) for w in range(4)]
    def tr_read(n, w):
        for sec in range(2):
            a(f"ds_read_b64_tr_b16 {vr(128+16*n+4*w+2*sec,2)}, v{(100 if sec else 24)+n} offset:{8192*w + 2048*sec}")
    if P["tr_pre"]:
        a("s_barrier")
        for (n, w) in fr[:P["tr_pre"]]: tr_read(n, w)
    for r in range(8):
        a(f"s_waitcnt vmcnt({7-r})\nds_read_b128 {vr(64+4*r)}, v5 offset:{qoff(r)}")
        if r: a("s_waitcnt lgkmcnt(1)"); check(7, 64+4*(r-1), 4, sB, r == 1)
    a("s_waitcnt lgkmcnt(0)")
    check(7, 64+28, 4, sB, False)
    a("v_and_b32 v7, v6, v7\nv_cmp_ne_u32 vcc, 0, v7\ns_cbranch_vccz L_qok\ns_mov_b32 s16, 0")
    a("L_qfetch:")
    for r in range(8):
        a(f"s_bitcmp1_b32 s16, {r}\ns_cbranch_scc0 L_qs{r}")
        q_dma(r)
        a(f"L_qs{r}:")
    a("s_waitcnt vmcnt(0)")
    for r in range(8): a(f"ds_read_b128 {vr(64+4*r)}, v5 offset:{qoff(r)}")
    a("s_mov_b32 s16, 0")
    for r in range(8):
        a(f"s_waitcnt lgkmcnt({7-r})")
        check(7, 64+4*r, 4, sB, True)
        a(f"v_and_b32 v7, v6, v7\nv_cmp_ne_u32 vcc, 0, v7\ns_cmp_lg_u64 vcc, 0\ns_cselect_b32 s17, {1<<r}, 0\ns_or_b32 s16, s16, s17")
    spin("L_qfetch", "s_cbranch_scc1", "s_cmp_lg_u32 s16, 0")
    a("L_qok:")
    stamp(5)
    a(f"s_setprio {P['pv_prio']}\ns_barrier")
    for i_, (n, w) in enumerate(fr):
        if i_ == P["tr_split"][0]: a("s_barrier")
        if i_ == P["tr_split"][1]: a("s_barrier")
        if i_ >= P["tr_pre"]: tr_read(n, w)
    if P["cyc"]: stamp(2)
    for x in P["tr_split"]:
        if x >= 32: a("s_barrier")
    a("s_setprio 0\ns_waitcnt lgkmcnt(0)\ns_barrier")
    stamp(6)
    del lq[:]
    def p_read(hh, w): lop(f"ds_read_b128 {vr(32+16*hh+4*w)}, v98 offset:{2048*w + 256*hh}", ("P", hh, w))
    for w in range(4): p_read(0, w)
    def outblk(hh, r): return (8 if hh == 0 else 64) + 4*r
    def pack(hh, q):
        L = []
        for r in range(4):
            o = outblk(hh, r) + q
            L += [f"v_cvt_pk_bf16_f32 v{o}, v{64+32*hh+8*q+r}, v{64+32*hh+8*q+4+r}", f"v_bfi_b32 v{o}, v6, s{sB+q}, v{o}"]
        return L
    def ostore(hh, r): return f"buffer_store_dwordx4 {vr(outblk(hh, r))}, v1, {sr(SW)}, s{64+4*hh+r} offen sc1"
    order = [(hh, n, w) for hh in range(2) for n in range(8) for w in range(4)]
    GAP = 3
    F = []
    for q in range(3): F += [(8*q + 7 + GAP, l) for l in pack(0, q)]
    for r in range(4):
        F += [(31 + GAP + P["st_gap"]*r, l) for l in pack(0, 3)[2*r:2*r+2]] + [(0, ostore(0, r))]
    G2 = []
    for q in range(3): G2 += [(32 + 8*q + 7 + GAP, l) for l in pack(1, q)]
    for i_, (hh, n, w) in enumerate(order):
        lwait([("P", hh, w)])
        acc = 64 + 32*hh + 4*n
        a(f"v_mfma_f32_16x16x32_bf16 {vr(acc)}, {vr(32+16*hh+4*w)}, {vr(128+16*n+4*w)}, {'0' if w == 0 else vr(acc)}")
        if i_ == P["bd_at"]: a("s_barrier")
        if 3 <= i_ < 7: p_read(1, i_ - 3)
        if P["cyc"] and i_ == 31: stamp(1)
        used = 0
        while used < 2:
            if F and F[0][0] <= i_:
                l = F.pop(0)[1]; a(l); used += 0 if "store" in l else 1
            elif G2 and G2[0][0] <= i_ and not any("v64," in x[1] or True for x in F if "store" not in x[1] and x[0] <= 31 + GAP - 1):
                a(G2.pop(0)[1]); used += 1
            else: break
    stamp(7)
    for f in F + G2: a(f[1])
    pk = pack(1, 3)
    for r in range(4):
        a(pk[2*r]); a(pk[2*r+1]); a(ostore(1, r))
    stamp(8)
    if diag:
        a("s_waitcnt vmcnt(0)"); stamp(9)
    a("s_branch L_exit")

    sect[0] = "S"
    a("L_S1:")
    a(f"""s_load_dwordx2 s[{SG}:{SG+1}], s[0:1], 32
    s_load_dwordx2 s[{SX}:{SX+1}], s[0:1], 56
    s_load_dwordx2 s[{SQ}:{SQ+1}], s[0:1], 72
    s_load_dwordx2 s[{SK}:{SK+1}], s[0:1], 64""")
    srd(SX, 512*1792*2); srd(SQ, 1792*512*2); srd(SK, 1792*2)
    srd(SG, 4 << 20)
    a(f"""v_lshlrev_b32 v5, 17, v3
    v_lshlrev_b32 v6, 2, v3
    v_xor_b32 v6, v6, v2
    v_lshl_add_u32 v4, v6, 4, v5
    v_xor_b32 v26, 32, v4
    s_lshl_b32 s10, s8, 5
    s_add_u32 s10, s10, s3
    s_lshl_b32 s10, s10, 15
    s_lshl_b32 s11, s7, 8
    s_add_u32 s10, s10, s11
    s_lshl_b32 s11, s3, 13
    s_add_u32 s11, s11, {X}""")
    a(f"""v_bfe_u32 v6, v0, 2, 2
    v_bfe_u32 v7, v0, 4, 1
    v_bfe_u32 v5, v0, 1, 1
    v_lshl_or_b32 v7, v7, 1, v5
    v_lshl_or_b32 v7, v6, 2, v7
    s_lshl_b32 s12, s3, 2
    v_xor_b32 v7, s12, v7
    v_lshlrev_b32 v7, 4, v7
    v_lshlrev_b32 v6, 8, v6
    v_lshl_add_u32 v6, v3, 11, v6
    v_and_b32 v5, 1, v0
    v_lshl_add_u32 v6, v5, 3, v6
    v_add_u32 v6, {X}, v6
    v_add_u32 v8, v6, v7
    v_xor_b32 v9, 32, v8""")
    a(f"""v_and_b32 v5, 7, v0
    v_lshl_add_u32 v5, v5, 2, v3
    v_lshlrev_b32 v10, 9, v5
    v_lshlrev_b32 v11, 4, v0
    v_lshlrev_b32 v5, 4, v2
    v_lshl_add_u32 v5, v3, 3, v5
    s_lshl_b32 s12, s3, 6
    s_add_u32 s13, s12, s11
    v_add_u32 v12, s13, v5
    v_and_b32 v5, 3, v0
    v_mul_u32_u24 v5, {8192+64}, v5
    v_lshl_add_u32 v5, v3, 4, v5
    v_add_u32 v13, {X}, v5
    v_and_b32 v5, 31, v0
    s_add_u32 s13, s12, {X+2048}
    v_lshl_add_u32 v14, v5, 1, s13
    v_mov_b32 v15, s11
    v_mov_b32 v31, {X}
    v_mov_b32 v30, 0x10001
    v_bfe_u32 v5, v0, 4, 1
    v_cmp_eq_u32 s[18:19], 1, v5
    s_mov_b32 m0, s11
    s_nop 0""")
    a(f"""s_lshl2_add_u32 s15, s8, s3
    s_mul_i32 s15, s15, {32*3584}
    s_lshr_b32 s16, s5, 2
    s_lshl2_add_u32 s16, s4, s16
    s_lshl_b32 s16, s16, 7
    s_add_u32 s15, s15, s16
    v_mul_u32_u24 v20, 3584, v0
    s_lshl4_add_u32 s9, s4, s5
    s_waitcnt lgkmcnt(0)""")
    if P["tlb"]:
        a(f"""s_lshl2_add_u32 s12, s7, s8
        s_lshl_b32 s12, s12, 15
        s_add_u32 s12, s12, {BP + 3*256 + 128}
        s_lshl_b32 s13, s9, 14
        v_mov_b32 v21, 0
        s_mov_b64 exec, 1
        buffer_load_dword v237, v21, {sr(SG)}, s10 offen
        buffer_load_dword v237, v21, {sr(SQ)}, s13 offen
        buffer_load_dword v237, v21, {sr(SW)}, s12 offen nt
        s_mov_b64 exec, -1""")
    a("s_barrier")
    if P["h_touch"] and P["bhint"]:
        a(f"""s_lshl_b32 s12, s3, 13
        s_lshl2_add_u32 s13, s7, s8
        s_lshl_b32 s13, s13, 15
        s_add_u32 s13, s13, s12""")
        for rnd in range(P["brounds"]):
            for x in range(P["bhint"]):
                a(f"s_add_u32 s12, s13, {BP + ((32*x//P['bhint'] + 3 - rnd) % 32)*256 + 128}\ns_load_dword s{HINT+x}, s[{SW}:{SW+1}], s12 glc")
    for r in range(16): a(f"v_mov_b32 v{96+r}, 0")
    if P["uv_pf"]:
        a(f"""s_lshl2_add_u32 s12, s8, s3
        s_lshl_b32 s12, s12, 18
        s_lshl_b32 s13, s7, 8
        s_add_u32 s12, s12, s13
        v_lshrrev_b32 v21, 1, v0
        v_and_b32 v22, 1, v0
        v_lshlrev_b32 v22, 7, v22
        v_lshl_add_u32 v21, v21, 13, v22
        {"s_mov_b32 exec_hi, 0" if P["uv_pf"] == 1 else ""}
        buffer_load_dword v238, v21, {sr(SG)}, s12 offen
        s_mov_b64 exec, -1""")
    a(f"""s_cmp_eq_u32 s4, 7
    s_cbranch_scc1 L_nomlp
    s_mov_b32 exec_hi, 0
    {"" if P["w1_att"] else f"buffer_load_dword v239, v20, {sr(SX)}, s15 offen"}
    s_mov_b64 exec, -1
    s_cmp_lg_u32 s3, 3
    s_cbranch_scc1 L_nomlp
    s_lshl_b32 s15, s9, 5
    s_lshl_b32 s16, s9, 14
    v_lshlrev_b32 v21, 12, v3
    v_lshl_add_u32 v21, v2, 4, v21
    v_lshlrev_b32 v22, 1, v2
    buffer_load_ushort v48, v22, {sr(SK)}, s15 offen""")
    a(f"""v_mov_b32 v27, v21
    v_lshrrev_b32 v20, 1, v0
    v_mul_u32_u24 v20, 3584, v20
    v_and_b32 v21, 1, v0
    v_lshl_add_u32 v20, v21, 4, v20
    v_lshlrev_b32 v21, 4, v0
    v_add_u32 v21, {X}, v21
    ds_write_b128 v21, v[56:59]
    v_lshlrev_b32 v21, 4, v3
    v_add_u32 v21, {X}, v21
    v_lshlrev_b32 v22, 8, v3
    v_lshl_add_u32 v22, v2, 3, v22
    v_add_u32 v22, {X+16384}, v22
    v_lshl_add_u32 v23, v3, 2, v2
    v_and_b32 v23, 15, v23
    v_lshlrev_b32 v23, 2, v23
    s_mov_b32 m0, {X+16384}""")
    def w2_loads():
        for t in range(16): a(f"buffer_load_dwordx4 {vr(192+4*t)}, v27, {sr(SQ)}, s16 offen offset:{256*t} nt")
    if P["w2_early"]: w2_loads()
    for t in range(16): a(f"ds_read_b128 {vr(64+4*t)}, v21 offset:{64*t}")
    if not P["w1_att"]: a("s_waitcnt vmcnt(0)")
    if P["optx"]: a("s_barrier")
    for q in range(16):
        a(f"buffer_load_dwordx4 v20, {sr(SX)}, s15 offen lds")
        if q < 15: a(f"s_addk_i32 m0, 0x400\ns_add_u32 s15, s15, {32*3584}")
    if P["optx"]: a("s_waitcnt vmcnt(0)")
    else:
        a(f"s_waitcnt vmcnt({P['wo_gate']})\ns_barrier")
        if P["w2_early"] or P["w2_at"] == "u": a("s_waitcnt vmcnt(0)")
        else:
            w2_loads()
            a("s_waitcnt vmcnt(16)")
    stamp(8)
    for t in range(16):
        a(f"ds_read_b64_tr_b16 {vr(128+4*t,2)}, v22 offset:{1024*t}\nds_read_b64_tr_b16 {vr(130+4*t,2)}, v22 offset:{1024*t+128}")
    a("s_waitcnt lgkmcnt(0)")
    for t in range(16):
        a(f"v_mfma_f32_16x16x32_bf16 v[16:19], {vr(64+4*t)}, {vr(128+4*t)}, {'0' if t == 0 else 'v[16:19]'}")
    rnd_bf16(20, 16)
    a("v_lshlrev_b32 v48, 16, v48\nv_add_f32 v20, v20, v48")
    rnd_bf16(20, 20)
    a("""v_max_f32 v20, 0, v20
    v_mul_f32 v20, v20, v20
    v_cvt_pk_bf16_f32 v20, v20, v20
    ds_bpermute_b32 v21, v23, v20
    s_waitcnt lgkmcnt(0)""")
    for rq in range(4):
        for dw in range(4):
            a(f"v_and_b32_dpp v{64+4*rq+dw}, v21, v{32+dw} row_newbcast:{rq} {DPPM}")
    def wuv_loads():
        a("s_mov_b32 m0, s11\ns_barrier")
        stamp(1)
        for q in range(8):
            if 0 < q <= P["uv_slow"]: a("s_waitcnt vmcnt(0)")
            a(f"buffer_load_dwordx4 v{26 if (q>>1)&1 else 4}, {sr(SG)}, s10 offen nt lds")
            if q < 7: a(f"s_add_u32 m0, m0, 1024\ns_add_u32 s10, s10, {(64*8192 if q & 1 == 0 else (1-64)*8192) & 0xffffffff}")
    wuv_loads()
    if (P["optx"] and not P["w2_early"]) or P["w2_at"] == "u":
        w2_loads()
        a("s_waitcnt vmcnt(0)")
    else: a("s_waitcnt vmcnt(8)")
    for rq in range(4):
        for cb in range(4):
            a(f"v_mfma_f32_16x16x32_bf16 {vr(96+4*cb)}, {vr(64+4*rq)}, {vr(192+16*rq+4*cb)}, {'0' if rq == 0 else vr(96+4*cb)}")
    a("s_nop 7\ns_branch L_wuv_done\nL_nomlp:")
    if P["wo_gate"] is not None: a("s_barrier")
    wuv_loads()
    a("L_wuv_done:")
    a(f"""s_lshl_b32 s12, s3, 13
    s_lshl2_add_u32 s16, s7, s8
    s_lshl_b32 s13, s16, 15
    s_add_u32 s13, s13, s12
    s_add_u32 s13, s13, {BP}
    s_lshl_b32 s12, s12, 1
    s_lshl4_add_u32 s12, s7, s12
    s_add_u32 s12, s12, {ST}""")
    if P["st_touch"]: a(f"buffer_load_dwordx4 v[16:19], v10, {sr(SW)}, s12 offen {P['st_pol']}")
    a("s_waitcnt vmcnt(0)")
    a(f"s_add_u32 s36, s{SW}, s13\ns_addc_u32 s37, s{SW+1}, 0")
    boffs = [((32*x//P["bhint"] + 3) % 32)*256 + 128 for x in range(P["bhint"])]
    if P["hpipe"]:
        for x, o in enumerate(boffs): a(f"s_load_dwordx2 {sr(HINT+2*x,2)}, s[36:37], {o} glc")
    a("s_barrier")
    for n in range(2):
        for t in range(4):
            for sec in range(2):
                a(f"ds_read_b64_tr_b16 {vr(160+16*n+4*t+2*sec,2)}, v{8+n} offset:{8192*t + 1024*sec}")
    a("s_waitcnt lgkmcnt(0)\ns_barrier")
    a(f"""s_cmp_lg_u32 s3, 3
    s_cbranch_scc1 L_nomw
    v_add_u32 v20, {X+4096}, v41
    s_mov_b32 exec_hi, 0""")
    for cb in range(4): a(f"ds_write_b128 v20, {vr(96+4*cb)} offset:{512*cb}")
    a("s_mov_b64 exec, -1\nL_nomw:")
    stamp(2)
    nh = P["lhint"]
    shint("L_lhint", hint_offs(nh, 16, 31, 9, 12, 32//max(nh,1)), 't')
    def st_check():
        a(f"""v_xor_b32 v17, s{sF}, v17
        v_bitop3_b32 v17, v17, v19, s{sF} bitop3:0xf6""")
    def st_loop():
        if P["st_sleep"]: a(f"s_branch L_stp1\nL_stp:\ns_sleep {P['st_sleep']}\nL_stp1:")
        else: a("L_stp:")
        a(f"buffer_load_dwordx4 v[16:19], v10, {sr(SW)}, s12 offen {P['st_pol']}\ns_waitcnt vmcnt(0)")
        st_check()
        a("v_cmp_ne_u32 vcc, 0, v17")
        spin("L_stp", "s_cbranch_vccnz")
        stamp(4)
    if P["st_first"]: st_loop()
    nh = P["bhint"]
    if P["hpipe"]: a("s_branch L_bhint0_chk")
    for rnd in range(P["brounds"]):
        shint(f"L_bhint{rnd}", [((32*x//nh + 3 - rnd) % 32)*256 + 128 for x in range(nh)], 'c')
    stamp(3)
    a("s_add_u32 s14, s13, 4096")
    if P["st_last"] and not P["st_first"]: st_loop()
    def pl_load(t): a(f"buffer_load_dwordx4 {vr(64+4*t)}, v11, {sr(SW)}, s{13 + (t>>2)} offen offset:{1024*(t&3)} {P['pl_pol']}")
    def ops():
        a("v_mov_b32 v24, v16")
        allreduce("v_max_f32", 24, 20)
        a("""v_sub_f32 v16, v16, v24
        v_exp_f32 v16, v16
        v_cvt_pk_bf16_f32 v16, v16, v16""")
        for t in range(8):
            for dw in range(4):
                a(f"v_and_b32_dpp v{128+4*t+dw}, v16, v{32+dw} row_newbcast:{t} {DPPM}")
        a("v_and_b32 v25, 0xffff0000, v16\nv_mul_f32 v25, v25, v18")
        allreduce("v_add_f32", 25, 20)
        a("v_mul_f32 v25, 0.5, v25\nds_write_b64 v15, v[24:25] offset:1024")
    def mf(t): a(f"v_mfma_f32_16x16x32_bf16 v[40:43], {vr(128+4*t)}, {vr(64+4*t)}, {'0' if t == 0 else 'v[40:43]'}")
    if not P["st_last"]: a(f"buffer_load_dwordx4 v[16:19], v10, {sr(SW)}, s12 offen {P['st_pol']}")
    for t in range(8): pl_load(t)
    if not P["st_last"]:
        a("s_waitcnt vmcnt(8)")
        stamp(4)
        st_check()
        a("v_cmp_ne_u32 vcc, 0, v17\ns_cbranch_vccz L_stok")
        a(f"L_stp:\nbuffer_load_dwordx4 v[16:19], v10, {sr(SW)}, s12 offen {P['st_pol']}\ns_waitcnt vmcnt(0)")
        st_check()
        a("v_cmp_ne_u32 vcc, 0, v17")
        spin("L_stp", "s_cbranch_vccnz")
        a("L_stok:")
    ops()
    stamp(5)
    for t in range(8):
        a(f"s_waitcnt vmcnt({7-t})")
        mf(t)
        check(48+t, 64+4*t, 4, sB, True)
        if t == 2: a("v_or3_b32 v7, v48, v49, v50")
        if t in (4, 6): a(f"v_or3_b32 v7, v7, v{47+t}, v{48+t}")
    a("v_or_b32 v7, v7, v55\nv_and_b32 v7, v30, v7\nv_cmp_ne_u32 vcc, 0, v7\ns_cbranch_vccz L_bok")
    a("L_bre:")
    if P["re_sleep"]: a(f"s_sleep {P['re_sleep']}")
    for t in range(8):
        a(f"v_and_b32 v7, v30, v{48+t}\nv_cmp_ne_u32 vcc, 0, v7\ns_cbranch_vccz L_br{t}")
        pl_load(t)
        a(f"L_br{t}:")
    a("s_waitcnt vmcnt(0)")
    for t in range(8):
        mf(t)
        check(48+t, 64+4*t, 4, sB, True)
        if t == 2: a("v_or3_b32 v7, v48, v49, v50")
        if t in (4, 6): a(f"v_or3_b32 v7, v7, v{47+t}, v{48+t}")
    a("v_or_b32 v7, v7, v55\nv_and_b32 v7, v30, v7\nv_cmp_ne_u32 vcc, 0, v7\ns_add_u32 s28, s28, 99")
    spin("L_bre", "s_cbranch_vccnz")
    a("L_bok:\ns_nop 1")
    stamp(6)
    a("""v_cvt_pk_bf16_f32 v44, v40, v41
    v_cvt_pk_bf16_f32 v45, v42, v43
    s_mov_b32 exec_hi, 0
    ds_write_b64 v12, v[44:45]
    s_mov_b64 exec, -1
    s_waitcnt lgkmcnt(0)
    s_barrier""")
    a("ds_read_b128 v[64:67], v13")
    for u in range(2): a(f"ds_read2st64_b64 {vr(80+4*u)}, v31 offset0:{2 + 32*u} offset1:{18 + 32*u}")
    for t in range(1, 4): a(f"ds_read_b128 {vr(64+4*t)}, v13 offset:{64*t}")
    sm = """v_max3_f32 v4, v80, v82, v84
    v_max_f32 v4, v4, v86
    v_sub_f32 v80, v80, v4
    v_sub_f32 v82, v82, v4
    v_sub_f32 v84, v84, v4
    v_sub_f32 v86, v86, v4
    v_exp_f32 v80, v80
    v_exp_f32 v82, v82
    v_exp_f32 v84, v84
    v_exp_f32 v86, v86
    v_mul_f32 v5, v80, v81
    v_fmac_f32 v5, v82, v83
    v_fmac_f32 v5, v84, v85
    v_fmac_f32 v5, v86, v87
    v_rcp_f32 v5, v5
    v_mul_f32 v6, v40, v80
    v_fmac_f32 v6, v41, v82
    v_fmac_f32 v6, v42, v84
    v_fmac_f32 v6, v43, v86""".split("\n")
    fill = [0, 2, 2, 2, 1, 1, 1, 99]
    for x, (n, t) in enumerate([(n, t) for n in range(2) for t in range(4)]):
        if n == 0: a(f"s_waitcnt lgkmcnt({[5, 2, 1, 0][t]})")
        a(f"v_mfma_f32_16x16x32_bf16 {vr(40+4*n)}, {vr(64+4*t)}, {vr(160+16*n+4*t)}, {'0' if t == 0 else vr(40+4*n)}")
        for _ in range(min(fill[x], len(sm))): a(sm.pop(0))
    a("""v_mul_f32 v7, v44, v80
    v_fmac_f32 v7, v45, v82
    v_fmac_f32 v7, v46, v84
    v_fmac_f32 v7, v47, v86
    v_cndmask_b32 v6, v6, v7, s[18:19]
    v_mul_f32 v6, v6, v5
    v_cvt_pk_bf16_f32 v6, v6, v6
    ds_write_b16 v14, v6
    s_waitcnt lgkmcnt(0)""")
    stamp(7)
    a("s_barrier\ns_branch L_exit")

    sect[0] = "O"
    a("L_WO:")
    a(f"s_load_dwordx2 s[{SG}:{SG+1}], s[0:1], 40\ns_barrier\nL_WO1:")
    srd(SC, 16 << 20)
    a(f"""s_lshl4_add_u32 s14, s4, s5
    s_lshl2_add_u32 s14, s14, s3
    s_sub_u32 s14, s14, 4
    s_lshl_b32 s14, s14, 15
    v_lshrrev_b32 v5, 1, v0
    v_and_b32 v6, 1, v0
    v_lshlrev_b32 v5, 10, v5
    v_lshl_add_u32 v5, v6, 7, v5""")
    a("v_mov_b32 v44, v5\ns_mov_b32 s30, s14")
    def ckv_pf():
        for x in range(P["cpf"]):
            if x >= P["cpf_depth"]: a(f"s_waitcnt vmcnt({P['cpf_depth']-1})")
            if P["rgmajor"] == 4:
                a(f"""s_add_u32 s31, s30, {4096*(7-x)}
                v_lshlrev_b32 v44, 7, v0
                s_mov_b32 exec_hi, 0
                buffer_load_dword v{100+x}, v44, {sr(SC)}, s31 offen
                s_mov_b64 exec, -1""")
            else:
                a(f"""s_mov_b32 exec_{'lo' if x & 1 == 0 else 'hi'}, 0
                buffer_load_dword v{100+x}, v44, {sr(SC)}, s30 offen offset:{256*(3 - x//2)}
                s_mov_b64 exec, -1""")
    if not P["cpf_late"]: ckv_pf()
    srd(SG, 4 << 20)
    a(f"""s_sub_u32 s9, s3, 4
    s_lshl_b32 s10, s7, 17
    s_lshl_b32 s11, s9, 8
    s_add_u32 s10, s10, s11
    s_lshl_b32 s11, s9, 15
    v_lshlrev_b32 v4, 2, v3
    v_xor_b32 v4, v4, v2
    v_lshlrev_b32 v4, 4, v4
    v_lshl_add_u32 v4, v3, 10, v4
    v_xor_b32 v5, 32, v4
    s_mov_b32 m0, s11""")
    if P["wo_rot"]:
        a("s_lshl_b32 s13, s8, 15\ns_add_u32 s10, s10, s13")
        for tau in range(3):
            a(f"s_cmp_eq_u32 s8, {3-tau}\ns_cselect_b32 s{36+tau}, -31, 1\ns_lshl_b32 s{36+tau}, s{36+tau}, 12")
    a(f"""v_bfe_u32 v6, v0, 2, 2
    v_bfe_u32 v7, v0, 4, 1
    v_bfe_u32 v16, v0, 1, 1
    v_lshl_or_b32 v7, v7, 1, v16
    v_lshl_or_b32 v7, v6, 2, v7
    v_lshlrev_b32 v7, 4, v7
    v_lshlrev_b32 v6, 8, v6
    v_lshl_add_u32 v6, v3, 11, v6
    v_and_b32 v16, 1, v0
    v_lshl_add_u32 v6, v16, 3, v6
    v_add_u32 v6, s11, v6""")
    for n in range(8):
        a(f"v_xor_b32 v16, {32*n}, v7\nv_add_u32 v{8+n}, v6, v16")
    a(f"""v_lshlrev_b32 v16, 4, v3
    v_add_u32 v16, {X+2048}, v16
    v_lshlrev_b32 v17, 6, v2
    v_lshl_add_u32 v17, v3, 4, v17
    v_mov_b32 v18, 0xff
    s_lshl2_add_u32 s12, s7, s8
    s_lshl_b32 s12, s12, 11
    s_lshl_b32 s13, s9, 9
    s_add_u32 s12, s12, s13
    s_add_u32 s12, s12, {DP}""")
    for t in range(4):
        if P["wo_rot"]: a(f"s_add_u32 s13, s8, {t}\ns_and_b32 s13, s13, 3\ns_lshl_b32 s13, s13, 6\nv_add_u32 v{36+t}, s13, v16")
        else: a(f"v_add_u32 v{36+t}, {64*t}, v16")
    a("s_waitcnt lgkmcnt(0)")
    if P["tlb"]: a(f"v_mov_b32 v45, 0\ns_mov_b64 exec, 1\nbuffer_load_dword v110, v45, {sr(SG)}, s10 offen\ns_mov_b64 exec, -1")
    def wo_read(t):
        for n in range(8):
            for sec in range(2):
                a(f"ds_read_b64_tr_b16 {vr(128+32*t+4*n+2*sec,2)}, v{8+n} offset:{8192*t + 1024*sec}")
    nxt = 0
    for rg in range(32):
        if rg == 0 and P["cpf"] and not P["cpf_late"]: a(f"s_waitcnt vmcnt({P['cpf_tail']})")
        if rg == 0 and not P["optx"]: a("s_barrier")
        if rg == P["x_n"] and P["optx"]: a(f"s_waitcnt vmcnt({P['x_left']})\ns_barrier")
        if rg == 0 and P["cpf_late"]:
            ckv_pf()
            if P["cpf_wait"] is not None: a(f"s_waitcnt vmcnt({P['cpf_wait']})")
        if rg == 0:
            for x in P["wo_bar"]:
                if x < 0: a("s_barrier")
        if rg == 0 and not P["fine"]: stamp(1)
        wd = P["wo_edepth"] if rg < P["wo_early"] else (P["wo_depth0"] if rg < 8 + P["wo_depth0"] else P["wo_depth"])
        if rg >= wd:
            a(f"s_waitcnt vmcnt({wd-1})")
            landed = rg - wd + 1
            if landed >= 8*(nxt+1):
                if nxt == 0: stamp(5)
                if "noread" not in P["abl"]: wo_read(nxt)
                nxt += 1
        a(f"buffer_load_dwordx4 v{4+((rg>>1)&1)}, {sr(SG)}, s10 offen {P['first_pol'] if rg < 8 else P['wo_pol']} lds")
        if rg in P["wo_bar"]: a("s_barrier")
        if rg < 31:
            if P["wo_rot"] and rg & 7 == 7: a(f"s_add_u32 m0, m0, 1024\ns_add_u32 s10, s10, s{36+(rg>>3)}")
            else: a("s_add_u32 m0, m0, 1024\ns_add_u32 s10, s10, 4096")
    while nxt < 4:
        a(f"s_waitcnt vmcnt({24 - 8*nxt})")
        wo_read(nxt); nxt += 1
    for n in range(1, 8):
        a(f"s_mov_b32 s{40+2*n}, {0x01010101 << n}\ns_mov_b32 s{41+2*n}, {0x01010101 << n}")
    for x in P["wo_bar"]:
        if x >= 32: a("s_barrier")
    stamp(6)
    if "bwait" in P["abl"]: a("s_barrier")
    a(f"s_lshl_b32 s13, s9, 9\ns_add_u32 s13, s13, {X+4096}\nv_and_b32 v19, 0x1ff, v17\nv_add_u32 v19, s13, v19")
    a("s_barrier\nds_read_b128 v[40:43], v19\ns_barrier")
    stamp(7)
    for t in range(4): a(f"ds_read_b128 {vr(20+4*t)}, v{36+t}")
    order3 = [(n, t) for t in range(4) for n in range(2)] + [(n, t) for n in range(2, 8) for t in range(4)]
    for x, (n, t) in enumerate(order3):
        if n == 0: a(f"s_waitcnt lgkmcnt({3-t})")
        a(f"v_mfma_f32_16x16x32_bf16 {vr(64+4*n)}, {vr(128+32*t+4*n)}, {vr(20+4*t)}, {'v[40:43]' if t == 0 else vr(64+4*n)}")
        if n >= 4:
            for m in ([n-3] if n < 6 else ([3] if n == 6 else [4])) + ([5] if n == 7 else []):
                a(f"v_cndmask_b32 v{64+t}, v{64+t}, v{64+4*m+t}, s[{40+2*m}:{41+2*m}]")
    for t in range(4): a(f"v_cndmask_b32 v{64+t}, v{64+t}, v{64+24+t}, s[52:53]")
    for r in range(4): a(f"v_bfi_b32 v{64+r}, v18, s{sF+r}, v{64+r}")
    a("s_mov_b64 exec, s[54:55]")
    for r in range(4): a(f"v_bfi_b32 v{64+r}, v18, s{sF+r}, v{92+r}")
    a(f"""s_mov_b32 exec_lo, 0x00ff00ff
    s_mov_b32 exec_hi, 0x00ff00ff
    buffer_store_dwordx4 v[64:67], v17, {sr(SW)}, s12 offen sc1
    s_mov_b64 exec, -1""")
    stamp(8)
    if diag:
        a("s_waitcnt vmcnt(0)"); stamp(9)

    a("L_exit:")
    if P["probe"]:
        if P["probe"][0].startswith("x"):
            a(f"s_waitcnt lgkmcnt(0)\ns_lshl_b32 s85, 1, s4\ns_and_b32 s85, s85, {int(P['probe'][0][1:], 16)}\ns_cselect_b32 s84, s80, 0\ns_cmp_eq_u32 s3, 0\ns_cselect_b32 s84, s84, 0")
        a(f"""s_load_dwordx2 s[86:87], s[0:1], 96
        s_mov_b64 exec, 1
        s_waitcnt lgkmcnt(0)
        v_mov_b32 v4, 0
        v_mov_b32 v5, s84
        s_cmp_eq_u32 s84, 0
        s_cbranch_scc1 L_pr1
        global_atomic_umax v4, v5, s[86:87] offset:128
        L_pr1:
        s_cmp_lg_u32 s3, 0
        s_cbranch_scc1 L_pr2
        v_mov_b32 v5, s80
        global_atomic_umax v4, v5, s[86:87]
        v_not_b32 v6, v5
        global_atomic_umax v4, v6, s[86:87] offset:4
        L_pr2:
        s_cmp_lg_u32 s88, 1
        s_cbranch_scc1 L_end
        s_add_u32 s90, s80, 3000
        L_pr3:
        s_memrealtime s[82:83]
        s_waitcnt lgkmcnt(0)
        s_sub_u32 s83, s82, s90
        s_cmp_lt_i32 s83, 0
        s_cbranch_scc1 L_pr3
        global_load_dwordx2 v[8:9], v4, s[86:87] sc1
        global_load_dword v10, v4, s[86:87] offset:128 sc1
        s_waitcnt vmcnt(0)
        v_readfirstlane_b32 s91, v8
        v_readfirstlane_b32 s92, v9
        v_readfirstlane_b32 s93, v10
        s_not_b32 s92, s92""")
        ref = "s92" if P["probe"][1] == "min" else "s91"
        val = {"maxstart": "s91", "none": ref}.get(P["probe"][0], "s93")
        amp = P["probe"][2] if len(P["probe"]) > 2 else 1
        a(f"""s_sub_u32 s94, {val}, {ref}
        s_mul_i32 s94, s94, {amp}
        s_min_u32 s94, s94, 3000
        s_add_u32 s90, s92, 4000
        s_add_u32 s90, s90, s94
        L_pr4:
        s_memrealtime s[82:83]
        s_waitcnt lgkmcnt(0)
        s_sub_u32 s83, s82, s90
        s_cmp_lt_i32 s83, 0
        s_cbranch_scc1 L_pr4""")
    if diag:
        a(f"""s_mov_b64 exec, -1
        s_waitcnt lgkmcnt(0)
        s_lshl3_add_u32 s10, s2, s3
        s_lshl_b32 s10, s10, 7
        s_add_u32 s10, s10, {STAMP}
        v_mov_b32 v4, 0""")
        for k in range(10):
            a(f"v_mov_b32 v5, s{80+2*k}\nbuffer_store_dword v5, v4, {sr(SW)}, s10 offen offset:{4*k}")
        a(f"v_mov_b32 v5, s28\nbuffer_store_dword v5, v4, {sr(SW)}, s10 offen offset:40")
        a(f"s_getreg_b32 s11, hwreg(HW_REG_XCC_ID)\nv_mov_b32 v5, s11\nbuffer_store_dword v5, v4, {sr(SW)}, s10 offen offset:44")
        a(f"s_getreg_b32 s11, hwreg(HW_REG_HW_ID)\nv_mov_b32 v5, s11\nbuffer_store_dword v5, v4, {sr(SW)}, s10 offen offset:48")
    a("L_end:\ns_endpgm\nL_codeend:")

    lines = a.lines
    if diag:
        pre = [f"s_mov_b32 s{80+2*k}, 0" for k in range(1, 10)]
        lines = lines[:1] + pre + lines[1:]
    lines, nins = insert_waits(lines)
    b = Asm(); b.lines = lines
    head = f"""; fused MLA decode attention (absorbed form) + squared-relu MLP, one persistent launch, 256 workgroups
; @launch grid=(256,1,1) block=(512,1,1) lds=163840
.amdgcn_target "amdgcn-amd-amdhsa--gfx950"
.text
.globl {KNAME}
.p2align 8
.type {KNAME},@function
{KNAME}:
"""
    foot = f"""
.section .rodata,"a"
.p2align 6
.amdhsa_kernel {KNAME}
  .amdhsa_next_free_vgpr 256
  .amdhsa_next_free_sgpr 102
  .amdhsa_accum_offset 256
  .amdhsa_group_segment_fixed_size 0
  .amdhsa_kernarg_size 112
  .amdhsa_user_sgpr_count 2
  .amdhsa_user_sgpr_kernarg_segment_ptr 1
  .amdhsa_system_sgpr_workgroup_id_x 1
  .amdhsa_float_denorm_mode_32 3
.end_amdhsa_kernel
"""
    txt = b.text()
    if P["abl"]:
        L = txt.split("\n"); O = []
        for l in L:
            if "nowo" in P["abl"] and "s[60:63]" in l and "buffer_load" in l: continue
            if "nomlp" in P["abl"] and "s_cmp_eq_u32 s4, 7" in l: l = "    s_cmp_eq_u32 s4, s4"
            if "noqk" in P["abl"] and "32x32x16" in l and ", 0" not in l[-4:]: continue
            if "nos3" in P["abl"] and "16x16x32" in l and ("v[24:27]," in l or "v[28:31]," in l) and "v[32:35], v[" not in l: continue
            O.append(l)
        txt = "\n".join(O)
    if P["pol"] != "nt":
        txt = txt.replace(" nt lds", f" {P['pol']} lds").replace(" nt\n", f" {P['pol']}\n")
    return head + txt + foot

if __name__ == "__main__":
    import json
    kw = json.loads(sys.argv[2]) if len(sys.argv) > 2 else {}
    open(sys.argv[1], "w").write(gen(**kw))
```

```python
import sys, math, struct
from asmlib import Asm, insert_waits
from gen_common import KNAME

EP, QP, QL, GO, ST, HP, DP, BP, STAMP = 0, 0x1000, 0x40000, 0x48000, 0x50000, 0x60000, 0x80000, 0x100000, 0x800000
WS_REC = 0x1000000
X = 131072
SPIN = 1 << 17

def f2u(x): return struct.unpack("<I", struct.pack("<f", x))[0]
def vr(a, n=4): return f"v[{a}:{a+n-1}]"
def sr(a, n=4): return f"s[{a}:{a+n-1}]"

SX, SC, SQ, SK, SW, SG = 40, 44, 48, 52, 56, 60
sF, sB = 20, 24
HINT = 64
DPPM = "row_mask:0xf bank_mask:0xf"

DEFAULT = dict(lite=False, diag=False, cyc=False, fine=False, calib=0, probe=None, abl=(), pol="nt", prefetch=True, pf_wgs=16, role_bit=0,
               pq=True, pk_late='a', pf_ramp=(0, 4, 10), bi_at=2, q_at=31, qhint=0, cw_at=-1, sm_pre=4, bb_at=1, ba_at=28, q_ah=5, bd_at=8, l_pre=6, fin=1, ent=2, hc=1, s1mode='a', ops_split=99, w1pf_at='b', xfast=True, align=None, nox=0, nox_cpf=2, tlb=False, zpf=0, uv_slow=0, w2_at='g', st_sleep=0, st_first=False, uk_first=False, tr_pre=0, pv_prio=0, qk_prio=2, qk_fill=(2, 2), tr_split=(20, 26), pv_bar=(10, 24), st_gap=4, optx=False, pf_pol='', first_pol='', uk_pol='nt', x_n=8, x_left=0, pv_fill=2,
               cpf=0, wo_gate=8, ql_pre=None, cpf_depth=2, cpf_tail=1, wq_pol="", wo_pol="", wo_depth=8, wo_depth0=8, wo_bar=(7, 23, 29), wo_rot=True,
               bhint=4, fhint=0, hsleep=0, out_pol="", mlp_at="pf", wpq=False, x_bar=True, wq_bars=(), ln_at=7, st_last=True, st_at=10, w2_early=False, uv_pf=0, w1_att=False, cpf_wait=None, lhint=0, st_touch=False, h_touch=True, hmap=1, pk_mix=False, cpf_late=False, c_keep=0, ql_delay=0, fin_pol='sc1', pl_pol='sc1', st_pol='sc1', rgmajor=4, hpipe=True, brounds=1, re_sleep=0, w1_wait=17, w2_late=True, wuv_depth=8, q_prio=True, q_fast=True, w1_pre=16, w2_left=0, att_pf=0, out_touch='sc1', dpp_early=True, go_at=None, cpfq=True, c_ramp=((0,10),), wo_early=0, wo_edepth=2)

def gen(**kw):
    P = dict(DEFAULT); P.update(kw)
    diag = P["diag"]
    a = Asm()
    sect = ["entry"]
    def fs(k):
        if P['cyc'] == 3: stamp(k, True)
    def stamp(k, force=False):
        if P["cyc"] == 3 and sect[0] in ("C", "F", "H") and not force: return
        if P["cyc"] == 2 and (sect[0], k) not in (("entry", 0), ("C", 3), ("H", 8), ("H", 7), ("S", 6), ("O", 8), ("A", 3), ("A", 4)): return
        if diag: a(f"{'s_memtime' if P['cyc'] else 's_memrealtime'} s[{80+2*k}:{81+2*k}]")
        if P["probe"] and P["probe"][0] == f"{sect[0]}{k}":
            a("s_memrealtime s[84:85]")
    def srd(base, size):
        a(f"s_mov_b32 s{base+2}, {size}\ns_mov_b32 s{base+3}, 0x20000")
    def ep_load(): a(f"s_load_dword s35, s[{SW}:{SW+1}], {EP}")
    def tags(need_b=True):
        for q in range(4): a(f"s_add_u32 s{sF+q}, s35, {q+1}")
        if need_b:
            for q in range(4): a(f"s_and_b32 s{sB+q}, s{sF+q}, 3\ns_mul_i32 s{sB+q}, s{sB+q}, 0x8001")
    def allreduce(op, v, t1):
        for r in (1, 2, 4, 8):
            a(f"{op}_dpp v{v}, v{v}, v{v} row_ror:{r} {DPPM}")
        for sw in ("v_permlane16_swap_b32", "v_permlane32_swap_b32"):
            a(f"v_mov_b32 v{t1}, v{v}\n{sw} v{t1}, v{v}\n{op} v{v}, v{v}, v{t1}")
    def rnd_bf16(d, s):
        a(f"v_cvt_pk_bf16_f32 v{d}, v{s}, v{s}\nv_and_b32 v{d}, 0xffff0000, v{d}")
    def unpack2(d, s):
        a(f"v_lshlrev_b32 v{d}, 16, v{s}\nv_and_b32 v{d+1}, 0xffff0000, v{s}")
    def ln_stats(xr, f, t):
        for i in range(4): unpack2(f+2*i, xr+i)
        a(f"v_add_f32 v{t}, v{f}, v{f+1}\nv_add_f32 v{t+1}, v{f+2}, v{f+3}\nv_add_f32 v{t+2}, v{f+4}, v{f+5}\nv_add_f32 v{t+3}, v{f+6}, v{f+7}")
        a(f"v_add_f32 v{t}, v{t}, v{t+1}\nv_add_f32 v{t+2}, v{t+2}, v{t+3}\nv_add_f32 v{t}, v{t}, v{t+2}")
        allreduce("v_add_f32", t, t+2)
        a(f"v_mul_f32 v{t}, {f2u(1/512)}, v{t}")
        a(f"v_sub_f32 v{t+2}, v{f}, v{t}\nv_mul_f32 v{t+1}, v{t+2}, v{t+2}")
        for i in range(1, 8):
            a(f"v_sub_f32 v{t+2+(i&1)}, v{f+i}, v{t}\nv_fmac_f32 v{t+1}, v{t+2+(i&1)}, v{t+2+(i&1)}")
        allreduce("v_add_f32", t+1, t+2)
        a(f"v_mul_f32 v{t+1}, {f2u(1/512)}, v{t+1}")
        rnd_bf16(t, t)
        rnd_bf16(t+1, t+1)
        a(f"v_add_f32 v{t+1}, {f2u(1e-5)}, v{t+1}")
        rnd_bf16(t+1, t+1)
        a(f"v_sqrt_f32 v{t+1}, v{t+1}")
        rnd_bf16(t+1, t+1)
        a(f"v_rcp_f32 v{t+1}, v{t+1}")
    def delta_masks(m, t):
        a(f"""v_and_b32 v{t}, 1, v0
        v_lshlrev_b32 v{t}, 4, v{t}
        v_mov_b32 v{t+1}, 0xffff
        v_lshlrev_b32 v{t}, v{t}, v{t+1}
        v_bfe_u32 v{t+1}, v0, 1, 3""")
        for dw in range(4):
            a(f"v_cmp_eq_u32 vcc, {dw}, v{t+1}\nv_cndmask_b32 v{m+dw}, 0, v{t}, vcc")
    def check(acc, first, n, tagbase, start):
        for i in range(n):
            if start and i == 0: a(f"v_xor_b32 v{acc}, s{tagbase}, v{first}")
            else: a(f"v_bitop3_b32 v{acc}, v{acc}, v{first+i}, s{tagbase+(i&3)} bitop3:0xf6")
    def spin(label, cond_branch, pre=""):
        a(f"""s_add_u32 s28, s28, 1
        s_cmp_gt_u32 s28, {SPIN}
        s_cbranch_scc1 L_exit
        {pre}
        {cond_branch} {label}""")
    def shint(label, offs, kind):
        if not offs: return
        a(f"{label}:")
        if P["hsleep"]: a(f"s_sleep {P['hsleep']}")
        n = len(offs)
        if kind == 'c':
            for x, o in enumerate(offs): a(f"s_load_dwordx2 {sr(HINT+2*x,2)}, s[36:37], {o} glc")
            a(f"{label}_chk:\ns_waitcnt lgkmcnt(0)")
            for x in range(n):
                a(f"s_xor_b64 {sr(HINT+2*x,2)}, {sr(HINT+2*x,2)}, {sr(sB,2)}")
                if x: a(f"s_or_b64 {sr(HINT,2)}, {sr(HINT,2)}, {sr(HINT+2*x,2)}")
            a(f"s_or_b32 s{HINT}, s{HINT}, s{HINT+1}")
            fin = f"s_and_b32 s{HINT}, s{HINT}, 0x10001"
        elif kind == 'd':
            for x, o in enumerate(offs): a(f"s_load_dword s{HINT+x}, s[{SW}:{SW+1}], s{o} glc")
            a("s_waitcnt lgkmcnt(0)")
            for x in range(n):
                a(f"s_xor_b32 s{HINT+x}, s{HINT+x}, s{sF}")
                if x: a(f"s_or_b32 s{HINT}, s{HINT}, s{HINT+x}")
            fin = f"s_and_b32 s{HINT}, s{HINT}, 0xff"
        elif kind == 't':
            for x, o in enumerate(offs): a(f"s_load_dwordx2 {sr(HINT+2*x,2)}, s[{SW}:{SW+1}], s{o} glc")
            a("s_waitcnt lgkmcnt(0)")
            for x in range(n):
                a(f"s_xor_b32 s{HINT+2*x+1}, s{HINT+2*x+1}, s{sF}")
                if x: a(f"s_or_b32 s{HINT+1}, s{HINT+1}, s{HINT+2*x+1}")
            fin = f"s_cmp_lg_u32 s{HINT+1}, 0"
        else:
            tb, mask = (sB, 0x10001) if kind == 'b' else (sF, 0xff)
            for x, o in enumerate(offs): a(f"s_load_dwordx4 {sr(HINT+4*x)}, s[{SW}:{SW+1}], s{o} glc")
            a("s_waitcnt lgkmcnt(0)")
            for x in range(4*n):
                a(f"s_xor_b32 s{HINT+x}, s{HINT+x}, s{tb+(x&3)}")
                if x: a(f"s_or_b32 s{HINT}, s{HINT}, s{HINT+x}")
            fin = f"s_and_b32 s{HINT}, s{HINT}, {mask}"
        spin(label, "s_cbranch_scc1", fin)
    def tdelay(label, ticks):
        a(f"""s_waitcnt lgkmcnt(0)
        s_add_u32 s78, s80, {ticks}
        {label}:
        s_memrealtime s[76:77]
        s_waitcnt lgkmcnt(0)
        s_sub_u32 s77, s76, s78
        s_cmp_lt_i32 s77, 0
        s_cbranch_scc1 {label}""")
    def hint_offs(n, seed, modmask, shift, base, spread):
        for x in range(n):
            a(f"s_add_u32 s{30+x}, s{seed}, {x*spread}\ns_and_b32 s{30+x}, s{30+x}, {modmask}\ns_lshl_b32 s{30+x}, s{30+x}, {shift}\ns_add_u32 s{30+x}, s{30+x}, s{base}")
        return [30+x for x in range(n)]

    stamp(0)
    if (P["calib"] or P["probe"] or P["lite"]) and P["align"] is None: a("s_memrealtime s[80:81]")
    if P["probe"]: a("s_mov_b32 s84, 0\ns_mov_b32 s88, 0")
    if P["align"] is not None: a("s_branch L_align\nL_back:\ns_nop 0")
    assert P["role_bit"] == 0 and P["hmap"] == 1
    a(f"""s_load_dwordx4 s[48:51], s[0:1], 16
    s_load_dwordx4 s[40:43], s[0:1], 0
    s_load_dwordx2 s[{SW}:{SW+1}], s[0:1], 104
    v_lshrrev_b32 v1, 6, v0""")
    if P["prefetch"]:
        a(f"""s_cmp_ge_u32 s2, {P['pf_wgs']}
        s_cbranch_scc1 L_nopf
        s_getpc_b64 s[10:11]
        L_pc:
        v_lshlrev_b32 v4, 6, v0
        v_min_u32 v4, L_codeend - L_pc - 4, v4
        global_load_dword v255, v4, s[10:11]
        L_nopf:""")
    a(f"""v_readfirstlane_b32 s3, v1
    s_lshr_b32 s5, s2, 4
    s_cmp_ge_u32 s5, 16
    s_cbranch_scc1 L_end
    v_and_b32 v0, 63, v0
    s_and_b32 s4, s2, 7""")
    if P["ent"] == 2:
        a(f"""s_bitcmp1_b32 s2, 3
        s_cbranch_scc0 L_WGT
        s_cmp_ge_u32 s3, 4
        s_cbranch_scc1 L_ATT_stub
        v_lshrrev_b32 v4, 1, v0
        v_and_b32 v5, 1, v0
        v_lshlrev_b32 v4, 11, v4
        v_lshl_add_u32 v4, v5, 7, v4
        v_bfe_u32 v5, v0, 1, 2
        v_mad_u32_u24 v5, v5, {P["hc"]}, s4
        v_and_b32 v5, 7, v5
        v_lshl_add_u32 v4, v5, 8, v4
        s_lshl2_add_u32 s16, s5, s3
        v_lshl_add_u32 v126, s16, 16, v4
        s_waitcnt lgkmcnt(0)
        global_load_dword v121, v126, s[48:49]""")
        if not P["pk_late"]: a("global_load_dword v127, v126, s[50:51]")
        a("s_branch L_ATT")
    else:
        a(f"""    s_cmp_ge_u32 s3, 4
    s_cbranch_scc1 L_go
    v_lshrrev_b32 v4, 1, v0
    v_and_b32 v5, 1, v0
    v_lshlrev_b32 v4, 11, v4
    s_lshl_b32 s17, s4, 8
    v_lshl_add_u32 v4, v5, 7, v4
    s_lshr_b32 s16, s2, 3
    s_lshl2_add_u32 s16, s16, s3
    s_lshl_b32 s16, s16, 15
    s_add_u32 s16, s16, s17
    v_add_u32 v5, s16, v4
    s_lshl2_add_u32 s16, s5, s3
    s_lshl_b32 s16, s16, 16
    s_add_u32 s16, s16, s17
    v_add_u32 v126, s16, v4
    s_mov_b32 exec_hi, 0
    s_waitcnt lgkmcnt(0)
    global_load_dword v121, v5, s[48:49]
    s_mov_b64 exec, -1
    s_bitcmp1_b32 s2, 3
    s_cbranch_scc0 L_WGT""")
        if not P["pk_late"]: a("global_load_dword v127, v126, s[50:51]")
        a("""s_branch L_ATT
    L_go:
    s_bitcmp1_b32 s2, 3
    s_cbranch_scc1 L_ATT_stub""")
    def decode():
        a(f"""s_lshr_b32 s7, s5, 2
        s_mul_i32 s8, s7, {P["hc"]}
        s_add_u32 s8, s8, s4
        s_and_b32 s8, s8, 7
        s_lshl3_add_u32 s7, s7, s8
        s_and_b32 s8, s5, 3
        s_lshl_b32 s17, s7, 8
        v_and_b32 v2, 15, v0
        v_lshrrev_b32 v3, 4, v0""")
    def ptrs():
        a(f"""s_mov_b64 s[{SK}:{SK+1}], s[50:51]
        s_mov_b64 s[{SC}:{SC+1}], s[42:43]""")

    def common():
        a("s_mov_b32 s28, 0")
        srd(SW, WS_REC)
        a("v_lshlrev_b32 v41, 5, v2\nv_lshl_add_u32 v41, v3, 4, v41")

    sect[0] = "A"
    PART = 0
    XA = """s_lshl_b32 s11, s3, 7
    v_lshlrev_b32 v4, 4, v0
    v_lshl_add_u32 v5, s8, 2, v2
    v_and_b32 v5, 15, v5
    v_lshl_add_u32 v5, v3, 4, v5
    v_lshlrev_b32 v5, 1, v5"""
    a("L_WGT:")
    if P["xfast"]:
        a(f"""s_cmp_eq_u32 s3, 7
        s_cbranch_scc1 L_warm
        L_WGT1:
        s_lshl_b32 s8, s5, 2
        v_add_u32 v5, s8, v0
        v_lshlrev_b32 v4, 4, v0
        v_bfi_b32 v5, 15, v5, v0
        s_lshl_b32 s11, s3, 7
        v_lshl_add_u32 v5, v5, 1, s11
        s_waitcnt lgkmcnt(0)
        global_load_dwordx4 v[8:11], v4, s[40:41]
        global_load_ushort v12, v5, s[40:41]""")
    decode()
    a(f"""s_lshl_b32 s10, s3, 19
    s_lshl_b32 s11, s8, 15
    s_add_u32 s10, s10, s11
    s_add_u32 s10, s10, s17
    {"" if P["xfast"] else XA}
    v_lshlrev_b32 v6, 17, v3
    v_lshl_add_u32 v6, v2, 4, v6
    s_movk_i32 s12, 0x2000""")
    def uk_loads():
        srd(SK, 4 << 20)
        a(f"""s_lshl3_add_u32 s13, s8, s3
        s_lshl_b32 s13, s13, 17
        s_add_u32 s13, s13, s17
        s_lshl_b32 s14, s3, 12
        s_add_u32 m0, s14, {X}
        v_lshlrev_b32 v50, 2, v3
        v_xor_b32 v50, v50, v2
        v_lshlrev_b32 v50, 4, v50
        v_lshl_add_u32 v48, v3, 13, v50""")
        for rg in range(4):
            if rg: a(f"v_xor_b32 v49, {16*rg}, v48\ns_addk_i32 m0, 0x400\ns_add_u32 s13, s13, 0x8000")
            a(f"buffer_load_dwordx4 v{49 if rg else 48}, {sr(SK)}, s13 offen {P['uk_pol']} lds")
    UK = 0 if P["uk_first"] else 4
    xl = [f"buffer_load_dwordx4 v[8:11], v4, {sr(SX)}, 0 offen", f"buffer_load_ushort v12, v5, {sr(SX)}, s11 offen"]
    if P["wpq"]:
        a(f"""v_bfe_u32 v7, v0, 1, 2
        v_lshlrev_b32 v7, 13, v7
        v_lshl_add_u32 v7, v3, 17, v7
        v_and_b32 v13, 1, v0
        v_lshl_add_u32 v7, v13, 7, v7""")
    if not P["xfast"]: a("s_waitcnt lgkmcnt(0)")
    ptrs()
    srd(SQ, 4 << 20)
    if P["xfast"]: a("s_branch L_WGT2\nL_warm:\ns_branch L_WGT1\nL_WGT2:")
    else:
        srd(SX, 1024)
        for l in xl: a(l)
    if P["x_bar"]: a("s_barrier")
    if P["uk_first"]:
        uk_loads()
        if P["uk_first"] == 2: a("s_barrier")
    if P["wpq"]:
        a(f"""s_mov_b32 exec_lo, {0x000f000f if P["pq"] else 0x00ff00ff}
        s_mov_b32 exec_hi, {0x000f000f if P["pq"] else 0x00ff00ff}
        buffer_load_dword v254, v7, {sr(SQ)}, s10 offen
        s_mov_b64 exec, -1""")
        if P.get("wpq_bar"): a("s_barrier")
    for t in range(16):
        a(f"buffer_load_dwordx4 {vr(64+4*t)}, v6, {sr(SQ)}, s10 offen {P['first_pol'] if t < (2 if P['pq'] else 4) else P['wq_pol']}")
        if t < 15:
            if t & 3 == 3: a(f"s_cmp_eq_u32 s8, {3-(t>>2)}\ns_cselect_b32 s13, {(-15*8192) & 0xffffffff}, s12\ns_add_u32 s10, s10, s13")
            else: a("s_add_u32 s10, s10, s12")
        if t in P["wq_bars"]: a("s_barrier")
        if t == min(3, P["ln_at"]):
            ep_load()
            if P["w1pf_at"] == "7":
                a(f"s_load_dwordx2 s[{SG}:{SG+1}], s[0:1], 56"); srd(SG, 512*1792*2)
            stamp(1)
            common()
            delta_masks(32, 36)
        if t == P["ln_at"]:
            a(f"s_waitcnt vmcnt({t+1 + (1 if P['wpq'] else 0) + 4 - UK})")
            if P["fine"]: stamp(5)
            ln_stats(8, 16, 24)
            a("v_lshlrev_b32 v12, 16, v12\nv_sub_f32 v12, v12, v24")
            rnd_bf16(12, 12)
            a("v_mul_f32 v12, v12, v25\nv_cvt_pk_bf16_f32 v12, v12, v12")
            a("s_cmp_lg_u32 s3, 3\ns_cbranch_scc1 L_noxn")
            for i in range(8): a(f"v_sub_f32 v{16+i}, v{16+i}, v24")
            for i in range(4): a(f"v_cvt_pk_bf16_f32 v{56+i}, v{16+2*i}, v{17+2*i}")
            for i in range(4): unpack2(16+2*i, 56+i)
            for i in range(8): a(f"v_mul_f32 v{16+i}, v{16+i}, v25")
            for i in range(4): a(f"v_cvt_pk_bf16_f32 v{56+i}, v{16+2*i}, v{17+2*i}")
            a("L_noxn:")
            if P["dpp_early"]:
                for t2 in range(16):
                    for dw in range(4):
                        a(f"v_and_b32_dpp v{128+4*t2+dw}, v12, v{32+dw} row_newbcast:{t2} {DPPM}")
    if P["fine"]: stamp(6)
    if not P["uk_first"]: uk_loads()
    if P["w1pf_at"] == "7":
        a(f"""s_mul_i32 s13, s8, {128*3584}
        s_lshr_b32 s14, s5, 2
        s_sub_u32 s15, s4, {1 if P["nox"] == 0 else 0}
        s_lshl2_add_u32 s14, s15, s14
        s_lshl_b32 s14, s14, 7
        s_add_u32 s13, s13, s14
        s_cmp_eq_u32 s4, {P["nox"]}
        s_cselect_b32 s13, 0x7ff00000, s13
        s_cmp_eq_u32 s3, 7
        s_cselect_b32 s13, s13, 0x7ff00000
        s_add_u32 s14, s13, {64*3584}
        v_mul_u32_u24 v51, 3584, v0
        s_waitcnt lgkmcnt(0)
        buffer_load_dword v52, v51, {sr(SG)}, s13 offen
        buffer_load_dword v53, v51, {sr(SG)}, s14 offen""")
        UK += 2
    a("s_lshl_b32 s12, s3, 9\nv_add_u32 v42, s12, v41")
    for t in range(16):
        for dw in range(4):
            if not P["dpp_early"]: a(f"v_and_b32_dpp v{128+4*t+dw}, v12, v{32+dw} row_newbcast:{t} {DPPM}")
        if t >= 1:
            a(f"s_waitcnt vmcnt({15-(t-1)+UK})")
            a(f"v_mfma_f32_16x16x32_bf16 v[44:47], {vr(128+4*(t-1))}, {vr(64+4*(t-1))}, {'0' if t == 1 else 'v[44:47]'}")
    a(f"s_waitcnt vmcnt({UK})\nv_mfma_f32_16x16x32_bf16 v[44:47], {vr(128+60)}, {vr(64+60)}, v[44:47]")
    a("s_waitcnt lgkmcnt(0)")
    tags(True)
    a(f"""s_mov_b32 exec_hi, 0
    ds_write_b128 v42, v[44:47] offset:{PART}
    s_mov_b64 exec, -1""")
    stamp(2)
    a(f"""s_sub_u32 s9, s3, 5
    s_cmp_lt_u32 s9, 2
    s_cbranch_scc1 L_A2
    s_waitcnt vmcnt({2 if P["w1pf_at"] == "7" else 0}) lgkmcnt(0)
    s_barrier
    s_cmp_lt_u32 s3, 4
    s_cbranch_scc1 L_S1
    s_branch L_WO""")
    a("L_A2:")
    a(f"""s_lshl_b32 s12, s9, 14
    s_add_u32 s12, s12, {X}
    v_and_b32 v4, 3, v0
    v_bfe_u32 v5, v0, 2, 2
    v_lshl_or_b32 v6, v4, 2, v5
    v_xor_b32 v6, v6, v3
    v_lshlrev_b32 v6, 4, v6
    v_lshl_add_u32 v6, v5, 10, v6
    v_lshl_add_u32 v6, v4, 8, v6
    v_add_u32 v10, s12, v6
    v_xor_b32 v11, 64, v10
    v_xor_b32 v12, 0x80, v10
    v_xor_b32 v13, 0xc0, v10
    s_lshl_b32 s13, s9, 8
    s_add_u32 s13, s13, 8192
    v_lshl_add_u32 v5, v3, 4, s13
    v_and_b32 v14, 31, v0
    v_lshl_add_u32 v14, v14, 3, s13
    v_lshlrev_b32 v15, 4, v0
    s_lshl1_add_u32 s11, s8, s9
    s_lshl_b32 s11, s11, 7
    s_lshl_b32 s10, s7, 10
    s_add_u32 s10, s10, s11
    s_add_u32 s10, s10, {QL}
    v_lshlrev_b32 v4, 1, v0
    v_cmp_eq_u32 s[14:15], 1, v3
    v_cmp_eq_u32 s[16:17], 2, v3
    v_cmp_eq_u32 s[18:19], 3, v3
    v_bfe_u32 v7, v0, 1, 2
    v_add_u32 v7, s{sF}, v7
    v_and_b32 v8, 1, v0
    v_lshrrev_b32 v7, v8, v7
    v_and_b32 v7, 1, v7
    v_xor_b32 v8, 1, v7
    v_lshlrev_b32 v8, 16, v8
    s_waitcnt vmcnt({2 if P["w1pf_at"] == "7" else 0}) lgkmcnt(0)""")
    stamp(3)
    a("s_barrier")
    for u in range(4): a(f"ds_read_b128 {vr(128+4*u)}, v15 offset:{PART + 1024*u}")
    fr = [(T, t) for t in range(4) for T in range(4)]
    for (T, t) in fr[:11]: a(f"ds_read_b128 {vr(64+16*T+4*t)}, v{10+t} offset:{4096*T}")
    a("s_waitcnt lgkmcnt(11)")
    a("""v_pk_add_f32 v[128:129], v[128:129], v[132:133]
    v_pk_add_f32 v[130:131], v[130:131], v[134:135]
    v_pk_add_f32 v[136:137], v[136:137], v[140:141]
    v_pk_add_f32 v[138:139], v[138:139], v[142:143]
    v_pk_add_f32 v[128:129], v[128:129], v[136:137]
    v_pk_add_f32 v[130:131], v[130:131], v[138:139]""")
    for q in range(4): a(f"v_mov_b32 v{132+q}, v{128+q}")
    for q in range(4): a(f"v_permlane32_swap_b32 v{132+q}, v{128+q}")
    a("""v_pk_add_f32 v[128:129], v[128:129], v[132:133]
    v_pk_add_f32 v[130:131], v[130:131], v[134:135]
    v_cvt_pk_bf16_f32 v128, v128, v129
    v_cvt_pk_bf16_f32 v129, v130, v131
    ds_write_b64 v14, v[128:129]""")
    for t in range(4): a(f"ds_read_b128 {vr(16+4*t)}, v5 offset:{64*t}")
    for (T, t) in fr[11:]: a(f"ds_read_b128 {vr(64+16*T+4*t)}, v{10+t} offset:{4096*T}")
    for t in range(4):
        a(f"s_waitcnt lgkmcnt({[8, 7, 4, 0][t]})")
        for T in range(4):
            a(f"v_mfma_f32_16x16x32_bf16 {vr(32+4*T)}, {vr(16+4*t)}, {vr(64+16*T+4*t)}, {'0' if t == 0 else vr(32+4*T)}")
    qs = math.log2(math.e) / math.sqrt(128.0)
    a(f"""v_cndmask_b32 v9, v32, v36, s[14:15]
    v_cndmask_b32 v9, v9, v40, s[16:17]
    v_cndmask_b32 v9, v9, v44, s[18:19]
    v_mul_f32 v9, {f2u(qs)}, v9
    v_add_u32 v9, v9, v8
    v_lshrrev_b32 v9, 17, v9
    v_lshl_or_b32 v9, v9, 1, v7
    s_nop 0""")
    if P["ql_delay"]:
        a("s_barrier")
        for _ in range(P["ql_delay"]): a("s_sleep 8")
    a(f"buffer_store_short v9, v4, {sr(SW)}, s10 offen sc1")
    stamp(4)
    if P["ql_delay"]: a(f"s_load_dwordx2 s[{SG}:{SG+1}], s[0:1], 40\ns_branch L_WO1")
    a("s_branch L_WO")

    sect[0] = "C"
    PX, MX, LX, FX = X, X + 8192, X + 9216, X + 12288
    a("L_ATT_stub:\ns_branch L_ATT_help\nL_ATT:")
    decode(); ptrs()
    a("s_lshl4_add_u32 s9, s4, s5")
    srd(SC, 16 << 20)
    common()
    a(f"""s_lshl2_add_u32 s10, s9, s3
    s_lshl_b32 s10, s10, 15
    s_lshl_b32 s11, s3, 13
    v_lshlrev_b32 v4, 2, v3
    v_xor_b32 v4, v4, v2
    v_lshlrev_b32 v4, 4, v4
    v_lshl_add_u32 v32, v3, 10, v4
    v_xor_b32 v33, 32, v32
    v_xor_b32 v34, 16, v32
    v_xor_b32 v35, 48, v32
    s_mov_b32 m0, s11
    s_nop 0""")
    seq = []
    def c_pos(n):
        G = P["rgmajor"]
        return (n // (8*G))*G + n % G, (n % (8*G)) // G
    def c_load(n):
        cb, rg = c_pos(n)
        a(f"buffer_load_dwordx4 v{32+(rg&3)}, {sr(SC)}, s10 offen {'nt' if n < 32 - P['c_keep'] else ''} lds")
        seq.append(n)
        if n < 31:
            cb2, rg2 = c_pos(n+1)
            dm = (cb2-cb)*32768 + (rg2-rg)*1024; dg = (cb2-cb)*256 + (rg2-rg)*4096
            a("s_add_u32 m0, m0, s15" if dm == 32768 else (f"s_addk_i32 m0, {dm}" if -32768 <= dm < 32768 else f"s_add_u32 m0, m0, {dm & 0xffffffff}"))
            a(f"s_addk_i32 s10, {dg}")
        if n == P["q_at"]: a("ds_write_b32 v125, v125")
    def c_wait(n): a(f"s_waitcnt vmcnt({len(seq) - 1 - seq.index(n)})")
    seq.append("pq")
    if not P["pk_late"]: seq.append("pk")
    if P["pk_late"] == "a":
        a(f"global_load_dword v127, v126, s[{SK}:{SK+1}]"); seq.append("pk")
    a("s_mov_b32 s15, 0x8000")
    issued = 0
    for n in range(P["pf_ramp"][0]): c_load(n); issued += 1
    a(f"""s_lshl_b32 s16, s3, 12
    s_add_u32 s16, s16, {X}
    v_mov_b32 v125, s16
    v_mov_b32 v124, 0
    ds_write_b32 v125, v124""")
    ep_load()
    if P["zpf"]:
        a(f"""s_load_dwordx2 s[{SG}:{SG+1}], s[0:1], 40
        s_load_dwordx2 s[{SQ}:{SQ+1}], s[0:1], 72
        s_load_dwordx2 s[72:73], s[0:1], 32
        s_lshl2_add_u32 s19, s9, s3
        s_lshl_b32 s19, s19, 12
        s_lshl2_add_u32 s29, s7, s8
        s_lshl2_add_u32 s29, s29, s3
        s_lshl_b32 s29, s29, 13
        v_lshlrev_b32 v120, 7, v0""")
        srd(SG, 4 << 20); srd(SQ, 1792*512*2); srd(72, 4 << 20)
    stamp(1)
    a(f"""v_and_b32 v4, 3, v0
    v_lshrrev_b32 v1, 5, v0
    v_bfe_u32 v5, v0, 2, 1
    v_lshl_or_b32 v5, v4, 1, v5
    v_bfe_u32 v6, v0, 3, 1
    v_lshl_or_b32 v5, v5, 1, v6
    v_xor_b32 v5, v5, v1
    v_lshlrev_b32 v5, 4, v5
    v_bfe_u32 v6, v0, 2, 3
    v_lshl_add_u32 v5, v6, 10, v5
    v_lshl_add_u32 v5, v4, 8, v5
    v_add_u32 v8, s11, v5
    v_xor_b32 v5, v2, v1
    v_lshlrev_b32 v5, 4, v5
    v_and_b32 v4, 31, v0
    v_lshl_add_u32 v5, v4, 10, v5
    v_add_u32 v16, {X}, v5""")
    for x in range(1, 8): a(f"v_xor_b32 v{8+x}, {32*x}, v8\nv_xor_b32 v{16+x}, {32*x}, v16")
    for x in range(8): a(f"v_add_u32 v{24+x}, 0x10000, v{8+x}")
    a(f"""v_lshlrev_b32 v6, 4, v4
    v_add_u32 v96, {MX}, v6
    v_lshl_add_u32 v6, v1, 9, v6
    s_lshl2_add_u32 s13, s3, {MX}
    v_add_u32 v97, s13, v6
    s_lshl_b32 s13, s3, 11
    s_add_u32 s13, s13, {PX}
    v_lshl_add_u32 v99, v0, 4, s13
    s_waitcnt lgkmcnt(0)""")
    if P["pk_late"] == "ep" and not P["uk_first"]:
        a(f"global_load_dword v127, v126, s[{SK}:{SK+1}]"); seq.append("pk")
    tags(False)
    lq = []
    def lop(text, key): a(text); lq.append(key)
    def lwait(items):
        last = max([i for i, x in enumerate(lq) if x in items], default=-1)
        if last >= 0: a(f"s_waitcnt lgkmcnt({min(15, len(lq) - 1 - last)})")
        del lq[:last+1]
    def c_read(cb):
        for t in range(8*cb, 8*cb+8):
            a(f"ds_read_b128 {vr(128+4*t)}, v{(8 if cb < 2 else 24) + (t&7)} offset:{32768*(cb&1)}")
    def blk_done(b): return max(n for n in range(32) if c_pos(n)[0] == b) + 1 if b < 4 else 99
    for key, d in (("pq", P["pf_ramp"][1]), ("pk", P["pf_ramp"][2])):
        if key in seq: c_wait(key)
        while issued < d: c_load(issued); issued += 1
    landed = 0; pre = 0
    while issued < 32:
        c_wait(landed); landed += 1
        while issued < 32 and issued - landed < P["pf_ramp"][2]:
            c_load(issued); issued += 1
        if landed == P["bi_at"]: a("s_barrier")
        if landed >= blk_done(pre): c_read(pre); pre += 1
    stamp(2)
    if P["zpf"]:
        a("s_barrier")
        if P["zpf"] & 1: a(f"buffer_load_dword v121, v120, {sr(SG)}, s29 offen"); seq.append("z1")
        if P["zpf"] & 2: a(f"s_mov_b32 exec_hi, 0\nbuffer_load_dword v122, v120, {sr(SQ)}, s19 offen\ns_mov_b64 exec, -1"); seq.append("z2")
        if P["zpf"] & 4: a(f"buffer_load_dword v123, v126, {sr(72)}, s18 offen"); seq.append("z4")
    while pre < 4:
        c_wait(blk_done(pre) - 1)
        if pre == 3 and P["tr_pre"]: a("s_barrier")
        c_read(pre); pre += 1
    a(f"s_setprio {P['qk_prio']}\ns_barrier")
    stamp(3)
    NS = 8
    def q_read(t): lop(f"ds_read_b128 {vr(32+4*(t % NS))}, v{16+(t&7)} offset:{256*(t>>3)}", ("Q", t))
    rd = 0
    for t in range(32):
        while rd < min(32, t + P["q_ah"] + 1): q_read(rd); rd += 1
        if t == P["ba_at"]:
            assert rd == 32
            a("s_waitcnt lgkmcnt(0)"); del lq[:]
            stamp(4)
            a("s_barrier")
        lwait([("Q", t)])
        a(f"v_mfma_f32_32x32x16_bf16 {vr(64,16)}, {vr(128+4*t)}, {vr(32+4*(t % NS))}, {'0' if t == 0 else vr(64,16)}")
    stamp(5); fs(1)
    a(f"""v_max3_f32 v4, v64, v65, v66
    v_max3_f32 v5, v67, v68, v69
    v_max3_f32 v6, v70, v71, v72
    v_max3_f32 v7, v73, v74, v75
    v_max3_f32 v4, v4, v76, v77
    v_max3_f32 v5, v5, v78, v79
    v_max3_f32 v4, v4, v5, v6
    v_max_f32 v20, v4, v7
    ds_write_b32 v97, v20""")
    fs(2)
    for r in range(0, 16, 2):
        a(f"v_pk_add_f32 {vr(64+r,2)}, {vr(64+r,2)}, v[20:21] op_sel_hi:[1,0] neg_lo:[0,1] neg_hi:[0,1]")
    for r in range(16):
        if r == P["bb_at"]:
            a("s_waitcnt lgkmcnt(0)"); fs(3)
            a("s_barrier"); fs(4)
            a("ds_read_b128 v[8:11], v96\nds_read_b128 v[12:15], v96 offset:512")
        a(f"v_exp_f32 v{64+r}, v{64+r}")
    a("s_waitcnt lgkmcnt(0)"); fs(5)
    a("""v_max3_f32 v4, v8, v9, v10
    v_max3_f32 v5, v11, v12, v13
    v_max3_f32 v4, v4, v14, v15
    v_max_f32 v8, v4, v5
    v_sub_f32 v20, v20, v8
    v_exp_f32 v20, v20""")
    for hf in range(2):
        for r in range(8*hf, 8*hf+8, 2):
            a(f"v_pk_mul_f32 {vr(64+r,2)}, {vr(64+r,2)}, v[20:21] op_sel_hi:[1,0]")
        for r in range(8*hf, 8*hf+8, 2):
            a(f"v_cvt_pk_bf16_f32 v{80+r//2}, v{64+r}, v{65+r}")
        a(f"ds_write_b128 v99, {vr(80+4*hf)} offset:{1024*hf}")
    fs(6)
    a("""v_pk_add_f32 v[64:65], v[64:65], v[66:67]
    v_pk_add_f32 v[68:69], v[68:69], v[70:71]
    v_pk_add_f32 v[72:73], v[72:73], v[74:75]
    v_pk_add_f32 v[76:77], v[76:77], v[78:79]
    v_pk_add_f32 v[64:65], v[64:65], v[68:69]
    v_pk_add_f32 v[72:73], v[72:73], v[76:77]
    s_waitcnt lgkmcnt(0)""")
    fs(7)
    a("""s_setprio 0
    s_barrier""")
    stamp(6); fs(8)
    a("""v_add_f32 v64, v64, v65
    v_add_f32 v72, v72, v73
    v_add_f32 v64, v64, v72
    ds_write_b32 v97, v64 offset:1024
    s_waitcnt lgkmcnt(0)
    s_barrier""")
    a("s_setprio 0\ns_cmp_lg_u32 s3, 0\ns_cbranch_scc1 L_FIN")
    a(f"""ds_read_b128 v[32:35], v96 offset:1024
    ds_read_b128 v[36:39], v96 offset:1536
    v_lshlrev_b32 v5, 4, v0
    v_mov_b32 v9, s{sF}
    v_mov_b32 v11, s{sF}
    s_lshl_b32 s12, s9, 9
    s_add_u32 s12, s12, {ST}
    s_waitcnt lgkmcnt(0)
    v_add_f32 v32, v32, v33
    v_add_f32 v34, v34, v35
    v_add_f32 v36, v36, v37
    v_add_f32 v38, v38, v39
    v_add_f32 v32, v32, v34
    v_add_f32 v36, v36, v38
    v_add_f32 v10, v32, v36
    s_mov_b32 exec_hi, 0
    buffer_store_dwordx4 v[8:11], v5, {sr(SW)}, s12 offen sc1
    s_mov_b64 exec, -1""")
    stamp(7)

    sect[0] = "F"
    a("L_FIN:")
    if P["cyc"]: a("s_barrier")
    if P["fin"] == "old":
        a(f"""s_cmp_lt_u32 s5, 14
        s_cbranch_scc1 L_exit
        s_load_dwordx2 s[{SC}:{SC+1}], s[0:1], 80
        s_load_dwordx2 s[{SQ}:{SQ+1}], s[0:1], 88
        s_sub_u32 s10, s5, 14
        s_lshl1_add_u32 s10, s4, s10
        s_lshl_b32 s11, s10, 7
        s_lshl_b32 s12, s3, 16
        s_add_u32 s11, s11, s12
        s_add_u32 s11, s11, {DP}
        s_add_u32 s12, s11, 0x4000
        s_add_u32 s13, s11, 0x8000
        s_add_u32 s14, s11, 0xc000
        s_lshl_b32 s16, s10, 6
        v_lshrrev_b32 v4, 3, v0
        v_and_b32 v5, 7, v0
        v_lshlrev_b32 v4, 11, v4
        v_lshl_add_u32 v4, v5, 4, v4
        v_lshlrev_b32 v12, 4, v5
        v_add_u32 v12, {FX}, v12
        s_lshl_b32 s17, s3, 7
        v_add_u32 v13, s17, v12
        v_lshlrev_b32 v5, 3, v5
        v_mov_b32 v6, 0xff""")
        srd(SX, 1024); srd(SC, 1024); srd(SQ, 1024)
        a(f"""s_waitcnt lgkmcnt(0)
        buffer_load_dwordx2 v[14:15], v5, {sr(SX)}, s16 offen
        buffer_load_dwordx2 v[16:17], v5, {sr(SC)}, s16 offen""")
        if P["out_touch"]: a(f"buffer_load_dwordx2 v[30:31], v5, {sr(SQ)}, s16 offen {P['out_touch']}")
        a("s_waitcnt vmcnt(0)")
        unpack2(20, 14); unpack2(22, 15); unpack2(24, 16); unpack2(26, 17)
        a("v_pk_add_f32 v[20:21], v[20:21], v[24:25]\nv_pk_add_f32 v[22:23], v[22:23], v[26:27]")
        a("L_fin:")
        for x in range(4): a(f"buffer_load_dwordx4 {vr(64+4*x)}, v4, {sr(SW)}, s{11+x} offen {P['fin_pol']}")
        for x in range(4):
            a(f"s_waitcnt vmcnt({3-x})")
            check(7, 64+4*x, 4, sF, x == 0)
            if x: a(f"v_pk_add_f32 v[64:65], v[64:65], {vr(64+4*x,2)}\nv_pk_add_f32 v[66:67], v[66:67], {vr(66+4*x,2)}")
        a("v_and_b32 v7, v6, v7\nv_cmp_ne_u32 vcc, 0, v7")
        spin("L_fin", "s_cbranch_vccnz")
        for q in range(4): a(f"v_add_f32_dpp v{64+q}, v{64+q}, v{64+q} row_ror:8 {DPPM}")
        for sw in ("v_permlane16_swap_b32", "v_permlane32_swap_b32"):
            for q in range(4): a(f"v_mov_b32 v{68+q}, v{64+q}")
            for q in range(4): a(f"{sw} v{68+q}, v{64+q}")
            a("v_pk_add_f32 v[64:65], v[64:65], v[68:69]\nv_pk_add_f32 v[66:67], v[66:67], v[70:71]")
        a(f"""s_mov_b64 exec, 0xff
        ds_write_b128 v13, v[64:67]
        s_waitcnt lgkmcnt(0)
        s_barrier
        s_cmp_lg_u32 s3, 0
        s_cbranch_scc1 L_exit""")
        for x in range(1, 4): a(f"ds_read_b128 {vr(64+4*x)}, v12 offset:{128*x}")
        a("v_pk_add_f32 v[20:21], v[20:21], v[64:65]\nv_pk_add_f32 v[22:23], v[22:23], v[66:67]\ns_waitcnt lgkmcnt(0)")
        stamp(8)
        a(f"""v_pk_add_f32 v[68:69], v[68:69], v[72:73]
        v_pk_add_f32 v[70:71], v[70:71], v[74:75]
        v_pk_add_f32 v[20:21], v[20:21], v[76:77]
        v_pk_add_f32 v[22:23], v[22:23], v[78:79]
        v_pk_add_f32 v[20:21], v[20:21], v[68:69]
        v_pk_add_f32 v[22:23], v[22:23], v[70:71]
        v_cvt_pk_bf16_f32 v12, v20, v21
        v_cvt_pk_bf16_f32 v13, v22, v23
        buffer_store_dwordx2 v[12:13], v5, {sr(SQ)}, s16 offen {P['out_pol']}
        s_cmp_lg_u32 s10, 0
        s_cbranch_scc1 L_fin_done
        s_mov_b64 exec, 1
        {"s_mov_b32 s88, 1" if P["probe"] else ""}
        v_mov_b32 v14, s{sF}
        buffer_store_dword v14, v5, {sr(SW)}, 0 offen offset:{EP} {P['out_pol']}
        L_fin_done:
        s_mov_b64 exec, -1""")
    else:
        nw = P["fin"]
        k0 = 16 - 4 // nw
        a(f"""s_cmp_lt_u32 s5, {k0}
        s_cbranch_scc1 L_exit
        s_sub_u32 s12, 3, s3
        s_cmp_ge_u32 s12, {nw}
        s_cbranch_scc1 L_exit
        s_load_dwordx2 s[{SC}:{SC+1}], s[0:1], 80
        s_load_dwordx2 s[{SQ}:{SQ+1}], s[0:1], 88
        s_sub_u32 s10, s5, {k0}
        s_mul_i32 s10, s10, {nw}
        s_add_u32 s10, s10, s12
        s_lshl2_add_u32 s10, s4, s10
        s_lshl_b32 s11, s10, 6
        s_add_u32 s64, s11, {DP}""")
        for x in range(1, 8): a(f"s_add_u32 s{64+x}, s64, {0x8000*x}")
        a(f"""s_lshl_b32 s16, s10, 5
        v_lshrrev_b32 v4, 2, v0
        v_and_b32 v5, 3, v0
        v_lshlrev_b32 v4, 11, v4
        v_lshl_add_u32 v4, v5, 4, v4
        v_lshl_add_u32 v5, v5, 2, v3
        v_lshlrev_b32 v5, 1, v5
        v_mov_b32 v6, 0xff""")
        srd(SX, 1024); srd(SC, 1024); srd(SQ, 1024)
        a(f"""s_waitcnt lgkmcnt(0)
        buffer_load_ushort v14, v5, {sr(SX)}, s16 offen
        buffer_load_ushort v15, v5, {sr(SC)}, s16 offen""")
        if P["out_touch"]: a(f"buffer_load_ushort v30, v5, {sr(SQ)}, s16 offen {P['out_touch']}")
        a("""s_waitcnt vmcnt(0)
        v_lshlrev_b32 v14, 16, v14
        v_lshlrev_b32 v15, 16, v15
        v_add_f32 v14, v14, v15
        L_fin:""")
        for x in range(8): a(f"buffer_load_dwordx4 {vr(64+4*x)}, v4, {sr(SW)}, s{64+x} offen {P['fin_pol']}")
        for x in range(8):
            a(f"s_waitcnt vmcnt({7-x})")
            check(7, 64+4*x, 4, sF, x == 0)
            if x: a(f"v_pk_add_f32 v[64:65], v[64:65], {vr(64+4*x,2)}\nv_pk_add_f32 v[66:67], v[66:67], {vr(66+4*x,2)}")
        a("v_and_b32 v7, v6, v7\nv_cmp_ne_u32 vcc, 0, v7")
        a("v_permlane32_swap_b32 v64, v66\nv_permlane32_swap_b32 v65, v67")
        spin("L_fin", "s_cbranch_vccnz")
        stamp(8)
        a(f"""v_pk_add_f32 v[64:65], v[64:65], v[66:67]
        v_permlane16_swap_b32 v64, v65
        v_add_f32 v64, v64, v65
        v_add_f32_dpp v64, v64, v64 row_ror:4 {DPPM}
        v_add_f32_dpp v64, v64, v64 row_ror:8 {DPPM}
        v_add_f32 v64, v64, v14
        v_cvt_pk_bf16_f32 v64, v64, v64
        s_mov_b32 exec_lo, 0x000f000f
        s_mov_b32 exec_hi, 0x000f000f
        buffer_store_short v64, v5, {sr(SQ)}, s16 offen {P['out_pol']}
        s_cmp_lg_u32 s10, 0
        s_cbranch_scc1 L_fin_done
        s_mov_b64 exec, 1
        {"s_mov_b32 s88, 1" if P["probe"] else ""}
        v_mov_b32 v14, s{sF}
        buffer_store_dword v14, v5, {sr(SW)}, 0 offen offset:{EP} {P['out_pol']}
        L_fin_done:
        s_mov_b64 exec, -1""")
    if P["lite"]:
        a(f"""s_waitcnt vmcnt(0)
        s_memrealtime s[82:83]
        s_lshl_b32 s10, s10, {4 if P["fin"] == "old" else 3}
        s_add_u32 s10, s10, {STAMP}
        s_waitcnt lgkmcnt(0)
        v_mov_b32 v4, 0
        v_mov_b32 v8, s80
        v_mov_b32 v9, s82
        v_mov_b32 v10, s80
        v_mov_b32 v11, s82
        {"buffer_store_dwordx4 v[8:11]" if P["fin"] == "old" else "buffer_store_dwordx2 v[8:9]"}, v4, {sr(SW)}, s10 offen""")
    if diag:
        a("s_waitcnt vmcnt(0)"); stamp(9)
    a("s_branch L_exit")

    sect[0] = "H"
    a("L_ATT_help:")
    decode()
    common()
    a("s_waitcnt lgkmcnt(0)")
    ep_load()
    a(f"""s_lshl4_add_u32 s9, s4, s5
    s_sub_u32 s10, s3, 4
    s_lshl_b32 s11, s10, 12
    s_add_u32 s12, s11, {QL}
    s_add_u32 s13, s11, {X}
    s_lshl_b32 s14, s10, 6
    v_lshlrev_b32 v4, 4, v0
    v_add_u32 v5, s13, v4
    v_xor_b32 v8, s14, v4
    v_xor_b32 v9, 16, v8
    v_xor_b32 v10, 32, v8
    v_xor_b32 v11, 48, v8
    v_mov_b32 v6, 0x10001""")
    a(f"""v_bfe_u32 v4, v0, 2, 2
    v_bfe_u32 v7, v0, 4, 1
    v_bfe_u32 v12, v0, 1, 1
    v_lshl_or_b32 v12, v7, 1, v12
    v_lshl_or_b32 v12, v4, 2, v12
    v_lshlrev_b32 v12, 4, v12
    v_lshl_add_u32 v12, v4, 8, v12
    v_lshl_add_u32 v12, v7, 10, v12
    v_lshrrev_b32 v13, 5, v0
    v_lshl_add_u32 v12, v13, 12, v12
    v_and_b32 v4, 1, v0
    v_lshl_add_u32 v12, v4, 3, v12
    s_lshl_b32 s14, s10, 15
    v_add_u32 v24, s14, v12
    v_lshlrev_b32 v4, 4, v2
    v_lshl_add_u32 v1, v3, 19, v4
    v_lshl_add_u32 v4, v7, 9, v4
    v_lshl_add_u32 v4, v13, 10, v4
    v_add_u32 v98, {PX}, v4
    s_lshl_b32 s15, s9, 8
    s_add_u32 s14, s14, s15
    s_add_u32 s14, s14, {BP}""")
    for n in range(8):
        if n: a(f"v_xor_b32 v{24+n}, {32*n}, v24")
        a(f"v_xor_b32 v{100+n}, {32*n + 16}, v24")
    for hh in range(2):
        for r in range(4):
            a(f"s_add_u32 s{64+4*hh+r}, s14, {(16*hh + r)*131072}")
    a("s_waitcnt lgkmcnt(0)")
    tags(True)
    if P["tlb"]:
        a(f"""v_lshlrev_b32 v4, 20, v0
        s_mov_b64 exec, 15
        buffer_load_dword v110, v4, {sr(SW)}, s64 offen nt
        s_mov_b64 exec, -1""")
    a("s_barrier")
    a(f"""v_mov_b32 v16, s13
    L_qtrig:
    ds_read_b32 v17, v16
    s_waitcnt lgkmcnt(0)
    v_cmp_eq_u32 vcc, 0, v17
    s_sleep 1
    s_add_u32 s28, s28, 0x10000
    s_cbranch_scc1 L_exit
    s_cbranch_vccnz L_qtrig
    s_and_b32 s28, s28, 0xffff""")
    stamp(4)
    if P["q_prio"]: a("s_setprio 3")
    def qoff(r): return 1024*(r & 3) + 16384*(r >> 2)
    def q_dma(r): a(f"s_add_u32 m0, s13, {qoff(r)}\ns_add_u32 s15, s12, {qoff(r)}\nbuffer_load_dwordx4 v{8+(r&3)}, {sr(SW)}, s15 offen sc1 lds")
    for r in range(8): q_dma(r)
    if P["zpf"]: a("s_barrier")
    fr = [(n, w) for n in range(8) for w in range(4)]
    def tr_read(n, w):
        for sec in range(2):
            a(f"ds_read_b64_tr_b16 {vr(128+16*n+4*w+2*sec,2)}, v{(100 if sec else 24)+n} offset:{8192*w + 2048*sec}")
    if P["tr_pre"]:
        a("s_barrier")
        for (n, w) in fr[:P["tr_pre"]]: tr_read(n, w)
    for r in range(8):
        a(f"s_waitcnt vmcnt({7-r})\nds_read_b128 {vr(64+4*r)}, v5 offset:{qoff(r)}")
        if r: a("s_waitcnt lgkmcnt(1)"); check(7, 64+4*(r-1), 4, sB, r == 1)
    a("s_waitcnt lgkmcnt(0)")
    check(7, 64+28, 4, sB, False)
    a("v_and_b32 v7, v6, v7\nv_cmp_ne_u32 vcc, 0, v7\ns_cbranch_vccz L_qok\ns_mov_b32 s16, 0")
    a("L_qfetch:")
    for r in range(8):
        a(f"s_bitcmp1_b32 s16, {r}\ns_cbranch_scc0 L_qs{r}")
        q_dma(r)
        a(f"L_qs{r}:")
    a("s_waitcnt vmcnt(0)")
    for r in range(8): a(f"ds_read_b128 {vr(64+4*r)}, v5 offset:{qoff(r)}")
    a("s_mov_b32 s16, 0")
    for r in range(8):
        a(f"s_waitcnt lgkmcnt({7-r})")
        check(7, 64+4*r, 4, sB, True)
        a(f"v_and_b32 v7, v6, v7\nv_cmp_ne_u32 vcc, 0, v7\ns_cmp_lg_u64 vcc, 0\ns_cselect_b32 s17, {1<<r}, 0\ns_or_b32 s16, s16, s17")
    spin("L_qfetch", "s_cbranch_scc1", "s_cmp_lg_u32 s16, 0")
    a("L_qok:")
    stamp(5)
    a(f"s_setprio {P['pv_prio']}\ns_barrier")
    for i_, (n, w) in enumerate(fr):
        if i_ == P["tr_split"][0]: a("s_barrier")
        if i_ == P["tr_split"][1]: a("s_barrier")
        if i_ >= P["tr_pre"]: tr_read(n, w)
    if P["cyc"]: stamp(2)
    for x in P["tr_split"]:
        if x >= 32: a("s_barrier")
    a("s_setprio 0\ns_waitcnt lgkmcnt(0)\ns_barrier")
    stamp(6)
    del lq[:]
    def p_read(hh, w): lop(f"ds_read_b128 {vr(32+16*hh+4*w)}, v98 offset:{2048*w + 256*hh}", ("P", hh, w))
    for w in range(4): p_read(0, w)
    def outblk(hh, r): return (8 if hh == 0 else 64) + 4*r
    def pack(hh, q):
        L = []
        for r in range(4):
            o = outblk(hh, r) + q
            L += [f"v_cvt_pk_bf16_f32 v{o}, v{64+32*hh+8*q+r}, v{64+32*hh+8*q+4+r}", f"v_bfi_b32 v{o}, v6, s{sB+q}, v{o}"]
        return L
    def ostore(hh, r): return f"buffer_store_dwordx4 {vr(outblk(hh, r))}, v1, {sr(SW)}, s{64+4*hh+r} offen sc1"
    order = [(hh, n, w) for hh in range(2) for n in range(8) for w in range(4)]
    GAP = 3
    F = []
    for q in range(3): F += [(8*q + 7 + GAP, l) for l in pack(0, q)]
    for r in range(4):
        F += [(31 + GAP + P["st_gap"]*r, l) for l in pack(0, 3)[2*r:2*r+2]] + [(0, ostore(0, r))]
    G2 = []
    for q in range(3): G2 += [(32 + 8*q + 7 + GAP, l) for l in pack(1, q)]
    for i_, (hh, n, w) in enumerate(order):
        lwait([("P", hh, w)])
        acc = 64 + 32*hh + 4*n
        a(f"v_mfma_f32_16x16x32_bf16 {vr(acc)}, {vr(32+16*hh+4*w)}, {vr(128+16*n+4*w)}, {'0' if w == 0 else vr(acc)}")
        if i_ == P["bd_at"]: a("s_barrier")
        if 3 <= i_ < 7: p_read(1, i_ - 3)
        if P["cyc"] and i_ == 31: stamp(1)
        used = 0
        while used < 2:
            if F and F[0][0] <= i_:
                l = F.pop(0)[1]; a(l); used += 0 if "store" in l else 1
            elif G2 and G2[0][0] <= i_ and not any("v64," in x[1] or True for x in F if "store" not in x[1] and x[0] <= 31 + GAP - 1):
                a(G2.pop(0)[1]); used += 1
            else: break
    stamp(7)
    for f in F + G2: a(f[1])
    pk = pack(1, 3)
    for r in range(4):
        a(pk[2*r]); a(pk[2*r+1]); a(ostore(1, r))
    stamp(8)
    if diag:
        a("s_waitcnt vmcnt(0)"); stamp(9)
    a("s_branch L_exit")

    sect[0] = "S"
    a("L_S1:")
    a(f"""s_load_dwordx2 s[{SG}:{SG+1}], s[0:1], 32
    s_load_dwordx2 s[{SX}:{SX+1}], s[0:1], 56
    s_load_dwordx2 s[{SQ}:{SQ+1}], s[0:1], 72
    s_load_dwordx2 s[{SK}:{SK+1}], s[0:1], 64""")
    srd(SX, 512*1792*2); srd(SQ, 1792*512*2); srd(SK, 1792*2)
    srd(SG, 4 << 20)
    a(f"""v_lshlrev_b32 v5, 17, v3
    v_lshlrev_b32 v6, 2, v3
    v_xor_b32 v6, v6, v2
    v_lshl_add_u32 v4, v6, 4, v5
    v_xor_b32 v26, 32, v4
    s_lshl_b32 s10, s8, 5
    s_add_u32 s10, s10, s3
    s_lshl_b32 s10, s10, 15
    s_lshl_b32 s11, s7, 8
    s_add_u32 s10, s10, s11
    s_lshl_b32 s11, s3, 13
    s_add_u32 s11, s11, {X}""")
    a(f"""v_bfe_u32 v6, v0, 2, 2
    v_bfe_u32 v7, v0, 4, 1
    v_bfe_u32 v5, v0, 1, 1
    v_lshl_or_b32 v7, v7, 1, v5
    v_lshl_or_b32 v7, v6, 2, v7
    s_lshl_b32 s12, s3, 2
    v_xor_b32 v7, s12, v7
    v_lshlrev_b32 v7, 4, v7
    v_lshlrev_b32 v6, 8, v6
    v_lshl_add_u32 v6, v3, 11, v6
    v_and_b32 v5, 1, v0
    v_lshl_add_u32 v6, v5, 3, v6
    v_add_u32 v6, {X}, v6
    v_add_u32 v8, v6, v7
    v_xor_b32 v9, 32, v8""")
    a(f"""v_and_b32 v5, 7, v0
    v_lshl_add_u32 v5, v5, 2, v3
    v_lshlrev_b32 v10, 9, v5
    v_lshlrev_b32 v11, 4, v0
    v_lshlrev_b32 v5, 4, v2
    v_lshl_add_u32 v5, v3, 3, v5
    s_lshl_b32 s12, s3, 6
    s_add_u32 s13, s12, s11
    v_add_u32 v12, s13, v5
    v_and_b32 v5, 3, v0
    v_mul_u32_u24 v5, {8192+64}, v5
    v_lshl_add_u32 v5, v3, 4, v5
    v_add_u32 v13, {X}, v5
    v_and_b32 v5, 31, v0
    s_add_u32 s13, s12, {X+2048}
    v_lshl_add_u32 v14, v5, 1, s13
    v_mov_b32 v15, s11
    v_mov_b32 v31, {X}
    v_mov_b32 v30, 0x10001
    v_bfe_u32 v5, v0, 4, 1
    v_cmp_eq_u32 s[18:19], 1, v5
    s_mov_b32 m0, s11
    s_nop 0""")
    a(f"""s_lshl2_add_u32 s15, s8, s3
    s_mul_i32 s15, s15, {32*3584}
    s_lshr_b32 s16, s5, 2
    s_sub_u32 s9, s4, {1 if P["nox"] == 0 else 0}
    s_lshl2_add_u32 s16, s9, s16
    s_lshl_b32 s16, s16, 7
    s_add_u32 s15, s15, s16
    v_mul_u32_u24 v20, 3584, v0
    s_lshl4_add_u32 s9, s9, s5
    s_waitcnt lgkmcnt(0)""")
    if P["tlb"]:
        a(f"""s_lshl2_add_u32 s12, s7, s8
        s_lshl_b32 s12, s12, 15
        s_add_u32 s12, s12, {BP + 3*256 + 128}
        s_lshl_b32 s13, s9, 14
        v_mov_b32 v21, 0
        s_mov_b64 exec, 1
        buffer_load_dword v237, v21, {sr(SG)}, s10 offen
        buffer_load_dword v237, v21, {sr(SQ)}, s13 offen
        buffer_load_dword v237, v21, {sr(SW)}, s12 offen nt
        s_mov_b64 exec, -1""")
    if P["w1pf_at"] == "1":
        a(f"""s_cmp_eq_u32 s4, {P["nox"]}
        s_cbranch_scc1 L_nw1
        s_mov_b32 exec_hi, 0
        buffer_load_dword v239, v20, {sr(SX)}, s15 offen
        s_mov_b64 exec, -1
        L_nw1:""")
    a("s_barrier")
    if P["h_touch"] and P["bhint"]:
        a(f"""s_lshl_b32 s12, s3, 13
        s_lshl2_add_u32 s13, s7, s8
        s_lshl_b32 s13, s13, 15
        s_add_u32 s13, s13, s12""")
        for rnd in range(P["brounds"]):
            for x in range(P["bhint"]):
                a(f"s_add_u32 s12, s13, {BP + ((32*x//P['bhint'] + 3 - rnd) % 32)*256 + 128}\ns_load_dword s{HINT+x}, s[{SW}:{SW+1}], s12 glc")
    for r in range(16): a(f"v_mov_b32 v{96+r}, 0")
    if P["uv_pf"]:
        a(f"""s_lshl2_add_u32 s12, s8, s3
        s_lshl_b32 s12, s12, 18
        s_lshl_b32 s13, s7, 8
        s_add_u32 s12, s12, s13
        v_lshrrev_b32 v21, 1, v0
        v_and_b32 v22, 1, v0
        v_lshlrev_b32 v22, 7, v22
        v_lshl_add_u32 v21, v21, 13, v22
        {"s_mov_b32 exec_hi, 0" if P["uv_pf"] == 1 else ""}
        buffer_load_dword v238, v21, {sr(SG)}, s12 offen
        s_mov_b64 exec, -1""")
    a(f"""s_cmp_eq_u32 s4, {P["nox"]}
    s_cbranch_scc1 L_nomlp
    s_mov_b32 exec_hi, 0
    {"" if P["w1_att"] or P["w1pf_at"] != "b" else f"buffer_load_dword v239, v20, {sr(SX)}, s15 offen"}
    s_mov_b64 exec, -1
    s_cmp_lg_u32 s3, 3
    s_cbranch_scc1 L_nomlp
    s_lshl_b32 s15, s9, 5
    s_lshl_b32 s16, s9, 14
    v_lshlrev_b32 v21, 12, v3
    v_lshl_add_u32 v21, v2, 4, v21
    v_lshlrev_b32 v22, 1, v2
    buffer_load_ushort v48, v22, {sr(SK)}, s15 offen""")
    a(f"""v_mov_b32 v27, v21
    v_lshrrev_b32 v20, 1, v0
    v_mul_u32_u24 v20, 3584, v20
    v_and_b32 v21, 1, v0
    v_lshl_add_u32 v20, v21, 4, v20
    v_lshlrev_b32 v21, 4, v0
    v_add_u32 v21, {X}, v21
    ds_write_b128 v21, v[56:59]
    v_lshlrev_b32 v21, 4, v3
    v_add_u32 v21, {X}, v21
    v_lshlrev_b32 v22, 8, v3
    v_lshl_add_u32 v22, v2, 3, v22
    v_add_u32 v22, {X+16384}, v22
    v_lshl_add_u32 v23, v3, 2, v2
    v_and_b32 v23, 15, v23
    v_lshlrev_b32 v23, 2, v23
    s_mov_b32 m0, {X+16384}""")
    def w2_loads():
        for t in range(16): a(f"buffer_load_dwordx4 {vr(192+4*t)}, v27, {sr(SQ)}, s16 offen offset:{256*t} nt")
    if P["w2_early"]: w2_loads()
    for t in range(16): a(f"ds_read_b128 {vr(64+4*t)}, v21 offset:{64*t}")
    if not P["w1_att"]: a("s_waitcnt vmcnt(0)")
    if P["optx"]: a("s_barrier")
    for q in range(16):
        a(f"buffer_load_dwordx4 v20, {sr(SX)}, s15 offen lds")
        if q < 15: a(f"s_addk_i32 m0, 0x400\ns_add_u32 s15, s15, {32*3584}")
    if P["optx"]: a("s_waitcnt vmcnt(0)")
    else:
        a(f"s_waitcnt vmcnt({P['wo_gate']})\ns_barrier")
        if P["w2_early"] or P["w2_at"] == "u": a("s_waitcnt vmcnt(0)")
        else:
            w2_loads()
            a("s_waitcnt vmcnt(16)")
    stamp(8)
    for t in range(16):
        a(f"ds_read_b64_tr_b16 {vr(128+4*t,2)}, v22 offset:{1024*t}\nds_read_b64_tr_b16 {vr(130+4*t,2)}, v22 offset:{1024*t+128}")
    a("s_waitcnt lgkmcnt(0)")
    for t in range(16):
        a(f"v_mfma_f32_16x16x32_bf16 v[16:19], {vr(64+4*t)}, {vr(128+4*t)}, {'0' if t == 0 else 'v[16:19]'}")
    rnd_bf16(20, 16)
    a("v_lshlrev_b32 v48, 16, v48\nv_add_f32 v20, v20, v48")
    rnd_bf16(20, 20)
    a("""v_max_f32 v20, 0, v20
    v_mul_f32 v20, v20, v20
    v_cvt_pk_bf16_f32 v20, v20, v20
    ds_bpermute_b32 v21, v23, v20
    s_waitcnt lgkmcnt(0)""")
    for rq in range(4):
        for dw in range(4):
            a(f"v_and_b32_dpp v{64+4*rq+dw}, v21, v{32+dw} row_newbcast:{rq} {DPPM}")
    def wuv_loads():
        a("s_mov_b32 m0, s11\ns_barrier")
        stamp(1)
        for q in range(8):
            if 0 < q <= P["uv_slow"]: a("s_waitcnt vmcnt(0)")
            a(f"buffer_load_dwordx4 v{26 if (q>>1)&1 else 4}, {sr(SG)}, s10 offen nt lds")
            if q < 7: a(f"s_add_u32 m0, m0, 1024\ns_add_u32 s10, s10, {(64*8192 if q & 1 == 0 else (1-64)*8192) & 0xffffffff}")
    wuv_loads()
    if (P["optx"] and not P["w2_early"]) or P["w2_at"] == "u":
        w2_loads()
        a("s_waitcnt vmcnt(0)")
    else: a("s_waitcnt vmcnt(8)")
    for rq in range(4):
        for cb in range(4):
            a(f"v_mfma_f32_16x16x32_bf16 {vr(96+4*cb)}, {vr(64+4*rq)}, {vr(192+16*rq+4*cb)}, {'0' if rq == 0 else vr(96+4*cb)}")
    a("s_nop 7\ns_branch L_wuv_done\nL_nomlp:")
    if P["wo_gate"] is not None: a("s_barrier")
    wuv_loads()
    a("L_wuv_done:")
    a(f"""s_lshl_b32 s12, s3, 13
    s_lshl2_add_u32 s16, s7, s8
    s_lshl_b32 s13, s16, 15
    s_add_u32 s13, s13, s12
    s_add_u32 s13, s13, {BP}
    s_lshl_b32 s12, s12, 1
    s_lshl4_add_u32 s12, s7, s12
    s_add_u32 s12, s12, {ST}""")
    if P["st_touch"]: a(f"buffer_load_dwordx4 v[16:19], v10, {sr(SW)}, s12 offen {P['st_pol']}")
    a("s_waitcnt vmcnt(0)")
    a(f"s_add_u32 s36, s{SW}, s13\ns_addc_u32 s37, s{SW+1}, 0")
    boffs = [((32*x//P["bhint"] + 3) % 32)*256 + 128 for x in range(P["bhint"])]
    if P["hpipe"]:
        for x, o in enumerate(boffs): a(f"s_load_dwordx2 {sr(HINT+2*x,2)}, s[36:37], {o} glc")
    a("s_barrier")
    for n in range(2):
        for t in range(4):
            for sec in range(2):
                a(f"ds_read_b64_tr_b16 {vr(160+16*n+4*t+2*sec,2)}, v{8+n} offset:{8192*t + 1024*sec}")
    a("s_waitcnt lgkmcnt(0)\ns_barrier")
    a(f"""s_cmp_lg_u32 s3, 3
    s_cbranch_scc1 L_nomw
    v_add_u32 v20, {X+4096}, v41
    s_mov_b32 exec_hi, 0""")
    for cb in range(4): a(f"ds_write_b128 v20, {vr(96+4*cb)} offset:{512*cb}")
    a("s_mov_b64 exec, -1\nL_nomw:")
    stamp(2)
    nh = P["lhint"]
    shint("L_lhint", hint_offs(nh, 16, 31, 9, 12, 32//max(nh,1)), 't')
    def st_check():
        a(f"""v_xor_b32 v17, s{sF}, v17
        v_bitop3_b32 v17, v17, v19, s{sF} bitop3:0xf6""")
    def st_loop():
        if P["st_sleep"]: a(f"s_branch L_stp1\nL_stp:\ns_sleep {P['st_sleep']}\nL_stp1:")
        else: a("L_stp:")
        a(f"buffer_load_dwordx4 v[16:19], v10, {sr(SW)}, s12 offen {P['st_pol']}\ns_waitcnt vmcnt(0)")
        st_check()
        a("v_cmp_ne_u32 vcc, 0, v17")
        spin("L_stp", "s_cbranch_vccnz")
        stamp(4)
    def pl_load(t): a(f"buffer_load_dwordx4 {vr(64+4*t)}, v11, {sr(SW)}, s{13 + (t>>2)} offen offset:{1024*(t&3)} {P['pl_pol']}")
    def ops(between=None):
        a0 = len(a.lines)
        ops1()
        if between is not None:
            L = a.lines[a0:]; del a.lines[a0:]
            k = min(P["ops_split"], len(L))
            a.lines.extend(L[:k]); between(); a.lines.extend(L[k:])
    def ops1():
        a("v_mov_b32 v24, v16")
        allreduce("v_max_f32", 24, 20)
        a("""v_sub_f32 v16, v16, v24
        v_exp_f32 v16, v16
        v_cvt_pk_bf16_f32 v16, v16, v16""")
        for t in range(8):
            for dw in range(4):
                a(f"v_and_b32_dpp v{128+4*t+dw}, v16, v{32+dw} row_newbcast:{t} {DPPM}")
        a("v_and_b32 v25, 0xffff0000, v16\nv_mul_f32 v25, v25, v18")
        allreduce("v_add_f32", 25, 20)
        a("v_mul_f32 v25, 0.5, v25\nds_write_b64 v15, v[24:25] offset:1024")
    if P["st_first"]: st_loop()
    if P["s1mode"] != "a":
        a("s_add_u32 s14, s13, 4096")
        if P["hpipe"]: a("s_branch L_h1_chk")
        shint("L_h1", boffs[:1], 'c')
        a(f"buffer_load_dwordx4 v[16:19], v10, {sr(SW)}, s12 offen {P['st_pol']}")
        if P["s1mode"] == "b": shint("L_h2", boffs[1:], 'c')
        a("s_waitcnt vmcnt(0)")
        st_check()
        a("v_cmp_ne_u32 vcc, 0, v17\ns_cbranch_vccz L_stok2")
        st_loop()
        a("L_stok2:")
        stamp(3)
        def lds8():
            for t in range(8): pl_load(t)
        if P["s1mode"] == "b": ops(lds8)
        else:
            for x, o in enumerate(boffs[1:]): a(f"s_load_dwordx2 {sr(HINT+2*x,2)}, s[36:37], {o} glc")
            ops()
            a("s_branch L_h2_chk")
            shint("L_h2", boffs[1:], 'c')
            lds8()
        a("s_branch L_s1go")
    def mf(t): a(f"v_mfma_f32_16x16x32_bf16 v[40:43], {vr(128+4*t)}, {vr(64+4*t)}, {'0' if t == 0 else 'v[40:43]'}")
    if P['s1mode'] == 'a':
        nh = P["bhint"]
        if P["hpipe"]: a("s_branch L_bhint0_chk")
        for rnd in range(P["brounds"]):
            shint(f"L_bhint{rnd}", [((32*x//nh + 3 - rnd) % 32)*256 + 128 for x in range(nh)], 'c')
        stamp(3)
        a("s_add_u32 s14, s13, 4096")
        if P["st_last"] and not P["st_first"]: st_loop()
        if not P["st_last"]: a(f"buffer_load_dwordx4 v[16:19], v10, {sr(SW)}, s12 offen {P['st_pol']}")
        for t in range(8): pl_load(t)
        if not P["st_last"]:
            a("s_waitcnt vmcnt(8)")
            stamp(4)
            st_check()
            a("v_cmp_ne_u32 vcc, 0, v17\ns_cbranch_vccz L_stok")
            a(f"L_stp:\nbuffer_load_dwordx4 v[16:19], v10, {sr(SW)}, s12 offen {P['st_pol']}\ns_waitcnt vmcnt(0)")
            st_check()
            a("v_cmp_ne_u32 vcc, 0, v17")
            spin("L_stp", "s_cbranch_vccnz")
            a("L_stok:")
        ops()
    a("L_s1go:")
    stamp(5)
    for t in range(8):
        a(f"s_waitcnt vmcnt({7-t})")
        mf(t)
        check(48+t, 64+4*t, 4, sB, True)
        if t == 2: a("v_or3_b32 v7, v48, v49, v50")
        if t in (4, 6): a(f"v_or3_b32 v7, v7, v{47+t}, v{48+t}")
    a("v_or_b32 v7, v7, v55\nv_and_b32 v7, v30, v7\nv_cmp_ne_u32 vcc, 0, v7\ns_cbranch_vccz L_bok")
    a("L_bre:")
    if P["re_sleep"]: a(f"s_sleep {P['re_sleep']}")
    for t in range(8):
        a(f"v_and_b32 v7, v30, v{48+t}\nv_cmp_ne_u32 vcc, 0, v7\ns_cbranch_vccz L_br{t}")
        pl_load(t)
        a(f"L_br{t}:")
    a("s_waitcnt vmcnt(0)")
    for t in range(8):
        mf(t)
        check(48+t, 64+4*t, 4, sB, True)
        if t == 2: a("v_or3_b32 v7, v48, v49, v50")
        if t in (4, 6): a(f"v_or3_b32 v7, v7, v{47+t}, v{48+t}")
    a("v_or_b32 v7, v7, v55\nv_and_b32 v7, v30, v7\nv_cmp_ne_u32 vcc, 0, v7\ns_add_u32 s28, s28, 99")
    spin("L_bre", "s_cbranch_vccnz")
    a("L_bok:\ns_nop 1")
    stamp(6)
    a("""v_cvt_pk_bf16_f32 v44, v40, v41
    v_cvt_pk_bf16_f32 v45, v42, v43
    s_mov_b32 exec_hi, 0
    ds_write_b64 v12, v[44:45]
    s_mov_b64 exec, -1
    s_waitcnt lgkmcnt(0)
    s_barrier""")
    a("ds_read_b128 v[64:67], v13")
    for u in range(2): a(f"ds_read2st64_b64 {vr(80+4*u)}, v31 offset0:{2 + 32*u} offset1:{18 + 32*u}")
    for t in range(1, 4): a(f"ds_read_b128 {vr(64+4*t)}, v13 offset:{64*t}")
    sm = """v_max3_f32 v4, v80, v82, v84
    v_max_f32 v4, v4, v86
    v_sub_f32 v80, v80, v4
    v_sub_f32 v82, v82, v4
    v_sub_f32 v84, v84, v4
    v_sub_f32 v86, v86, v4
    v_exp_f32 v80, v80
    v_exp_f32 v82, v82
    v_exp_f32 v84, v84
    v_exp_f32 v86, v86
    v_mul_f32 v5, v80, v81
    v_fmac_f32 v5, v82, v83
    v_fmac_f32 v5, v84, v85
    v_fmac_f32 v5, v86, v87
    v_rcp_f32 v5, v5
    v_mul_f32 v6, v40, v80
    v_fmac_f32 v6, v41, v82
    v_fmac_f32 v6, v42, v84
    v_fmac_f32 v6, v43, v86""".split("\n")
    fill = [0, 2, 2, 2, 1, 1, 1, 99]
    for x, (n, t) in enumerate([(n, t) for n in range(2) for t in range(4)]):
        if n == 0: a(f"s_waitcnt lgkmcnt({[5, 2, 1, 0][t]})")
        a(f"v_mfma_f32_16x16x32_bf16 {vr(40+4*n)}, {vr(64+4*t)}, {vr(160+16*n+4*t)}, {'0' if t == 0 else vr(40+4*n)}")
        for _ in range(min(fill[x], len(sm))): a(sm.pop(0))
    a("""v_mul_f32 v7, v44, v80
    v_fmac_f32 v7, v45, v82
    v_fmac_f32 v7, v46, v84
    v_fmac_f32 v7, v47, v86
    v_cndmask_b32 v6, v6, v7, s[18:19]
    v_mul_f32 v6, v6, v5
    v_cvt_pk_bf16_f32 v6, v6, v6
    ds_write_b16 v14, v6
    s_waitcnt lgkmcnt(0)""")
    stamp(7)
    a("s_barrier\ns_branch L_exit")

    sect[0] = "O"
    a("L_WO:")
    a(f"s_load_dwordx2 s[{SG}:{SG+1}], s[0:1], 40\ns_barrier\nL_WO1:")
    srd(SC, 16 << 20)
    a(f"""s_lshl4_add_u32 s14, s4, s5
    s_lshl2_add_u32 s14, s14, s3
    s_sub_u32 s14, s14, 4
    s_lshl_b32 s14, s14, 15
    v_lshrrev_b32 v5, 1, v0
    v_and_b32 v6, 1, v0
    v_lshlrev_b32 v5, 10, v5
    v_lshl_add_u32 v5, v6, 7, v5""")
    a("v_mov_b32 v44, v5\ns_mov_b32 s30, s14")
    def ckv_pf():
        for x in range(P["cpf"]):
            if x >= P["cpf_depth"]: a(f"s_waitcnt vmcnt({P['cpf_depth']-1})")
            if P["rgmajor"] == 4:
                a(f"""s_add_u32 s31, s30, {4096*(7-x)}
                v_lshlrev_b32 v44, 7, v0
                s_mov_b32 exec_hi, 0
                buffer_load_dword v{100+x}, v44, {sr(SC)}, s31 offen
                s_mov_b64 exec, -1""")
            else:
                a(f"""s_mov_b32 exec_{'lo' if x & 1 == 0 else 'hi'}, 0
                buffer_load_dword v{100+x}, v44, {sr(SC)}, s30 offen offset:{256*(3 - x//2)}
                s_mov_b64 exec, -1""")
    if not P["cpf_late"]: ckv_pf()
    if P["nox_cpf"]:
        a(f"s_cmp_lg_u32 s4, {P['nox']}\ns_cbranch_scc1 L_nocpf")
        sv = P["cpf"]; P["cpf"] = P["nox_cpf"]; ckv_pf(); P["cpf"] = sv
        a(f"s_waitcnt vmcnt({P['cpf_tail']})\nL_nocpf:")
    srd(SG, 4 << 20)
    a(f"""s_sub_u32 s9, s3, 4
    s_lshl_b32 s10, s7, 17
    s_lshl_b32 s11, s9, 8
    s_add_u32 s10, s10, s11
    s_lshl_b32 s11, s9, 15
    v_lshlrev_b32 v4, 2, v3
    v_xor_b32 v4, v4, v2
    v_lshlrev_b32 v4, 4, v4
    v_lshl_add_u32 v4, v3, 10, v4
    v_xor_b32 v5, 32, v4
    s_mov_b32 m0, s11""")
    if P["wo_rot"]:
        a("s_lshl_b32 s13, s8, 15\ns_add_u32 s10, s10, s13")
        for tau in range(3):
            a(f"s_cmp_eq_u32 s8, {3-tau}\ns_cselect_b32 s{36+tau}, -31, 1\ns_lshl_b32 s{36+tau}, s{36+tau}, 12")
    a(f"""v_bfe_u32 v6, v0, 2, 2
    v_bfe_u32 v7, v0, 4, 1
    v_bfe_u32 v16, v0, 1, 1
    v_lshl_or_b32 v7, v7, 1, v16
    v_lshl_or_b32 v7, v6, 2, v7
    v_lshlrev_b32 v7, 4, v7
    v_lshlrev_b32 v6, 8, v6
    v_lshl_add_u32 v6, v3, 11, v6
    v_and_b32 v16, 1, v0
    v_lshl_add_u32 v6, v16, 3, v6
    v_add_u32 v6, s11, v6""")
    for n in range(8):
        a(f"v_xor_b32 v16, {32*n}, v7\nv_add_u32 v{8+n}, v6, v16")
    a(f"""v_lshlrev_b32 v16, 4, v3
    v_add_u32 v16, {X+2048}, v16
    v_lshlrev_b32 v17, 6, v2
    v_lshl_add_u32 v17, v3, 4, v17
    v_mov_b32 v18, 0xff
    s_lshl2_add_u32 s12, s7, s8
    s_lshl_b32 s12, s12, 11
    s_lshl_b32 s13, s9, 9
    s_add_u32 s12, s12, s13
    s_add_u32 s12, s12, {DP}""")
    for t in range(4):
        if P["wo_rot"]: a(f"s_add_u32 s13, s8, {t}\ns_and_b32 s13, s13, 3\ns_lshl_b32 s13, s13, 6\nv_add_u32 v{36+t}, s13, v16")
        else: a(f"v_add_u32 v{36+t}, {64*t}, v16")
    a("s_waitcnt lgkmcnt(0)")
    if P["tlb"]: a(f"v_mov_b32 v45, 0\ns_mov_b64 exec, 1\nbuffer_load_dword v110, v45, {sr(SG)}, s10 offen\ns_mov_b64 exec, -1")
    def wo_read(t):
        for n in range(8):
            for sec in range(2):
                a(f"ds_read_b64_tr_b16 {vr(128+32*t+4*n+2*sec,2)}, v{8+n} offset:{8192*t + 1024*sec}")
    nxt = 0
    for rg in range(32):
        if rg == 0 and P["cpf"] and not P["cpf_late"]: a(f"s_waitcnt vmcnt({P['cpf_tail']})")
        if rg == 0 and not P["optx"]: a("s_barrier")
        if rg == P["x_n"] and P["optx"]: a(f"s_waitcnt vmcnt({P['x_left']})\ns_barrier")
        if rg == 0 and P["cpf_late"]:
            ckv_pf()
            if P["cpf_wait"] is not None: a(f"s_waitcnt vmcnt({P['cpf_wait']})")
        if rg == 0:
            for x in P["wo_bar"]:
                if x < 0: a("s_barrier")
        if rg == 0 and not P["fine"]: stamp(1)
        wd = P["wo_edepth"] if rg < P["wo_early"] else (P["wo_depth0"] if rg < 8 + P["wo_depth0"] else P["wo_depth"])
        if rg >= wd:
            a(f"s_waitcnt vmcnt({wd-1})")
            landed = rg - wd + 1
            if landed >= 8*(nxt+1):
                if nxt == 0: stamp(5)
                if "noread" not in P["abl"]: wo_read(nxt)
                nxt += 1
        a(f"buffer_load_dwordx4 v{4+((rg>>1)&1)}, {sr(SG)}, s10 offen {P['first_pol'] if rg < 8 else P['wo_pol']} lds")
        if rg in P["wo_bar"]: a("s_barrier")
        if rg < 31:
            if P["wo_rot"] and rg & 7 == 7: a(f"s_add_u32 m0, m0, 1024\ns_add_u32 s10, s10, s{36+(rg>>3)}")
            else: a("s_add_u32 m0, m0, 1024\ns_add_u32 s10, s10, 4096")
    while nxt < 4:
        a(f"s_waitcnt vmcnt({24 - 8*nxt})")
        wo_read(nxt); nxt += 1
    for n in range(1, 8):
        a(f"s_mov_b32 s{40+2*n}, {0x01010101 << n}\ns_mov_b32 s{41+2*n}, {0x01010101 << n}")
    for x in P["wo_bar"]:
        if x >= 32: a("s_barrier")
    stamp(6)
    if "bwait" in P["abl"]: a("s_barrier")
    a(f"s_lshl_b32 s13, s9, 9\ns_add_u32 s13, s13, {X+4096}\nv_and_b32 v19, 0x1ff, v17\nv_add_u32 v19, s13, v19")
    a("s_barrier\nds_read_b128 v[40:43], v19\ns_barrier")
    stamp(7)
    for t in range(4): a(f"ds_read_b128 {vr(20+4*t)}, v{36+t}")
    order3 = [(n, t) for t in range(4) for n in range(2)] + [(n, t) for n in range(2, 8) for t in range(4)]
    for x, (n, t) in enumerate(order3):
        if n == 0: a(f"s_waitcnt lgkmcnt({3-t})")
        a(f"v_mfma_f32_16x16x32_bf16 {vr(64+4*n)}, {vr(128+32*t+4*n)}, {vr(20+4*t)}, {'v[40:43]' if t == 0 else vr(64+4*n)}")
        if n >= 4:
            for m in ([n-3] if n < 6 else ([3] if n == 6 else [4])) + ([5] if n == 7 else []):
                a(f"v_cndmask_b32 v{64+t}, v{64+t}, v{64+4*m+t}, s[{40+2*m}:{41+2*m}]")
    for t in range(4): a(f"v_cndmask_b32 v{64+t}, v{64+t}, v{64+24+t}, s[52:53]")
    for r in range(4): a(f"v_bfi_b32 v{64+r}, v18, s{sF+r}, v{64+r}")
    a("s_mov_b64 exec, s[54:55]")
    for r in range(4): a(f"v_bfi_b32 v{64+r}, v18, s{sF+r}, v{92+r}")
    a(f"""s_mov_b32 exec_lo, 0x00ff00ff
    s_mov_b32 exec_hi, 0x00ff00ff
    buffer_store_dwordx4 v[64:67], v17, {sr(SW)}, s12 offen sc1
    s_mov_b64 exec, -1""")
    stamp(8)
    if diag:
        a("s_waitcnt vmcnt(0)"); stamp(9)

    a("L_exit:")
    if P["probe"]:
        if P["probe"][0].startswith("x"):
            a(f"s_waitcnt lgkmcnt(0)\ns_lshl_b32 s85, 1, s4\ns_and_b32 s85, s85, {int(P['probe'][0][1:], 16)}\ns_cselect_b32 s84, s80, 0\ns_cmp_eq_u32 s3, 0\ns_cselect_b32 s84, s84, 0")
        a(f"""s_load_dwordx2 s[86:87], s[0:1], 96
        s_mov_b64 exec, 1
        s_waitcnt lgkmcnt(0)
        v_mov_b32 v4, 0
        v_mov_b32 v5, s84
        s_cmp_eq_u32 s84, 0
        s_cbranch_scc1 L_pr1
        global_atomic_umax v4, v5, s[86:87] offset:128
        L_pr1:
        s_cmp_lg_u32 s3, 0
        s_cbranch_scc1 L_pr2
        v_mov_b32 v5, s80
        global_atomic_umax v4, v5, s[86:87]
        v_not_b32 v6, v5
        global_atomic_umax v4, v6, s[86:87] offset:4
        L_pr2:
        s_cmp_lg_u32 s88, 1
        s_cbranch_scc1 L_end
        s_add_u32 s90, s80, 3000
        L_pr3:
        s_memrealtime s[82:83]
        s_waitcnt lgkmcnt(0)
        s_sub_u32 s83, s82, s90
        s_cmp_lt_i32 s83, 0
        s_cbranch_scc1 L_pr3
        global_load_dwordx2 v[8:9], v4, s[86:87] sc1
        global_load_dword v10, v4, s[86:87] offset:128 sc1
        s_waitcnt vmcnt(0)
        v_readfirstlane_b32 s91, v8
        v_readfirstlane_b32 s92, v9
        v_readfirstlane_b32 s93, v10
        s_not_b32 s92, s92""")
        ref = "s92" if P["probe"][1] == "min" else "s91"
        val = {"maxstart": "s91", "none": ref}.get(P["probe"][0], "s93")
        amp = P["probe"][2] if len(P["probe"]) > 2 else 1
        a(f"""s_sub_u32 s94, {val}, {ref}
        s_mul_i32 s94, s94, {amp}
        s_min_u32 s94, s94, 3000
        s_add_u32 s90, s92, 4000
        s_add_u32 s90, s90, s94
        L_pr4:
        s_memrealtime s[82:83]
        s_waitcnt lgkmcnt(0)
        s_sub_u32 s83, s82, s90
        s_cmp_lt_i32 s83, 0
        s_cbranch_scc1 L_pr4""")
    if diag:
        a(f"""s_mov_b64 exec, -1
        s_waitcnt lgkmcnt(0)
        s_lshl3_add_u32 s10, s2, s3
        s_lshl_b32 s10, s10, 7
        s_add_u32 s10, s10, {STAMP}
        v_mov_b32 v4, 0""")
        for k in range(10):
            a(f"v_mov_b32 v5, s{80+2*k}\nbuffer_store_dword v5, v4, {sr(SW)}, s10 offen offset:{4*k}")
        a(f"v_mov_b32 v5, s28\nbuffer_store_dword v5, v4, {sr(SW)}, s10 offen offset:40")
        a(f"s_getreg_b32 s11, hwreg(HW_REG_XCC_ID)\nv_mov_b32 v5, s11\nbuffer_store_dword v5, v4, {sr(SW)}, s10 offen offset:44")
        a(f"s_getreg_b32 s11, hwreg(HW_REG_HW_ID)\nv_mov_b32 v5, s11\nbuffer_store_dword v5, v4, {sr(SW)}, s10 offen offset:48")
    a("L_end:\ns_endpgm\nL_codeend:")
    if P["align"] is not None:
        a(f"""L_align:
        s_memrealtime s[80:81]
        s_and_b32 s4, s2, 7
        s_mul_i32 s5, s4, 3
        s_cmp_eq_u32 s4, 0
        s_cselect_b32 s5, {P['align']}, s5
        s_waitcnt lgkmcnt(0)
        s_or_b32 s6, s80, 511
        s_add_u32 s6, s6, s5
        L_al:
        s_memrealtime s[80:81]
        s_waitcnt lgkmcnt(0)
        s_sub_u32 s7, s80, s6
        s_cmp_lt_i32 s7, 0
        s_cbranch_scc1 L_al
        s_branch L_back""")


    lines = a.lines
    if diag:
        pre = [f"s_mov_b32 s{80+2*k}, 0" for k in range(1, 10)]
        lines = lines[:1] + pre + lines[1:]
    lines, nins = insert_waits(lines)
    b = Asm(); b.lines = lines
    head = f"""; fused MLA decode attention (absorbed form) + squared-relu MLP, one persistent launch, 256 workgroups
; @launch grid=(256,1,1) block=(512,1,1) lds=163840
.amdgcn_target "amdgcn-amd-amdhsa--gfx950"
.text
.globl {KNAME}
.p2align 8
.type {KNAME},@function
{KNAME}:
"""
    foot = f"""
.section .rodata,"a"
.p2align 6
.amdhsa_kernel {KNAME}
  .amdhsa_next_free_vgpr 256
  .amdhsa_next_free_sgpr 102
  .amdhsa_accum_offset 256
  .amdhsa_group_segment_fixed_size 0
  .amdhsa_kernarg_size 112
  .amdhsa_user_sgpr_count 2
  .amdhsa_user_sgpr_kernarg_segment_ptr 1
  .amdhsa_system_sgpr_workgroup_id_x 1
  .amdhsa_float_denorm_mode_32 3
.end_amdhsa_kernel
"""
    txt = b.text()
    if P["abl"]:
        L = txt.split("\n"); O = []
        for l in L:
            if "nowo" in P["abl"] and "s[60:63]" in l and "buffer_load" in l: continue
            if "nomlp" in P["abl"] and f"s_cmp_eq_u32 s4, {P['nox']}" in l: l = "    s_cmp_eq_u32 s4, s4"
            if "noqk" in P["abl"] and "32x32x16" in l and ", 0" not in l[-4:]: continue
            if "nos3" in P["abl"] and "16x16x32" in l and ("v[24:27]," in l or "v[28:31]," in l) and "v[32:35], v[" not in l: continue
            O.append(l)
        txt = "\n".join(O)
    if P["pol"] != "nt":
        txt = txt.replace(" nt lds", f" {P['pol']} lds").replace(" nt\n", f" {P['pol']}\n")
    return head + txt + foot

if __name__ == "__main__":
    import json
    kw = json.loads(sys.argv[2]) if len(sys.argv) > 2 else {}
    open(sys.argv[1], "w").write(gen(**kw))
```

```python
import sys, math, struct
from asmlib import Asm, insert_waits
from gen_common import KNAME

EP, QP, QL, GO, ST, HP, DP, BP, STAMP = 0, 0x1000, 0x40000, 0x48000, 0x50000, 0x60000, 0x80000, 0x100000, 0x800000
WS_REC = 0x1000000
X = 131072
SPIN = 1 << 17

def f2u(x): return struct.unpack("<I", struct.pack("<f", x))[0]
def vr(a, n=4): return f"v[{a}:{a+n-1}]"
def sr(a, n=4): return f"s[{a}:{a+n-1}]"

SX, SC, SQ, SK, SW, SG = 40, 44, 48, 52, 56, 60
sF, sB = 20, 24
HINT = 64
DPPM = "row_mask:0xf bank_mask:0xf"

DEFAULT = dict(lite=False, diag=False, cyc=False, fine=False, calib=0, probe=None, abl=(), pol="nt", prefetch=True, pf_wgs=16, role_bit=0,
               pq=True, pk_late='a', pf_ramp=(0, 4, 10), bi_at=2, q_at=31, qhint=0, cw_at=-1, sm_pre=4, bb_at=4, ba_at=28, q_ah=5, bd_at=8, l_pre=6, fin=1, ent=2, hc=1, uvg=0, dp_warm=False, fin_wait=True, qgate=0, b1_at=10, tr_mid=2, s3ord=1, pw64=True, pv4=False, s1mode='a', ops_split=99, w1pf_at='1', xfast=True, align=None, nox=0, nox_cpf=2, tlb=False, zpf=0, uv_slow=0, w2_at='g', st_sleep=0, st_first=False, uk_first=False, tr_pre=0, pv_prio=0, qk_prio=2, qk_fill=(2, 2), tr_split=(14, 20), pv_bar=(10, 24), st_gap=4, optx=False, pf_pol='', first_pol='', uk_pol='nt', x_n=8, x_left=0, pv_fill=2,
               cpf=0, wo_gate=8, ql_pre=None, cpf_depth=2, cpf_tail=1, wq_pol="", wo_pol="", wo_depth=8, wo_depth0=8, wo_bar=(7, 23, 29), wo_rot=True,
               bhint=4, fhint=0, hsleep=0, out_pol="", mlp_at="pf", wpq=False, x_bar=True, wq_bars=(), ln_at=7, st_last=True, st_at=10, w2_early=False, uv_pf=0, w1_att=False, cpf_wait=None, lhint=0, st_touch=False, h_touch=False, hmap=1, pk_mix=False, cpf_late=False, c_keep=0, ql_delay=0, fin_pol='sc1', pl_pol='sc1', st_pol='sc1', rgmajor=4, hpipe=True, brounds=1, re_sleep=0, w1_wait=17, w2_late=True, wuv_depth=8, q_prio=True, q_fast=True, w1_pre=16, w2_left=0, att_pf=0, out_touch='sc1', dpp_early=True, go_at=None, cpfq=True, c_ramp=((0,10),), wo_early=0, wo_edepth=2)

def gen(**kw):
    P = dict(DEFAULT); P.update(kw)
    diag = P["diag"]
    a = Asm()
    sect = ["entry"]
    def fs(k):
        if P['cyc'] == 3: stamp(k, True)
    def stamp(k, force=False):
        if P["cyc"] == 3 and sect[0] in ("C", "F", "H") and not force: return
        if P["cyc"] == 2 and (sect[0], k) not in (("entry", 0), ("C", 3), ("H", 8), ("H", 7), ("S", 6), ("O", 8), ("A", 3), ("A", 4)): return
        if diag: a(f"{'s_memtime' if P['cyc'] else 's_memrealtime'} s[{80+2*k}:{81+2*k}]")
        if P["probe"] and P["probe"][0] == f"{sect[0]}{k}":
            a("s_memrealtime s[84:85]")
    def srd(base, size):
        a(f"s_mov_b32 s{base+2}, {size}\ns_mov_b32 s{base+3}, 0x20000")
    def ep_load(): a(f"s_load_dword s35, s[{SW}:{SW+1}], {EP}")
    def tags(need_b=True):
        for q in range(4): a(f"s_add_u32 s{sF+q}, s35, {q+1}")
        if need_b:
            for q in range(4): a(f"s_and_b32 s{sB+q}, s{sF+q}, 3\ns_mul_i32 s{sB+q}, s{sB+q}, 0x8001")
    def allreduce(op, v, t1):
        for r in (1, 2, 4, 8):
            a(f"{op}_dpp v{v}, v{v}, v{v} row_ror:{r} {DPPM}")
        for sw in ("v_permlane16_swap_b32", "v_permlane32_swap_b32"):
            a(f"v_mov_b32 v{t1}, v{v}\n{sw} v{t1}, v{v}\n{op} v{v}, v{v}, v{t1}")
    def rnd_bf16(d, s):
        a(f"v_cvt_pk_bf16_f32 v{d}, v{s}, v{s}\nv_and_b32 v{d}, 0xffff0000, v{d}")
    def unpack2(d, s):
        a(f"v_lshlrev_b32 v{d}, 16, v{s}\nv_and_b32 v{d+1}, 0xffff0000, v{s}")
    def ln_stats(xr, f, t):
        for i in range(4): unpack2(f+2*i, xr+i)
        a(f"v_add_f32 v{t}, v{f}, v{f+1}\nv_add_f32 v{t+1}, v{f+2}, v{f+3}\nv_add_f32 v{t+2}, v{f+4}, v{f+5}\nv_add_f32 v{t+3}, v{f+6}, v{f+7}")
        a(f"v_add_f32 v{t}, v{t}, v{t+1}\nv_add_f32 v{t+2}, v{t+2}, v{t+3}\nv_add_f32 v{t}, v{t}, v{t+2}")
        allreduce("v_add_f32", t, t+2)
        a(f"v_mul_f32 v{t}, {f2u(1/512)}, v{t}")
        a(f"v_sub_f32 v{t+2}, v{f}, v{t}\nv_mul_f32 v{t+1}, v{t+2}, v{t+2}")
        for i in range(1, 8):
            a(f"v_sub_f32 v{t+2+(i&1)}, v{f+i}, v{t}\nv_fmac_f32 v{t+1}, v{t+2+(i&1)}, v{t+2+(i&1)}")
        allreduce("v_add_f32", t+1, t+2)
        a(f"v_mul_f32 v{t+1}, {f2u(1/512)}, v{t+1}")
        rnd_bf16(t, t)
        rnd_bf16(t+1, t+1)
        a(f"v_add_f32 v{t+1}, {f2u(1e-5)}, v{t+1}")
        rnd_bf16(t+1, t+1)
        a(f"v_sqrt_f32 v{t+1}, v{t+1}")
        rnd_bf16(t+1, t+1)
        a(f"v_rcp_f32 v{t+1}, v{t+1}")
    def delta_masks(m, t):
        a(f"""v_and_b32 v{t}, 1, v0
        v_lshlrev_b32 v{t}, 4, v{t}
        v_mov_b32 v{t+1}, 0xffff
        v_lshlrev_b32 v{t}, v{t}, v{t+1}
        v_bfe_u32 v{t+1}, v0, 1, 3""")
        for dw in range(4):
            a(f"v_cmp_eq_u32 vcc, {dw}, v{t+1}\nv_cndmask_b32 v{m+dw}, 0, v{t}, vcc")
    def check(acc, first, n, tagbase, start):
        for i in range(n):
            if start and i == 0: a(f"v_xor_b32 v{acc}, s{tagbase}, v{first}")
            else: a(f"v_bitop3_b32 v{acc}, v{acc}, v{first+i}, s{tagbase+(i&3)} bitop3:0xf6")
    def spin(label, cond_branch, pre=""):
        a(f"""s_add_u32 s28, s28, 1
        s_cmp_gt_u32 s28, {SPIN}
        s_cbranch_scc1 L_exit
        {pre}
        {cond_branch} {label}""")
    def shint(label, offs, kind):
        if not offs: return
        a(f"{label}:")
        if P["hsleep"]: a(f"s_sleep {P['hsleep']}")
        n = len(offs)
        if kind == 'c':
            for x, o in enumerate(offs): a(f"s_load_dwordx2 {sr(HINT+2*x,2)}, s[36:37], {o} glc")
            a(f"{label}_chk:\ns_waitcnt lgkmcnt(0)")
            for x in range(n):
                a(f"s_xor_b64 {sr(HINT+2*x,2)}, {sr(HINT+2*x,2)}, {sr(sB,2)}")
                if x: a(f"s_or_b64 {sr(HINT,2)}, {sr(HINT,2)}, {sr(HINT+2*x,2)}")
            a(f"s_or_b32 s{HINT}, s{HINT}, s{HINT+1}")
            fin = f"s_and_b32 s{HINT}, s{HINT}, 0x10001"
        elif kind == 'd':
            for x, o in enumerate(offs): a(f"s_load_dword s{HINT+x}, s[{SW}:{SW+1}], s{o} glc")
            a("s_waitcnt lgkmcnt(0)")
            for x in range(n):
                a(f"s_xor_b32 s{HINT+x}, s{HINT+x}, s{sF}")
                if x: a(f"s_or_b32 s{HINT}, s{HINT}, s{HINT+x}")
            fin = f"s_and_b32 s{HINT}, s{HINT}, 0xff"
        elif kind == 't':
            for x, o in enumerate(offs): a(f"s_load_dwordx2 {sr(HINT+2*x,2)}, s[{SW}:{SW+1}], s{o} glc")
            a("s_waitcnt lgkmcnt(0)")
            for x in range(n):
                a(f"s_xor_b32 s{HINT+2*x+1}, s{HINT+2*x+1}, s{sF}")
                if x: a(f"s_or_b32 s{HINT+1}, s{HINT+1}, s{HINT+2*x+1}")
            fin = f"s_cmp_lg_u32 s{HINT+1}, 0"
        else:
            tb, mask = (sB, 0x10001) if kind == 'b' else (sF, 0xff)
            for x, o in enumerate(offs): a(f"s_load_dwordx4 {sr(HINT+4*x)}, s[{SW}:{SW+1}], s{o} glc")
            a("s_waitcnt lgkmcnt(0)")
            for x in range(4*n):
                a(f"s_xor_b32 s{HINT+x}, s{HINT+x}, s{tb+(x&3)}")
                if x: a(f"s_or_b32 s{HINT}, s{HINT}, s{HINT+x}")
            fin = f"s_and_b32 s{HINT}, s{HINT}, {mask}"
        spin(label, "s_cbranch_scc1", fin)
    def tdelay(label, ticks):
        a(f"""s_waitcnt lgkmcnt(0)
        s_add_u32 s78, s80, {ticks}
        {label}:
        s_memrealtime s[76:77]
        s_waitcnt lgkmcnt(0)
        s_sub_u32 s77, s76, s78
        s_cmp_lt_i32 s77, 0
        s_cbranch_scc1 {label}""")
    def hint_offs(n, seed, modmask, shift, base, spread):
        for x in range(n):
            a(f"s_add_u32 s{30+x}, s{seed}, {x*spread}\ns_and_b32 s{30+x}, s{30+x}, {modmask}\ns_lshl_b32 s{30+x}, s{30+x}, {shift}\ns_add_u32 s{30+x}, s{30+x}, s{base}")
        return [30+x for x in range(n)]

    stamp(0)
    if (P["calib"] or P["probe"] or P["lite"]) and P["align"] is None: a("s_memrealtime s[80:81]")
    if P["probe"]: a("s_mov_b32 s84, 0\ns_mov_b32 s88, 0")
    if P["align"] is not None: a("s_branch L_align\nL_back:\ns_nop 0")
    assert P["role_bit"] == 0 and P["hmap"] == 1
    a(f"""s_load_dwordx4 s[48:51], s[0:1], 16
    s_load_dwordx4 s[40:43], s[0:1], 0
    s_load_dwordx2 s[{SW}:{SW+1}], s[0:1], 104
    v_lshrrev_b32 v1, 6, v0""")
    if P["prefetch"]:
        a(f"""s_cmp_ge_u32 s2, {P['pf_wgs']}
        s_cbranch_scc1 L_nopf
        s_getpc_b64 s[10:11]
        L_pc:
        v_lshlrev_b32 v4, 6, v0
        v_min_u32 v4, L_codeend - L_pc - 4, v4
        global_load_dword v255, v4, s[10:11]
        L_nopf:""")
    a(f"""v_readfirstlane_b32 s3, v1
    s_lshr_b32 s5, s2, 4
    s_cmp_ge_u32 s5, 16
    s_cbranch_scc1 L_end
    v_and_b32 v0, 63, v0
    s_and_b32 s4, s2, 7""")
    if P["ent"] == 2:
        a(f"""s_bitcmp1_b32 s2, 3
        s_cbranch_scc0 L_WGT
        s_cmp_ge_u32 s3, 4
        s_cbranch_scc1 L_ATT_stub
        v_lshrrev_b32 v4, 1, v0
        v_and_b32 v5, 1, v0
        v_lshlrev_b32 v4, 11, v4
        v_lshl_add_u32 v4, v5, 7, v4
        v_bfe_u32 v5, v0, 1, 2
        v_mad_u32_u24 v5, v5, {P["hc"]}, s4
        v_and_b32 v5, 7, v5
        v_lshl_add_u32 v4, v5, 8, v4
        s_lshl2_add_u32 s16, s5, s3
        v_lshl_add_u32 v126, s16, 16, v4
        s_waitcnt lgkmcnt(0)
        global_load_dword v121, v126, s[48:49]""")
        if not P["pk_late"]: a("global_load_dword v127, v126, s[50:51]")
        a("s_branch L_ATT")
    else:
        a(f"""    s_cmp_ge_u32 s3, 4
    s_cbranch_scc1 L_go
    v_lshrrev_b32 v4, 1, v0
    v_and_b32 v5, 1, v0
    v_lshlrev_b32 v4, 11, v4
    s_lshl_b32 s17, s4, 8
    v_lshl_add_u32 v4, v5, 7, v4
    s_lshr_b32 s16, s2, 3
    s_lshl2_add_u32 s16, s16, s3
    s_lshl_b32 s16, s16, 15
    s_add_u32 s16, s16, s17
    v_add_u32 v5, s16, v4
    s_lshl2_add_u32 s16, s5, s3
    s_lshl_b32 s16, s16, 16
    s_add_u32 s16, s16, s17
    v_add_u32 v126, s16, v4
    s_mov_b32 exec_hi, 0
    s_waitcnt lgkmcnt(0)
    global_load_dword v121, v5, s[48:49]
    s_mov_b64 exec, -1
    s_bitcmp1_b32 s2, 3
    s_cbranch_scc0 L_WGT""")
        if not P["pk_late"]: a("global_load_dword v127, v126, s[50:51]")
        a("""s_branch L_ATT
    L_go:
    s_bitcmp1_b32 s2, 3
    s_cbranch_scc1 L_ATT_stub""")
    def decode():
        a(f"""s_lshr_b32 s7, s5, 2
        s_mul_i32 s8, s7, {P["hc"]}
        s_add_u32 s8, s8, s4
        s_and_b32 s8, s8, 7
        s_lshl3_add_u32 s7, s7, s8
        s_and_b32 s8, s5, 3
        s_lshl_b32 s17, s7, 8
        v_and_b32 v2, 15, v0
        v_lshrrev_b32 v3, 4, v0""")
    def ptrs():
        a(f"""s_mov_b64 s[{SK}:{SK+1}], s[50:51]
        s_mov_b64 s[{SC}:{SC+1}], s[42:43]""")

    def common():
        a("s_mov_b32 s28, 0")
        srd(SW, WS_REC)
        a("v_lshlrev_b32 v41, 5, v2\nv_lshl_add_u32 v41, v3, 4, v41")

    sect[0] = "A"
    PART = 0
    XA = """s_lshl_b32 s11, s3, 7
    v_lshlrev_b32 v4, 4, v0
    v_lshl_add_u32 v5, s8, 2, v2
    v_and_b32 v5, 15, v5
    v_lshl_add_u32 v5, v3, 4, v5
    v_lshlrev_b32 v5, 1, v5"""
    a("L_WGT:")
    if P["xfast"]:
        a(f"""s_cmp_eq_u32 s3, 7
        s_cbranch_scc1 L_warm
        L_WGT1:
        s_lshl_b32 s8, s5, 2
        v_add_u32 v5, s8, v0
        v_lshlrev_b32 v4, 4, v0
        v_bfi_b32 v5, 15, v5, v0
        s_lshl_b32 s11, s3, 7
        v_lshl_add_u32 v5, v5, 1, s11
        s_waitcnt lgkmcnt(0)
        global_load_dwordx4 v[8:11], v4, s[40:41]
        global_load_ushort v12, v5, s[40:41]""")
    decode()
    a(f"""s_lshl_b32 s10, s3, 19
    s_lshl_b32 s11, s8, 15
    s_add_u32 s10, s10, s11
    s_add_u32 s10, s10, s17
    {"" if P["xfast"] else XA}
    v_lshlrev_b32 v6, 17, v3
    v_lshl_add_u32 v6, v2, 4, v6
    s_movk_i32 s12, 0x2000""")
    def uk_loads():
        srd(SK, 4 << 20)
        a(f"""s_lshl3_add_u32 s13, s8, s3
        s_lshl_b32 s13, s13, 17
        s_add_u32 s13, s13, s17
        s_lshl_b32 s14, s3, 12
        s_add_u32 m0, s14, {X}
        v_lshlrev_b32 v50, 2, v3
        v_xor_b32 v50, v50, v2
        v_lshlrev_b32 v50, 4, v50
        v_lshl_add_u32 v48, v3, 13, v50""")
        for rg in range(4):
            if rg: a(f"v_xor_b32 v49, {16*rg}, v48\ns_addk_i32 m0, 0x400\ns_add_u32 s13, s13, 0x8000")
            a(f"buffer_load_dwordx4 v{49 if rg else 48}, {sr(SK)}, s13 offen {P['uk_pol']} lds")
    UK = 0 if P["uk_first"] else 4
    xl = [f"buffer_load_dwordx4 v[8:11], v4, {sr(SX)}, 0 offen", f"buffer_load_ushort v12, v5, {sr(SX)}, s11 offen"]
    if P["wpq"]:
        a(f"""v_bfe_u32 v7, v0, 1, 2
        v_lshlrev_b32 v7, 13, v7
        v_lshl_add_u32 v7, v3, 17, v7
        v_and_b32 v13, 1, v0
        v_lshl_add_u32 v7, v13, 7, v7""")
    if not P["xfast"]: a("s_waitcnt lgkmcnt(0)")
    ptrs()
    srd(SQ, 4 << 20)
    if P["xfast"]: a("s_branch L_WGT2\nL_warm:\ns_branch L_WGT1\nL_WGT2:")
    else:
        srd(SX, 1024)
        for l in xl: a(l)
    if P["x_bar"]: a("s_barrier")
    if P["uk_first"]:
        uk_loads()
        if P["uk_first"] == 2: a("s_barrier")
    if P["wpq"]:
        a(f"""s_mov_b32 exec_lo, {0x000f000f if P["pq"] else 0x00ff00ff}
        s_mov_b32 exec_hi, {0x000f000f if P["pq"] else 0x00ff00ff}
        buffer_load_dword v254, v7, {sr(SQ)}, s10 offen
        s_mov_b64 exec, -1""")
        if P.get("wpq_bar"): a("s_barrier")
    for t in range(16):
        a(f"buffer_load_dwordx4 {vr(64+4*t)}, v6, {sr(SQ)}, s10 offen {P['first_pol'] if t < (2 if P['pq'] else 4) else P['wq_pol']}")
        if t < 15:
            if t & 3 == 3: a(f"s_cmp_eq_u32 s8, {3-(t>>2)}\ns_cselect_b32 s13, {(-15*8192) & 0xffffffff}, s12\ns_add_u32 s10, s10, s13")
            else: a("s_add_u32 s10, s10, s12")
        if t in P["wq_bars"]: a("s_barrier")
        if t == min(3, P["ln_at"]):
            ep_load()
            if P["w1pf_at"] == "7":
                a(f"s_load_dwordx2 s[{SG}:{SG+1}], s[0:1], 56"); srd(SG, 512*1792*2)
            stamp(1)
            common()
            delta_masks(32, 36)
        if t == P["ln_at"]:
            a(f"s_waitcnt vmcnt({t+1 + (1 if P['wpq'] else 0) + 4 - UK})")
            if P["fine"]: stamp(5)
            ln_stats(8, 16, 24)
            a("v_lshlrev_b32 v12, 16, v12\nv_sub_f32 v12, v12, v24")
            rnd_bf16(12, 12)
            a("v_mul_f32 v12, v12, v25\nv_cvt_pk_bf16_f32 v12, v12, v12")
            a("s_cmp_lg_u32 s3, 3\ns_cbranch_scc1 L_noxn")
            for i in range(8): a(f"v_sub_f32 v{16+i}, v{16+i}, v24")
            for i in range(4): a(f"v_cvt_pk_bf16_f32 v{56+i}, v{16+2*i}, v{17+2*i}")
            for i in range(4): unpack2(16+2*i, 56+i)
            for i in range(8): a(f"v_mul_f32 v{16+i}, v{16+i}, v25")
            for i in range(4): a(f"v_cvt_pk_bf16_f32 v{56+i}, v{16+2*i}, v{17+2*i}")
            a("L_noxn:")
            if P["dpp_early"]:
                for t2 in range(16):
                    for dw in range(4):
                        a(f"v_and_b32_dpp v{128+4*t2+dw}, v12, v{32+dw} row_newbcast:{t2} {DPPM}")
    if P["fine"]: stamp(6)
    if not P["uk_first"]: uk_loads()
    if P["w1pf_at"] == "7":
        a(f"""s_mul_i32 s13, s8, {128*3584}
        s_lshr_b32 s14, s5, 2
        s_sub_u32 s15, s4, {1 if P["nox"] == 0 else 0}
        s_lshl2_add_u32 s14, s15, s14
        s_lshl_b32 s14, s14, 7
        s_add_u32 s13, s13, s14
        s_cmp_eq_u32 s4, {P["nox"]}
        s_cselect_b32 s13, 0x7ff00000, s13
        s_cmp_eq_u32 s3, 7
        s_cselect_b32 s13, s13, 0x7ff00000
        s_add_u32 s14, s13, {64*3584}
        v_mul_u32_u24 v51, 3584, v0
        s_waitcnt lgkmcnt(0)
        buffer_load_dword v52, v51, {sr(SG)}, s13 offen
        buffer_load_dword v53, v51, {sr(SG)}, s14 offen""")
        UK += 2
    a("s_lshl_b32 s12, s3, 9\nv_add_u32 v42, s12, v41")
    for t in range(16):
        for dw in range(4):
            if not P["dpp_early"]: a(f"v_and_b32_dpp v{128+4*t+dw}, v12, v{32+dw} row_newbcast:{t} {DPPM}")
        if t >= 1:
            a(f"s_waitcnt vmcnt({15-(t-1)+UK})")
            a(f"v_mfma_f32_16x16x32_bf16 v[44:47], {vr(128+4*(t-1))}, {vr(64+4*(t-1))}, {'0' if t == 1 else 'v[44:47]'}")
    a(f"s_waitcnt vmcnt({UK})\nv_mfma_f32_16x16x32_bf16 v[44:47], {vr(128+60)}, {vr(64+60)}, v[44:47]")
    a("s_waitcnt lgkmcnt(0)")
    tags(True)
    a(f"""s_mov_b32 exec_hi, 0
    ds_write_b128 v42, v[44:47] offset:{PART}
    s_mov_b64 exec, -1""")
    stamp(2)
    a(f"""s_sub_u32 s9, s3, 5
    s_cmp_lt_u32 s9, 2
    s_cbranch_scc1 L_A2
    s_waitcnt vmcnt({2 if P["w1pf_at"] == "7" else 0}) lgkmcnt(0)
    s_barrier
    s_cmp_lt_u32 s3, 4
    s_cbranch_scc1 L_S1
    s_branch L_WO""")
    a("L_A2:")
    a(f"""s_lshl_b32 s12, s9, 14
    s_add_u32 s12, s12, {X}
    v_and_b32 v4, 3, v0
    v_bfe_u32 v5, v0, 2, 2
    v_lshl_or_b32 v6, v4, 2, v5
    v_xor_b32 v6, v6, v3
    v_lshlrev_b32 v6, 4, v6
    v_lshl_add_u32 v6, v5, 10, v6
    v_lshl_add_u32 v6, v4, 8, v6
    v_add_u32 v10, s12, v6
    v_xor_b32 v11, 64, v10
    v_xor_b32 v12, 0x80, v10
    v_xor_b32 v13, 0xc0, v10
    s_lshl_b32 s13, s9, 8
    s_add_u32 s13, s13, 8192
    v_lshl_add_u32 v5, v3, 4, s13
    v_and_b32 v14, 31, v0
    v_lshl_add_u32 v14, v14, 3, s13
    v_lshlrev_b32 v15, 4, v0
    s_lshl1_add_u32 s11, s8, s9
    s_lshl_b32 s11, s11, 7
    s_lshl_b32 s10, s7, 10
    s_add_u32 s10, s10, s11
    s_add_u32 s10, s10, {QL}
    v_lshlrev_b32 v4, 1, v0
    v_cmp_eq_u32 s[14:15], 1, v3
    v_cmp_eq_u32 s[16:17], 2, v3
    v_cmp_eq_u32 s[18:19], 3, v3
    v_bfe_u32 v7, v0, 1, 2
    v_add_u32 v7, s{sF}, v7
    v_and_b32 v8, 1, v0
    v_lshrrev_b32 v7, v8, v7
    v_and_b32 v7, 1, v7
    v_xor_b32 v8, 1, v7
    v_lshlrev_b32 v8, 16, v8
    s_waitcnt vmcnt({2 if P["w1pf_at"] == "7" else 0}) lgkmcnt(0)""")
    stamp(3)
    a("s_barrier")
    for u in range(4): a(f"ds_read_b128 {vr(128+4*u)}, v15 offset:{PART + 1024*u}")
    fr = [(T, t) for t in range(4) for T in range(4)]
    for (T, t) in fr[:11]: a(f"ds_read_b128 {vr(64+16*T+4*t)}, v{10+t} offset:{4096*T}")
    a("s_waitcnt lgkmcnt(11)")
    a("""v_pk_add_f32 v[128:129], v[128:129], v[132:133]
    v_pk_add_f32 v[130:131], v[130:131], v[134:135]
    v_pk_add_f32 v[136:137], v[136:137], v[140:141]
    v_pk_add_f32 v[138:139], v[138:139], v[142:143]
    v_pk_add_f32 v[128:129], v[128:129], v[136:137]
    v_pk_add_f32 v[130:131], v[130:131], v[138:139]""")
    for q in range(4): a(f"v_mov_b32 v{132+q}, v{128+q}")
    for q in range(4): a(f"v_permlane32_swap_b32 v{132+q}, v{128+q}")
    a("""v_pk_add_f32 v[128:129], v[128:129], v[132:133]
    v_pk_add_f32 v[130:131], v[130:131], v[134:135]
    v_cvt_pk_bf16_f32 v128, v128, v129
    v_cvt_pk_bf16_f32 v129, v130, v131
    ds_write_b64 v14, v[128:129]""")
    for t in range(4): a(f"ds_read_b128 {vr(16+4*t)}, v5 offset:{64*t}")
    for (T, t) in fr[11:]: a(f"ds_read_b128 {vr(64+16*T+4*t)}, v{10+t} offset:{4096*T}")
    for t in range(4):
        a(f"s_waitcnt lgkmcnt({[8, 7, 4, 0][t]})")
        for T in range(4):
            a(f"v_mfma_f32_16x16x32_bf16 {vr(32+4*T)}, {vr(16+4*t)}, {vr(64+16*T+4*t)}, {'0' if t == 0 else vr(32+4*T)}")
    qs = math.log2(math.e) / math.sqrt(128.0)
    a(f"""v_cndmask_b32 v9, v32, v36, s[14:15]
    v_cndmask_b32 v9, v9, v40, s[16:17]
    v_cndmask_b32 v9, v9, v44, s[18:19]
    v_mul_f32 v9, {f2u(qs)}, v9
    v_add_u32 v9, v9, v8
    v_lshrrev_b32 v9, 17, v9
    v_lshl_or_b32 v9, v9, 1, v7
    s_nop 0""")
    if P["ql_delay"]:
        a("s_barrier")
        for _ in range(P["ql_delay"]): a("s_sleep 8")
    a(f"buffer_store_short v9, v4, {sr(SW)}, s10 offen sc1")
    stamp(4)
    if P["ql_delay"]: a(f"s_load_dwordx2 s[{SG}:{SG+1}], s[0:1], 40\ns_branch L_WO1")
    a("s_branch L_WO")

    sect[0] = "C"
    PX, MX, LX, FX = X, X + 8192, X + 9216, X + 12288
    a("L_ATT_stub:\ns_branch L_ATT_help\nL_ATT:")
    decode(); ptrs()
    a("s_lshl4_add_u32 s9, s4, s5")
    srd(SC, 16 << 20)
    common()
    a(f"""s_lshl2_add_u32 s10, s9, s3
    s_lshl_b32 s10, s10, 15
    s_lshl_b32 s11, s3, 13
    v_lshlrev_b32 v4, 2, v3
    v_xor_b32 v4, v4, v2
    v_lshlrev_b32 v4, 4, v4
    v_lshl_add_u32 v32, v3, 10, v4
    v_xor_b32 v33, 32, v32
    v_xor_b32 v34, 16, v32
    v_xor_b32 v35, 48, v32
    s_mov_b32 m0, s11
    s_nop 0""")
    seq = []
    def c_pos(n):
        G = P["rgmajor"]
        return (n // (8*G))*G + n % G, (n % (8*G)) // G
    def c_load(n):
        cb, rg = c_pos(n)
        a(f"buffer_load_dwordx4 v{32+(rg&3)}, {sr(SC)}, s10 offen {'nt' if n < 32 - P['c_keep'] else ''} lds")
        seq.append(n)
        if n < 31:
            cb2, rg2 = c_pos(n+1)
            dm = (cb2-cb)*32768 + (rg2-rg)*1024; dg = (cb2-cb)*256 + (rg2-rg)*4096
            a("s_add_u32 m0, m0, s15" if dm == 32768 else (f"s_addk_i32 m0, {dm}" if -32768 <= dm < 32768 else f"s_add_u32 m0, m0, {dm & 0xffffffff}"))
            a(f"s_addk_i32 s10, {dg}")
        if n == P["q_at"]: a("ds_write_b32 v125, v125")
    def c_wait(n): a(f"s_waitcnt vmcnt({len(seq) - 1 - seq.index(n)})")
    seq.append("pq")
    if not P["pk_late"]: seq.append("pk")
    if P["pk_late"] == "a":
        a(f"global_load_dword v127, v126, s[{SK}:{SK+1}]"); seq.append("pk")
    a("s_mov_b32 s15, 0x8000")
    issued = 0
    for n in range(P["pf_ramp"][0]): c_load(n); issued += 1
    a(f"""s_lshl_b32 s16, s3, 11
    s_add_u32 s16, s16, {X}
    v_mov_b32 v125, s16
    v_mov_b32 v124, 0
    ds_write_b32 v125, v124""")
    ep_load()
    if P["zpf"]:
        a(f"""s_load_dwordx2 s[{SG}:{SG+1}], s[0:1], 40
        s_load_dwordx2 s[{SQ}:{SQ+1}], s[0:1], 72
        s_load_dwordx2 s[72:73], s[0:1], 32
        s_lshl2_add_u32 s19, s9, s3
        s_lshl_b32 s19, s19, 12
        s_lshl2_add_u32 s29, s7, s8
        s_lshl2_add_u32 s29, s29, s3
        s_lshl_b32 s29, s29, 13
        v_lshlrev_b32 v120, 7, v0""")
        srd(SG, 4 << 20); srd(SQ, 1792*512*2); srd(72, 4 << 20)
    stamp(1)
    a(f"""v_and_b32 v4, 3, v0
    v_lshrrev_b32 v1, 5, v0
    v_bfe_u32 v5, v0, 2, 1
    v_lshl_or_b32 v5, v4, 1, v5
    v_bfe_u32 v6, v0, 3, 1
    v_lshl_or_b32 v5, v5, 1, v6
    v_xor_b32 v5, v5, v1
    v_lshlrev_b32 v5, 4, v5
    v_bfe_u32 v6, v0, 2, 3
    v_lshl_add_u32 v5, v6, 10, v5
    v_lshl_add_u32 v5, v4, 8, v5
    v_add_u32 v8, s11, v5
    v_xor_b32 v5, v2, v1
    v_lshlrev_b32 v5, 4, v5
    v_and_b32 v4, 31, v0
    v_lshl_add_u32 v5, v4, 8, v5
    v_add_u32 v16, {X}, v5""")
    for x in range(1, 8): a(f"v_xor_b32 v{8+x}, {32*x}, v8\nv_xor_b32 v{16+x}, {32*x}, v16")
    for x in range(8): a(f"v_add_u32 v{24+x}, 0x10000, v{8+x}")
    a(f"""v_lshlrev_b32 v6, 4, v4
    v_add_u32 v96, {MX}, v6
    v_lshl_add_u32 v6, v1, 9, v6
    s_lshl2_add_u32 s13, s3, {MX}
    v_add_u32 v97, s13, v6
    s_lshl_b32 s13, s3, 11
    s_add_u32 s13, s13, {PX}
    v_lshl_add_u32 v99, v0, 4, s13
    s_waitcnt lgkmcnt(0)""")
    if P["pk_late"] == "ep" and not P["uk_first"]:
        a(f"global_load_dword v127, v126, s[{SK}:{SK+1}]"); seq.append("pk")
    tags(False)
    lq = []
    def lop(text, key): a(text); lq.append(key)
    def lwait(items):
        last = max([i for i, x in enumerate(lq) if x in items], default=-1)
        if last >= 0: a(f"s_waitcnt lgkmcnt({min(15, len(lq) - 1 - last)})")
        del lq[:last+1]
    def c_read(cb):
        for t in range(8*cb, 8*cb+8):
            a(f"ds_read_b128 {vr(128+4*t)}, v{(8 if cb < 2 else 24) + (t&7)} offset:{32768*(cb&1)}")
    def blk_done(b): return max(n for n in range(32) if c_pos(n)[0] == b) + 1 if b < 4 else 99
    for key, d in (("pq", P["pf_ramp"][1]), ("pk", P["pf_ramp"][2])):
        if key in seq: c_wait(key)
        while issued < d: c_load(issued); issued += 1
    landed = 0; pre = 0
    while issued < 32:
        c_wait(landed); landed += 1
        while issued < 32 and issued - landed < P["pf_ramp"][2]:
            c_load(issued); issued += 1
        if landed == P["bi_at"]: a("s_barrier")
        if landed >= blk_done(pre): c_read(pre); pre += 1
    stamp(2)
    if P["zpf"]:
        a("s_barrier")
        if P["zpf"] & 1: a(f"buffer_load_dword v121, v120, {sr(SG)}, s29 offen"); seq.append("z1")
        if P["zpf"] & 2: a(f"s_mov_b32 exec_hi, 0\nbuffer_load_dword v122, v120, {sr(SQ)}, s19 offen\ns_mov_b64 exec, -1"); seq.append("z2")
        if P["zpf"] & 4: a(f"buffer_load_dword v123, v126, {sr(72)}, s18 offen"); seq.append("z4")
    while pre < 4:
        c_wait(blk_done(pre) - 1)
        if pre == 3 and P["tr_pre"]: a("s_barrier")
        c_read(pre); pre += 1
    a(f"s_setprio {P['qk_prio']}\ns_barrier")
    stamp(3)
    NS = 8
    def q_read(t): lop(f"ds_read_b128 {vr(32+4*(t % NS))}, v{16+(t&7)} offset:{8192*(t>>3)}", ("Q", t))
    rd = 0
    for t in range(32):
        if t == P["b1_at"]:
            assert rd <= 16
            a("s_barrier")
        while rd < min(32 if t >= P["b1_at"] else 16, t + P["q_ah"] + 1): q_read(rd); rd += 1
        if t == P["ba_at"]:
            assert rd == 32
            a("s_waitcnt lgkmcnt(0)"); del lq[:]
            stamp(4)
            a("s_barrier")
        lwait([("Q", t)])
        a(f"v_mfma_f32_32x32x16_bf16 {vr(64,16)}, {vr(128+4*t)}, {vr(32+4*(t % NS))}, {'0' if t == 0 else vr(64,16)}")
    stamp(5); fs(1)
    a(f"""v_max3_f32 v4, v64, v65, v66
    v_max3_f32 v5, v67, v68, v69
    v_max3_f32 v6, v70, v71, v72
    v_max3_f32 v7, v73, v74, v75
    v_max3_f32 v4, v4, v76, v77
    v_max3_f32 v5, v5, v78, v79
    v_max3_f32 v4, v4, v5, v6
    v_max_f32 v20, v4, v7
    ds_write_b32 v97, v20""")
    fs(2)
    for r in range(0, 16, 2):
        a(f"v_pk_add_f32 {vr(64+r,2)}, {vr(64+r,2)}, v[20:21] op_sel_hi:[1,0] neg_lo:[0,1] neg_hi:[0,1]")
    for r in range(16):
        if r == P["bb_at"]:
            a("s_waitcnt lgkmcnt(0)"); fs(3)
            a("s_barrier"); fs(4)
            a("ds_read_b128 v[8:11], v96\nds_read_b128 v[12:15], v96 offset:512")
        a(f"v_exp_f32 v{64+r}, v{64+r}")
    a("s_waitcnt lgkmcnt(0)"); fs(5)
    a("""v_max3_f32 v4, v8, v9, v10
    v_max3_f32 v5, v11, v12, v13
    v_max3_f32 v4, v4, v14, v15
    v_max_f32 v8, v4, v5
    v_sub_f32 v20, v20, v8
    v_exp_f32 v20, v20""")
    if P["pw64"]:
        for x in range(4):
            for r in (4*x, 4*x+2): a(f"v_pk_mul_f32 {vr(64+r,2)}, {vr(64+r,2)}, v[20:21] op_sel_hi:[1,0]")
            for r in (4*x, 4*x+2): a(f"v_cvt_pk_bf16_f32 v{80+r//2}, v{64+r}, v{65+r}")
            a(f"ds_write_b64 v99, {vr(80+2*x,2)} offset:{1024*(x>>1) + 8*(x&1)}")
    else:
        for hf in range(2):
            for r in range(8*hf, 8*hf+8, 2):
                a(f"v_pk_mul_f32 {vr(64+r,2)}, {vr(64+r,2)}, v[20:21] op_sel_hi:[1,0]")
            for r in range(8*hf, 8*hf+8, 2):
                a(f"v_cvt_pk_bf16_f32 v{80+r//2}, v{64+r}, v{65+r}")
            a(f"ds_write_b128 v99, {vr(80+4*hf)} offset:{1024*hf}")
    fs(6)
    a("""v_pk_add_f32 v[64:65], v[64:65], v[66:67]
    v_pk_add_f32 v[68:69], v[68:69], v[70:71]
    v_pk_add_f32 v[72:73], v[72:73], v[74:75]
    v_pk_add_f32 v[76:77], v[76:77], v[78:79]
    v_pk_add_f32 v[64:65], v[64:65], v[68:69]
    v_pk_add_f32 v[72:73], v[72:73], v[76:77]
    s_waitcnt lgkmcnt(0)""")
    fs(7)
    a("""s_setprio 0
    s_barrier""")
    stamp(6); fs(8)
    a("""v_add_f32 v64, v64, v65
    v_add_f32 v72, v72, v73
    v_add_f32 v64, v64, v72
    ds_write_b32 v97, v64 offset:1024
    s_waitcnt lgkmcnt(0)
    s_barrier""")
    a("s_setprio 0\ns_cmp_lg_u32 s3, 0\ns_cbranch_scc1 L_FIN")
    a(f"""ds_read_b128 v[32:35], v96 offset:1024
    ds_read_b128 v[36:39], v96 offset:1536
    v_lshlrev_b32 v5, 4, v0
    v_mov_b32 v9, s{sF}
    v_mov_b32 v11, s{sF}
    s_lshl_b32 s12, s9, 9
    s_add_u32 s12, s12, {ST}
    s_waitcnt lgkmcnt(0)
    v_add_f32 v32, v32, v33
    v_add_f32 v34, v34, v35
    v_add_f32 v36, v36, v37
    v_add_f32 v38, v38, v39
    v_add_f32 v32, v32, v34
    v_add_f32 v36, v36, v38
    v_add_f32 v10, v32, v36
    s_mov_b32 exec_hi, 0
    buffer_store_dwordx4 v[8:11], v5, {sr(SW)}, s12 offen sc1
    s_mov_b64 exec, -1""")
    stamp(7)

    sect[0] = "F"
    a("L_FIN:")
    if P["cyc"]: a("s_barrier")
    if P["fin"] == "old":
        a(f"""s_cmp_lt_u32 s5, 14
        s_cbranch_scc1 L_exit
        s_load_dwordx2 s[{SC}:{SC+1}], s[0:1], 80
        s_load_dwordx2 s[{SQ}:{SQ+1}], s[0:1], 88
        s_sub_u32 s10, s5, 14
        s_lshl1_add_u32 s10, s4, s10
        s_lshl_b32 s11, s10, 7
        s_lshl_b32 s12, s3, 16
        s_add_u32 s11, s11, s12
        s_add_u32 s11, s11, {DP}
        s_add_u32 s12, s11, 0x4000
        s_add_u32 s13, s11, 0x8000
        s_add_u32 s14, s11, 0xc000
        s_lshl_b32 s16, s10, 6
        v_lshrrev_b32 v4, 3, v0
        v_and_b32 v5, 7, v0
        v_lshlrev_b32 v4, 11, v4
        v_lshl_add_u32 v4, v5, 4, v4
        v_lshlrev_b32 v12, 4, v5
        v_add_u32 v12, {FX}, v12
        s_lshl_b32 s17, s3, 7
        v_add_u32 v13, s17, v12
        v_lshlrev_b32 v5, 3, v5
        v_mov_b32 v6, 0xff""")
        srd(SX, 1024); srd(SC, 1024); srd(SQ, 1024)
        a(f"""s_waitcnt lgkmcnt(0)
        buffer_load_dwordx2 v[14:15], v5, {sr(SX)}, s16 offen
        buffer_load_dwordx2 v[16:17], v5, {sr(SC)}, s16 offen""")
        if P["out_touch"]: a(f"buffer_load_dwordx2 v[30:31], v5, {sr(SQ)}, s16 offen {P['out_touch']}")
        a("s_waitcnt vmcnt(0)")
        unpack2(20, 14); unpack2(22, 15); unpack2(24, 16); unpack2(26, 17)
        a("v_pk_add_f32 v[20:21], v[20:21], v[24:25]\nv_pk_add_f32 v[22:23], v[22:23], v[26:27]")
        a("L_fin:")
        for x in range(4): a(f"buffer_load_dwordx4 {vr(64+4*x)}, v4, {sr(SW)}, s{11+x} offen {P['fin_pol']}")
        for x in range(4):
            a(f"s_waitcnt vmcnt({3-x})")
            check(7, 64+4*x, 4, sF, x == 0)
            if x: a(f"v_pk_add_f32 v[64:65], v[64:65], {vr(64+4*x,2)}\nv_pk_add_f32 v[66:67], v[66:67], {vr(66+4*x,2)}")
        a("v_and_b32 v7, v6, v7\nv_cmp_ne_u32 vcc, 0, v7")
        spin("L_fin", "s_cbranch_vccnz")
        for q in range(4): a(f"v_add_f32_dpp v{64+q}, v{64+q}, v{64+q} row_ror:8 {DPPM}")
        for sw in ("v_permlane16_swap_b32", "v_permlane32_swap_b32"):
            for q in range(4): a(f"v_mov_b32 v{68+q}, v{64+q}")
            for q in range(4): a(f"{sw} v{68+q}, v{64+q}")
            a("v_pk_add_f32 v[64:65], v[64:65], v[68:69]\nv_pk_add_f32 v[66:67], v[66:67], v[70:71]")
        a(f"""s_mov_b64 exec, 0xff
        ds_write_b128 v13, v[64:67]
        s_waitcnt lgkmcnt(0)
        s_barrier
        s_cmp_lg_u32 s3, 0
        s_cbranch_scc1 L_exit""")
        for x in range(1, 4): a(f"ds_read_b128 {vr(64+4*x)}, v12 offset:{128*x}")
        a("v_pk_add_f32 v[20:21], v[20:21], v[64:65]\nv_pk_add_f32 v[22:23], v[22:23], v[66:67]\ns_waitcnt lgkmcnt(0)")
        stamp(8)
        a(f"""v_pk_add_f32 v[68:69], v[68:69], v[72:73]
        v_pk_add_f32 v[70:71], v[70:71], v[74:75]
        v_pk_add_f32 v[20:21], v[20:21], v[76:77]
        v_pk_add_f32 v[22:23], v[22:23], v[78:79]
        v_pk_add_f32 v[20:21], v[20:21], v[68:69]
        v_pk_add_f32 v[22:23], v[22:23], v[70:71]
        v_cvt_pk_bf16_f32 v12, v20, v21
        v_cvt_pk_bf16_f32 v13, v22, v23
        buffer_store_dwordx2 v[12:13], v5, {sr(SQ)}, s16 offen {P['out_pol']}
        s_cmp_lg_u32 s10, 0
        s_cbranch_scc1 L_fin_done
        s_mov_b64 exec, 1
        {"s_mov_b32 s88, 1" if P["probe"] else ""}
        v_mov_b32 v14, s{sF}
        buffer_store_dword v14, v5, {sr(SW)}, 0 offen offset:{EP} {P['out_pol']}
        L_fin_done:
        s_mov_b64 exec, -1""")
    else:
        nw = P["fin"]
        k0 = 16 - 4 // nw
        a(f"""s_cmp_lt_u32 s5, {k0}
        s_cbranch_scc1 L_exit
        s_sub_u32 s12, 3, s3
        s_cmp_ge_u32 s12, {nw}
        s_cbranch_scc1 L_exit
        s_load_dwordx2 s[{SC}:{SC+1}], s[0:1], 80
        s_load_dwordx2 s[{SQ}:{SQ+1}], s[0:1], 88
        s_sub_u32 s10, s5, {k0}
        s_mul_i32 s10, s10, {nw}
        s_add_u32 s10, s10, s12
        s_lshl2_add_u32 s10, s4, s10
        s_lshl_b32 s11, s10, 6
        s_add_u32 s64, s11, {DP}""")
        for x in range(1, 8): a(f"s_add_u32 s{64+x}, s64, {0x8000*x}")
        a(f"""s_lshl_b32 s16, s10, 5
        v_lshrrev_b32 v4, 2, v0
        v_and_b32 v5, 3, v0
        v_lshlrev_b32 v4, 11, v4
        v_lshl_add_u32 v4, v5, 4, v4
        v_lshl_add_u32 v5, v5, 2, v3
        v_lshlrev_b32 v5, 1, v5
        v_mov_b32 v6, 0xff""")
        srd(SX, 1024); srd(SC, 1024); srd(SQ, 1024)
        if P["fin_wait"] and not P["cyc"]: a("s_barrier")
        a(f"""s_waitcnt lgkmcnt(0)
        buffer_load_ushort v14, v5, {sr(SX)}, s16 offen
        buffer_load_ushort v15, v5, {sr(SC)}, s16 offen""")
        if P["out_touch"]: a(f"buffer_load_ushort v30, v5, {sr(SQ)}, s16 offen {P['out_touch']}")
        a("""s_waitcnt vmcnt(0)
        v_lshlrev_b32 v14, 16, v14
        v_lshlrev_b32 v15, 16, v15
        v_add_f32 v14, v14, v15
        L_fin:""")
        for x in range(8): a(f"buffer_load_dwordx4 {vr(64+4*x)}, v4, {sr(SW)}, s{64+x} offen {P['fin_pol']}")
        for x in range(8):
            a(f"s_waitcnt vmcnt({7-x})")
            check(7, 64+4*x, 4, sF, x == 0)
            if x: a(f"v_pk_add_f32 v[64:65], v[64:65], {vr(64+4*x,2)}\nv_pk_add_f32 v[66:67], v[66:67], {vr(66+4*x,2)}")
        a("v_and_b32 v7, v6, v7\nv_cmp_ne_u32 vcc, 0, v7")
        a("v_permlane32_swap_b32 v64, v66\nv_permlane32_swap_b32 v65, v67")
        spin("L_fin", "s_cbranch_vccnz")
        stamp(8)
        a(f"""v_pk_add_f32 v[64:65], v[64:65], v[66:67]
        v_permlane16_swap_b32 v64, v65
        v_add_f32 v64, v64, v65
        v_add_f32_dpp v64, v64, v64 row_ror:4 {DPPM}
        v_add_f32_dpp v64, v64, v64 row_ror:8 {DPPM}
        v_add_f32 v64, v64, v14
        v_cvt_pk_bf16_f32 v64, v64, v64
        s_mov_b32 exec_lo, 0x000f000f
        s_mov_b32 exec_hi, 0x000f000f
        buffer_store_short v64, v5, {sr(SQ)}, s16 offen {P['out_pol']}
        s_cmp_lg_u32 s10, 0
        s_cbranch_scc1 L_fin_done
        s_mov_b64 exec, 1
        {"s_mov_b32 s88, 1" if P["probe"] else ""}
        v_mov_b32 v14, s{sF}
        buffer_store_dword v14, v5, {sr(SW)}, 0 offen offset:{EP} {P['out_pol']}
        L_fin_done:
        s_mov_b64 exec, -1""")
    if P["lite"]:
        a(f"""s_waitcnt vmcnt(0)
        s_memrealtime s[82:83]
        s_lshl_b32 s10, s10, {4 if P["fin"] == "old" else 3}
        s_add_u32 s10, s10, {STAMP}
        s_waitcnt lgkmcnt(0)
        v_mov_b32 v4, 0
        v_mov_b32 v8, s80
        v_mov_b32 v9, s82
        v_mov_b32 v10, s80
        v_mov_b32 v11, s82
        {"buffer_store_dwordx4 v[8:11]" if P["fin"] == "old" else "buffer_store_dwordx2 v[8:9]"}, v4, {sr(SW)}, s10 offen""")
    if diag:
        a("s_waitcnt vmcnt(0)"); stamp(9)
    a("s_branch L_exit")

    sect[0] = "H"
    a("L_ATT_help:")
    decode()
    common()
    a("s_waitcnt lgkmcnt(0)")
    ep_load()
    a(f"""s_lshl4_add_u32 s9, s4, s5
    s_sub_u32 s10, s3, 4
    s_lshl_b32 s11, s10, 13
    s_add_u32 s12, s11, {QL}
    s_lshl_b32 s11, s10, 11
    s_add_u32 s13, s11, {X}
    s_and_b32 s14, s10, 1
    s_lshl_b32 s14, s14, 3
    v_lshlrev_b32 v4, 4, v0
    v_add_u32 v5, s13, v4
    v_xor_b32 v8, v2, v3
    v_xor_b32 v8, s14, v8
    v_lshlrev_b32 v8, 4, v8
    v_lshl_add_u32 v8, v3, 10, v8
    v_xor_b32 v9, 64, v8
    v_mov_b32 v6, 0x10001""")
    a(f"""v_bfe_u32 v4, v0, 2, 2
    v_bfe_u32 v7, v0, 4, 1
    v_bfe_u32 v12, v0, 1, 1
    v_lshl_or_b32 v12, v7, 1, v12
    v_lshl_or_b32 v12, v4, 2, v12
    v_lshlrev_b32 v12, 4, v12
    v_lshl_add_u32 v12, v4, 8, v12
    v_lshl_add_u32 v12, v7, 10, v12
    v_lshrrev_b32 v13, 5, v0
    v_lshl_add_u32 v12, v13, 12, v12
    v_and_b32 v4, 1, v0
    v_lshl_add_u32 v12, v4, 3, v12
    s_lshl_b32 s14, s10, 15
    v_add_u32 v24, s14, v12
    v_lshlrev_b32 v4, 4, v2
    v_lshl_add_u32 v1, v3, 19, v4
    v_lshl_add_u32 v4, v7, 9, v4
    v_lshl_add_u32 v4, v13, 10, v4
    v_add_u32 v98, {PX}, v4
    s_lshl_b32 s15, s9, 8
    s_add_u32 s14, s14, s15
    s_add_u32 s14, s14, {BP}""")
    for n in range(8):
        if n: a(f"v_xor_b32 v{24+n}, {32*n}, v24")
        a(f"v_xor_b32 v{100+n}, {32*n + 16}, v24")
    for hh in range(2):
        for r in range(4):
            a(f"s_add_u32 s{64+4*hh+r}, s14, {(16*hh + r)*131072}")
    a("s_waitcnt lgkmcnt(0)")
    tags(True)
    if P["tlb"]:
        a(f"""v_lshlrev_b32 v4, 20, v0
        s_mov_b64 exec, 15
        buffer_load_dword v110, v4, {sr(SW)}, s64 offen nt
        s_mov_b64 exec, -1""")
    a("s_barrier")
    a(f"""v_mov_b32 v16, s13
    L_qtrig:
    ds_read_b32 v17, v16
    s_waitcnt lgkmcnt(0)
    v_cmp_eq_u32 vcc, 0, v17
    s_sleep 1
    s_add_u32 s28, s28, 0x10000
    s_cbranch_scc1 L_exit
    s_cbranch_vccnz L_qtrig
    s_and_b32 s28, s28, 0xffff""")
    stamp(4)
    if P["q_prio"]: a("s_setprio 3")
    def qoff(r): return 1024*(r & 1) + 8192*(r >> 1)
    def q_dma(r): a(f"s_add_u32 m0, s13, {qoff(r)}\ns_add_u32 s15, s12, {4096*(r & 1) + 256*(r >> 1)}\nbuffer_load_dwordx4 v{8+(r&1)}, {sr(SW)}, s15 offen sc1 lds")
    for r in range(8): q_dma(r)
    fr = [(n, w) for n in range(8) for w in range(4)]
    def tr_read(n, w):
        for sec in range(2):
            a(f"ds_read_b64_tr_b16 {vr(128+16*n+4*w+2*sec,2)}, v{(100 if sec else 24)+n} offset:{8192*w + 2048*sec}")
    def q_valid(st):
        R = list(range(4*st, 4*st+4))
        for r in R:
            a(f"s_waitcnt vmcnt({7-r})\nds_read_b128 {vr(64+4*r)}, v5 offset:{qoff(r)}")
            if r > R[0]: a("s_waitcnt lgkmcnt(1)"); check(7, 64+4*(r-1), 4, sB, r == R[0]+1)
        a("s_waitcnt lgkmcnt(0)")
        check(7, 64+4*R[-1], 4, sB, False)
        a(f"v_and_b32 v7, v6, v7\nv_cmp_ne_u32 vcc, 0, v7\ns_cbranch_vccz L_qok{st}\ns_mov_b32 s16, 0")
        a(f"L_qfetch{st}:")
        for r in R:
            a(f"s_bitcmp1_b32 s16, {r}\ns_cbranch_scc0 L_qs{r}")
            q_dma(r)
            a(f"L_qs{r}:")
        a("s_waitcnt vmcnt(0)")
        for r in R: a(f"ds_read_b128 {vr(64+4*r)}, v5 offset:{qoff(r)}")
        a("s_mov_b32 s16, 0")
        for r in R:
            a(f"s_waitcnt lgkmcnt({R[-1]-r})")
            check(7, 64+4*r, 4, sB, True)
            a(f"v_and_b32 v7, v6, v7\nv_cmp_ne_u32 vcc, 0, v7\ns_cmp_lg_u64 vcc, 0\ns_cselect_b32 s17, {1<<r}, 0\ns_or_b32 s16, s16, s17")
        spin(f"L_qfetch{st}", "s_cbranch_scc1", "s_cmp_lg_u32 s16, 0")
        a(f"L_qok{st}:")
    q_valid(0)
    stamp(5)
    a("s_barrier")
    q_valid(1)
    a(f"s_setprio {P['pv_prio']}")
    for (n, w) in fr[:P["tr_mid"]]: tr_read(n, w)
    a("s_barrier")
    P["tr_pre"] = P["tr_mid"]
    for i_, (n, w) in enumerate(fr):
        if i_ == P["tr_split"][0]: a("s_barrier")
        if i_ == P["tr_split"][1]: a("s_barrier")
        if i_ >= P["tr_pre"]: tr_read(n, w)
    if P["cyc"]: stamp(2)
    for x in P["tr_split"]:
        if x >= 32: a("s_barrier")
    a("s_setprio 0\ns_waitcnt lgkmcnt(0)\ns_barrier")
    stamp(6)
    del lq[:]
    def p_read(hh, w): lop(f"ds_read_b128 {vr(32+16*hh+4*w)}, v98 offset:{2048*w + 256*hh}", ("P", hh, w))
    for w in range(4): p_read(0, w)
    def outblk(hh, r): return (8 if hh == 0 else 64) + 4*r
    def pack(hh, q):
        L = []
        for r in range(4):
            o = outblk(hh, r) + q
            L += [f"v_cvt_pk_bf16_f32 v{o}, v{64+32*hh+8*q+r}, v{64+32*hh+8*q+4+r}", f"v_bfi_b32 v{o}, v6, s{sB+q}, v{o}"]
        return L
    def ostore(hh, r): return f"buffer_store_dwordx4 {vr(outblk(hh, r))}, v1, {sr(SW)}, s{64+4*hh+r} offen sc1"
    order = [(hh, n, w) for hh in range(2) for n in range(8) for w in range(4)]
    GAP = 3
    F = []
    for q in range(3): F += [(8*q + 7 + GAP, l) for l in pack(0, q)]
    for r in range(4):
        F += [(31 + GAP + P["st_gap"]*r, l) for l in pack(0, 3)[2*r:2*r+2]] + [(0, ostore(0, r))]
    G2 = []
    for q in range(3): G2 += [(32 + 8*q + 7 + GAP, l) for l in pack(1, q)]
    for i_, (hh, n, w) in enumerate(order):
        lwait([("P", hh, w)])
        acc = 64 + 32*hh + 4*n
        a(f"v_mfma_f32_16x16x32_bf16 {vr(acc)}, {vr(32+16*hh+4*w)}, {vr(128+16*n+4*w)}, {'0' if w == 0 else vr(acc)}")
        if i_ == P["bd_at"]: a("s_barrier")
        if 3 <= i_ < 7: p_read(1, i_ - 3)
        if P["cyc"] and i_ == 31: stamp(1)
        used = 0
        while used < 2:
            if F and F[0][0] <= i_:
                l = F.pop(0)[1]; a(l); used += 0 if "store" in l else 1
            elif G2 and G2[0][0] <= i_ and not any("v64," in x[1] or True for x in F if "store" not in x[1] and x[0] <= 31 + GAP - 1):
                a(G2.pop(0)[1]); used += 1
            else: break
    stamp(7)
    for f in F + G2: a(f[1])
    pk = pack(1, 3)
    for r in range(4):
        a(pk[2*r]); a(pk[2*r+1]); a(ostore(1, r))
    stamp(8)
    if diag:
        a("s_waitcnt vmcnt(0)"); stamp(9)
    a("s_branch L_exit")

    sect[0] = "S"
    a("L_S1:")
    a(f"""s_load_dwordx2 s[{SG}:{SG+1}], s[0:1], 32
    s_load_dwordx2 s[{SX}:{SX+1}], s[0:1], 56
    s_load_dwordx2 s[{SQ}:{SQ+1}], s[0:1], 72
    s_load_dwordx2 s[{SK}:{SK+1}], s[0:1], 64""")
    srd(SX, 512*1792*2); srd(SQ, 1792*512*2); srd(SK, 1792*2)
    srd(SG, 4 << 20)
    a(f"""v_lshlrev_b32 v5, 17, v3
    v_lshlrev_b32 v6, 2, v3
    v_xor_b32 v6, v6, v2
    v_lshl_add_u32 v4, v6, 4, v5
    v_xor_b32 v26, 32, v4
    s_lshl_b32 s10, s8, 5
    s_add_u32 s10, s10, s3
    s_lshl_b32 s10, s10, 15
    s_lshl_b32 s11, s7, 8
    s_add_u32 s10, s10, s11
    s_lshl_b32 s11, s3, 13
    s_add_u32 s11, s11, {X}""")
    a(f"""v_bfe_u32 v6, v0, 2, 2
    v_bfe_u32 v7, v0, 4, 1
    v_bfe_u32 v5, v0, 1, 1
    v_lshl_or_b32 v7, v7, 1, v5
    v_lshl_or_b32 v7, v6, 2, v7
    s_lshl_b32 s12, s3, 2
    v_xor_b32 v7, s12, v7
    v_lshlrev_b32 v7, 4, v7
    v_lshlrev_b32 v6, 8, v6
    v_lshl_add_u32 v6, v3, 11, v6
    v_and_b32 v5, 1, v0
    v_lshl_add_u32 v6, v5, 3, v6
    v_add_u32 v6, {X}, v6
    v_add_u32 v8, v6, v7
    v_xor_b32 v9, 32, v8""")
    a(f"""v_and_b32 v5, 7, v0
    v_lshl_add_u32 v5, v5, 2, v3
    v_lshlrev_b32 v10, 9, v5
    v_lshlrev_b32 v11, 4, v0
    v_lshlrev_b32 v5, 4, v2
    v_lshl_add_u32 v5, v3, 3, v5
    s_lshl_b32 s12, s3, 6
    s_add_u32 s13, s12, s11
    v_add_u32 v12, s13, v5
    v_and_b32 v5, 3, v0
    v_mul_u32_u24 v5, {8192+64}, v5
    v_lshl_add_u32 v5, v3, 4, v5
    v_add_u32 v13, {X}, v5
    v_bfe_u32 v5, v0, 4, 1
    v_bfe_u32 v6, v0, 1, 1
    v_lshl_or_b32 v5, v5, 1, v6
    v_bfe_u32 v6, v0, 2, 2
    v_lshl_or_b32 v5, v5, 2, v6
    v_and_b32 v6, 1, v0
    v_lshl_or_b32 v5, v5, 1, v6
    s_add_u32 s13, s12, {X+2048}
    v_lshl_add_u32 v14, v5, 1, s13
    v_mov_b32 v15, s11
    v_mov_b32 v31, {X}
    v_mov_b32 v30, 0x10001
    v_bfe_u32 v5, v0, 4, 1
    v_cmp_eq_u32 s[18:19], 1, v5
    s_mov_b32 m0, s11
    s_nop 0""")
    a(f"""s_lshl2_add_u32 s15, s8, s3
    s_mul_i32 s15, s15, {32*3584}
    s_lshr_b32 s16, s5, 2
    s_sub_u32 s9, s4, {1 if P["nox"] == 0 else 0}
    s_lshl2_add_u32 s16, s9, s16
    s_lshl_b32 s16, s16, 7
    s_add_u32 s15, s15, s16
    v_mul_u32_u24 v20, 3584, v0
    s_lshl4_add_u32 s9, s9, s5
    s_waitcnt lgkmcnt(0)""")
    if P["tlb"]:
        a(f"""s_lshl2_add_u32 s12, s7, s8
        s_lshl_b32 s12, s12, 15
        s_add_u32 s12, s12, {BP + 3*256 + 128}
        s_lshl_b32 s13, s9, 14
        v_mov_b32 v21, 0
        s_mov_b64 exec, 1
        buffer_load_dword v237, v21, {sr(SG)}, s10 offen
        buffer_load_dword v237, v21, {sr(SQ)}, s13 offen
        buffer_load_dword v237, v21, {sr(SW)}, s12 offen nt
        s_mov_b64 exec, -1""")
    if P["w1pf_at"] == "1":
        a(f"""s_cmp_eq_u32 s4, {P["nox"]}
        s_cbranch_scc1 L_nw1
        s_mov_b32 exec_hi, 0
        buffer_load_dword v239, v20, {sr(SX)}, s15 offen
        s_mov_b64 exec, -1
        L_nw1:""")
    a("s_barrier")
    if P["h_touch"] and P["bhint"]:
        a(f"""s_lshl_b32 s12, s3, 13
        s_lshl2_add_u32 s13, s7, s8
        s_lshl_b32 s13, s13, 15
        s_add_u32 s13, s13, s12""")
        for rnd in range(P["brounds"]):
            for x in range(P["bhint"]):
                a(f"s_add_u32 s12, s13, {BP + ((32*x//P['bhint'] + 3 - rnd) % 32)*256 + 128}\ns_load_dword s{HINT+x}, s[{SW}:{SW+1}], s12 glc")
    for r in range(16): a(f"v_mov_b32 v{96+r}, 0")
    if P["uv_pf"]:
        a(f"""s_lshl2_add_u32 s12, s8, s3
        s_lshl_b32 s12, s12, 18
        s_lshl_b32 s13, s7, 8
        s_add_u32 s12, s12, s13
        v_lshrrev_b32 v21, 1, v0
        v_and_b32 v22, 1, v0
        v_lshlrev_b32 v22, 7, v22
        v_lshl_add_u32 v21, v21, 13, v22
        {"s_mov_b32 exec_hi, 0" if P["uv_pf"] == 1 else ""}
        buffer_load_dword v238, v21, {sr(SG)}, s12 offen
        s_mov_b64 exec, -1""")
    a(f"""s_cmp_eq_u32 s4, {P["nox"]}
    s_cbranch_scc1 L_nomlp
    s_mov_b32 exec_hi, 0
    {"" if P["w1_att"] or P["w1pf_at"] != "b" else f"buffer_load_dword v239, v20, {sr(SX)}, s15 offen"}
    s_mov_b64 exec, -1
    s_cmp_lg_u32 s3, 3
    s_cbranch_scc1 L_nomlp
    s_lshl_b32 s15, s9, 5
    s_lshl_b32 s16, s9, 14
    v_lshlrev_b32 v21, 12, v3
    v_lshl_add_u32 v21, v2, 4, v21
    v_lshlrev_b32 v22, 1, v2
    buffer_load_ushort v48, v22, {sr(SK)}, s15 offen""")
    a(f"""v_mov_b32 v27, v21
    v_lshrrev_b32 v20, 1, v0
    v_mul_u32_u24 v20, 3584, v20
    v_and_b32 v21, 1, v0
    v_lshl_add_u32 v20, v21, 4, v20
    v_lshlrev_b32 v21, 4, v0
    v_add_u32 v21, {X}, v21
    ds_write_b128 v21, v[56:59]
    v_lshlrev_b32 v21, 4, v3
    v_add_u32 v21, {X}, v21
    v_lshlrev_b32 v22, 8, v3
    v_lshl_add_u32 v22, v2, 3, v22
    v_add_u32 v22, {X+16384}, v22
    v_lshl_add_u32 v23, v3, 2, v2
    v_and_b32 v23, 15, v23
    v_lshlrev_b32 v23, 2, v23
    s_mov_b32 m0, {X+16384}""")
    def w2_loads():
        for t in range(16): a(f"buffer_load_dwordx4 {vr(192+4*t)}, v27, {sr(SQ)}, s16 offen offset:{256*t} nt")
    if P["w2_early"]: w2_loads()
    for t in range(16): a(f"ds_read_b128 {vr(64+4*t)}, v21 offset:{64*t}")
    if not P["w1_att"]: a("s_waitcnt vmcnt(0)")
    if P["optx"]: a("s_barrier")
    for q in range(16):
        a(f"buffer_load_dwordx4 v20, {sr(SX)}, s15 offen lds")
        if q < 15: a(f"s_addk_i32 m0, 0x400\ns_add_u32 s15, s15, {32*3584}")
    if P["optx"]: a("s_waitcnt vmcnt(0)")
    else:
        a(f"s_waitcnt vmcnt({P['wo_gate']})\ns_barrier")
        if P["w2_early"] or P["w2_at"] == "u": a("s_waitcnt vmcnt(0)")
        else:
            w2_loads()
            a("s_waitcnt vmcnt(16)")
    stamp(8)
    for t in range(16):
        a(f"ds_read_b64_tr_b16 {vr(128+4*t,2)}, v22 offset:{1024*t}\nds_read_b64_tr_b16 {vr(130+4*t,2)}, v22 offset:{1024*t+128}")
    a("s_waitcnt lgkmcnt(0)")
    for t in range(16):
        a(f"v_mfma_f32_16x16x32_bf16 v[16:19], {vr(64+4*t)}, {vr(128+4*t)}, {'0' if t == 0 else 'v[16:19]'}")
    rnd_bf16(20, 16)
    a("v_lshlrev_b32 v48, 16, v48\nv_add_f32 v20, v20, v48")
    rnd_bf16(20, 20)
    a("""v_max_f32 v20, 0, v20
    v_mul_f32 v20, v20, v20
    v_cvt_pk_bf16_f32 v20, v20, v20
    ds_bpermute_b32 v21, v23, v20
    s_waitcnt lgkmcnt(0)""")
    for rq in range(4):
        for dw in range(4):
            a(f"v_and_b32_dpp v{64+4*rq+dw}, v21, v{32+dw} row_newbcast:{rq} {DPPM}")
    def wuv_loads():
        a("s_mov_b32 m0, s11\ns_barrier")
        stamp(1)
        for q in range(8):
            if 0 < q <= P["uv_slow"]: a("s_waitcnt vmcnt(0)")
            a(f"buffer_load_dwordx4 v{26 if (q>>1)&1 else 4}, {sr(SG)}, s10 offen nt lds")
            if q < 7: a(f"s_add_u32 m0, m0, 1024\ns_add_u32 s10, s10, {(64*8192 if q & 1 == 0 else (1-64)*8192) & 0xffffffff}")
    wuv_loads()
    if (P["optx"] and not P["w2_early"]) or P["w2_at"] == "u":
        w2_loads()
        a("s_waitcnt vmcnt(0)")
    else: a("s_waitcnt vmcnt(8)")
    for rq in range(4):
        for cb in range(4):
            a(f"v_mfma_f32_16x16x32_bf16 {vr(96+4*cb)}, {vr(64+4*rq)}, {vr(192+16*rq+4*cb)}, {'0' if rq == 0 else vr(96+4*cb)}")
    a("s_nop 7\ns_branch L_wuv_done\nL_nomlp:")
    if P["qgate"]:
        a("s_cmp_lg_u32 s3, 2\ns_cbranch_scc1 L_nogate")
        for x in range(P["qgate"]):
            grp = [0, 7, 5, 3][x]
            a(f"""s_mul_i32 s12, s8, {8 + P["hc"]}
            s_add_u32 s12, s12, {grp}
            s_and_b32 s12, s12, 7
            s_lshl3_add_u32 s12, s8, s12
            s_lshl3_add_u32 s12, s12, s4
            s_lshl_b32 s12, s12, 7
            s_add_u32 s{30+x}, s12, {QL}""")
        shint("L_gate", [30+x for x in range(P["qgate"])], 'b')
        a("L_nogate:")
    if P["uvg"]:
        a(f"""s_lshl1_add_u32 s12, s8, s3
        s_lshl_b32 s12, s12, 19
        s_lshl_b32 s13, s7, 8
        s_add_u32 s12, s12, s13
        s_cmp_lt_u32 s3, 2
        s_cselect_b32 s12, s12, 0x7ff00000
        s_add_u32 s13, s12, 0x40000
        v_lshrrev_b32 v21, 1, v0
        v_and_b32 v22, 1, v0
        v_lshlrev_b32 v22, 7, v22
        v_lshl_add_u32 v21, v21, 13, v22""")
    if P["wo_gate"] is not None: a("s_barrier")
    if P["uvg"]:
        for _ in range(P["uvg"] - 1): a("s_sleep 2")
        a(f"buffer_load_dword v235, v21, {sr(SG)}, s12 offen\nbuffer_load_dword v234, v21, {sr(SG)}, s13 offen")
    if P["dp_warm"]:
        a(f"""s_cmp_lg_u32 s3, 1
        s_cbranch_scc1 L_nowarm
        s_load_dwordx4 s[72:75], s[0:1], 80
        s_lshl_b32 s12, s5, 14
        s_lshl_b32 s13, s4, 8
        s_add_u32 s12, s12, s13
        s_add_u32 s12, s12, {DP}
        v_lshrrev_b32 v21, 1, v0
        v_and_b32 v22, 1, v0
        v_lshlrev_b32 v21, 11, v21
        v_lshl_add_u32 v21, v22, 7, v21
        s_mov_b64 exec, 0xffff
        buffer_load_dword v236, v21, {sr(SW)}, s12 offen sc1
        s_cmp_lg_u32 s5, 0
        s_cbranch_scc1 L_nowarm2
        s_mov_b64 exec, 1
        s_lshl_b32 s13, s4, 7
        v_mov_b32 v21, s13
        s_waitcnt lgkmcnt(0)
        global_load_dword v236, v21, s[72:73]
        global_load_dword v236, v21, s[74:75] sc1
        L_nowarm2:
        s_mov_b64 exec, -1
        L_nowarm:""")
    wuv_loads()
    a("L_wuv_done:")
    a(f"""s_lshl_b32 s12, s3, 13
    s_lshl2_add_u32 s16, s7, s8
    s_lshl_b32 s13, s16, 15
    s_add_u32 s13, s13, s12
    s_add_u32 s13, s13, {BP}
    s_lshl_b32 s12, s12, 1
    s_lshl4_add_u32 s12, s7, s12
    s_add_u32 s12, s12, {ST}""")
    if P["st_touch"]: a(f"buffer_load_dwordx4 v[16:19], v10, {sr(SW)}, s12 offen {P['st_pol']}")
    a("s_waitcnt vmcnt(0)")
    a(f"s_add_u32 s36, s{SW}, s13\ns_addc_u32 s37, s{SW+1}, 0")
    boffs = [((32*x//P["bhint"] + 3) % 32)*256 + 128 for x in range(P["bhint"])]
    if P["hpipe"]:
        for x, o in enumerate(boffs): a(f"s_load_dwordx2 {sr(HINT+2*x,2)}, s[36:37], {o} glc")
    a("s_barrier")
    for n in range(2):
        for t in range(4):
            for sec in range(2):
                a(f"ds_read_b64_tr_b16 {vr(160+16*n+4*t+2*sec,2)}, v{8+n} offset:{8192*t + 1024*sec}")
    a("s_waitcnt lgkmcnt(0)\ns_barrier")
    a(f"""s_cmp_lg_u32 s3, 3
    s_cbranch_scc1 L_nomw
    v_add_u32 v20, {X+4096}, v41
    s_mov_b32 exec_hi, 0""")
    for cb in range(4): a(f"ds_write_b128 v20, {vr(96+4*cb)} offset:{512*cb}")
    a("s_mov_b64 exec, -1\nL_nomw:")
    stamp(2)
    nh = P["lhint"]
    shint("L_lhint", hint_offs(nh, 16, 31, 9, 12, 32//max(nh,1)), 't')
    def st_check():
        a(f"""v_xor_b32 v17, s{sF}, v17
        v_bitop3_b32 v17, v17, v19, s{sF} bitop3:0xf6""")
    def st_loop():
        if P["st_sleep"]: a(f"s_branch L_stp1\nL_stp:\ns_sleep {P['st_sleep']}\nL_stp1:")
        else: a("L_stp:")
        a(f"buffer_load_dwordx4 v[16:19], v10, {sr(SW)}, s12 offen {P['st_pol']}\ns_waitcnt vmcnt(0)")
        st_check()
        a("v_cmp_ne_u32 vcc, 0, v17")
        spin("L_stp", "s_cbranch_vccnz")
        stamp(4)
    def pl_load(t): a(f"buffer_load_dwordx4 {vr(64+4*t)}, v11, {sr(SW)}, s{13 + (t>>2)} offen offset:{1024*(t&3)} {P['pl_pol']}")
    def ops(between=None):
        a0 = len(a.lines)
        ops1()
        if between is not None:
            L = a.lines[a0:]; del a.lines[a0:]
            k = min(P["ops_split"], len(L))
            a.lines.extend(L[:k]); between(); a.lines.extend(L[k:])
    def ops1():
        a("v_mov_b32 v24, v16")
        allreduce("v_max_f32", 24, 20)
        a("""v_sub_f32 v16, v16, v24
        v_exp_f32 v16, v16
        v_cvt_pk_bf16_f32 v16, v16, v16""")
        for t in range(8):
            for dw in range(4):
                a(f"v_and_b32_dpp v{128+4*t+dw}, v16, v{32+dw} row_newbcast:{t} {DPPM}")
        a("v_and_b32 v25, 0xffff0000, v16\nv_mul_f32 v25, v25, v18")
        allreduce("v_add_f32", 25, 20)
        a("v_mul_f32 v25, 0.5, v25\nds_write_b64 v15, v[24:25] offset:1024")
    if P["st_first"]: st_loop()
    if P["s1mode"] != "a":
        a("s_add_u32 s14, s13, 4096")
        if P["hpipe"]: a("s_branch L_h1_chk")
        shint("L_h1", boffs[:1], 'c')
        a(f"buffer_load_dwordx4 v[16:19], v10, {sr(SW)}, s12 offen {P['st_pol']}")
        if P["s1mode"] == "b": shint("L_h2", boffs[1:], 'c')
        a("s_waitcnt vmcnt(0)")
        st_check()
        a("v_cmp_ne_u32 vcc, 0, v17\ns_cbranch_vccz L_stok2")
        st_loop()
        a("L_stok2:")
        stamp(3)
        def lds8():
            for t in range(8): pl_load(t)
        if P["s1mode"] == "b": ops(lds8)
        else:
            for x, o in enumerate(boffs[1:]): a(f"s_load_dwordx2 {sr(HINT+2*x,2)}, s[36:37], {o} glc")
            ops()
            a("s_branch L_h2_chk")
            shint("L_h2", boffs[1:], 'c')
            lds8()
        a("s_branch L_s1go")
    def mf(t): a(f"v_mfma_f32_16x16x32_bf16 v[40:43], {vr(128+4*t)}, {vr(64+4*t)}, {'0' if t == 0 else 'v[40:43]'}")
    if P['s1mode'] == 'a':
        nh = P["bhint"]
        if P["hpipe"]: a("s_branch L_bhint0_chk")
        for rnd in range(P["brounds"]):
            shint(f"L_bhint{rnd}", [((32*x//nh + 3 - rnd) % 32)*256 + 128 for x in range(nh)], 'c')
        stamp(3)
        a("s_add_u32 s14, s13, 4096")
        if P["st_last"] and not P["st_first"]: st_loop()
        if not P["st_last"]: a(f"buffer_load_dwordx4 v[16:19], v10, {sr(SW)}, s12 offen {P['st_pol']}")
        for t in range(8): pl_load(t)
        if not P["st_last"]:
            a("s_waitcnt vmcnt(8)")
            stamp(4)
            st_check()
            a("v_cmp_ne_u32 vcc, 0, v17\ns_cbranch_vccz L_stok")
            a(f"L_stp:\nbuffer_load_dwordx4 v[16:19], v10, {sr(SW)}, s12 offen {P['st_pol']}\ns_waitcnt vmcnt(0)")
            st_check()
            a("v_cmp_ne_u32 vcc, 0, v17")
            spin("L_stp", "s_cbranch_vccnz")
            a("L_stok:")
        ops()
    a("L_s1go:")
    stamp(5)
    for t in range(8):
        a(f"s_waitcnt vmcnt({7-t})")
        mf(t)
        check(48+t, 64+4*t, 4, sB, True)
        if t == 2: a("v_or3_b32 v7, v48, v49, v50")
        if t in (4, 6): a(f"v_or3_b32 v7, v7, v{47+t}, v{48+t}")
    a("v_or_b32 v7, v7, v55\nv_and_b32 v7, v30, v7\nv_cmp_ne_u32 vcc, 0, v7\ns_cbranch_vccz L_bok")
    a("L_bre:")
    if P["re_sleep"]: a(f"s_sleep {P['re_sleep']}")
    for t in range(8):
        a(f"v_and_b32 v7, v30, v{48+t}\nv_cmp_ne_u32 vcc, 0, v7\ns_cbranch_vccz L_br{t}")
        pl_load(t)
        a(f"L_br{t}:")
    a("s_waitcnt vmcnt(0)")
    for t in range(8):
        mf(t)
        check(48+t, 64+4*t, 4, sB, True)
        if t == 2: a("v_or3_b32 v7, v48, v49, v50")
        if t in (4, 6): a(f"v_or3_b32 v7, v7, v{47+t}, v{48+t}")
    a("v_or_b32 v7, v7, v55\nv_and_b32 v7, v30, v7\nv_cmp_ne_u32 vcc, 0, v7\ns_add_u32 s28, s28, 99")
    spin("L_bre", "s_cbranch_vccnz")
    a("L_bok:\ns_nop 1")
    stamp(6)
    a("""v_cvt_pk_bf16_f32 v44, v40, v41
    v_cvt_pk_bf16_f32 v45, v42, v43
    s_mov_b32 exec_hi, 0
    ds_write_b64 v12, v[44:45]
    s_mov_b64 exec, -1
    s_waitcnt lgkmcnt(0)
    s_barrier""")
    a("ds_read_b128 v[64:67], v13")
    for u in range(2): a(f"ds_read2st64_b64 {vr(80+4*u)}, v31 offset0:{2 + 32*u} offset1:{18 + 32*u}")
    for t in range(1, 4): a(f"ds_read_b128 {vr(64+4*t)}, v13 offset:{64*t}")
    sm = """v_max3_f32 v4, v80, v82, v84
    v_max_f32 v4, v4, v86
    v_sub_f32 v80, v80, v4
    v_sub_f32 v82, v82, v4
    v_sub_f32 v84, v84, v4
    v_sub_f32 v86, v86, v4
    v_exp_f32 v80, v80
    v_exp_f32 v82, v82
    v_exp_f32 v84, v84
    v_exp_f32 v86, v86
    v_mul_f32 v5, v80, v81
    v_fmac_f32 v5, v82, v83
    v_fmac_f32 v5, v84, v85
    v_fmac_f32 v5, v86, v87
    v_rcp_f32 v5, v5
    v_mul_f32 v6, v40, v80
    v_fmac_f32 v6, v41, v82
    v_fmac_f32 v6, v42, v84
    v_fmac_f32 v6, v43, v86""".split("\n")
    fill = [0, 2, 2, 2, 1, 1, 1, 99]
    for x, (n, t) in enumerate([(n, t) for n in range(2) for t in range(4)]):
        if n == 0: a(f"s_waitcnt lgkmcnt({[5, 2, 1, 0][t]})")
        a(f"v_mfma_f32_16x16x32_bf16 {vr(40+4*n)}, {vr(64+4*t)}, {vr(160+16*n+4*t)}, {'0' if t == 0 else vr(40+4*n)}")
        for _ in range(min(fill[x], len(sm))): a(sm.pop(0))
    a("""v_mul_f32 v7, v44, v80
    v_fmac_f32 v7, v45, v82
    v_fmac_f32 v7, v46, v84
    v_fmac_f32 v7, v47, v86
    v_cndmask_b32 v6, v6, v7, s[18:19]
    v_mul_f32 v6, v6, v5
    v_cvt_pk_bf16_f32 v6, v6, v6
    ds_write_b16 v14, v6
    s_waitcnt lgkmcnt(0)""")
    stamp(7)
    a("s_barrier")
    if P["cyc"]: a("s_barrier")
    a("s_branch L_exit")

    sect[0] = "O"
    a("L_WO:")
    a(f"s_load_dwordx2 s[{SG}:{SG+1}], s[0:1], 40\ns_barrier\nL_WO1:")
    srd(SC, 16 << 20)
    a(f"""s_lshl4_add_u32 s14, s4, s5
    s_lshl2_add_u32 s14, s14, s3
    s_sub_u32 s14, s14, 4
    s_lshl_b32 s14, s14, 15
    v_lshrrev_b32 v5, 1, v0
    v_and_b32 v6, 1, v0
    v_lshlrev_b32 v5, 10, v5
    v_lshl_add_u32 v5, v6, 7, v5""")
    a("v_mov_b32 v44, v5\ns_mov_b32 s30, s14")
    def ckv_pf():
        for x in range(P["cpf"]):
            if x >= P["cpf_depth"]: a(f"s_waitcnt vmcnt({P['cpf_depth']-1})")
            if P["rgmajor"] == 2:
                a(f"""s_add_u32 s31, s30, {8192*(3-x) + 512}
                v_lshrrev_b32 v44, 2, v0
                v_and_b32 v45, 3, v0
                v_lshlrev_b32 v44, 10, v44
                v_lshl_add_u32 v44, v45, 7, v44
                s_mov_b32 exec_hi, 0
                buffer_load_dword v{110+x}, v44, {sr(SC)}, s31 offen
                s_mov_b64 exec, -1""")
            elif P["rgmajor"] == 4:
                a(f"""s_add_u32 s31, s30, {4096*(7-x)}
                v_lshlrev_b32 v44, 7, v0
                s_mov_b32 exec_hi, 0
                buffer_load_dword v{110+x}, v44, {sr(SC)}, s31 offen
                s_mov_b64 exec, -1""")
            else:
                a(f"""s_mov_b32 exec_{'lo' if x & 1 == 0 else 'hi'}, 0
                buffer_load_dword v{110+x}, v44, {sr(SC)}, s30 offen offset:{256*(3 - x//2)}
                s_mov_b64 exec, -1""")
    if not P["cpf_late"]: ckv_pf()
    if P["nox_cpf"]:
        a(f"s_cmp_lg_u32 s4, {P['nox']}\ns_cbranch_scc1 L_nocpf")
        sv = P["cpf"]; P["cpf"] = P["nox_cpf"]; ckv_pf(); P["cpf"] = sv
        a(f"s_waitcnt vmcnt({P['cpf_tail']})\nL_nocpf:")
    srd(SG, 4 << 20)
    a(f"""s_sub_u32 s9, s3, 4
    s_lshl_b32 s10, s7, 17
    s_lshl_b32 s11, s9, 8
    s_add_u32 s10, s10, s11
    s_lshl_b32 s11, s9, 15
    v_lshlrev_b32 v4, 2, v3
    v_xor_b32 v4, v4, v2
    v_lshlrev_b32 v4, 4, v4
    v_lshl_add_u32 v4, v3, 10, v4
    v_xor_b32 v5, 32, v4
    s_mov_b32 m0, s11""")
    if P["wo_rot"]:
        a("s_lshl_b32 s13, s8, 15\ns_add_u32 s10, s10, s13")
        for tau in range(3):
            a(f"s_cmp_eq_u32 s8, {3-tau}\ns_cselect_b32 s{36+tau}, -31, 1\ns_lshl_b32 s{36+tau}, s{36+tau}, 12")
    a(f"""v_bfe_u32 v6, v0, 2, 2
    v_bfe_u32 v7, v0, 4, 1
    v_bfe_u32 v16, v0, 1, 1
    v_lshl_or_b32 v7, v7, 1, v16
    v_lshl_or_b32 v7, v6, 2, v7
    v_lshlrev_b32 v7, 4, v7
    v_lshlrev_b32 v6, 8, v6
    v_lshl_add_u32 v6, v3, 11, v6
    v_and_b32 v16, 1, v0
    v_lshl_add_u32 v6, v16, 3, v6
    v_add_u32 v6, s11, v6""")
    for n in range(8):
        a(f"v_xor_b32 v16, {32*n}, v7\nv_add_u32 v{8+n}, v6, v16")
    a(f"""v_lshrrev_b32 v16, 1, v3
    v_add_u32 v16, s8, v16
    v_and_b32 v17, 1, v3
    v_and_b32 v18, 1, v0
    v_lshl_or_b32 v17, v17, 1, v18
    v_lshlrev_b32 v17, 4, v17
    v_add_u32 v17, {X+2048}, v17
    v_and_b32 v36, 3, v16
    v_lshl_add_u32 v36, v36, 6, v17
    v_xor_b32 v37, 0x80, v36
    v_mul_u32_u24 v38, 0xaaaa, v18
    v_add_u32 v38, 0x4444, v38
    v_lshlrev_b32 v17, 2, v0
    v_mov_b32 v18, 0xff
    v_and_b32 v19, 3, v0
    v_add_u32 v19, s{sF}, v19
    s_lshl2_add_u32 s12, s7, s8
    s_lshl_b32 s12, s12, 11
    s_lshl_b32 s13, s9, 9
    s_add_u32 s12, s12, s13
    s_add_u32 s12, s12, {DP}
    s_add_u32 s13, s13, {X+4096}
    v_add_u32 v39, s13, v17""")
    assert P["wo_rot"]
    for r in range(40): a(f"v_mov_b32 v{64+r}, 0")
    a("s_waitcnt lgkmcnt(0)")
    if P["tlb"]: a(f"v_mov_b32 v45, 0\ns_mov_b64 exec, 1\nbuffer_load_dword v110, v45, {sr(SG)}, s10 offen\ns_mov_b64 exec, -1")
    def wo_read(t):
        for n in range(8):
            for sec in range(2):
                a(f"ds_read_b64_tr_b16 {vr(128+16*n+4*t+2*sec,2)}, v{8+n} offset:{8192*t + 1024*sec}")
    nxt = 0
    for rg in range(32):
        if rg == 0 and P["cpf"] and not P["cpf_late"]: a(f"s_waitcnt vmcnt({P['cpf_tail']})")
        if rg == 0 and not P["optx"]: a("s_barrier")
        if rg == P["x_n"] and P["optx"]: a(f"s_waitcnt vmcnt({P['x_left']})\ns_barrier")
        if rg == 0 and P["cpf_late"]:
            ckv_pf()
            if P["cpf_wait"] is not None: a(f"s_waitcnt vmcnt({P['cpf_wait']})")
        if rg == 0:
            for x in P["wo_bar"]:
                if x < 0: a("s_barrier")
        if rg == 0 and not P["fine"]: stamp(1)
        wd = P["wo_edepth"] if rg < P["wo_early"] else (P["wo_depth0"] if rg < 8 + P["wo_depth0"] else P["wo_depth"])
        if rg >= wd:
            a(f"s_waitcnt vmcnt({wd-1})")
            landed = rg - wd + 1
            if landed >= 8*(nxt+1):
                if nxt == 0: stamp(5)
                if "noread" not in P["abl"]: wo_read(nxt)
                nxt += 1
        a(f"buffer_load_dwordx4 v{4+((rg>>1)&1)}, {sr(SG)}, s10 offen {P['first_pol'] if rg < 8 else P['wo_pol']} lds")
        if rg in P["wo_bar"]: a("s_barrier")
        if rg < 31:
            if P["wo_rot"] and rg & 7 == 7: a(f"s_add_u32 m0, m0, 1024\ns_add_u32 s10, s10, s{36+(rg>>3)}")
            else: a("s_add_u32 m0, m0, 1024\ns_add_u32 s10, s10, 4096")
    while nxt < 4:
        a(f"s_waitcnt vmcnt({24 - 8*nxt})")
        wo_read(nxt); nxt += 1
    for v_ in range(4):
        a(f"s_mov_b32 s{40+2*v_}, {0x00030003 << (4*v_)}\ns_mov_b32 s{41+2*v_}, {0x00030003 << (4*v_)}")
    for x in P["wo_bar"]:
        if x >= 32: a("s_barrier")
    stamp(6)
    if "bwait" in P["abl"]: a("s_barrier")
    a("s_barrier\nds_read_b32 v96, v39\nds_read_b32 v100, v39 offset:256\ns_mov_b64 exec, s[40:41]\ns_barrier")
    stamp(7)
    for v_ in range(4):
        if v_: a(f"s_mov_b64 exec, s[{40+2*v_}:{41+2*v_}]")
        for T in range(2): a(f"ds_read_b128 {vr(64+8*v_+4*T)}, v{36+T}")
    a("s_mov_b64 exec, -1")
    if P["s3ord"] == 0: o3 = [(H, v_, T) for H in range(2) for v_ in range(4) for T in range(2)]
    else: o3 = [(H, v_, T) for v_ in range(2) for T in range(2) for H in range(2)] + [(H, v_, T) for H in range(2) for v_ in range(2, 4) for T in range(2)]
    for (H, v_, T) in o3:
        if H == 0: a(f"s_waitcnt lgkmcnt({7 - 2*v_ - T})")
        a(f"v_smfmac_f32_16x16x64_bf16 {vr(96+4*H)}, {vr(64+8*v_+4*T)}, {vr(128+16*(4*H+v_)+8*T, 8)}, v38")
    a(f"""v_add_f32 v96, v96, v97
    v_bfi_b32 v96, v18, v19, v96
    buffer_store_dword v96, v17, {sr(SW)}, s12 offen sc1
    v_add_f32 v100, v100, v101
    v_bfi_b32 v100, v18, v19, v100
    buffer_store_dword v100, v17, {sr(SW)}, s12 offen offset:256 sc1""")
    stamp(8)
    if diag:
        a("s_waitcnt vmcnt(0)"); stamp(9)

    a("L_exit:")
    if P["probe"]:
        if P["probe"][0].startswith("x"):
            a(f"s_waitcnt lgkmcnt(0)\ns_lshl_b32 s85, 1, s4\ns_and_b32 s85, s85, {int(P['probe'][0][1:], 16)}\ns_cselect_b32 s84, s80, 0\ns_cmp_eq_u32 s3, 0\ns_cselect_b32 s84, s84, 0")
        a(f"""s_load_dwordx2 s[86:87], s[0:1], 96
        s_mov_b64 exec, 1
        s_waitcnt lgkmcnt(0)
        v_mov_b32 v4, 0
        v_mov_b32 v5, s84
        s_cmp_eq_u32 s84, 0
        s_cbranch_scc1 L_pr1
        global_atomic_umax v4, v5, s[86:87] offset:128
        L_pr1:
        s_cmp_lg_u32 s3, 0
        s_cbranch_scc1 L_pr2
        v_mov_b32 v5, s80
        global_atomic_umax v4, v5, s[86:87]
        v_not_b32 v6, v5
        global_atomic_umax v4, v6, s[86:87] offset:4
        L_pr2:
        s_cmp_lg_u32 s88, 1
        s_cbranch_scc1 L_end
        s_add_u32 s90, s80, 3000
        L_pr3:
        s_memrealtime s[82:83]
        s_waitcnt lgkmcnt(0)
        s_sub_u32 s83, s82, s90
        s_cmp_lt_i32 s83, 0
        s_cbranch_scc1 L_pr3
        global_load_dwordx2 v[8:9], v4, s[86:87] sc1
        global_load_dword v10, v4, s[86:87] offset:128 sc1
        s_waitcnt vmcnt(0)
        v_readfirstlane_b32 s91, v8
        v_readfirstlane_b32 s92, v9
        v_readfirstlane_b32 s93, v10
        s_not_b32 s92, s92""")
        ref = "s92" if P["probe"][1] == "min" else "s91"
        val = {"maxstart": "s91", "none": ref}.get(P["probe"][0], "s93")
        amp = P["probe"][2] if len(P["probe"]) > 2 else 1
        a(f"""s_sub_u32 s94, {val}, {ref}
        s_mul_i32 s94, s94, {amp}
        s_min_u32 s94, s94, 6000
        s_add_u32 s90, s92, 4000
        s_add_u32 s90, s90, s94
        L_pr4:
        s_memrealtime s[82:83]
        s_waitcnt lgkmcnt(0)
        s_sub_u32 s83, s82, s90
        s_cmp_lt_i32 s83, 0
        s_cbranch_scc1 L_pr4""")
    if diag:
        a(f"""s_mov_b64 exec, -1
        s_waitcnt lgkmcnt(0)
        s_lshl3_add_u32 s10, s2, s3
        s_lshl_b32 s10, s10, 7
        s_add_u32 s10, s10, {STAMP}
        v_mov_b32 v4, 0""")
        for k in range(10):
            a(f"v_mov_b32 v5, s{80+2*k}\nbuffer_store_dword v5, v4, {sr(SW)}, s10 offen offset:{4*k}")
        a(f"v_mov_b32 v5, s28\nbuffer_store_dword v5, v4, {sr(SW)}, s10 offen offset:40")
        a(f"s_getreg_b32 s11, hwreg(HW_REG_XCC_ID)\nv_mov_b32 v5, s11\nbuffer_store_dword v5, v4, {sr(SW)}, s10 offen offset:44")
        a(f"s_getreg_b32 s11, hwreg(HW_REG_HW_ID)\nv_mov_b32 v5, s11\nbuffer_store_dword v5, v4, {sr(SW)}, s10 offen offset:48")
    a("L_end:\ns_endpgm\nL_codeend:")
    if P["align"] is not None:
        a(f"""L_align:
        s_memrealtime s[80:81]
        s_and_b32 s4, s2, 7
        s_mul_i32 s5, s4, 3
        s_cmp_eq_u32 s4, 0
        s_cselect_b32 s5, {P['align']}, s5
        s_waitcnt lgkmcnt(0)
        s_or_b32 s6, s80, 511
        s_add_u32 s6, s6, s5
        L_al:
        s_memrealtime s[80:81]
        s_waitcnt lgkmcnt(0)
        s_sub_u32 s7, s80, s6
        s_cmp_lt_i32 s7, 0
        s_cbranch_scc1 L_al
        s_branch L_back""")


    lines = a.lines
    if diag:
        pre = [f"s_mov_b32 s{80+2*k}, 0" for k in range(1, 10)]
        lines = lines[:1] + pre + lines[1:]
    lines, nins = insert_waits(lines)
    b = Asm(); b.lines = lines
    head = f"""; fused MLA decode attention (absorbed form) + squared-relu MLP, one persistent launch, 256 workgroups
; @launch grid=(256,1,1) block=(512,1,1) lds=163840
.amdgcn_target "amdgcn-amd-amdhsa--gfx950"
.text
.globl {KNAME}
.p2align 8
.type {KNAME},@function
{KNAME}:
"""
    foot = f"""
.section .rodata,"a"
.p2align 6
.amdhsa_kernel {KNAME}
  .amdhsa_next_free_vgpr 256
  .amdhsa_next_free_sgpr 102
  .amdhsa_accum_offset 256
  .amdhsa_group_segment_fixed_size 0
  .amdhsa_kernarg_size 112
  .amdhsa_user_sgpr_count 2
  .amdhsa_user_sgpr_kernarg_segment_ptr 1
  .amdhsa_system_sgpr_workgroup_id_x 1
  .amdhsa_float_denorm_mode_32 3
.end_amdhsa_kernel
"""
    txt = b.text()
    if P["abl"]:
        L = txt.split("\n"); O = []
        for l in L:
            if "nowo" in P["abl"] and "s[60:63]" in l and "buffer_load" in l: continue
            if "nomlp" in P["abl"] and f"s_cmp_eq_u32 s4, {P['nox']}" in l: l = "    s_cmp_eq_u32 s4, s4"
            if "noqk" in P["abl"] and "32x32x16" in l and ", 0" not in l[-4:]: continue
            if "nopv" in P["abl"] and "16x16x32" in l and any(f"v[{x}:{x+3}], v[{y}" in l for x in (36, 40, 52, 56) for y in range(128, 256, 4)): continue
            if "noexp" in P["abl"] and "v_exp_f32 v7" in l: continue
            if "nos3" in P["abl"] and "16x16x32" in l and ("v[24:27]," in l or "v[28:31]," in l) and "v[32:35], v[" not in l: continue
            O.append(l)
        txt = "\n".join(O)
    if P["pol"] != "nt":
        txt = txt.replace(" nt lds", f" {P['pol']} lds").replace(" nt\n", f" {P['pol']}\n")
    return head + txt + foot

if __name__ == "__main__":
    import json
    kw = json.loads(sys.argv[2]) if len(sys.argv) > 2 else {}
    open(sys.argv[1], "w").write(gen(**kw))
```

```python
import sys, math, struct
from asmlib import Asm, insert_waits
from gen_common import KNAME

EP, QP, QL, GO, ST, HP, DP, BP, STAMP = 0, 0x1000, 0x40000, 0x48000, 0x50000, 0x60000, 0x80000, 0x100000, 0x800000
WS_REC = 0x1000000
X = 131072
SPIN = 1 << 17

def f2u(x): return struct.unpack("<I", struct.pack("<f", x))[0]
def vr(a, n=4): return f"v[{a}:{a+n-1}]"
def sr(a, n=4): return f"s[{a}:{a+n-1}]"

SX, SC, SQ, SK, SW, SG = 40, 44, 48, 52, 56, 60
sF, sB = 20, 24
HINT = 64
DPPM = "row_mask:0xf bank_mask:0xf"

DEFAULT = dict(lite=False, diag=False, cyc=False, fine=False, calib=0, probe=None, abl=(), pol="nt", prefetch=True, pf_wgs=16, role_bit=0,
               pq=True, pk_late='a', pf_ramp=(0, 4, 10), bi_at=2, q_at=31, qhint=0, cw_at=-1, sm_pre=4, bb_at=4, ba_at=28, q_ah=5, bd_at=8, l_pre=6, fin=1, ent=2, hc=1, pre=None, uvg=0, dp_warm=False, fin_wait=True, qgate=0, b1_at=10, tr_mid=2, s3ord=1, pw64=True, pv4=False, s1mode='a', ops_split=99, w1pf_at='1', xfast=True, align=None, nox=0, nox_cpf=2, tlb=False, zpf=0, uv_slow=0, w2_at='g', st_sleep=0, st_first=False, uk_first=False, tr_pre=0, pv_prio=0, qk_prio=2, qk_fill=(2, 2), tr_split=(14, 20), pv_bar=(10, 24), st_gap=4, optx=False, pf_pol='', first_pol='', uk_pol='nt', x_n=8, x_left=0, pv_fill=2,
               cpf=0, wo_gate=8, ql_pre=None, cpf_depth=2, cpf_tail=1, wq_pol="", wo_pol="", wo_depth=8, wo_depth0=8, wo_bar=(7, 23, 29), wo_rot=True,
               bhint=4, fhint=0, hsleep=0, out_pol="", mlp_at="pf", wpq=False, x_bar=True, wq_bars=(), ln_at=7, st_last=True, st_at=10, w2_early=False, uv_pf=0, w1_att=False, cpf_wait=None, lhint=0, st_touch=False, h_touch=False, hmap=1, pk_mix=False, cpf_late=False, c_keep=0, ql_delay=0, fin_pol='sc1', pl_pol='sc1', st_pol='sc1', rgmajor=4, hpipe=True, brounds=1, re_sleep=0, w1_wait=17, w2_late=True, wuv_depth=8, q_prio=True, q_fast=True, w1_pre=16, w2_left=0, att_pf=0, out_touch='sc1', dpp_early=True, go_at=None, cpfq=True, c_ramp=((0,10),), wo_early=0, wo_edepth=2)

def gen(**kw):
    P = dict(DEFAULT); P.update(kw)
    diag = P["diag"]
    a = Asm()
    sect = ["entry"]
    def fs(k):
        if P['cyc'] == 3: stamp(k, True)
    def stamp(k, force=False):
        if P["cyc"] == 3 and sect[0] in ("C", "F", "H") and not force: return
        if P["cyc"] == 2 and (sect[0], k) not in (("entry", 0), ("C", 3), ("H", 8), ("H", 7), ("S", 6), ("O", 8), ("A", 3), ("A", 4)): return
        if diag: a(f"{'s_memtime' if P['cyc'] else 's_memrealtime'} s[{80+2*k}:{81+2*k}]")
        if P["probe"] and P["probe"][0] == f"{sect[0]}{k}":
            a("s_memrealtime s[84:85]")
    def srd(base, size):
        a(f"s_mov_b32 s{base+2}, {size}\ns_mov_b32 s{base+3}, 0x20000")
    def ep_load(): a(f"s_load_dword s35, s[{SW}:{SW+1}], {EP}")
    def tags(need_b=True):
        for q in range(4): a(f"s_add_u32 s{sF+q}, s35, {q+1}")
        if need_b:
            for q in range(4): a(f"s_and_b32 s{sB+q}, s{sF+q}, 3\ns_mul_i32 s{sB+q}, s{sB+q}, 0x8001")
    def allreduce(op, v, t1):
        for r in (1, 2, 4, 8):
            a(f"{op}_dpp v{v}, v{v}, v{v} row_ror:{r} {DPPM}")
        for sw in ("v_permlane16_swap_b32", "v_permlane32_swap_b32"):
            a(f"v_mov_b32 v{t1}, v{v}\n{sw} v{t1}, v{v}\n{op} v{v}, v{v}, v{t1}")
    def rnd_bf16(d, s):
        a(f"v_cvt_pk_bf16_f32 v{d}, v{s}, v{s}\nv_and_b32 v{d}, 0xffff0000, v{d}")
    def unpack2(d, s):
        a(f"v_lshlrev_b32 v{d}, 16, v{s}\nv_and_b32 v{d+1}, 0xffff0000, v{s}")
    def ln_stats(xr, f, t):
        for i in range(4): unpack2(f+2*i, xr+i)
        a(f"v_add_f32 v{t}, v{f}, v{f+1}\nv_add_f32 v{t+1}, v{f+2}, v{f+3}\nv_add_f32 v{t+2}, v{f+4}, v{f+5}\nv_add_f32 v{t+3}, v{f+6}, v{f+7}")
        a(f"v_add_f32 v{t}, v{t}, v{t+1}\nv_add_f32 v{t+2}, v{t+2}, v{t+3}\nv_add_f32 v{t}, v{t}, v{t+2}")
        allreduce("v_add_f32", t, t+2)
        a(f"v_mul_f32 v{t}, {f2u(1/512)}, v{t}")
        a(f"v_sub_f32 v{t+2}, v{f}, v{t}\nv_mul_f32 v{t+1}, v{t+2}, v{t+2}")
        for i in range(1, 8):
            a(f"v_sub_f32 v{t+2+(i&1)}, v{f+i}, v{t}\nv_fmac_f32 v{t+1}, v{t+2+(i&1)}, v{t+2+(i&1)}")
        allreduce("v_add_f32", t+1, t+2)
        a(f"v_mul_f32 v{t+1}, {f2u(1/512)}, v{t+1}")
        rnd_bf16(t, t)
        rnd_bf16(t+1, t+1)
        a(f"v_add_f32 v{t+1}, {f2u(1e-5)}, v{t+1}")
        rnd_bf16(t+1, t+1)
        a(f"v_sqrt_f32 v{t+1}, v{t+1}")
        rnd_bf16(t+1, t+1)
        a(f"v_rcp_f32 v{t+1}, v{t+1}")
    def delta_masks(m, t):
        a(f"""v_and_b32 v{t}, 1, v0
        v_lshlrev_b32 v{t}, 4, v{t}
        v_mov_b32 v{t+1}, 0xffff
        v_lshlrev_b32 v{t}, v{t}, v{t+1}
        v_bfe_u32 v{t+1}, v0, 1, 3""")
        for dw in range(4):
            a(f"v_cmp_eq_u32 vcc, {dw}, v{t+1}\nv_cndmask_b32 v{m+dw}, 0, v{t}, vcc")
    def check(acc, first, n, tagbase, start):
        for i in range(n):
            if start and i == 0: a(f"v_xor_b32 v{acc}, s{tagbase}, v{first}")
            else: a(f"v_bitop3_b32 v{acc}, v{acc}, v{first+i}, s{tagbase+(i&3)} bitop3:0xf6")
    def spin(label, cond_branch, pre=""):
        a(f"""s_add_u32 s28, s28, 1
        s_cmp_gt_u32 s28, {SPIN}
        s_cbranch_scc1 L_exit
        {pre}
        {cond_branch} {label}""")
    def shint(label, offs, kind):
        if not offs: return
        a(f"{label}:")
        if P["hsleep"]: a(f"s_sleep {P['hsleep']}")
        n = len(offs)
        if kind == 'c':
            for x, o in enumerate(offs): a(f"s_load_dwordx2 {sr(HINT+2*x,2)}, s[36:37], {o} glc")
            a(f"{label}_chk:\ns_waitcnt lgkmcnt(0)")
            for x in range(n):
                a(f"s_xor_b64 {sr(HINT+2*x,2)}, {sr(HINT+2*x,2)}, {sr(sB,2)}")
                if x: a(f"s_or_b64 {sr(HINT,2)}, {sr(HINT,2)}, {sr(HINT+2*x,2)}")
            a(f"s_or_b32 s{HINT}, s{HINT}, s{HINT+1}")
            fin = f"s_and_b32 s{HINT}, s{HINT}, 0x10001"
        elif kind == 'd':
            for x, o in enumerate(offs): a(f"s_load_dword s{HINT+x}, s[{SW}:{SW+1}], s{o} glc")
            a("s_waitcnt lgkmcnt(0)")
            for x in range(n):
                a(f"s_xor_b32 s{HINT+x}, s{HINT+x}, s{sF}")
                if x: a(f"s_or_b32 s{HINT}, s{HINT}, s{HINT+x}")
            fin = f"s_and_b32 s{HINT}, s{HINT}, 0xff"
        elif kind == 't':
            for x, o in enumerate(offs): a(f"s_load_dwordx2 {sr(HINT+2*x,2)}, s[{SW}:{SW+1}], s{o} glc")
            a("s_waitcnt lgkmcnt(0)")
            for x in range(n):
                a(f"s_xor_b32 s{HINT+2*x+1}, s{HINT+2*x+1}, s{sF}")
                if x: a(f"s_or_b32 s{HINT+1}, s{HINT+1}, s{HINT+2*x+1}")
            fin = f"s_cmp_lg_u32 s{HINT+1}, 0"
        else:
            tb, mask = (sB, 0x10001) if kind == 'b' else (sF, 0xff)
            for x, o in enumerate(offs): a(f"s_load_dwordx4 {sr(HINT+4*x)}, s[{SW}:{SW+1}], s{o} glc")
            a("s_waitcnt lgkmcnt(0)")
            for x in range(4*n):
                a(f"s_xor_b32 s{HINT+x}, s{HINT+x}, s{tb+(x&3)}")
                if x: a(f"s_or_b32 s{HINT}, s{HINT}, s{HINT+x}")
            fin = f"s_and_b32 s{HINT}, s{HINT}, {mask}"
        spin(label, "s_cbranch_scc1", fin)
    def tdelay(label, ticks):
        a(f"""s_waitcnt lgkmcnt(0)
        s_add_u32 s78, s80, {ticks}
        {label}:
        s_memrealtime s[76:77]
        s_waitcnt lgkmcnt(0)
        s_sub_u32 s77, s76, s78
        s_cmp_lt_i32 s77, 0
        s_cbranch_scc1 {label}""")
    def hint_offs(n, seed, modmask, shift, base, spread):
        for x in range(n):
            a(f"s_add_u32 s{30+x}, s{seed}, {x*spread}\ns_and_b32 s{30+x}, s{30+x}, {modmask}\ns_lshl_b32 s{30+x}, s{30+x}, {shift}\ns_add_u32 s{30+x}, s{30+x}, s{base}")
        return [30+x for x in range(n)]

    stamp(0)
    if (P["calib"] or P["probe"] or P["lite"]) and P["align"] is None: a("s_memrealtime s[80:81]")
    if P["probe"]: a("s_mov_b32 s84, 0\ns_mov_b32 s88, 0")
    if P["align"] is not None: a("s_branch L_align\nL_back:\ns_nop 0")
    if P["pre"] is not None:
        a(f"""s_cmp_ge_u32 s2, 256
        s_cbranch_scc1 L_end
        s_load_dwordx2 s[10:11], s[0:1], 8
        s_lshl_b32 s12, s2, 16
        v_lshrrev_b32 v1, 6, v0
        v_and_b32 v2, 63, v0
        v_lshlrev_b32 v1, 13, v1
        v_lshl_add_u32 v1, v2, 4, v1
        v_add_u32 v1, s12, v1
        v_add_u32 v2, 4096, v1
        s_waitcnt lgkmcnt(0)""")
        for x in range(8):
            if x >= 3: a("s_waitcnt vmcnt(2)")
            a(f"global_load_dwordx4 {vr(8+4*x)}, v{1 + (x>>2)}, s[10:11] offset:{1024*(x&3)} {P['pre']}")
        a("s_waitcnt vmcnt(0)\ns_barrier\ns_memrealtime s[84:85]\nv_lshrrev_b32 v1, 6, v0\ns_nop 1\nv_readfirstlane_b32 s3, v1\ns_waitcnt lgkmcnt(0)\ns_cmp_eq_u32 s3, 1\ns_cselect_b32 s84, s84, 0")
    assert P["role_bit"] == 0 and P["hmap"] == 1
    a(f"""s_load_dwordx4 s[48:51], s[0:1], 16
    s_load_dwordx4 s[40:43], s[0:1], 0
    s_load_dwordx2 s[{SW}:{SW+1}], s[0:1], 104
    v_lshrrev_b32 v1, 6, v0""")
    if P["prefetch"]:
        a(f"""s_cmp_ge_u32 s2, {P['pf_wgs']}
        s_cbranch_scc1 L_nopf
        s_getpc_b64 s[10:11]
        L_pc:
        v_lshlrev_b32 v4, 6, v0
        v_min_u32 v4, L_codeend - L_pc - 4, v4
        global_load_dword v255, v4, s[10:11]
        L_nopf:""")
    a(f"""v_readfirstlane_b32 s3, v1
    s_lshr_b32 s5, s2, 4
    s_cmp_ge_u32 s5, 16
    s_cbranch_scc1 L_end
    v_and_b32 v0, 63, v0
    s_and_b32 s4, s2, 7""")
    if P["ent"] == 2:
        a(f"""s_bitcmp1_b32 s2, 3
        s_cbranch_scc0 L_WGT
        s_cmp_ge_u32 s3, 4
        s_cbranch_scc1 L_ATT_stub
        v_lshrrev_b32 v4, 1, v0
        v_and_b32 v5, 1, v0
        v_lshlrev_b32 v4, 11, v4
        v_lshl_add_u32 v4, v5, 7, v4
        v_bfe_u32 v5, v0, 1, 2
        v_mad_u32_u24 v5, v5, {P["hc"]}, s4
        v_and_b32 v5, 7, v5
        v_lshl_add_u32 v4, v5, 8, v4
        s_lshl2_add_u32 s16, s5, s3
        v_lshl_add_u32 v126, s16, 16, v4
        s_waitcnt lgkmcnt(0)
        global_load_dword v121, v126, s[48:49]""")
        if not P["pk_late"]: a("global_load_dword v127, v126, s[50:51]")
        a("s_branch L_ATT")
    else:
        a(f"""    s_cmp_ge_u32 s3, 4
    s_cbranch_scc1 L_go
    v_lshrrev_b32 v4, 1, v0
    v_and_b32 v5, 1, v0
    v_lshlrev_b32 v4, 11, v4
    s_lshl_b32 s17, s4, 8
    v_lshl_add_u32 v4, v5, 7, v4
    s_lshr_b32 s16, s2, 3
    s_lshl2_add_u32 s16, s16, s3
    s_lshl_b32 s16, s16, 15
    s_add_u32 s16, s16, s17
    v_add_u32 v5, s16, v4
    s_lshl2_add_u32 s16, s5, s3
    s_lshl_b32 s16, s16, 16
    s_add_u32 s16, s16, s17
    v_add_u32 v126, s16, v4
    s_mov_b32 exec_hi, 0
    s_waitcnt lgkmcnt(0)
    global_load_dword v121, v5, s[48:49]
    s_mov_b64 exec, -1
    s_bitcmp1_b32 s2, 3
    s_cbranch_scc0 L_WGT""")
        if not P["pk_late"]: a("global_load_dword v127, v126, s[50:51]")
        a("""s_branch L_ATT
    L_go:
    s_bitcmp1_b32 s2, 3
    s_cbranch_scc1 L_ATT_stub""")
    def decode():
        a(f"""s_lshr_b32 s7, s5, 2
        s_mul_i32 s8, s7, {P["hc"]}
        s_add_u32 s8, s8, s4
        s_and_b32 s8, s8, 7
        s_lshl3_add_u32 s7, s7, s8
        s_and_b32 s8, s5, 3
        s_lshl_b32 s17, s7, 8
        v_and_b32 v2, 15, v0
        v_lshrrev_b32 v3, 4, v0""")
    def ptrs():
        a(f"""s_mov_b64 s[{SK}:{SK+1}], s[50:51]
        s_mov_b64 s[{SC}:{SC+1}], s[42:43]""")

    def common():
        a("s_mov_b32 s28, 0")
        srd(SW, WS_REC)
        a("v_lshlrev_b32 v41, 5, v2\nv_lshl_add_u32 v41, v3, 4, v41")

    sect[0] = "A"
    PART = 0
    XA = """s_lshl_b32 s11, s3, 7
    v_lshlrev_b32 v4, 4, v0
    v_lshl_add_u32 v5, s8, 2, v2
    v_and_b32 v5, 15, v5
    v_lshl_add_u32 v5, v3, 4, v5
    v_lshlrev_b32 v5, 1, v5"""
    a("L_WGT:")
    if P["xfast"]:
        a(f"""s_cmp_eq_u32 s3, 7
        s_cbranch_scc1 L_warm
        L_WGT1:
        s_lshl_b32 s8, s5, 2
        v_add_u32 v5, s8, v0
        v_lshlrev_b32 v4, 4, v0
        v_bfi_b32 v5, 15, v5, v0
        s_lshl_b32 s11, s3, 7
        v_lshl_add_u32 v5, v5, 1, s11
        s_waitcnt lgkmcnt(0)
        global_load_dwordx4 v[8:11], v4, s[40:41]
        global_load_ushort v12, v5, s[40:41]""")
    decode()
    a(f"""s_lshl_b32 s10, s3, 19
    s_lshl_b32 s11, s8, 15
    s_add_u32 s10, s10, s11
    s_add_u32 s10, s10, s17
    {"" if P["xfast"] else XA}
    v_lshlrev_b32 v6, 17, v3
    v_lshl_add_u32 v6, v2, 4, v6
    s_movk_i32 s12, 0x2000""")
    def uk_loads():
        srd(SK, 4 << 20)
        a(f"""s_lshl3_add_u32 s13, s8, s3
        s_lshl_b32 s13, s13, 17
        s_add_u32 s13, s13, s17
        s_lshl_b32 s14, s3, 12
        s_add_u32 m0, s14, {X}
        v_lshlrev_b32 v50, 2, v3
        v_xor_b32 v50, v50, v2
        v_lshlrev_b32 v50, 4, v50
        v_lshl_add_u32 v48, v3, 13, v50""")
        for rg in range(4):
            if rg: a(f"v_xor_b32 v49, {16*rg}, v48\ns_addk_i32 m0, 0x400\ns_add_u32 s13, s13, 0x8000")
            a(f"buffer_load_dwordx4 v{49 if rg else 48}, {sr(SK)}, s13 offen {P['uk_pol']} lds")
    UK = 0 if P["uk_first"] else 4
    xl = [f"buffer_load_dwordx4 v[8:11], v4, {sr(SX)}, 0 offen", f"buffer_load_ushort v12, v5, {sr(SX)}, s11 offen"]
    if P["wpq"]:
        a(f"""v_bfe_u32 v7, v0, 1, 2
        v_lshlrev_b32 v7, 13, v7
        v_lshl_add_u32 v7, v3, 17, v7
        v_and_b32 v13, 1, v0
        v_lshl_add_u32 v7, v13, 7, v7""")
    if not P["xfast"]: a("s_waitcnt lgkmcnt(0)")
    ptrs()
    srd(SQ, 4 << 20)
    if P["xfast"]: a("s_branch L_WGT2\nL_warm:\ns_branch L_WGT1\nL_WGT2:")
    else:
        srd(SX, 1024)
        for l in xl: a(l)
    if P["x_bar"]: a("s_barrier")
    if P["uk_first"]:
        uk_loads()
        if P["uk_first"] == 2: a("s_barrier")
    if P["wpq"]:
        a(f"""s_mov_b32 exec_lo, {0x000f000f if P["pq"] else 0x00ff00ff}
        s_mov_b32 exec_hi, {0x000f000f if P["pq"] else 0x00ff00ff}
        buffer_load_dword v254, v7, {sr(SQ)}, s10 offen
        s_mov_b64 exec, -1""")
        if P.get("wpq_bar"): a("s_barrier")
    for t in range(16):
        a(f"buffer_load_dwordx4 {vr(64+4*t)}, v6, {sr(SQ)}, s10 offen {P['first_pol'] if t < (2 if P['pq'] else 4) else P['wq_pol']}")
        if t < 15:
            if t & 3 == 3: a(f"s_cmp_eq_u32 s8, {3-(t>>2)}\ns_cselect_b32 s13, {(-15*8192) & 0xffffffff}, s12\ns_add_u32 s10, s10, s13")
            else: a("s_add_u32 s10, s10, s12")
        if t in P["wq_bars"]: a("s_barrier")
        if t == min(3, P["ln_at"]):
            ep_load()
            if P["w1pf_at"] == "7":
                a(f"s_load_dwordx2 s[{SG}:{SG+1}], s[0:1], 56"); srd(SG, 512*1792*2)
            stamp(1)
            common()
            delta_masks(32, 36)
        if t == P["ln_at"]:
            a(f"s_waitcnt vmcnt({t+1 + (1 if P['wpq'] else 0) + 4 - UK})")
            if P["fine"]: stamp(5)
            ln_stats(8, 16, 24)
            a("v_lshlrev_b32 v12, 16, v12\nv_sub_f32 v12, v12, v24")
            rnd_bf16(12, 12)
            a("v_mul_f32 v12, v12, v25\nv_cvt_pk_bf16_f32 v12, v12, v12")
            a("s_cmp_lg_u32 s3, 3\ns_cbranch_scc1 L_noxn")
            for i in range(8): a(f"v_sub_f32 v{16+i}, v{16+i}, v24")
            for i in range(4): a(f"v_cvt_pk_bf16_f32 v{56+i}, v{16+2*i}, v{17+2*i}")
            for i in range(4): unpack2(16+2*i, 56+i)
            for i in range(8): a(f"v_mul_f32 v{16+i}, v{16+i}, v25")
            for i in range(4): a(f"v_cvt_pk_bf16_f32 v{56+i}, v{16+2*i}, v{17+2*i}")
            a("L_noxn:")
            if P["dpp_early"]:
                for t2 in range(16):
                    for dw in range(4):
                        a(f"v_and_b32_dpp v{128+4*t2+dw}, v12, v{32+dw} row_newbcast:{t2} {DPPM}")
    if P["fine"]: stamp(6)
    if not P["uk_first"]: uk_loads()
    if P["w1pf_at"] == "7":
        a(f"""s_mul_i32 s13, s8, {128*3584}
        s_lshr_b32 s14, s5, 2
        s_sub_u32 s15, s4, {1 if P["nox"] == 0 else 0}
        s_lshl2_add_u32 s14, s15, s14
        s_lshl_b32 s14, s14, 7
        s_add_u32 s13, s13, s14
        s_cmp_eq_u32 s4, {P["nox"]}
        s_cselect_b32 s13, 0x7ff00000, s13
        s_cmp_eq_u32 s3, 7
        s_cselect_b32 s13, s13, 0x7ff00000
        s_add_u32 s14, s13, {64*3584}
        v_mul_u32_u24 v51, 3584, v0
        s_waitcnt lgkmcnt(0)
        buffer_load_dword v52, v51, {sr(SG)}, s13 offen
        buffer_load_dword v53, v51, {sr(SG)}, s14 offen""")
        UK += 2
    a("s_lshl_b32 s12, s3, 9\nv_add_u32 v42, s12, v41")
    for t in range(16):
        for dw in range(4):
            if not P["dpp_early"]: a(f"v_and_b32_dpp v{128+4*t+dw}, v12, v{32+dw} row_newbcast:{t} {DPPM}")
        if t >= 1:
            a(f"s_waitcnt vmcnt({15-(t-1)+UK})")
            a(f"v_mfma_f32_16x16x32_bf16 v[44:47], {vr(128+4*(t-1))}, {vr(64+4*(t-1))}, {'0' if t == 1 else 'v[44:47]'}")
    a(f"s_waitcnt vmcnt({UK})\nv_mfma_f32_16x16x32_bf16 v[44:47], {vr(128+60)}, {vr(64+60)}, v[44:47]")
    a("s_waitcnt lgkmcnt(0)")
    tags(True)
    a(f"""s_mov_b32 exec_hi, 0
    ds_write_b128 v42, v[44:47] offset:{PART}
    s_mov_b64 exec, -1""")
    stamp(2)
    a(f"""s_sub_u32 s9, s3, 5
    s_cmp_lt_u32 s9, 2
    s_cbranch_scc1 L_A2
    s_waitcnt vmcnt({2 if P["w1pf_at"] == "7" else 0}) lgkmcnt(0)
    s_barrier
    s_cmp_lt_u32 s3, 4
    s_cbranch_scc1 L_S1
    s_branch L_WO""")
    a("L_A2:")
    a(f"""s_lshl_b32 s12, s9, 14
    s_add_u32 s12, s12, {X}
    v_and_b32 v4, 3, v0
    v_bfe_u32 v5, v0, 2, 2
    v_lshl_or_b32 v6, v4, 2, v5
    v_xor_b32 v6, v6, v3
    v_lshlrev_b32 v6, 4, v6
    v_lshl_add_u32 v6, v5, 10, v6
    v_lshl_add_u32 v6, v4, 8, v6
    v_add_u32 v10, s12, v6
    v_xor_b32 v11, 64, v10
    v_xor_b32 v12, 0x80, v10
    v_xor_b32 v13, 0xc0, v10
    s_lshl_b32 s13, s9, 8
    s_add_u32 s13, s13, 8192
    v_lshl_add_u32 v5, v3, 4, s13
    v_and_b32 v14, 31, v0
    v_lshl_add_u32 v14, v14, 3, s13
    v_lshlrev_b32 v15, 4, v0
    s_lshl1_add_u32 s11, s8, s9
    s_lshl_b32 s11, s11, 7
    s_lshl_b32 s10, s7, 10
    s_add_u32 s10, s10, s11
    s_add_u32 s10, s10, {QL}
    v_lshlrev_b32 v4, 1, v0
    v_cmp_eq_u32 s[14:15], 1, v3
    v_cmp_eq_u32 s[16:17], 2, v3
    v_cmp_eq_u32 s[18:19], 3, v3
    v_bfe_u32 v7, v0, 1, 2
    v_add_u32 v7, s{sF}, v7
    v_and_b32 v8, 1, v0
    v_lshrrev_b32 v7, v8, v7
    v_and_b32 v7, 1, v7
    v_xor_b32 v8, 1, v7
    v_lshlrev_b32 v8, 16, v8
    s_waitcnt vmcnt({2 if P["w1pf_at"] == "7" else 0}) lgkmcnt(0)""")
    stamp(3)
    a("s_barrier")
    for u in range(4): a(f"ds_read_b128 {vr(128+4*u)}, v15 offset:{PART + 1024*u}")
    fr = [(T, t) for t in range(4) for T in range(4)]
    for (T, t) in fr[:11]: a(f"ds_read_b128 {vr(64+16*T+4*t)}, v{10+t} offset:{4096*T}")
    a("s_waitcnt lgkmcnt(11)")
    a("""v_pk_add_f32 v[128:129], v[128:129], v[132:133]
    v_pk_add_f32 v[130:131], v[130:131], v[134:135]
    v_pk_add_f32 v[136:137], v[136:137], v[140:141]
    v_pk_add_f32 v[138:139], v[138:139], v[142:143]
    v_pk_add_f32 v[128:129], v[128:129], v[136:137]
    v_pk_add_f32 v[130:131], v[130:131], v[138:139]""")
    for q in range(4): a(f"v_mov_b32 v{132+q}, v{128+q}")
    for q in range(4): a(f"v_permlane32_swap_b32 v{132+q}, v{128+q}")
    a("""v_pk_add_f32 v[128:129], v[128:129], v[132:133]
    v_pk_add_f32 v[130:131], v[130:131], v[134:135]
    v_cvt_pk_bf16_f32 v128, v128, v129
    v_cvt_pk_bf16_f32 v129, v130, v131
    ds_write_b64 v14, v[128:129]""")
    for t in range(4): a(f"ds_read_b128 {vr(16+4*t)}, v5 offset:{64*t}")
    for (T, t) in fr[11:]: a(f"ds_read_b128 {vr(64+16*T+4*t)}, v{10+t} offset:{4096*T}")
    for t in range(4):
        a(f"s_waitcnt lgkmcnt({[8, 7, 4, 0][t]})")
        for T in range(4):
            a(f"v_mfma_f32_16x16x32_bf16 {vr(32+4*T)}, {vr(16+4*t)}, {vr(64+16*T+4*t)}, {'0' if t == 0 else vr(32+4*T)}")
    qs = math.log2(math.e) / math.sqrt(128.0)
    a(f"""v_cndmask_b32 v9, v32, v36, s[14:15]
    v_cndmask_b32 v9, v9, v40, s[16:17]
    v_cndmask_b32 v9, v9, v44, s[18:19]
    v_mul_f32 v9, {f2u(qs)}, v9
    v_add_u32 v9, v9, v8
    v_lshrrev_b32 v9, 17, v9
    v_lshl_or_b32 v9, v9, 1, v7
    s_nop 0""")
    if P["ql_delay"]:
        a("s_barrier")
        for _ in range(P["ql_delay"]): a("s_sleep 8")
    a(f"buffer_store_short v9, v4, {sr(SW)}, s10 offen sc1")
    stamp(4)
    if P["ql_delay"]: a(f"s_load_dwordx2 s[{SG}:{SG+1}], s[0:1], 40\ns_branch L_WO1")
    a("s_branch L_WO")

    sect[0] = "C"
    PX, MX, LX, FX = X, X + 8192, X + 9216, X + 12288
    a("L_ATT_stub:\ns_branch L_ATT_help\nL_ATT:")
    decode(); ptrs()
    a("s_lshl4_add_u32 s9, s4, s5")
    srd(SC, 16 << 20)
    common()
    a(f"""s_lshl2_add_u32 s10, s9, s3
    s_lshl_b32 s10, s10, 15
    s_lshl_b32 s11, s3, 13
    v_lshlrev_b32 v4, 2, v3
    v_xor_b32 v4, v4, v2
    v_lshlrev_b32 v4, 4, v4
    v_lshl_add_u32 v32, v3, 10, v4
    v_xor_b32 v33, 32, v32
    v_xor_b32 v34, 16, v32
    v_xor_b32 v35, 48, v32
    s_mov_b32 m0, s11
    s_nop 0""")
    seq = []
    def c_pos(n):
        G = P["rgmajor"]
        return (n // (8*G))*G + n % G, (n % (8*G)) // G
    def c_load(n):
        cb, rg = c_pos(n)
        a(f"buffer_load_dwordx4 v{32+(rg&3)}, {sr(SC)}, s10 offen {'nt' if n < 32 - P['c_keep'] else ''} lds")
        seq.append(n)
        if n < 31:
            cb2, rg2 = c_pos(n+1)
            dm = (cb2-cb)*32768 + (rg2-rg)*1024; dg = (cb2-cb)*256 + (rg2-rg)*4096
            a("s_add_u32 m0, m0, s15" if dm == 32768 else (f"s_addk_i32 m0, {dm}" if -32768 <= dm < 32768 else f"s_add_u32 m0, m0, {dm & 0xffffffff}"))
            a(f"s_addk_i32 s10, {dg}")
        if n == P["q_at"]: a("ds_write_b32 v125, v125")
    def c_wait(n): a(f"s_waitcnt vmcnt({len(seq) - 1 - seq.index(n)})")
    seq.append("pq")
    if not P["pk_late"]: seq.append("pk")
    if P["pk_late"] == "a":
        a(f"global_load_dword v127, v126, s[{SK}:{SK+1}]"); seq.append("pk")
    a("s_mov_b32 s15, 0x8000")
    issued = 0
    for n in range(P["pf_ramp"][0]): c_load(n); issued += 1
    a(f"""s_lshl_b32 s16, s3, 11
    s_add_u32 s16, s16, {X}
    v_mov_b32 v125, s16
    v_mov_b32 v124, 0
    ds_write_b32 v125, v124""")
    ep_load()
    if P["zpf"]:
        a(f"""s_load_dwordx2 s[{SG}:{SG+1}], s[0:1], 40
        s_load_dwordx2 s[{SQ}:{SQ+1}], s[0:1], 72
        s_load_dwordx2 s[72:73], s[0:1], 32
        s_lshl2_add_u32 s19, s9, s3
        s_lshl_b32 s19, s19, 12
        s_lshl2_add_u32 s29, s7, s8
        s_lshl2_add_u32 s29, s29, s3
        s_lshl_b32 s29, s29, 13
        v_lshlrev_b32 v120, 7, v0""")
        srd(SG, 4 << 20); srd(SQ, 1792*512*2); srd(72, 4 << 20)
    stamp(1)
    a(f"""v_and_b32 v4, 3, v0
    v_lshrrev_b32 v1, 5, v0
    v_bfe_u32 v5, v0, 2, 1
    v_lshl_or_b32 v5, v4, 1, v5
    v_bfe_u32 v6, v0, 3, 1
    v_lshl_or_b32 v5, v5, 1, v6
    v_xor_b32 v5, v5, v1
    v_lshlrev_b32 v5, 4, v5
    v_bfe_u32 v6, v0, 2, 3
    v_lshl_add_u32 v5, v6, 10, v5
    v_lshl_add_u32 v5, v4, 8, v5
    v_add_u32 v8, s11, v5
    v_xor_b32 v5, v2, v1
    v_lshlrev_b32 v5, 4, v5
    v_and_b32 v4, 31, v0
    v_lshl_add_u32 v5, v4, 8, v5
    v_add_u32 v16, {X}, v5""")
    for x in range(1, 8): a(f"v_xor_b32 v{8+x}, {32*x}, v8\nv_xor_b32 v{16+x}, {32*x}, v16")
    for x in range(8): a(f"v_add_u32 v{24+x}, 0x10000, v{8+x}")
    a(f"""v_lshlrev_b32 v6, 4, v4
    v_add_u32 v96, {MX}, v6
    v_lshl_add_u32 v6, v1, 9, v6
    s_lshl2_add_u32 s13, s3, {MX}
    v_add_u32 v97, s13, v6
    s_lshl_b32 s13, s3, 11
    s_add_u32 s13, s13, {PX}
    v_lshl_add_u32 v99, v0, 4, s13
    s_waitcnt lgkmcnt(0)""")
    if P["pk_late"] == "ep" and not P["uk_first"]:
        a(f"global_load_dword v127, v126, s[{SK}:{SK+1}]"); seq.append("pk")
    tags(False)
    lq = []
    def lop(text, key): a(text); lq.append(key)
    def lwait(items):
        last = max([i for i, x in enumerate(lq) if x in items], default=-1)
        if last >= 0: a(f"s_waitcnt lgkmcnt({min(15, len(lq) - 1 - last)})")
        del lq[:last+1]
    def c_read(cb):
        for t in range(8*cb, 8*cb+8):
            a(f"ds_read_b128 {vr(128+4*t)}, v{(8 if cb < 2 else 24) + (t&7)} offset:{32768*(cb&1)}")
    def blk_done(b): return max(n for n in range(32) if c_pos(n)[0] == b) + 1 if b < 4 else 99
    for key, d in (("pq", P["pf_ramp"][1]), ("pk", P["pf_ramp"][2])):
        if key in seq: c_wait(key)
        while issued < d: c_load(issued); issued += 1
    landed = 0; pre = 0
    while issued < 32:
        c_wait(landed); landed += 1
        while issued < 32 and issued - landed < P["pf_ramp"][2]:
            c_load(issued); issued += 1
        if landed == P["bi_at"]: a("s_barrier")
        if landed >= blk_done(pre): c_read(pre); pre += 1
    stamp(2)
    if P["zpf"]:
        a("s_barrier")
        if P["zpf"] & 1: a(f"buffer_load_dword v121, v120, {sr(SG)}, s29 offen"); seq.append("z1")
        if P["zpf"] & 2: a(f"s_mov_b32 exec_hi, 0\nbuffer_load_dword v122, v120, {sr(SQ)}, s19 offen\ns_mov_b64 exec, -1"); seq.append("z2")
        if P["zpf"] & 4: a(f"buffer_load_dword v123, v126, {sr(72)}, s18 offen"); seq.append("z4")
    while pre < 4:
        c_wait(blk_done(pre) - 1)
        if pre == 3 and P["tr_pre"]: a("s_barrier")
        c_read(pre); pre += 1
    a(f"s_setprio {P['qk_prio']}\ns_barrier")
    stamp(3)
    NS = 8
    def q_read(t): lop(f"ds_read_b128 {vr(32+4*(t % NS))}, v{16+(t&7)} offset:{8192*(t>>3)}", ("Q", t))
    rd = 0
    for t in range(32):
        if t == P["b1_at"]:
            assert rd <= 16
            a("s_barrier")
        while rd < min(32 if t >= P["b1_at"] else 16, t + P["q_ah"] + 1): q_read(rd); rd += 1
        if t == P["ba_at"]:
            assert rd == 32
            a("s_waitcnt lgkmcnt(0)"); del lq[:]
            stamp(4)
            a("s_barrier")
        lwait([("Q", t)])
        a(f"v_mfma_f32_32x32x16_bf16 {vr(64,16)}, {vr(128+4*t)}, {vr(32+4*(t % NS))}, {'0' if t == 0 else vr(64,16)}")
    stamp(5); fs(1)
    a(f"""v_max3_f32 v4, v64, v65, v66
    v_max3_f32 v5, v67, v68, v69
    v_max3_f32 v6, v70, v71, v72
    v_max3_f32 v7, v73, v74, v75
    v_max3_f32 v4, v4, v76, v77
    v_max3_f32 v5, v5, v78, v79
    v_max3_f32 v4, v4, v5, v6
    v_max_f32 v20, v4, v7
    ds_write_b32 v97, v20""")
    fs(2)
    for r in range(0, 16, 2):
        a(f"v_pk_add_f32 {vr(64+r,2)}, {vr(64+r,2)}, v[20:21] op_sel_hi:[1,0] neg_lo:[0,1] neg_hi:[0,1]")
    for r in range(16):
        if r == P["bb_at"]:
            a("s_waitcnt lgkmcnt(0)"); fs(3)
            a("s_barrier"); fs(4)
            a("ds_read_b128 v[8:11], v96\nds_read_b128 v[12:15], v96 offset:512")
        a(f"v_exp_f32 v{64+r}, v{64+r}")
    a("s_waitcnt lgkmcnt(0)"); fs(5)
    a("""v_max3_f32 v4, v8, v9, v10
    v_max3_f32 v5, v11, v12, v13
    v_max3_f32 v4, v4, v14, v15
    v_max_f32 v8, v4, v5
    v_sub_f32 v20, v20, v8
    v_exp_f32 v20, v20""")
    if P["pw64"]:
        for x in range(4):
            for r in (4*x, 4*x+2): a(f"v_pk_mul_f32 {vr(64+r,2)}, {vr(64+r,2)}, v[20:21] op_sel_hi:[1,0]")
            for r in (4*x, 4*x+2): a(f"v_cvt_pk_bf16_f32 v{80+r//2}, v{64+r}, v{65+r}")
            a(f"ds_write_b64 v99, {vr(80+2*x,2)} offset:{1024*(x>>1) + 8*(x&1)}")
    else:
        for hf in range(2):
            for r in range(8*hf, 8*hf+8, 2):
                a(f"v_pk_mul_f32 {vr(64+r,2)}, {vr(64+r,2)}, v[20:21] op_sel_hi:[1,0]")
            for r in range(8*hf, 8*hf+8, 2):
                a(f"v_cvt_pk_bf16_f32 v{80+r//2}, v{64+r}, v{65+r}")
            a(f"ds_write_b128 v99, {vr(80+4*hf)} offset:{1024*hf}")
    fs(6)
    a("""v_pk_add_f32 v[64:65], v[64:65], v[66:67]
    v_pk_add_f32 v[68:69], v[68:69], v[70:71]
    v_pk_add_f32 v[72:73], v[72:73], v[74:75]
    v_pk_add_f32 v[76:77], v[76:77], v[78:79]
    v_pk_add_f32 v[64:65], v[64:65], v[68:69]
    v_pk_add_f32 v[72:73], v[72:73], v[76:77]
    s_waitcnt lgkmcnt(0)""")
    fs(7)
    a("""s_setprio 0
    s_barrier""")
    stamp(6); fs(8)
    a("""v_add_f32 v64, v64, v65
    v_add_f32 v72, v72, v73
    v_add_f32 v64, v64, v72
    ds_write_b32 v97, v64 offset:1024
    s_waitcnt lgkmcnt(0)
    s_barrier""")
    a("s_setprio 0\ns_cmp_lg_u32 s3, 0\ns_cbranch_scc1 L_FIN")
    a(f"""ds_read_b128 v[32:35], v96 offset:1024
    ds_read_b128 v[36:39], v96 offset:1536
    v_lshlrev_b32 v5, 4, v0
    v_mov_b32 v9, s{sF}
    v_mov_b32 v11, s{sF}
    s_lshl_b32 s12, s9, 9
    s_add_u32 s12, s12, {ST}
    s_waitcnt lgkmcnt(0)
    v_add_f32 v32, v32, v33
    v_add_f32 v34, v34, v35
    v_add_f32 v36, v36, v37
    v_add_f32 v38, v38, v39
    v_add_f32 v32, v32, v34
    v_add_f32 v36, v36, v38
    v_add_f32 v10, v32, v36
    s_mov_b32 exec_hi, 0
    buffer_store_dwordx4 v[8:11], v5, {sr(SW)}, s12 offen sc1
    s_mov_b64 exec, -1""")
    stamp(7)

    sect[0] = "F"
    a("L_FIN:")
    if P["cyc"]: a("s_barrier")
    if P["fin"] == "old":
        a(f"""s_cmp_lt_u32 s5, 14
        s_cbranch_scc1 L_exit
        s_load_dwordx2 s[{SC}:{SC+1}], s[0:1], 80
        s_load_dwordx2 s[{SQ}:{SQ+1}], s[0:1], 88
        s_sub_u32 s10, s5, 14
        s_lshl1_add_u32 s10, s4, s10
        s_lshl_b32 s11, s10, 7
        s_lshl_b32 s12, s3, 16
        s_add_u32 s11, s11, s12
        s_add_u32 s11, s11, {DP}
        s_add_u32 s12, s11, 0x4000
        s_add_u32 s13, s11, 0x8000
        s_add_u32 s14, s11, 0xc000
        s_lshl_b32 s16, s10, 6
        v_lshrrev_b32 v4, 3, v0
        v_and_b32 v5, 7, v0
        v_lshlrev_b32 v4, 11, v4
        v_lshl_add_u32 v4, v5, 4, v4
        v_lshlrev_b32 v12, 4, v5
        v_add_u32 v12, {FX}, v12
        s_lshl_b32 s17, s3, 7
        v_add_u32 v13, s17, v12
        v_lshlrev_b32 v5, 3, v5
        v_mov_b32 v6, 0xff""")
        srd(SX, 1024); srd(SC, 1024); srd(SQ, 1024)
        a(f"""s_waitcnt lgkmcnt(0)
        buffer_load_dwordx2 v[14:15], v5, {sr(SX)}, s16 offen
        buffer_load_dwordx2 v[16:17], v5, {sr(SC)}, s16 offen""")
        if P["out_touch"]: a(f"buffer_load_dwordx2 v[30:31], v5, {sr(SQ)}, s16 offen {P['out_touch']}")
        a("s_waitcnt vmcnt(0)")
        unpack2(20, 14); unpack2(22, 15); unpack2(24, 16); unpack2(26, 17)
        a("v_pk_add_f32 v[20:21], v[20:21], v[24:25]\nv_pk_add_f32 v[22:23], v[22:23], v[26:27]")
        a("L_fin:")
        for x in range(4): a(f"buffer_load_dwordx4 {vr(64+4*x)}, v4, {sr(SW)}, s{11+x} offen {P['fin_pol']}")
        for x in range(4):
            a(f"s_waitcnt vmcnt({3-x})")
            check(7, 64+4*x, 4, sF, x == 0)
            if x: a(f"v_pk_add_f32 v[64:65], v[64:65], {vr(64+4*x,2)}\nv_pk_add_f32 v[66:67], v[66:67], {vr(66+4*x,2)}")
        a("v_and_b32 v7, v6, v7\nv_cmp_ne_u32 vcc, 0, v7")
        spin("L_fin", "s_cbranch_vccnz")
        for q in range(4): a(f"v_add_f32_dpp v{64+q}, v{64+q}, v{64+q} row_ror:8 {DPPM}")
        for sw in ("v_permlane16_swap_b32", "v_permlane32_swap_b32"):
            for q in range(4): a(f"v_mov_b32 v{68+q}, v{64+q}")
            for q in range(4): a(f"{sw} v{68+q}, v{64+q}")
            a("v_pk_add_f32 v[64:65], v[64:65], v[68:69]\nv_pk_add_f32 v[66:67], v[66:67], v[70:71]")
        a(f"""s_mov_b64 exec, 0xff
        ds_write_b128 v13, v[64:67]
        s_waitcnt lgkmcnt(0)
        s_barrier
        s_cmp_lg_u32 s3, 0
        s_cbranch_scc1 L_exit""")
        for x in range(1, 4): a(f"ds_read_b128 {vr(64+4*x)}, v12 offset:{128*x}")
        a("v_pk_add_f32 v[20:21], v[20:21], v[64:65]\nv_pk_add_f32 v[22:23], v[22:23], v[66:67]\ns_waitcnt lgkmcnt(0)")
        stamp(8)
        a(f"""v_pk_add_f32 v[68:69], v[68:69], v[72:73]
        v_pk_add_f32 v[70:71], v[70:71], v[74:75]
        v_pk_add_f32 v[20:21], v[20:21], v[76:77]
        v_pk_add_f32 v[22:23], v[22:23], v[78:79]
        v_pk_add_f32 v[20:21], v[20:21], v[68:69]
        v_pk_add_f32 v[22:23], v[22:23], v[70:71]
        v_cvt_pk_bf16_f32 v12, v20, v21
        v_cvt_pk_bf16_f32 v13, v22, v23
        buffer_store_dwordx2 v[12:13], v5, {sr(SQ)}, s16 offen {P['out_pol']}
        s_cmp_lg_u32 s10, 0
        s_cbranch_scc1 L_fin_done
        s_mov_b64 exec, 1
        {"s_mov_b32 s88, 1" if P["probe"] else ""}
        v_mov_b32 v14, s{sF}
        buffer_store_dword v14, v5, {sr(SW)}, 0 offen offset:{EP} {P['out_pol']}
        L_fin_done:
        s_mov_b64 exec, -1""")
    else:
        nw = P["fin"]
        k0 = 16 - 4 // nw
        a(f"""s_cmp_lt_u32 s5, {k0}
        s_cbranch_scc1 L_exit
        s_sub_u32 s12, 3, s3
        s_cmp_ge_u32 s12, {nw}
        s_cbranch_scc1 L_exit
        s_load_dwordx2 s[{SC}:{SC+1}], s[0:1], 80
        s_load_dwordx2 s[{SQ}:{SQ+1}], s[0:1], 88
        s_sub_u32 s10, s5, {k0}
        s_mul_i32 s10, s10, {nw}
        s_add_u32 s10, s10, s12
        s_lshl2_add_u32 s10, s4, s10
        s_lshl_b32 s11, s10, 6
        s_add_u32 s64, s11, {DP}""")
        for x in range(1, 8): a(f"s_add_u32 s{64+x}, s64, {0x8000*x}")
        a(f"""s_lshl_b32 s16, s10, 5
        v_lshrrev_b32 v4, 2, v0
        v_and_b32 v5, 3, v0
        v_lshlrev_b32 v4, 11, v4
        v_lshl_add_u32 v4, v5, 4, v4
        v_lshl_add_u32 v5, v5, 2, v3
        v_lshlrev_b32 v5, 1, v5
        v_mov_b32 v6, 0xff""")
        srd(SX, 1024); srd(SC, 1024); srd(SQ, 1024)
        if P["fin_wait"] and not P["cyc"]: a("s_barrier")
        a(f"""s_waitcnt lgkmcnt(0)
        buffer_load_ushort v14, v5, {sr(SX)}, s16 offen
        buffer_load_ushort v15, v5, {sr(SC)}, s16 offen""")
        if P["out_touch"]: a(f"buffer_load_ushort v30, v5, {sr(SQ)}, s16 offen {P['out_touch']}")
        a("""s_waitcnt vmcnt(0)
        v_lshlrev_b32 v14, 16, v14
        v_lshlrev_b32 v15, 16, v15
        v_add_f32 v14, v14, v15
        L_fin:""")
        for x in range(8): a(f"buffer_load_dwordx4 {vr(64+4*x)}, v4, {sr(SW)}, s{64+x} offen {P['fin_pol']}")
        for x in range(8):
            a(f"s_waitcnt vmcnt({7-x})")
            check(7, 64+4*x, 4, sF, x == 0)
            if x: a(f"v_pk_add_f32 v[64:65], v[64:65], {vr(64+4*x,2)}\nv_pk_add_f32 v[66:67], v[66:67], {vr(66+4*x,2)}")
        a("v_and_b32 v7, v6, v7\nv_cmp_ne_u32 vcc, 0, v7")
        a("v_permlane32_swap_b32 v64, v66\nv_permlane32_swap_b32 v65, v67")
        spin("L_fin", "s_cbranch_vccnz")
        stamp(8)
        a(f"""v_pk_add_f32 v[64:65], v[64:65], v[66:67]
        v_permlane16_swap_b32 v64, v65
        v_add_f32 v64, v64, v65
        v_add_f32_dpp v64, v64, v64 row_ror:4 {DPPM}
        v_add_f32_dpp v64, v64, v64 row_ror:8 {DPPM}
        v_add_f32 v64, v64, v14
        v_cvt_pk_bf16_f32 v64, v64, v64
        s_mov_b32 exec_lo, 0x000f000f
        s_mov_b32 exec_hi, 0x000f000f
        buffer_store_short v64, v5, {sr(SQ)}, s16 offen {P['out_pol']}
        s_cmp_lg_u32 s10, 0
        s_cbranch_scc1 L_fin_done
        s_mov_b64 exec, 1
        {"s_mov_b32 s88, 1" if P["probe"] else ""}
        v_mov_b32 v14, s{sF}
        buffer_store_dword v14, v5, {sr(SW)}, 0 offen offset:{EP} {P['out_pol']}
        L_fin_done:
        s_mov_b64 exec, -1""")
    if P["lite"]:
        a(f"""s_waitcnt vmcnt(0)
        s_memrealtime s[82:83]
        s_lshl_b32 s10, s10, {4 if P["fin"] == "old" else 3}
        s_add_u32 s10, s10, {STAMP}
        s_waitcnt lgkmcnt(0)
        v_mov_b32 v4, 0
        v_mov_b32 v8, s80
        v_mov_b32 v9, s82
        v_mov_b32 v10, s80
        v_mov_b32 v11, s82
        {"buffer_store_dwordx4 v[8:11]" if P["fin"] == "old" else "buffer_store_dwordx2 v[8:9]"}, v4, {sr(SW)}, s10 offen""")
    if diag:
        a("s_waitcnt vmcnt(0)"); stamp(9)
    a("s_branch L_exit")

    sect[0] = "H"
    a("L_ATT_help:")
    decode()
    common()
    a("s_waitcnt lgkmcnt(0)")
    ep_load()
    a(f"""s_lshl4_add_u32 s9, s4, s5
    s_sub_u32 s10, s3, 4
    s_lshl_b32 s11, s10, 13
    s_add_u32 s12, s11, {QL}
    s_lshl_b32 s11, s10, 11
    s_add_u32 s13, s11, {X}
    s_and_b32 s14, s10, 1
    s_lshl_b32 s14, s14, 3
    v_lshlrev_b32 v4, 4, v0
    v_add_u32 v5, s13, v4
    v_xor_b32 v8, v2, v3
    v_xor_b32 v8, s14, v8
    v_lshlrev_b32 v8, 4, v8
    v_lshl_add_u32 v8, v3, 10, v8
    v_xor_b32 v9, 64, v8
    v_mov_b32 v6, 0x10001""")
    a(f"""v_bfe_u32 v4, v0, 2, 2
    v_bfe_u32 v7, v0, 4, 1
    v_bfe_u32 v12, v0, 1, 1
    v_lshl_or_b32 v12, v7, 1, v12
    v_lshl_or_b32 v12, v4, 2, v12
    v_lshlrev_b32 v12, 4, v12
    v_lshl_add_u32 v12, v4, 8, v12
    v_lshl_add_u32 v12, v7, 10, v12
    v_lshrrev_b32 v13, 5, v0
    v_lshl_add_u32 v12, v13, 12, v12
    v_and_b32 v4, 1, v0
    v_lshl_add_u32 v12, v4, 3, v12
    s_lshl_b32 s14, s10, 15
    v_add_u32 v24, s14, v12
    v_lshlrev_b32 v4, 4, v2
    v_lshl_add_u32 v1, v3, 19, v4
    v_lshl_add_u32 v4, v7, 9, v4
    v_lshl_add_u32 v4, v13, 10, v4
    v_add_u32 v98, {PX}, v4
    s_lshl_b32 s15, s9, 8
    s_add_u32 s14, s14, s15
    s_add_u32 s14, s14, {BP}""")
    for n in range(8):
        if n: a(f"v_xor_b32 v{24+n}, {32*n}, v24")
        a(f"v_xor_b32 v{100+n}, {32*n + 16}, v24")
    for hh in range(2):
        for r in range(4):
            a(f"s_add_u32 s{64+4*hh+r}, s14, {(16*hh + r)*131072}")
    a("s_waitcnt lgkmcnt(0)")
    tags(True)
    if P["tlb"]:
        a(f"""v_lshlrev_b32 v4, 20, v0
        s_mov_b64 exec, 15
        buffer_load_dword v110, v4, {sr(SW)}, s64 offen nt
        s_mov_b64 exec, -1""")
    a("s_barrier")
    a(f"""v_mov_b32 v16, s13
    L_qtrig:
    ds_read_b32 v17, v16
    s_waitcnt lgkmcnt(0)
    v_cmp_eq_u32 vcc, 0, v17
    s_sleep 1
    s_add_u32 s28, s28, 0x10000
    s_cbranch_scc1 L_exit
    s_cbranch_vccnz L_qtrig
    s_and_b32 s28, s28, 0xffff""")
    stamp(4)
    if P["q_prio"]: a("s_setprio 3")
    def qoff(r): return 1024*(r & 1) + 8192*(r >> 1)
    def q_dma(r): a(f"s_add_u32 m0, s13, {qoff(r)}\ns_add_u32 s15, s12, {4096*(r & 1) + 256*(r >> 1)}\nbuffer_load_dwordx4 v{8+(r&1)}, {sr(SW)}, s15 offen sc1 lds")
    for r in range(8): q_dma(r)
    fr = [(n, w) for n in range(8) for w in range(4)]
    def tr_read(n, w):
        for sec in range(2):
            a(f"ds_read_b64_tr_b16 {vr(128+16*n+4*w+2*sec,2)}, v{(100 if sec else 24)+n} offset:{8192*w + 2048*sec}")
    def q_valid(st):
        R = list(range(4*st, 4*st+4))
        for r in R:
            a(f"s_waitcnt vmcnt({7-r})\nds_read_b128 {vr(64+4*r)}, v5 offset:{qoff(r)}")
            if r > R[0]: a("s_waitcnt lgkmcnt(1)"); check(7, 64+4*(r-1), 4, sB, r == R[0]+1)
        a("s_waitcnt lgkmcnt(0)")
        check(7, 64+4*R[-1], 4, sB, False)
        a(f"v_and_b32 v7, v6, v7\nv_cmp_ne_u32 vcc, 0, v7\ns_cbranch_vccz L_qok{st}\ns_mov_b32 s16, 0")
        a(f"L_qfetch{st}:")
        for r in R:
            a(f"s_bitcmp1_b32 s16, {r}\ns_cbranch_scc0 L_qs{r}")
            q_dma(r)
            a(f"L_qs{r}:")
        a("s_waitcnt vmcnt(0)")
        for r in R: a(f"ds_read_b128 {vr(64+4*r)}, v5 offset:{qoff(r)}")
        a("s_mov_b32 s16, 0")
        for r in R:
            a(f"s_waitcnt lgkmcnt({R[-1]-r})")
            check(7, 64+4*r, 4, sB, True)
            a(f"v_and_b32 v7, v6, v7\nv_cmp_ne_u32 vcc, 0, v7\ns_cmp_lg_u64 vcc, 0\ns_cselect_b32 s17, {1<<r}, 0\ns_or_b32 s16, s16, s17")
        spin(f"L_qfetch{st}", "s_cbranch_scc1", "s_cmp_lg_u32 s16, 0")
        a(f"L_qok{st}:")
    q_valid(0)
    stamp(5)
    a("s_barrier")
    q_valid(1)
    a(f"s_setprio {P['pv_prio']}")
    for (n, w) in fr[:P["tr_mid"]]: tr_read(n, w)
    a("s_barrier")
    P["tr_pre"] = P["tr_mid"]
    for i_, (n, w) in enumerate(fr):
        if i_ == P["tr_split"][0]: a("s_barrier")
        if i_ == P["tr_split"][1]: a("s_barrier")
        if i_ >= P["tr_pre"]: tr_read(n, w)
    if P["cyc"]: stamp(2)
    for x in P["tr_split"]:
        if x >= 32: a("s_barrier")
    a("s_setprio 0\ns_waitcnt lgkmcnt(0)\ns_barrier")
    stamp(6)
    del lq[:]
    def p_read(hh, w): lop(f"ds_read_b128 {vr(32+16*hh+4*w)}, v98 offset:{2048*w + 256*hh}", ("P", hh, w))
    for w in range(4): p_read(0, w)
    def outblk(hh, r): return (8 if hh == 0 else 64) + 4*r
    def pack(hh, q):
        L = []
        for r in range(4):
            o = outblk(hh, r) + q
            L += [f"v_cvt_pk_bf16_f32 v{o}, v{64+32*hh+8*q+r}, v{64+32*hh+8*q+4+r}", f"v_bfi_b32 v{o}, v6, s{sB+q}, v{o}"]
        return L
    def ostore(hh, r): return f"buffer_store_dwordx4 {vr(outblk(hh, r))}, v1, {sr(SW)}, s{64+4*hh+r} offen sc1"
    order = [(hh, n, w) for hh in range(2) for n in range(8) for w in range(4)]
    GAP = 3
    F = []
    for q in range(3): F += [(8*q + 7 + GAP, l) for l in pack(0, q)]
    for r in range(4):
        F += [(31 + GAP + P["st_gap"]*r, l) for l in pack(0, 3)[2*r:2*r+2]] + [(0, ostore(0, r))]
    G2 = []
    for q in range(3): G2 += [(32 + 8*q + 7 + GAP, l) for l in pack(1, q)]
    for i_, (hh, n, w) in enumerate(order):
        lwait([("P", hh, w)])
        acc = 64 + 32*hh + 4*n
        a(f"v_mfma_f32_16x16x32_bf16 {vr(acc)}, {vr(32+16*hh+4*w)}, {vr(128+16*n+4*w)}, {'0' if w == 0 else vr(acc)}")
        if i_ == P["bd_at"]: a("s_barrier")
        if 3 <= i_ < 7: p_read(1, i_ - 3)
        if P["cyc"] and i_ == 31: stamp(1)
        used = 0
        while used < 2:
            if F and F[0][0] <= i_:
                l = F.pop(0)[1]; a(l); used += 0 if "store" in l else 1
            elif G2 and G2[0][0] <= i_ and not any("v64," in x[1] or True for x in F if "store" not in x[1] and x[0] <= 31 + GAP - 1):
                a(G2.pop(0)[1]); used += 1
            else: break
    stamp(7)
    for f in F + G2: a(f[1])
    pk = pack(1, 3)
    for r in range(4):
        a(pk[2*r]); a(pk[2*r+1]); a(ostore(1, r))
    stamp(8)
    if diag:
        a("s_waitcnt vmcnt(0)"); stamp(9)
    a("s_branch L_exit")

    sect[0] = "S"
    a("L_S1:")
    a(f"""s_load_dwordx2 s[{SG}:{SG+1}], s[0:1], 32
    s_load_dwordx2 s[{SX}:{SX+1}], s[0:1], 56
    s_load_dwordx2 s[{SQ}:{SQ+1}], s[0:1], 72
    s_load_dwordx2 s[{SK}:{SK+1}], s[0:1], 64""")
    srd(SX, 512*1792*2); srd(SQ, 1792*512*2); srd(SK, 1792*2)
    srd(SG, 4 << 20)
    a(f"""v_lshlrev_b32 v5, 17, v3
    v_lshlrev_b32 v6, 2, v3
    v_xor_b32 v6, v6, v2
    v_lshl_add_u32 v4, v6, 4, v5
    v_xor_b32 v26, 32, v4
    s_lshl_b32 s10, s8, 5
    s_add_u32 s10, s10, s3
    s_lshl_b32 s10, s10, 15
    s_lshl_b32 s11, s7, 8
    s_add_u32 s10, s10, s11
    s_lshl_b32 s11, s3, 13
    s_add_u32 s11, s11, {X}""")
    a(f"""v_bfe_u32 v6, v0, 2, 2
    v_bfe_u32 v7, v0, 4, 1
    v_bfe_u32 v5, v0, 1, 1
    v_lshl_or_b32 v7, v7, 1, v5
    v_lshl_or_b32 v7, v6, 2, v7
    s_lshl_b32 s12, s3, 2
    v_xor_b32 v7, s12, v7
    v_lshlrev_b32 v7, 4, v7
    v_lshlrev_b32 v6, 8, v6
    v_lshl_add_u32 v6, v3, 11, v6
    v_and_b32 v5, 1, v0
    v_lshl_add_u32 v6, v5, 3, v6
    v_add_u32 v6, {X}, v6
    v_add_u32 v8, v6, v7
    v_xor_b32 v9, 32, v8""")
    a(f"""v_and_b32 v5, 7, v0
    v_lshl_add_u32 v5, v5, 2, v3
    v_lshlrev_b32 v10, 9, v5
    v_lshlrev_b32 v11, 4, v0
    v_lshlrev_b32 v5, 4, v2
    v_lshl_add_u32 v5, v3, 3, v5
    s_lshl_b32 s12, s3, 6
    s_add_u32 s13, s12, s11
    v_add_u32 v12, s13, v5
    v_and_b32 v5, 3, v0
    v_mul_u32_u24 v5, {8192+64}, v5
    v_lshl_add_u32 v5, v3, 4, v5
    v_add_u32 v13, {X}, v5
    v_bfe_u32 v5, v0, 4, 1
    v_bfe_u32 v6, v0, 1, 1
    v_lshl_or_b32 v5, v5, 1, v6
    v_bfe_u32 v6, v0, 2, 2
    v_lshl_or_b32 v5, v5, 2, v6
    v_and_b32 v6, 1, v0
    v_lshl_or_b32 v5, v5, 1, v6
    s_add_u32 s13, s12, {X+2048}
    v_lshl_add_u32 v14, v5, 1, s13
    v_mov_b32 v15, s11
    v_mov_b32 v31, {X}
    v_mov_b32 v30, 0x10001
    v_bfe_u32 v5, v0, 4, 1
    v_cmp_eq_u32 s[18:19], 1, v5
    s_mov_b32 m0, s11
    s_nop 0""")
    a(f"""s_lshl2_add_u32 s15, s8, s3
    s_mul_i32 s15, s15, {32*3584}
    s_lshr_b32 s16, s5, 2
    s_sub_u32 s9, s4, {1 if P["nox"] == 0 else 0}
    s_lshl2_add_u32 s16, s9, s16
    s_lshl_b32 s16, s16, 7
    s_add_u32 s15, s15, s16
    v_mul_u32_u24 v20, 3584, v0
    s_lshl4_add_u32 s9, s9, s5
    s_waitcnt lgkmcnt(0)""")
    if P["tlb"]:
        a(f"""s_lshl2_add_u32 s12, s7, s8
        s_lshl_b32 s12, s12, 15
        s_add_u32 s12, s12, {BP + 3*256 + 128}
        s_lshl_b32 s13, s9, 14
        v_mov_b32 v21, 0
        s_mov_b64 exec, 1
        buffer_load_dword v237, v21, {sr(SG)}, s10 offen
        buffer_load_dword v237, v21, {sr(SQ)}, s13 offen
        buffer_load_dword v237, v21, {sr(SW)}, s12 offen nt
        s_mov_b64 exec, -1""")
    if P["w1pf_at"] == "1":
        a(f"""s_cmp_eq_u32 s4, {P["nox"]}
        s_cbranch_scc1 L_nw1
        s_mov_b32 exec_hi, 0
        buffer_load_dword v239, v20, {sr(SX)}, s15 offen
        s_mov_b64 exec, -1
        L_nw1:""")
    a("s_barrier")
    if P["h_touch"] and P["bhint"]:
        a(f"""s_lshl_b32 s12, s3, 13
        s_lshl2_add_u32 s13, s7, s8
        s_lshl_b32 s13, s13, 15
        s_add_u32 s13, s13, s12""")
        for rnd in range(P["brounds"]):
            for x in range(P["bhint"]):
                a(f"s_add_u32 s12, s13, {BP + ((32*x//P['bhint'] + 3 - rnd) % 32)*256 + 128}\ns_load_dword s{HINT+x}, s[{SW}:{SW+1}], s12 glc")
    for r in range(16): a(f"v_mov_b32 v{96+r}, 0")
    if P["uv_pf"]:
        a(f"""s_lshl2_add_u32 s12, s8, s3
        s_lshl_b32 s12, s12, 18
        s_lshl_b32 s13, s7, 8
        s_add_u32 s12, s12, s13
        v_lshrrev_b32 v21, 1, v0
        v_and_b32 v22, 1, v0
        v_lshlrev_b32 v22, 7, v22
        v_lshl_add_u32 v21, v21, 13, v22
        {"s_mov_b32 exec_hi, 0" if P["uv_pf"] == 1 else ""}
        buffer_load_dword v238, v21, {sr(SG)}, s12 offen
        s_mov_b64 exec, -1""")
    a(f"""s_cmp_eq_u32 s4, {P["nox"]}
    s_cbranch_scc1 L_nomlp
    s_mov_b32 exec_hi, 0
    {"" if P["w1_att"] or P["w1pf_at"] != "b" else f"buffer_load_dword v239, v20, {sr(SX)}, s15 offen"}
    s_mov_b64 exec, -1
    s_cmp_lg_u32 s3, 3
    s_cbranch_scc1 L_nomlp
    s_lshl_b32 s15, s9, 5
    s_lshl_b32 s16, s9, 14
    v_lshlrev_b32 v21, 12, v3
    v_lshl_add_u32 v21, v2, 4, v21
    v_lshlrev_b32 v22, 1, v2
    buffer_load_ushort v48, v22, {sr(SK)}, s15 offen""")
    a(f"""v_mov_b32 v27, v21
    v_lshrrev_b32 v20, 1, v0
    v_mul_u32_u24 v20, 3584, v20
    v_and_b32 v21, 1, v0
    v_lshl_add_u32 v20, v21, 4, v20
    v_lshlrev_b32 v21, 4, v0
    v_add_u32 v21, {X}, v21
    ds_write_b128 v21, v[56:59]
    v_lshlrev_b32 v21, 4, v3
    v_add_u32 v21, {X}, v21
    v_lshlrev_b32 v22, 8, v3
    v_lshl_add_u32 v22, v2, 3, v22
    v_add_u32 v22, {X+16384}, v22
    v_lshl_add_u32 v23, v3, 2, v2
    v_and_b32 v23, 15, v23
    v_lshlrev_b32 v23, 2, v23
    s_mov_b32 m0, {X+16384}""")
    def w2_loads():
        for t in range(16): a(f"buffer_load_dwordx4 {vr(192+4*t)}, v27, {sr(SQ)}, s16 offen offset:{256*t} nt")
    if P["w2_early"]: w2_loads()
    for t in range(16): a(f"ds_read_b128 {vr(64+4*t)}, v21 offset:{64*t}")
    if not P["w1_att"]: a("s_waitcnt vmcnt(0)")
    if P["optx"]: a("s_barrier")
    for q in range(16):
        a(f"buffer_load_dwordx4 v20, {sr(SX)}, s15 offen lds")
        if q < 15: a(f"s_addk_i32 m0, 0x400\ns_add_u32 s15, s15, {32*3584}")
    if P["optx"]: a("s_waitcnt vmcnt(0)")
    else:
        a(f"s_waitcnt vmcnt({P['wo_gate']})\ns_barrier")
        if P["w2_early"] or P["w2_at"] == "u": a("s_waitcnt vmcnt(0)")
        else:
            w2_loads()
            a("s_waitcnt vmcnt(16)")
    stamp(8)
    for t in range(16):
        a(f"ds_read_b64_tr_b16 {vr(128+4*t,2)}, v22 offset:{1024*t}\nds_read_b64_tr_b16 {vr(130+4*t,2)}, v22 offset:{1024*t+128}")
    a("s_waitcnt lgkmcnt(0)")
    for t in range(16):
        a(f"v_mfma_f32_16x16x32_bf16 v[16:19], {vr(64+4*t)}, {vr(128+4*t)}, {'0' if t == 0 else 'v[16:19]'}")
    rnd_bf16(20, 16)
    a("v_lshlrev_b32 v48, 16, v48\nv_add_f32 v20, v20, v48")
    rnd_bf16(20, 20)
    a("""v_max_f32 v20, 0, v20
    v_mul_f32 v20, v20, v20
    v_cvt_pk_bf16_f32 v20, v20, v20
    ds_bpermute_b32 v21, v23, v20
    s_waitcnt lgkmcnt(0)""")
    for rq in range(4):
        for dw in range(4):
            a(f"v_and_b32_dpp v{64+4*rq+dw}, v21, v{32+dw} row_newbcast:{rq} {DPPM}")
    def wuv_loads():
        a("s_mov_b32 m0, s11\ns_barrier")
        stamp(1)
        for q in range(8):
            if 0 < q <= P["uv_slow"]: a("s_waitcnt vmcnt(0)")
            a(f"buffer_load_dwordx4 v{26 if (q>>1)&1 else 4}, {sr(SG)}, s10 offen nt lds")
            if q < 7: a(f"s_add_u32 m0, m0, 1024\ns_add_u32 s10, s10, {(64*8192 if q & 1 == 0 else (1-64)*8192) & 0xffffffff}")
    wuv_loads()
    if (P["optx"] and not P["w2_early"]) or P["w2_at"] == "u":
        w2_loads()
        a("s_waitcnt vmcnt(0)")
    else: a("s_waitcnt vmcnt(8)")
    for rq in range(4):
        for cb in range(4):
            a(f"v_mfma_f32_16x16x32_bf16 {vr(96+4*cb)}, {vr(64+4*rq)}, {vr(192+16*rq+4*cb)}, {'0' if rq == 0 else vr(96+4*cb)}")
    a("s_nop 7\ns_branch L_wuv_done\nL_nomlp:")
    if P["qgate"]:
        a("s_cmp_lg_u32 s3, 2\ns_cbranch_scc1 L_nogate")
        for x in range(P["qgate"]):
            grp = [0, 7, 5, 3][x]
            a(f"""s_mul_i32 s12, s8, {8 + P["hc"]}
            s_add_u32 s12, s12, {grp}
            s_and_b32 s12, s12, 7
            s_lshl3_add_u32 s12, s8, s12
            s_lshl3_add_u32 s12, s12, s4
            s_lshl_b32 s12, s12, 7
            s_add_u32 s{30+x}, s12, {QL}""")
        shint("L_gate", [30+x for x in range(P["qgate"])], 'b')
        a("L_nogate:")
    if P["uvg"]:
        a(f"""s_lshl1_add_u32 s12, s8, s3
        s_lshl_b32 s12, s12, 19
        s_lshl_b32 s13, s7, 8
        s_add_u32 s12, s12, s13
        s_cmp_lt_u32 s3, 2
        s_cselect_b32 s12, s12, 0x7ff00000
        s_add_u32 s13, s12, 0x40000
        v_lshrrev_b32 v21, 1, v0
        v_and_b32 v22, 1, v0
        v_lshlrev_b32 v22, 7, v22
        v_lshl_add_u32 v21, v21, 13, v22""")
    if P["wo_gate"] is not None: a("s_barrier")
    if P["uvg"]:
        for _ in range(P["uvg"] - 1): a("s_sleep 2")
        a(f"buffer_load_dword v235, v21, {sr(SG)}, s12 offen\nbuffer_load_dword v234, v21, {sr(SG)}, s13 offen")
    if P["dp_warm"]:
        a(f"""s_cmp_lg_u32 s3, 1
        s_cbranch_scc1 L_nowarm
        s_load_dwordx4 s[72:75], s[0:1], 80
        s_lshl_b32 s12, s5, 14
        s_lshl_b32 s13, s4, 8
        s_add_u32 s12, s12, s13
        s_add_u32 s12, s12, {DP}
        v_lshrrev_b32 v21, 1, v0
        v_and_b32 v22, 1, v0
        v_lshlrev_b32 v21, 11, v21
        v_lshl_add_u32 v21, v22, 7, v21
        s_mov_b64 exec, 0xffff
        buffer_load_dword v236, v21, {sr(SW)}, s12 offen sc1
        s_cmp_lg_u32 s5, 0
        s_cbranch_scc1 L_nowarm2
        s_mov_b64 exec, 1
        s_lshl_b32 s13, s4, 7
        v_mov_b32 v21, s13
        s_waitcnt lgkmcnt(0)
        global_load_dword v236, v21, s[72:73]
        global_load_dword v236, v21, s[74:75] sc1
        L_nowarm2:
        s_mov_b64 exec, -1
        L_nowarm:""")
    wuv_loads()
    a("L_wuv_done:")
    a(f"""s_lshl_b32 s12, s3, 13
    s_lshl2_add_u32 s16, s7, s8
    s_lshl_b32 s13, s16, 15
    s_add_u32 s13, s13, s12
    s_add_u32 s13, s13, {BP}
    s_lshl_b32 s12, s12, 1
    s_lshl4_add_u32 s12, s7, s12
    s_add_u32 s12, s12, {ST}""")
    if P["st_touch"]: a(f"buffer_load_dwordx4 v[16:19], v10, {sr(SW)}, s12 offen {P['st_pol']}")
    a("s_waitcnt vmcnt(0)")
    a(f"s_add_u32 s36, s{SW}, s13\ns_addc_u32 s37, s{SW+1}, 0")
    boffs = [((32*x//P["bhint"] + 3) % 32)*256 + 128 for x in range(P["bhint"])]
    if P["hpipe"]:
        for x, o in enumerate(boffs): a(f"s_load_dwordx2 {sr(HINT+2*x,2)}, s[36:37], {o} glc")
    a("s_barrier")
    for n in range(2):
        for t in range(4):
            for sec in range(2):
                a(f"ds_read_b64_tr_b16 {vr(160+16*n+4*t+2*sec,2)}, v{8+n} offset:{8192*t + 1024*sec}")
    a("s_waitcnt lgkmcnt(0)\ns_barrier")
    a(f"""s_cmp_lg_u32 s3, 3
    s_cbranch_scc1 L_nomw
    v_add_u32 v20, {X+4096}, v41
    s_mov_b32 exec_hi, 0""")
    for cb in range(4): a(f"ds_write_b128 v20, {vr(96+4*cb)} offset:{512*cb}")
    a("s_mov_b64 exec, -1\nL_nomw:")
    stamp(2)
    nh = P["lhint"]
    shint("L_lhint", hint_offs(nh, 16, 31, 9, 12, 32//max(nh,1)), 't')
    def st_check():
        a(f"""v_xor_b32 v17, s{sF}, v17
        v_bitop3_b32 v17, v17, v19, s{sF} bitop3:0xf6""")
    def st_loop():
        if P["st_sleep"]: a(f"s_branch L_stp1\nL_stp:\ns_sleep {P['st_sleep']}\nL_stp1:")
        else: a("L_stp:")
        a(f"buffer_load_dwordx4 v[16:19], v10, {sr(SW)}, s12 offen {P['st_pol']}\ns_waitcnt vmcnt(0)")
        st_check()
        a("v_cmp_ne_u32 vcc, 0, v17")
        spin("L_stp", "s_cbranch_vccnz")
        stamp(4)
    def pl_load(t): a(f"buffer_load_dwordx4 {vr(64+4*t)}, v11, {sr(SW)}, s{13 + (t>>2)} offen offset:{1024*(t&3)} {P['pl_pol']}")
    def ops(between=None):
        a0 = len(a.lines)
        ops1()
        if between is not None:
            L = a.lines[a0:]; del a.lines[a0:]
            k = min(P["ops_split"], len(L))
            a.lines.extend(L[:k]); between(); a.lines.extend(L[k:])
    def ops1():
        a("v_mov_b32 v24, v16")
        allreduce("v_max_f32", 24, 20)
        a("""v_sub_f32 v16, v16, v24
        v_exp_f32 v16, v16
        v_cvt_pk_bf16_f32 v16, v16, v16""")
        for t in range(8):
            for dw in range(4):
                a(f"v_and_b32_dpp v{128+4*t+dw}, v16, v{32+dw} row_newbcast:{t} {DPPM}")
        a("v_and_b32 v25, 0xffff0000, v16\nv_mul_f32 v25, v25, v18")
        allreduce("v_add_f32", 25, 20)
        a("v_mul_f32 v25, 0.5, v25\nds_write_b64 v15, v[24:25] offset:1024")
    if P["st_first"]: st_loop()
    if P["s1mode"] != "a":
        a("s_add_u32 s14, s13, 4096")
        if P["hpipe"]: a("s_branch L_h1_chk")
        shint("L_h1", boffs[:1], 'c')
        a(f"buffer_load_dwordx4 v[16:19], v10, {sr(SW)}, s12 offen {P['st_pol']}")
        if P["s1mode"] == "b": shint("L_h2", boffs[1:], 'c')
        a("s_waitcnt vmcnt(0)")
        st_check()
        a("v_cmp_ne_u32 vcc, 0, v17\ns_cbranch_vccz L_stok2")
        st_loop()
        a("L_stok2:")
        stamp(3)
        def lds8():
            for t in range(8): pl_load(t)
        if P["s1mode"] == "b": ops(lds8)
        else:
            for x, o in enumerate(boffs[1:]): a(f"s_load_dwordx2 {sr(HINT+2*x,2)}, s[36:37], {o} glc")
            ops()
            a("s_branch L_h2_chk")
            shint("L_h2", boffs[1:], 'c')
            lds8()
        a("s_branch L_s1go")
    def mf(t): a(f"v_mfma_f32_16x16x32_bf16 v[40:43], {vr(128+4*t)}, {vr(64+4*t)}, {'0' if t == 0 else 'v[40:43]'}")
    if P['s1mode'] == 'a':
        nh = P["bhint"]
        if P["hpipe"]: a("s_branch L_bhint0_chk")
        for rnd in range(P["brounds"]):
            shint(f"L_bhint{rnd}", [((32*x//nh + 3 - rnd) % 32)*256 + 128 for x in range(nh)], 'c')
        stamp(3)
        a("s_add_u32 s14, s13, 4096")
        if P["st_last"] and not P["st_first"]: st_loop()
        if not P["st_last"]: a(f"buffer_load_dwordx4 v[16:19], v10, {sr(SW)}, s12 offen {P['st_pol']}")
        for t in range(8): pl_load(t)
        if not P["st_last"]:
            a("s_waitcnt vmcnt(8)")
            stamp(4)
            st_check()
            a("v_cmp_ne_u32 vcc, 0, v17\ns_cbranch_vccz L_stok")
            a(f"L_stp:\nbuffer_load_dwordx4 v[16:19], v10, {sr(SW)}, s12 offen {P['st_pol']}\ns_waitcnt vmcnt(0)")
            st_check()
            a("v_cmp_ne_u32 vcc, 0, v17")
            spin("L_stp", "s_cbranch_vccnz")
            a("L_stok:")
        ops()
    a("L_s1go:")
    stamp(5)
    for t in range(8):
        a(f"s_waitcnt vmcnt({7-t})")
        mf(t)
        check(48+t, 64+4*t, 4, sB, True)
        if t == 2: a("v_or3_b32 v7, v48, v49, v50")
        if t in (4, 6): a(f"v_or3_b32 v7, v7, v{47+t}, v{48+t}")
    a("v_or_b32 v7, v7, v55\nv_and_b32 v7, v30, v7\nv_cmp_ne_u32 vcc, 0, v7\ns_cbranch_vccz L_bok")
    a("L_bre:")
    if P["re_sleep"]: a(f"s_sleep {P['re_sleep']}")
    for t in range(8):
        a(f"v_and_b32 v7, v30, v{48+t}\nv_cmp_ne_u32 vcc, 0, v7\ns_cbranch_vccz L_br{t}")
        pl_load(t)
        a(f"L_br{t}:")
    a("s_waitcnt vmcnt(0)")
    for t in range(8):
        mf(t)
        check(48+t, 64+4*t, 4, sB, True)
        if t == 2: a("v_or3_b32 v7, v48, v49, v50")
        if t in (4, 6): a(f"v_or3_b32 v7, v7, v{47+t}, v{48+t}")
    a("v_or_b32 v7, v7, v55\nv_and_b32 v7, v30, v7\nv_cmp_ne_u32 vcc, 0, v7\ns_add_u32 s28, s28, 99")
    spin("L_bre", "s_cbranch_vccnz")
    a("L_bok:\ns_nop 1")
    stamp(6)
    a("""v_cvt_pk_bf16_f32 v44, v40, v41
    v_cvt_pk_bf16_f32 v45, v42, v43
    s_mov_b32 exec_hi, 0
    ds_write_b64 v12, v[44:45]
    s_mov_b64 exec, -1
    s_waitcnt lgkmcnt(0)
    s_barrier""")
    a("ds_read_b128 v[64:67], v13")
    for u in range(2): a(f"ds_read2st64_b64 {vr(80+4*u)}, v31 offset0:{2 + 32*u} offset1:{18 + 32*u}")
    for t in range(1, 4): a(f"ds_read_b128 {vr(64+4*t)}, v13 offset:{64*t}")
    sm = """v_max3_f32 v4, v80, v82, v84
    v_max_f32 v4, v4, v86
    v_sub_f32 v80, v80, v4
    v_sub_f32 v82, v82, v4
    v_sub_f32 v84, v84, v4
    v_sub_f32 v86, v86, v4
    v_exp_f32 v80, v80
    v_exp_f32 v82, v82
    v_exp_f32 v84, v84
    v_exp_f32 v86, v86
    v_mul_f32 v5, v80, v81
    v_fmac_f32 v5, v82, v83
    v_fmac_f32 v5, v84, v85
    v_fmac_f32 v5, v86, v87
    v_rcp_f32 v5, v5
    v_mul_f32 v6, v40, v80
    v_fmac_f32 v6, v41, v82
    v_fmac_f32 v6, v42, v84
    v_fmac_f32 v6, v43, v86""".split("\n")
    fill = [0, 2, 2, 2, 1, 1, 1, 99]
    for x, (n, t) in enumerate([(n, t) for n in range(2) for t in range(4)]):
        if n == 0: a(f"s_waitcnt lgkmcnt({[5, 2, 1, 0][t]})")
        a(f"v_mfma_f32_16x16x32_bf16 {vr(40+4*n)}, {vr(64+4*t)}, {vr(160+16*n+4*t)}, {'0' if t == 0 else vr(40+4*n)}")
        for _ in range(min(fill[x], len(sm))): a(sm.pop(0))
    a("""v_mul_f32 v7, v44, v80
    v_fmac_f32 v7, v45, v82
    v_fmac_f32 v7, v46, v84
    v_fmac_f32 v7, v47, v86
    v_cndmask_b32 v6, v6, v7, s[18:19]
    v_mul_f32 v6, v6, v5
    v_cvt_pk_bf16_f32 v6, v6, v6
    ds_write_b16 v14, v6
    s_waitcnt lgkmcnt(0)""")
    stamp(7)
    a("s_barrier")
    if P["cyc"]: a("s_barrier")
    a("s_branch L_exit")

    sect[0] = "O"
    a("L_WO:")
    a(f"s_load_dwordx2 s[{SG}:{SG+1}], s[0:1], 40\ns_barrier\nL_WO1:")
    srd(SC, 16 << 20)
    a(f"""s_lshl4_add_u32 s14, s4, s5
    s_lshl2_add_u32 s14, s14, s3
    s_sub_u32 s14, s14, 4
    s_lshl_b32 s14, s14, 15
    v_lshrrev_b32 v5, 1, v0
    v_and_b32 v6, 1, v0
    v_lshlrev_b32 v5, 10, v5
    v_lshl_add_u32 v5, v6, 7, v5""")
    a("v_mov_b32 v44, v5\ns_mov_b32 s30, s14")
    def ckv_pf():
        for x in range(P["cpf"]):
            if x >= P["cpf_depth"]: a(f"s_waitcnt vmcnt({P['cpf_depth']-1})")
            if P["rgmajor"] == 2:
                a(f"""s_add_u32 s31, s30, {8192*(3-x) + 512}
                v_lshrrev_b32 v44, 2, v0
                v_and_b32 v45, 3, v0
                v_lshlrev_b32 v44, 10, v44
                v_lshl_add_u32 v44, v45, 7, v44
                s_mov_b32 exec_hi, 0
                buffer_load_dword v{110+x}, v44, {sr(SC)}, s31 offen
                s_mov_b64 exec, -1""")
            elif P["rgmajor"] == 4:
                a(f"""s_add_u32 s31, s30, {4096*(7-x)}
                v_lshlrev_b32 v44, 7, v0
                s_mov_b32 exec_hi, 0
                buffer_load_dword v{110+x}, v44, {sr(SC)}, s31 offen
                s_mov_b64 exec, -1""")
            else:
                a(f"""s_mov_b32 exec_{'lo' if x & 1 == 0 else 'hi'}, 0
                buffer_load_dword v{110+x}, v44, {sr(SC)}, s30 offen offset:{256*(3 - x//2)}
                s_mov_b64 exec, -1""")
    if not P["cpf_late"]: ckv_pf()
    if P["nox_cpf"]:
        a(f"s_cmp_lg_u32 s4, {P['nox']}\ns_cbranch_scc1 L_nocpf")
        sv = P["cpf"]; P["cpf"] = P["nox_cpf"]; ckv_pf(); P["cpf"] = sv
        a(f"s_waitcnt vmcnt({P['cpf_tail']})\nL_nocpf:")
    srd(SG, 4 << 20)
    a(f"""s_sub_u32 s9, s3, 4
    s_lshl_b32 s10, s7, 17
    s_lshl_b32 s11, s9, 8
    s_add_u32 s10, s10, s11
    s_lshl_b32 s11, s9, 15
    v_lshlrev_b32 v4, 2, v3
    v_xor_b32 v4, v4, v2
    v_lshlrev_b32 v4, 4, v4
    v_lshl_add_u32 v4, v3, 10, v4
    v_xor_b32 v5, 32, v4
    s_mov_b32 m0, s11""")
    if P["wo_rot"]:
        a("s_lshl_b32 s13, s8, 15\ns_add_u32 s10, s10, s13")
        for tau in range(3):
            a(f"s_cmp_eq_u32 s8, {3-tau}\ns_cselect_b32 s{36+tau}, -31, 1\ns_lshl_b32 s{36+tau}, s{36+tau}, 12")
    a(f"""v_bfe_u32 v6, v0, 2, 2
    v_bfe_u32 v7, v0, 4, 1
    v_bfe_u32 v16, v0, 1, 1
    v_lshl_or_b32 v7, v7, 1, v16
    v_lshl_or_b32 v7, v6, 2, v7
    v_lshlrev_b32 v7, 4, v7
    v_lshlrev_b32 v6, 8, v6
    v_lshl_add_u32 v6, v3, 11, v6
    v_and_b32 v16, 1, v0
    v_lshl_add_u32 v6, v16, 3, v6
    v_add_u32 v6, s11, v6""")
    for n in range(8):
        a(f"v_xor_b32 v16, {32*n}, v7\nv_add_u32 v{8+n}, v6, v16")
    a(f"""v_lshrrev_b32 v16, 1, v3
    v_add_u32 v16, s8, v16
    v_and_b32 v17, 1, v3
    v_and_b32 v18, 1, v0
    v_lshl_or_b32 v17, v17, 1, v18
    v_lshlrev_b32 v17, 4, v17
    v_add_u32 v17, {X+2048}, v17
    v_and_b32 v36, 3, v16
    v_lshl_add_u32 v36, v36, 6, v17
    v_xor_b32 v37, 0x80, v36
    v_mul_u32_u24 v38, 0xaaaa, v18
    v_add_u32 v38, 0x4444, v38
    v_lshlrev_b32 v17, 2, v0
    v_mov_b32 v18, 0xff
    v_and_b32 v19, 3, v0
    v_add_u32 v19, s{sF}, v19
    s_lshl2_add_u32 s12, s7, s8
    s_lshl_b32 s12, s12, 11
    s_lshl_b32 s13, s9, 9
    s_add_u32 s12, s12, s13
    s_add_u32 s12, s12, {DP}
    s_add_u32 s13, s13, {X+4096}
    v_add_u32 v39, s13, v17""")
    assert P["wo_rot"]
    for r in range(40): a(f"v_mov_b32 v{64+r}, 0")
    a("s_waitcnt lgkmcnt(0)")
    if P["tlb"]: a(f"v_mov_b32 v45, 0\ns_mov_b64 exec, 1\nbuffer_load_dword v110, v45, {sr(SG)}, s10 offen\ns_mov_b64 exec, -1")
    def wo_read(t):
        for n in range(8):
            for sec in range(2):
                a(f"ds_read_b64_tr_b16 {vr(128+16*n+4*t+2*sec,2)}, v{8+n} offset:{8192*t + 1024*sec}")
    nxt = 0
    for rg in range(32):
        if rg == 0 and P["cpf"] and not P["cpf_late"]: a(f"s_waitcnt vmcnt({P['cpf_tail']})")
        if rg == 0 and not P["optx"]: a("s_barrier")
        if rg == P["x_n"] and P["optx"]: a(f"s_waitcnt vmcnt({P['x_left']})\ns_barrier")
        if rg == 0 and P["cpf_late"]:
            ckv_pf()
            if P["cpf_wait"] is not None: a(f"s_waitcnt vmcnt({P['cpf_wait']})")
        if rg == 0:
            for x in P["wo_bar"]:
                if x < 0: a("s_barrier")
        if rg == 0 and not P["fine"]: stamp(1)
        wd = P["wo_edepth"] if rg < P["wo_early"] else (P["wo_depth0"] if rg < 8 + P["wo_depth0"] else P["wo_depth"])
        if rg >= wd:
            a(f"s_waitcnt vmcnt({wd-1})")
            landed = rg - wd + 1
            if landed >= 8*(nxt+1):
                if nxt == 0: stamp(5)
                if "noread" not in P["abl"]: wo_read(nxt)
                nxt += 1
        a(f"buffer_load_dwordx4 v{4+((rg>>1)&1)}, {sr(SG)}, s10 offen {P['first_pol'] if rg < 8 else P['wo_pol']} lds")
        if rg in P["wo_bar"]: a("s_barrier")
        if rg < 31:
            if P["wo_rot"] and rg & 7 == 7: a(f"s_add_u32 m0, m0, 1024\ns_add_u32 s10, s10, s{36+(rg>>3)}")
            else: a("s_add_u32 m0, m0, 1024\ns_add_u32 s10, s10, 4096")
    while nxt < 4:
        a(f"s_waitcnt vmcnt({24 - 8*nxt})")
        wo_read(nxt); nxt += 1
    for v_ in range(4):
        a(f"s_mov_b32 s{40+2*v_}, {0x00030003 << (4*v_)}\ns_mov_b32 s{41+2*v_}, {0x00030003 << (4*v_)}")
    for x in P["wo_bar"]:
        if x >= 32: a("s_barrier")
    stamp(6)
    if "bwait" in P["abl"]: a("s_barrier")
    a("s_barrier\nds_read_b32 v96, v39\nds_read_b32 v100, v39 offset:256\ns_mov_b64 exec, s[40:41]\ns_barrier")
    stamp(7)
    for v_ in range(4):
        if v_: a(f"s_mov_b64 exec, s[{40+2*v_}:{41+2*v_}]")
        for T in range(2): a(f"ds_read_b128 {vr(64+8*v_+4*T)}, v{36+T}")
    a("s_mov_b64 exec, -1")
    if P["s3ord"] == 0: o3 = [(H, v_, T) for H in range(2) for v_ in range(4) for T in range(2)]
    else: o3 = [(H, v_, T) for v_ in range(2) for T in range(2) for H in range(2)] + [(H, v_, T) for H in range(2) for v_ in range(2, 4) for T in range(2)]
    for (H, v_, T) in o3:
        if H == 0: a(f"s_waitcnt lgkmcnt({7 - 2*v_ - T})")
        a(f"v_smfmac_f32_16x16x64_bf16 {vr(96+4*H)}, {vr(64+8*v_+4*T)}, {vr(128+16*(4*H+v_)+8*T, 8)}, v38")
    a(f"""v_add_f32 v96, v96, v97
    v_bfi_b32 v96, v18, v19, v96
    buffer_store_dword v96, v17, {sr(SW)}, s12 offen sc1
    v_add_f32 v100, v100, v101
    v_bfi_b32 v100, v18, v19, v100
    buffer_store_dword v100, v17, {sr(SW)}, s12 offen offset:256 sc1""")
    stamp(8)
    if diag:
        a("s_waitcnt vmcnt(0)"); stamp(9)

    a("L_exit:")
    if P["probe"]:
        if P["probe"][0].startswith("x"):
            a(f"s_waitcnt lgkmcnt(0)\ns_lshl_b32 s85, 1, s4\ns_and_b32 s85, s85, {int(P['probe'][0][1:], 16)}\ns_cselect_b32 s84, s80, 0\ns_cmp_eq_u32 s3, 0\ns_cselect_b32 s84, s84, 0")
        a(f"""s_load_dwordx2 s[86:87], s[0:1], 96
        s_mov_b64 exec, 1
        s_waitcnt lgkmcnt(0)
        v_mov_b32 v4, 0
        v_mov_b32 v5, s84
        s_cmp_eq_u32 s84, 0
        s_cbranch_scc1 L_pr1
        global_atomic_umax v4, v5, s[86:87] offset:128
        L_pr1:
        s_cmp_lg_u32 s3, 0
        s_cbranch_scc1 L_pr2
        v_mov_b32 v5, s80
        global_atomic_umax v4, v5, s[86:87]
        v_not_b32 v6, v5
        global_atomic_umax v4, v6, s[86:87] offset:4
        L_pr2:
        s_cmp_lg_u32 s88, 1
        s_cbranch_scc1 L_end
        s_add_u32 s90, s80, 3000
        L_pr3:
        s_memrealtime s[82:83]
        s_waitcnt lgkmcnt(0)
        s_sub_u32 s83, s82, s90
        s_cmp_lt_i32 s83, 0
        s_cbranch_scc1 L_pr3
        global_load_dwordx2 v[8:9], v4, s[86:87] sc1
        global_load_dword v10, v4, s[86:87] offset:128 sc1
        s_waitcnt vmcnt(0)
        v_readfirstlane_b32 s91, v8
        v_readfirstlane_b32 s92, v9
        v_readfirstlane_b32 s93, v10
        s_not_b32 s92, s92""")
        ref = "s92" if P["probe"][1] == "min" else "s91"
        val = {"maxstart": "s91", "none": ref}.get(P["probe"][0], "s93")
        amp = P["probe"][2] if len(P["probe"]) > 2 else 1
        a(f"""s_sub_u32 s94, {val}, {ref}
        s_mul_i32 s94, s94, {amp}
        s_min_u32 s94, s94, 6000
        s_add_u32 s90, s92, 4000
        s_add_u32 s90, s90, s94
        L_pr4:
        s_memrealtime s[82:83]
        s_waitcnt lgkmcnt(0)
        s_sub_u32 s83, s82, s90
        s_cmp_lt_i32 s83, 0
        s_cbranch_scc1 L_pr4""")
    if diag:
        a(f"""s_mov_b64 exec, -1
        s_waitcnt lgkmcnt(0)
        s_lshl3_add_u32 s10, s2, s3
        s_lshl_b32 s10, s10, 7
        s_add_u32 s10, s10, {STAMP}
        v_mov_b32 v4, 0""")
        for k in range(10):
            a(f"v_mov_b32 v5, s{80+2*k}\nbuffer_store_dword v5, v4, {sr(SW)}, s10 offen offset:{4*k}")
        a(f"v_mov_b32 v5, s28\nbuffer_store_dword v5, v4, {sr(SW)}, s10 offen offset:40")
        a(f"s_getreg_b32 s11, hwreg(HW_REG_XCC_ID)\nv_mov_b32 v5, s11\nbuffer_store_dword v5, v4, {sr(SW)}, s10 offen offset:44")
        a(f"s_getreg_b32 s11, hwreg(HW_REG_HW_ID)\nv_mov_b32 v5, s11\nbuffer_store_dword v5, v4, {sr(SW)}, s10 offen offset:48")
    a("L_end:\ns_endpgm\nL_codeend:")
    if P["align"] is not None:
        a(f"""L_align:
        s_memrealtime s[80:81]
        s_and_b32 s4, s2, 7
        s_mul_i32 s5, s4, 3
        s_cmp_eq_u32 s4, 0
        s_cselect_b32 s5, {P['align']}, s5
        s_waitcnt lgkmcnt(0)
        s_or_b32 s6, s80, 511
        s_add_u32 s6, s6, s5
        L_al:
        s_memrealtime s[80:81]
        s_waitcnt lgkmcnt(0)
        s_sub_u32 s7, s80, s6
        s_cmp_lt_i32 s7, 0
        s_cbranch_scc1 L_al
        s_branch L_back""")


    lines = a.lines
    if diag:
        pre = [f"s_mov_b32 s{80+2*k}, 0" for k in range(1, 10)]
        lines = lines[:1] + pre + lines[1:]
    lines, nins = insert_waits(lines)
    b = Asm(); b.lines = lines
    head = f"""; fused MLA decode attention (absorbed form) + squared-relu MLP, one persistent launch, 256 workgroups
; @launch grid=(256,1,1) block=(512,1,1) lds=163840
.amdgcn_target "amdgcn-amd-amdhsa--gfx950"
.text
.globl {KNAME}
.p2align 8
.type {KNAME},@function
{KNAME}:
"""
    foot = f"""
.section .rodata,"a"
.p2align 6
.amdhsa_kernel {KNAME}
  .amdhsa_next_free_vgpr 256
  .amdhsa_next_free_sgpr 102
  .amdhsa_accum_offset 256
  .amdhsa_group_segment_fixed_size 0
  .amdhsa_kernarg_size 112
  .amdhsa_user_sgpr_count 2
  .amdhsa_user_sgpr_kernarg_segment_ptr 1
  .amdhsa_system_sgpr_workgroup_id_x 1
  .amdhsa_float_denorm_mode_32 3
.end_amdhsa_kernel
"""
    txt = b.text()
    if P["abl"]:
        L = txt.split("\n"); O = []
        for l in L:
            if "nowo" in P["abl"] and "s[60:63]" in l and "buffer_load" in l: continue
            if "nomlp" in P["abl"] and f"s_cmp_eq_u32 s4, {P['nox']}" in l: l = "    s_cmp_eq_u32 s4, s4"
            if "noqk" in P["abl"] and "32x32x16" in l and ", 0" not in l[-4:]: continue
            if "nopv" in P["abl"] and "16x16x32" in l and any(f"v[{x}:{x+3}], v[{y}" in l for x in (36, 40, 52, 56) for y in range(128, 256, 4)): continue
            if "noexp" in P["abl"] and "v_exp_f32 v7" in l: continue
            if "nos3" in P["abl"] and "16x16x32" in l and ("v[24:27]," in l or "v[28:31]," in l) and "v[32:35], v[" not in l: continue
            O.append(l)
        txt = "\n".join(O)
    if P["pol"] != "nt":
        txt = txt.replace(" nt lds", f" {P['pol']} lds").replace(" nt\n", f" {P['pol']}\n")
    return head + txt + foot

if __name__ == "__main__":
    import json
    kw = json.loads(sys.argv[2]) if len(sys.argv) > 2 else {}
    open(sys.argv[1], "w").write(gen(**kw))
```

```python
import re
class Asm:
    def __init__(self): self.lines = []
    def __call__(self, text):
        for l in text.split("\n"):
            l = l.strip()
            if l: self.lines.append(l)
    def text(self): return "\n".join(("" if l.endswith(":") or l.startswith(".") else "    ") + l for l in self.lines) + "\n"

REG = re.compile(r"\b([vsa])(\d+)\b|\b([vsa])\[(\d+):(\d+)\]|\b(vcc|exec|m0|scc)\b|\b(vcc_lo|vcc_hi|exec_lo|exec_hi)\b")
def regs(op):
    out = set()
    for m in REG.finditer(op):
        if m.group(1): out.add(m.group(1)+m.group(2))
        elif m.group(3):
            for i in range(int(m.group(4)), int(m.group(5))+1): out.add(m.group(3)+str(i))
        elif m.group(6): out.add(m.group(6))
        elif m.group(7): out.add(m.group(7).split("_")[0])
    return out
TRANS = ("v_exp_f32","v_log_f32","v_rcp_f32","v_rsq_f32","v_sqrt_f32","v_sin_f32","v_cos_f32")
def split_ops(rest):
    ops, depth, cur = [], 0, ""
    for ch in rest:
        if ch == "[": depth += 1
        if ch == "]": depth -= 1
        if ch == "," and depth == 0: ops.append(cur.strip()); cur = ""
        else: cur += ch
    if cur.strip(): ops.append(cur.strip())
    return ops
class I:
    def __init__(self, line):
        self.line = line
        l = line.split(";")[0].strip()
        self.label = l.endswith(":") or l.startswith(".") or not l
        self.w = set(); self.r = set(); self.kind = "other"; self.states = 1
        self.srcC = set(); self.srcAB = set(); self.passes = 0; self.dpp = False; self.wide = set(); self.constr = set()
        if self.label: self.states = 0; self.mn = ""; return
        p = l.split(None, 1); mn = p[0]; self.mn = mn
        ops = split_ops(p[1]) if len(p) > 1 else []
        if mn == "s_nop": self.states = int(ops[0], 0) + 1; self.kind = "nop"; return
        if mn.startswith("v_mfma") or mn.startswith("v_smfmac"):
            self.kind = "mfma"; self.w = regs(ops[0]); self.srcAB = regs(ops[1]) | regs(ops[2])
            if mn.startswith("v_smfmac"):
                self.srcC = regs(ops[0]); self.srcAB |= regs(ops[3])
            else: self.srcC = regs(ops[3])
            self.r = self.srcAB | self.srcC
            self.passes = 8 if "32x32" in mn else 4
            pass
            return
        if mn.startswith("v_"):
            self.kind = "valu"
            self.dpp = "_dpp" in mn or "row_" in l or "quad_perm" in l
            if mn.startswith("v_cmp"):
                self.w = regs(ops[0]); self.r = set().union(*[regs(o) for o in ops[1:]])
                if mn.startswith("v_cmpx"): self.w.add("exec")
            elif "permlane" in mn and "swap" in mn:
                self.w = regs(ops[0]) | regs(ops[1]); self.r = set(self.w); self.kind = "permlane"
            elif mn.startswith("v_readfirstlane") or mn.startswith("v_readlane"):
                self.w = regs(ops[0]); self.r = set().union(*[regs(o) for o in ops[1:]]); self.kind = "readlane"
            elif "_co_" in mn:
                self.w = regs(ops[0]) | regs(ops[1]); self.r = set().union(*[regs(o) for o in ops[2:]])
            else:
                self.w = regs(ops[0]); self.r = set().union(*[regs(o) for o in ops[1:]]) if len(ops) > 1 else set()
                if mn.startswith(("v_fmac", "v_dot2c", "v_mac", "v_writelane")) or self.dpp: self.r |= self.w
                if mn.startswith("v_cndmask") and len(ops) == 3: self.r.add("vcc")
            self.trans = mn.replace("_e32","").replace("_e64","") in TRANS
            return
        if mn.startswith(("buffer_", "global_", "flat_")):
            self.kind = "vmem"
            allr = [regs(o) for o in ops]
            isl = " lds" in l or "load_lds" in mn
            if "load" in mn and not isl:
                self.w = allr[0]; self.r = set().union(*allr[1:])
            elif "atomic" in mn and "sc0" in l and mn.startswith("global"):
                self.w = allr[0]; self.r = set().union(*allr[1:])
            else:
                self.r = set().union(*allr) if allr else set()
                if "store" in mn and ("x3" in mn or "x4" in mn):
                    self.wide = allr[0] if mn.startswith("buffer") else allr[1]
            if isl: self.r.add("m0"); self.lds_dma = True
            return
        if mn.startswith("ds_"):
            self.kind = "ds"
            allr = [regs(o) for o in ops]
            if mn.startswith(("ds_read", "ds_bpermute", "ds_permute", "ds_swizzle")) or "_rtn" in mn:
                self.w = allr[0]; self.r = set().union(*allr[1:])
            else: self.r = set().union(*allr)
            return
        if mn.startswith("s_"):
            self.kind = "salu"
            if mn.startswith(("s_cmp", "s_bitcmp", "s_cbranch", "s_branch", "s_waitcnt", "s_barrier", "s_endpgm", "s_sleep", "s_setprio")):
                self.r = set().union(*[regs(o) for o in ops]) if ops else set()
            else:
                self.w = regs(ops[0]) if ops else set(); self.r = set().union(*[regs(o) for o in ops[1:]]) if len(ops) > 1 else set()
                if "saveexec" in mn: self.w.add("exec")
            return
def v(s): return {x for x in s if x[0] in "va" and x != "vcc"}
def sg(s): return {x for x in s if x[0] == "s" or x == "vcc"}
def need(p, c):
    n = 0
    isvalu = lambda x: x.kind in ("valu", "permlane", "readlane")
    if isvalu(p):
        if c.kind == "mfma" and v(p.w) & c.r: n = max(n, 2)
        if c.kind == "mfma" and "exec" in p.w: n = max(n, 4)
        if isvalu(c) and c.dpp and v(p.w) & c.r: n = max(n, 2)
        if isvalu(c) and c.dpp and "exec" in p.w: n = max(n, 5)
        if c.kind == "permlane" and v(p.w) & c.r: n = max(n, 2)
        if c.kind == "readlane" and v(p.w) & c.r: n = max(n, 1)
        if c.kind == "readlane" and sg(p.w) & c.r: n = max(n, 4)
        if isvalu(c) and sg(p.w) & c.r: n = max(n, 2)
        if c.kind == "vmem" and sg(p.w) & c.r: n = max(n, 5)
        if c.kind == "salu" and sg(p.w) & c.r: n = max(n, 1)
        if getattr(p, "trans", False) and (isvalu(c) or c.kind == "mfma") and not getattr(c, "trans", False) and v(p.w) & c.r: n = max(n, 1)
        if "exec" in p.w and c.kind in ("readlane", "permlane"): n = max(n, 4)
    if p.kind == "mfma":
        k = {4: (6, 8, 3), 8: (10, 12, 7)}[p.passes]
        if c.kind == "mfma":
            if p.w & c.srcAB: n = max(n, k[1])
            if p.w & c.srcC and not (p.w == c.srcC and p.passes == c.passes and p.mn == c.mn): n = max(n, k[0])
            if p.w & c.w and not (p.w & c.srcC): n = max(n, k[0])
        elif c.kind != "salu" and c.kind != "nop":
            if p.w & (c.r | c.w): n = max(n, k[1])
            if isvalu(c) and p.srcC & c.w: n = max(n, k[2])
    if p.kind == "salu" and "m0" in p.w and c.kind == "vmem" and "m0" in c.r: n = max(n, 1)
    if p.kind == "vmem" and p.wide and (p.wide & c.w): n = max(n, 2)
    return n
def insert_waits(lines, verbose=False):
    out = []; hist = []
    nins = 0
    for l in lines:
        c = I(l)
        if c.label:
            out.append(l); continue
        req = 0
        dist = 0
        for p in reversed(hist):
            k = need(p, c)
            if k > dist: req = max(req, k - dist)
            dist += p.states
            if dist >= 20: break
        if req > 0:
            nins += 1
            nop = I(f"s_nop {req-1}")
            out.append(f"s_nop {req-1}"); hist.append(nop)
        out.append(l); hist.append(c)
        if len(hist) > 40: hist = hist[-40:]
    return out, nins

def check_edges(lines):
    ins = [I(l) for l in lines]
    lab = {l.split(":")[0].strip(): i for i, l in enumerate(lines) if l.strip().endswith(":")}
    bad = []
    def back(i, budget, seen=0):
        h = []; d = 0; j = i
        while j >= 0 and d < budget:
            x = ins[j]
            if not x.label:
                if j != i and x.mn in ("s_branch", "s_endpgm"): break
                h.append(x); d += x.states
            j -= 1
        return h[::-1]
    for i, x in enumerate(ins):
        if x.label or not x.mn.startswith(("s_branch", "s_cbranch")): continue
        tgt = x.line.split()[-1]
        if tgt not in lab: continue
        hist = back(i, 20)
        j = lab[tgt]; d = 0; cur = list(hist); n0 = len(hist)
        hops = 0
        while j < len(ins) and d < 20:
            c = ins[j]
            if not c.label:
                dist = 0
                for k in range(len(cur)-1, -1, -1):
                    p = cur[k]
                    if k < n0 and need(p, c) > dist: bad.append((x.line, p.line, c.line, need(p, c), dist))
                    dist += p.states
                    if dist >= 20: break
                cur.append(c); d += c.states
                if c.mn == "s_endpgm": break
                if c.mn == "s_branch":
                    t2 = c.line.split()[-1]
                    if t2 in lab and hops < 4: j = lab[t2]; hops += 1; continue
                    break
            j += 1
    return bad
```

```python
import sys, math, struct
from asmlib import Asm, insert_waits, check_edges
from gen_common import KNAME

EP, QP, QL, GO, ST, HP, DP, BP, STAMP = 0, 0x1000, 0x40000, 0x48000, 0x50000, 0x60000, 0x80000, 0x100000, 0x800000
WS_REC = 0x1000000
X = 131072
SPIN = 1 << 17

def f2u(x): return struct.unpack("<I", struct.pack("<f", x))[0]
def vr(a, n=4): return f"v[{a}:{a+n-1}]"
def sr(a, n=4): return f"s[{a}:{a+n-1}]"

SX, SC, SQ, SK, SW, SG = 40, 44, 48, 52, 56, 60
sF, sB = 20, 24
HINT = 64
DPPM = "row_mask:0xf bank_mask:0xf"

DEFAULT = dict(lite=False, diag=False, cyc=False, fine=False, calib=0, probe=None, abl=(), pol="nt", prefetch=True, pf_wgs=16, role_bit=0,
               pq=True, pk_late='a', pf_ramp=(0, 4, 10), bi_at=2, q_at=31, qhint=0, cw_at=-1, sm_pre=4, bb_at=4, ba_at=28, q_ah=5, bd_at=8, l_pre=6, fin=1, ent=2, hc=1, late_fast=True, st0=0, qmode='reg', q_land=0, prog=0, prog_at=(12, 20), b2_early=1, spf=0, spf_stride=64, spf_early=False, spf_b=15, mlp='w', m_pf='bd', m_wait='flag', hshift=0, fin_sleep=0, dp_cm=False, ntag=2, fin2=False, pre=None, uvg=0, dp_warm=False, fin_wait=True, qgate=0, b1_at=10, tr_mid=2, s3ord=1, pw64=True, pv4=False, s1mode='a', ops_split=99, w1pf_at='b', xfast=True, align=None, nox=0, nox_cpf=2, tlb=False, zpf=0, uv_slow=0, w2_at='g', st_sleep=0, st_first=False, uk_first=False, tr_pre=0, pv_prio=0, qk_prio=2, qk_fill=(2, 2), tr_split=(14, 20), pv_bar=(10, 24), st_gap=4, optx=False, pf_pol='', first_pol='', uk_pol='nt', x_n=8, x_left=0, pv_fill=2,
               cpf=0, wo_gate=8, ql_pre=None, cpf_depth=2, cpf_tail=1, wq_pol="", wo_pol="", wo_depth=8, wo_depth0=8, wo_bar=(7, 17, 22), wo_rot=True,
               bhint=4, fhint=0, hsleep=0, out_pol="", mlp_at="pf", wpq=False, x_bar=True, wq_bars=(), ln_at=7, st_last=True, st_at=10, w2_early=False, uv_pf=0, w1_att=False, cpf_wait=None, lhint=0, st_touch=False, h_touch=False, hmap=1, pk_mix=False, cpf_late=False, c_keep=0, ql_delay=0, fin_pol='sc1', pl_pol='sc1', st_pol='sc1', rgmajor=4, hpipe=True, brounds=1, re_sleep=0, w1_wait=17, w2_late=True, wuv_depth=8, q_prio=True, q_fast=True, w1_pre=16, w2_left=0, att_pf=0, out_touch=False, dpp_early=True, go_at=None, cpfq=True, c_ramp=((0,10),), wo_early=0, wo_edepth=2)

def gen(**kw):
    P = dict(DEFAULT); P.update(kw)
    diag = P["diag"]
    a = Asm()
    sect = ["entry"]
    def fs(k):
        if P['cyc'] == 3: stamp(k, True)
    def stamp(k, force=False):
        if P["cyc"] == 3 and sect[0] in ("C", "F", "H") and not force: return
        if P["cyc"] == 2 and (sect[0], k) not in (("entry", 0), ("C", 3), ("H", 8), ("H", 7), ("S", 6), ("O", 8), ("A", 3), ("A", 4)): return
        if diag: a(f"{'s_memtime' if P['cyc'] else 's_memrealtime'} s[{80+2*k}:{81+2*k}]")
        if P["probe"] and P["probe"][0] == f"{sect[0]}{k}":
            a("s_memrealtime s[84:85]")
    def srd(base, size):
        a(f"s_mov_b32 s{base+2}, {size}\ns_mov_b32 s{base+3}, 0x20000")
    def ep_load(): a(f"s_load_dword s35, s[{SW}:{SW+1}], {EP}")
    def tags(need_b=True):
        for q in range(4): a(f"s_add_u32 s{sF+q}, s35, {q+1}")
        if need_b:
            for q in range(4): a(f"s_and_b32 s{sB+q}, s{sF+q}, 3\ns_mul_i32 s{sB+q}, s{sB+q}, 0x8001\ns_and_b32 s{sB+q}, s{sB+q}, 0x10001")
    def allreduce(op, v, t1):
        for r in (1, 2, 4, 8):
            a(f"{op}_dpp v{v}, v{v}, v{v} row_ror:{r} {DPPM}")
        for sw in ("v_permlane16_swap_b32", "v_permlane32_swap_b32"):
            a(f"v_mov_b32 v{t1}, v{v}\n{sw} v{t1}, v{v}\n{op} v{v}, v{v}, v{t1}")
    def rnd_bf16(d, s):
        a(f"v_cvt_pk_bf16_f32 v{d}, v{s}, v{s}\nv_and_b32 v{d}, 0xffff0000, v{d}")
    def unpack2(d, s):
        a(f"v_lshlrev_b32 v{d}, 16, v{s}\nv_and_b32 v{d+1}, 0xffff0000, v{s}")
    def ln_stats(xr, f, t):
        for i in range(4): unpack2(f+2*i, xr+i)
        a(f"v_add_f32 v{t}, v{f}, v{f+1}\nv_add_f32 v{t+1}, v{f+2}, v{f+3}\nv_add_f32 v{t+2}, v{f+4}, v{f+5}\nv_add_f32 v{t+3}, v{f+6}, v{f+7}")
        a(f"v_add_f32 v{t}, v{t}, v{t+1}\nv_add_f32 v{t+2}, v{t+2}, v{t+3}\nv_add_f32 v{t}, v{t}, v{t+2}")
        allreduce("v_add_f32", t, t+2)
        a(f"v_mul_f32 v{t}, {f2u(1/512)}, v{t}")
        a(f"v_sub_f32 v{t+2}, v{f}, v{t}\nv_mul_f32 v{t+1}, v{t+2}, v{t+2}")
        for i in range(1, 8):
            a(f"v_sub_f32 v{t+2+(i&1)}, v{f+i}, v{t}\nv_fmac_f32 v{t+1}, v{t+2+(i&1)}, v{t+2+(i&1)}")
        allreduce("v_add_f32", t+1, t+2)
        a(f"v_mul_f32 v{t+1}, {f2u(1/512)}, v{t+1}")
        rnd_bf16(t, t)
        rnd_bf16(t+1, t+1)
        a(f"v_add_f32 v{t+1}, {f2u(1e-5)}, v{t+1}")
        rnd_bf16(t+1, t+1)
        a(f"v_sqrt_f32 v{t+1}, v{t+1}")
        rnd_bf16(t+1, t+1)
        a(f"v_rcp_f32 v{t+1}, v{t+1}")
    def delta_masks(m, t):
        a(f"""v_and_b32 v{t}, 1, v0
        v_lshlrev_b32 v{t}, 4, v{t}
        v_mov_b32 v{t+1}, 0xffff
        v_lshlrev_b32 v{t}, v{t}, v{t+1}
        v_bfe_u32 v{t+1}, v0, 1, 3""")
        for dw in range(4):
            a(f"v_cmp_eq_u32 vcc, {dw}, v{t+1}\nv_cndmask_b32 v{m+dw}, 0, v{t}, vcc")
    def check(acc, first, n, tagbase, start):
        for i in range(n):
            if start and i == 0: a(f"v_xor_b32 v{acc}, s{tagbase}, v{first}")
            else: a(f"v_bitop3_b32 v{acc}, v{acc}, v{first+i}, s{tagbase+(i&3)} bitop3:0xf6")
    def spin(label, cond_branch, pre=""):
        a(f"""s_add_u32 s28, s28, 1
        s_cmp_gt_u32 s28, {SPIN}
        s_cbranch_scc1 L_exit
        {pre}
        {cond_branch} {label}""")
    def shint(label, offs, kind):
        if not offs: return
        a(f"{label}:")
        if P["hsleep"]: a(f"s_sleep {P['hsleep']}")
        n = len(offs)
        if kind == 'c':
            for x, o in enumerate(offs): a(f"s_load_dwordx2 {sr(HINT+2*x,2)}, s[36:37], {o} glc")
            a(f"{label}_chk:\ns_waitcnt lgkmcnt(0)")
            for x in range(n):
                a(f"s_xor_b64 {sr(HINT+2*x,2)}, {sr(HINT+2*x,2)}, {sr(sB,2)}")
                if x: a(f"s_or_b64 {sr(HINT,2)}, {sr(HINT,2)}, {sr(HINT+2*x,2)}")
            a(f"s_or_b32 s{HINT}, s{HINT}, s{HINT+1}")
            fin = f"s_and_b32 s{HINT}, s{HINT}, 0x10001"
        elif kind == 'd':
            for x, o in enumerate(offs): a(f"s_load_dword s{HINT+x}, s[{SW}:{SW+1}], s{o} glc")
            a("s_waitcnt lgkmcnt(0)")
            for x in range(n):
                a(f"s_xor_b32 s{HINT+x}, s{HINT+x}, s{sF}")
                if x: a(f"s_or_b32 s{HINT}, s{HINT}, s{HINT+x}")
            fin = f"s_and_b32 s{HINT}, s{HINT}, 0xff"
        elif kind == 't':
            for x, o in enumerate(offs): a(f"s_load_dwordx2 {sr(HINT+2*x,2)}, s[{SW}:{SW+1}], s{o} glc")
            a("s_waitcnt lgkmcnt(0)")
            for x in range(n):
                a(f"s_xor_b32 s{HINT+2*x+1}, s{HINT+2*x+1}, s{sF}")
                if x: a(f"s_or_b32 s{HINT+1}, s{HINT+1}, s{HINT+2*x+1}")
            fin = f"s_cmp_lg_u32 s{HINT+1}, 0"
        else:
            tb, mask = (sB, 0x10001) if kind == 'b' else (sF, 0xff)
            for x, o in enumerate(offs): a(f"s_load_dwordx4 {sr(HINT+4*x)}, s[{SW}:{SW+1}], s{o} glc")
            a("s_waitcnt lgkmcnt(0)")
            for x in range(4*n):
                a(f"s_xor_b32 s{HINT+x}, s{HINT+x}, s{tb+(x&3)}")
                if x: a(f"s_or_b32 s{HINT}, s{HINT}, s{HINT+x}")
            fin = f"s_and_b32 s{HINT}, s{HINT}, {mask}"
        spin(label, "s_cbranch_scc1", fin)
    def tdelay(label, ticks):
        a(f"""s_waitcnt lgkmcnt(0)
        s_add_u32 s78, s80, {ticks}
        {label}:
        s_memrealtime s[76:77]
        s_waitcnt lgkmcnt(0)
        s_sub_u32 s77, s76, s78
        s_cmp_lt_i32 s77, 0
        s_cbranch_scc1 {label}""")
    def hint_offs(n, seed, modmask, shift, base, spread):
        for x in range(n):
            a(f"s_add_u32 s{30+x}, s{seed}, {x*spread}\ns_and_b32 s{30+x}, s{30+x}, {modmask}\ns_lshl_b32 s{30+x}, s{30+x}, {shift}\ns_add_u32 s{30+x}, s{30+x}, s{base}")
        return [30+x for x in range(n)]

    stamp(0)
    if (P["calib"] or P["probe"] or P["lite"]) and P["align"] is None: a("s_memrealtime s[80:81]")
    if P["probe"]: a("s_mov_b32 s84, 0\ns_mov_b32 s88, 0")
    if P["align"] is not None: a("s_branch L_align\nL_back:\ns_nop 0")
    if P["pre"] is not None:
        a(f"""s_cmp_ge_u32 s2, 256
        s_cbranch_scc1 L_end
        s_load_dwordx2 s[10:11], s[0:1], 8
        s_lshl_b32 s12, s2, 16
        v_lshrrev_b32 v1, 6, v0
        v_and_b32 v2, 63, v0
        v_lshlrev_b32 v1, 13, v1
        v_lshl_add_u32 v1, v2, 4, v1
        v_add_u32 v1, s12, v1
        v_add_u32 v2, 4096, v1
        s_waitcnt lgkmcnt(0)""")
        for x in range(8):
            if x >= 3: a("s_waitcnt vmcnt(2)")
            a(f"global_load_dwordx4 {vr(8+4*x)}, v{1 + (x>>2)}, s[10:11] offset:{1024*(x&3)} {P['pre']}")
        a("s_waitcnt vmcnt(0)\ns_barrier\ns_memrealtime s[84:85]\nv_lshrrev_b32 v1, 6, v0\ns_nop 1\nv_readfirstlane_b32 s3, v1\ns_waitcnt lgkmcnt(0)\ns_cmp_eq_u32 s3, 1\ns_cselect_b32 s84, s84, 0")
    assert P["role_bit"] == 0 and P["hmap"] == 1
    a(f"""s_load_dwordx4 s[48:51], s[0:1], 16
    s_load_dwordx4 s[40:43], s[0:1], 0
    s_load_dwordx2 s[{SW}:{SW+1}], s[0:1], 104
    v_lshrrev_b32 v1, 6, v0""")
    if P["prefetch"]:
        a(f"""s_cmp_ge_u32 s2, {P['pf_wgs']}
        s_cbranch_scc1 L_nopf
        s_getpc_b64 s[10:11]
        L_pc:
        v_lshlrev_b32 v4, 6, v0
        v_min_u32 v4, L_codeend - L_pc - 4, v4
        global_load_dword v255, v4, s[10:11]
        L_nopf:""")
    a(f"""v_readfirstlane_b32 s3, v1
    s_lshr_b32 s5, s2, 4
    s_cmp_ge_u32 s5, 16
    s_cbranch_scc1 L_end
    v_and_b32 v0, 63, v0
    s_and_b32 s4, s2, 7""")
    if P["ent"] == 2:
        a(f"""s_bitcmp1_b32 s2, 3
        s_cbranch_scc0 L_WGT
        s_cmp_ge_u32 s3, 4
        s_cbranch_scc1 L_ATT_stub
        v_lshrrev_b32 v4, 1, v0
        v_and_b32 v5, 1, v0
        v_lshlrev_b32 v4, 11, v4
        v_lshl_add_u32 v4, v5, 7, v4
        v_bfe_u32 v5, v0, 1, 2
        v_mad_u32_u24 v5, v5, {P["hc"]}, s4
        v_and_b32 v5, 7, v5
        v_lshl_add_u32 v4, v5, 8, v4
        s_lshl2_add_u32 s16, s5, s3
        v_lshl_add_u32 v126, s16, 16, v4
        s_waitcnt lgkmcnt(0)
        global_load_dword v121, v126, s[48:49]""")
        if not P["pk_late"]: a("global_load_dword v127, v126, s[50:51]")
        a("s_branch L_ATT")
    else:
        a(f"""    s_cmp_ge_u32 s3, 4
    s_cbranch_scc1 L_go
    v_lshrrev_b32 v4, 1, v0
    v_and_b32 v5, 1, v0
    v_lshlrev_b32 v4, 11, v4
    s_lshl_b32 s17, s4, 8
    v_lshl_add_u32 v4, v5, 7, v4
    s_lshr_b32 s16, s2, 3
    s_lshl2_add_u32 s16, s16, s3
    s_lshl_b32 s16, s16, 15
    s_add_u32 s16, s16, s17
    v_add_u32 v5, s16, v4
    s_lshl2_add_u32 s16, s5, s3
    s_lshl_b32 s16, s16, 16
    s_add_u32 s16, s16, s17
    v_add_u32 v126, s16, v4
    s_mov_b32 exec_hi, 0
    s_waitcnt lgkmcnt(0)
    global_load_dword v121, v5, s[48:49]
    s_mov_b64 exec, -1
    s_bitcmp1_b32 s2, 3
    s_cbranch_scc0 L_WGT""")
        if not P["pk_late"]: a("global_load_dword v127, v126, s[50:51]")
        a("""s_branch L_ATT
    L_go:
    s_bitcmp1_b32 s2, 3
    s_cbranch_scc1 L_ATT_stub""")
    def decode():
        a(f"""s_lshr_b32 s7, s5, 2
        s_mul_i32 s8, s7, {P["hc"]}
        s_add_u32 s8, s8, s4
        s_and_b32 s8, s8, 7
        s_lshl3_add_u32 s7, s7, s8
        s_and_b32 s8, s5, 3
        s_lshl_b32 s17, s7, 8
        v_and_b32 v2, 15, v0
        v_lshrrev_b32 v3, 4, v0""")
    def ptrs():
        a(f"""s_mov_b64 s[{SK}:{SK+1}], s[50:51]
        s_mov_b64 s[{SC}:{SC+1}], s[42:43]""")

    def common():
        a("s_mov_b32 s28, 0")
        srd(SW, WS_REC)
        a("v_lshlrev_b32 v41, 5, v2\nv_lshl_add_u32 v41, v3, 4, v41")

    sect[0] = "A"
    PART = 0
    XA = """s_lshl_b32 s11, s3, 7
    v_lshlrev_b32 v4, 4, v0
    v_lshl_add_u32 v5, s8, 2, v2
    v_and_b32 v5, 15, v5
    v_lshl_add_u32 v5, v3, 4, v5
    v_lshlrev_b32 v5, 1, v5"""
    a("L_WGT:")
    if P["xfast"]:
        a(f"""s_cmp_eq_u32 s3, 7
        s_cbranch_scc1 L_warm
        L_WGT1:
        s_lshl_b32 s8, s5, 2
        v_add_u32 v5, s8, v0
        v_lshlrev_b32 v4, 4, v0
        v_bfi_b32 v5, 15, v5, v0
        s_lshl_b32 s11, s3, 7
        v_lshl_add_u32 v5, v5, 1, s11
        s_waitcnt lgkmcnt(0)
        global_load_dwordx4 v[8:11], v4, s[40:41]
        global_load_ushort v12, v5, s[40:41]""")
    decode()
    a(f"""s_lshl_b32 s10, s3, 19
    s_lshl_b32 s11, s8, 15
    s_add_u32 s10, s10, s11
    s_add_u32 s10, s10, s17
    {"" if P["xfast"] else XA}
    v_lshlrev_b32 v6, 17, v3
    v_lshl_add_u32 v6, v2, 4, v6
    s_movk_i32 s12, 0x2000""")
    def uk_loads():
        srd(SK, 4 << 20)
        a(f"""s_lshl3_add_u32 s13, s8, s3
        s_lshl_b32 s13, s13, 17
        s_add_u32 s13, s13, s17
        s_lshl_b32 s14, s3, 12
        s_add_u32 m0, s14, {X}
        v_lshlrev_b32 v50, 2, v3
        v_xor_b32 v50, v50, v2
        v_lshlrev_b32 v50, 4, v50
        v_lshl_add_u32 v48, v3, 13, v50""")
        for rg in range(4):
            if rg: a(f"v_xor_b32 v49, {16*rg}, v48\ns_addk_i32 m0, 0x400\ns_add_u32 s13, s13, 0x8000")
            a(f"buffer_load_dwordx4 v{49 if rg else 48}, {sr(SK)}, s13 offen {P['uk_pol']} lds")
    UK = 0 if P["uk_first"] else 4
    xl = [f"buffer_load_dwordx4 v[8:11], v4, {sr(SX)}, 0 offen", f"buffer_load_ushort v12, v5, {sr(SX)}, s11 offen"]
    if P["wpq"]:
        a(f"""v_bfe_u32 v7, v0, 1, 2
        v_lshlrev_b32 v7, 13, v7
        v_lshl_add_u32 v7, v3, 17, v7
        v_and_b32 v13, 1, v0
        v_lshl_add_u32 v7, v13, 7, v7""")
    if not P["xfast"]: a("s_waitcnt lgkmcnt(0)")
    ptrs()
    srd(SQ, 4 << 20)
    if P["xfast"]: a("s_branch L_WGT2\nL_warm:\ns_branch L_WGT1\nL_WGT2:")
    else:
        srd(SX, 1024)
        for l in xl: a(l)
    if P["x_bar"]: a("s_barrier")
    if P["uk_first"]:
        uk_loads()
        if P["uk_first"] == 2: a("s_barrier")
    if P["wpq"]:
        a(f"""s_mov_b32 exec_lo, {0x000f000f if P["pq"] else 0x00ff00ff}
        s_mov_b32 exec_hi, {0x000f000f if P["pq"] else 0x00ff00ff}
        buffer_load_dword v254, v7, {sr(SQ)}, s10 offen
        s_mov_b64 exec, -1""")
        if P.get("wpq_bar"): a("s_barrier")
    for t in range(16):
        a(f"buffer_load_dwordx4 {vr(64+4*t)}, v6, {sr(SQ)}, s10 offen {P['first_pol'] if t < (2 if P['pq'] else 4) else P['wq_pol']}")
        if t < 15:
            if t & 3 == 3: a(f"s_cmp_eq_u32 s8, {3-(t>>2)}\ns_cselect_b32 s13, {(-15*8192) & 0xffffffff}, s12\ns_add_u32 s10, s10, s13")
            else: a("s_add_u32 s10, s10, s12")
        if t in P["wq_bars"]: a("s_barrier")
        if t == min(3, P["ln_at"]):
            ep_load()
            if P["w1pf_at"] == "7":
                a(f"s_load_dwordx2 s[{SG}:{SG+1}], s[0:1], 56"); srd(SG, 512*1792*2)
            stamp(1)
            common()
            delta_masks(32, 36)
        if t == P["ln_at"]:
            a(f"s_waitcnt vmcnt({t+1 + (1 if P['wpq'] else 0) + 4 - UK})")
            if P["fine"]: stamp(5)
            ln_stats(8, 16, 24)
            a("v_lshlrev_b32 v12, 16, v12\nv_sub_f32 v12, v12, v24")
            rnd_bf16(12, 12)
            a("v_mul_f32 v12, v12, v25\nv_cvt_pk_bf16_f32 v12, v12, v12")
            a("s_cmp_lg_u32 s3, 3\ns_cbranch_scc1 L_noxn")
            for i in range(8): a(f"v_sub_f32 v{16+i}, v{16+i}, v24")
            for i in range(4): a(f"v_cvt_pk_bf16_f32 v{56+i}, v{16+2*i}, v{17+2*i}")
            for i in range(4): unpack2(16+2*i, 56+i)
            for i in range(8): a(f"v_mul_f32 v{16+i}, v{16+i}, v25")
            for i in range(4): a(f"v_cvt_pk_bf16_f32 v{56+i}, v{16+2*i}, v{17+2*i}")
            a("L_noxn:")
            if P["dpp_early"]:
                for t2 in range(16):
                    for dw in range(4):
                        a(f"v_and_b32_dpp v{128+4*t2+dw}, v12, v{32+dw} row_newbcast:{t2} {DPPM}")
    if P["fine"]: stamp(6)
    if not P["uk_first"]: uk_loads()
    if P["w1pf_at"] == "7":
        a(f"""s_mul_i32 s13, s8, {128*3584}
        s_lshr_b32 s14, s5, 2
        s_sub_u32 s15, s4, {1 if P["nox"] == 0 else 0}
        s_lshl2_add_u32 s14, s15, s14
        s_lshl_b32 s14, s14, 7
        s_add_u32 s13, s13, s14
        s_cmp_eq_u32 s4, {P["nox"]}
        s_cselect_b32 s13, 0x7ff00000, s13
        s_cmp_eq_u32 s3, 7
        s_cselect_b32 s13, s13, 0x7ff00000
        s_add_u32 s14, s13, {64*3584}
        v_mul_u32_u24 v51, 3584, v0
        s_waitcnt lgkmcnt(0)
        buffer_load_dword v52, v51, {sr(SG)}, s13 offen
        buffer_load_dword v53, v51, {sr(SG)}, s14 offen""")
        UK += 2
    a("s_lshl_b32 s12, s3, 9\nv_add_u32 v42, s12, v41")
    for t in range(16):
        for dw in range(4):
            if not P["dpp_early"]: a(f"v_and_b32_dpp v{128+4*t+dw}, v12, v{32+dw} row_newbcast:{t} {DPPM}")
        if t >= 1:
            a(f"s_waitcnt vmcnt({15-(t-1)+UK})")
            a(f"v_mfma_f32_16x16x32_bf16 v[44:47], {vr(128+4*(t-1))}, {vr(64+4*(t-1))}, {'0' if t == 1 else 'v[44:47]'}")
    a(f"s_waitcnt vmcnt({UK})\nv_mfma_f32_16x16x32_bf16 v[44:47], {vr(128+60)}, {vr(64+60)}, v[44:47]")
    a("s_waitcnt lgkmcnt(0)")
    tags(True)
    a(f"""s_mov_b32 exec_hi, 0
    ds_write_b128 v42, v[44:47] offset:{PART}
    s_mov_b64 exec, -1""")
    stamp(2)
    a(f"""s_sub_u32 s9, s3, 5
    s_cmp_lt_u32 s9, 2
    s_cbranch_scc1 L_A2
    s_waitcnt vmcnt({2 if P["w1pf_at"] == "7" else 0}) lgkmcnt(0)
    s_barrier
    s_cmp_lt_u32 s3, 4
    s_cbranch_scc1 L_S1
    s_branch L_WO""")
    a("L_A2:")
    a(f"""s_lshl_b32 s12, s9, 14
    s_add_u32 s12, s12, {X}
    v_and_b32 v4, 3, v0
    v_bfe_u32 v5, v0, 2, 2
    v_lshl_or_b32 v6, v4, 2, v5
    v_xor_b32 v6, v6, v3
    v_lshlrev_b32 v6, 4, v6
    v_lshl_add_u32 v6, v5, 10, v6
    v_lshl_add_u32 v6, v4, 8, v6
    v_add_u32 v10, s12, v6
    v_xor_b32 v11, 64, v10
    v_xor_b32 v12, 0x80, v10
    v_xor_b32 v13, 0xc0, v10
    s_lshl_b32 s13, s9, 8
    s_add_u32 s13, s13, 8192
    v_lshl_add_u32 v5, v3, 4, s13
    v_and_b32 v14, 31, v0
    v_lshl_add_u32 v14, v14, 3, s13
    v_lshlrev_b32 v15, 4, v0
    s_lshl1_add_u32 s11, s8, s9
    s_lshl_b32 s11, s11, 7
    s_lshl_b32 s10, s7, 10
    s_add_u32 s10, s10, s11
    s_add_u32 s10, s10, {QL}
    v_lshlrev_b32 v4, 1, v0
    v_cmp_eq_u32 s[14:15], 1, v3
    v_cmp_eq_u32 s[16:17], 2, v3
    v_cmp_eq_u32 s[18:19], 3, v3
    v_bfe_u32 v7, v0, 1, 2
    v_add_u32 v7, s{sF}, v7
    v_and_b32 v8, 1, v0
    v_lshrrev_b32 v7, v8, v7
    v_and_b32 v7, 1, v7
    s_waitcnt vmcnt({2 if P["w1pf_at"] == "7" else 0}) lgkmcnt(0)""")
    stamp(3)
    a("s_barrier")
    for u in range(4): a(f"ds_read_b128 {vr(128+4*u)}, v15 offset:{PART + 1024*u}")
    fr = [(T, t) for t in range(4) for T in range(4)]
    for (T, t) in fr[:11]: a(f"ds_read_b128 {vr(64+16*T+4*t)}, v{10+t} offset:{4096*T}")
    a("s_waitcnt lgkmcnt(11)")
    a("""v_pk_add_f32 v[128:129], v[128:129], v[132:133]
    v_pk_add_f32 v[130:131], v[130:131], v[134:135]
    v_pk_add_f32 v[136:137], v[136:137], v[140:141]
    v_pk_add_f32 v[138:139], v[138:139], v[142:143]
    v_pk_add_f32 v[128:129], v[128:129], v[136:137]
    v_pk_add_f32 v[130:131], v[130:131], v[138:139]""")
    for q in range(4): a(f"v_mov_b32 v{132+q}, v{128+q}")
    for q in range(4): a(f"v_permlane32_swap_b32 v{132+q}, v{128+q}")
    a("""v_pk_add_f32 v[128:129], v[128:129], v[132:133]
    v_pk_add_f32 v[130:131], v[130:131], v[134:135]
    v_cvt_pk_bf16_f32 v128, v128, v129
    v_cvt_pk_bf16_f32 v129, v130, v131
    ds_write_b64 v14, v[128:129]""")
    for t in range(4): a(f"ds_read_b128 {vr(16+4*t)}, v5 offset:{64*t}")
    for (T, t) in fr[11:]: a(f"ds_read_b128 {vr(64+16*T+4*t)}, v{10+t} offset:{4096*T}")
    for t in range(4):
        a(f"s_waitcnt lgkmcnt({[8, 7, 4, 0][t]})")
        for T in range(4):
            a(f"v_mfma_f32_16x16x32_bf16 {vr(32+4*T)}, {vr(16+4*t)}, {vr(64+16*T+4*t)}, {'0' if t == 0 else vr(32+4*T)}")
    qs = math.log2(math.e) / math.sqrt(128.0)
    a(f"""v_cndmask_b32 v9, v32, v36, s[14:15]
    v_cndmask_b32 v9, v9, v40, s[16:17]
    v_cndmask_b32 v9, v9, v44, s[18:19]
    v_mul_f32 v9, {f2u(qs)}, v9
    v_add_u32 v9, 0x10000, v9
    v_lshrrev_b32 v9, 17, v9
    v_lshl_or_b32 v9, v9, 1, v7
    s_nop 0""")
    if P["ql_delay"]:
        a("s_barrier")
        for _ in range(max(0, P["ql_delay"] - 2)): a("s_sleep 8")
        a(f"s_cmp_eq_u32 s4, {P['nox']}\ns_cbranch_scc1 L_qd")
        for _ in range(min(2, P["ql_delay"])): a("s_sleep 8")
        a("L_qd:")
    a(f"buffer_store_short v9, v4, {sr(SW)}, s10 offen sc1")
    stamp(4)
    if P["ql_delay"]: a(f"s_load_dwordx2 s[{SG}:{SG+1}], s[0:1], 40\ns_branch L_WO1")
    a("s_branch L_WO")

    sect[0] = "C"
    PX, MX, LX, FX = X, X + 8192, X + 9216, X + 12288
    a("L_ATT_stub:\ns_branch L_ATT_help\nL_ATT:")
    decode(); ptrs()
    a("s_lshl4_add_u32 s9, s4, s5")
    srd(SC, 16 << 20)
    common()
    a(f"""s_lshl2_add_u32 s10, s9, s3
    s_lshl_b32 s10, s10, 15
    s_lshl_b32 s11, s3, 13
    v_lshlrev_b32 v4, 2, v3
    v_xor_b32 v4, v4, v2
    v_lshlrev_b32 v4, 4, v4
    v_lshl_add_u32 v32, v3, 10, v4
    v_xor_b32 v33, 32, v32
    v_xor_b32 v34, 16, v32
    v_xor_b32 v35, 48, v32
    s_mov_b32 m0, s11
    s_nop 0""")
    seq = []
    def c_pos(n):
        G = P["rgmajor"]
        return (n // (8*G))*G + n % G, (n % (8*G)) // G
    def c_load(n):
        cb, rg = c_pos(n)
        a(f"buffer_load_dwordx4 v{32+(rg&3)}, {sr(SC)}, s10 offen {'nt' if n < 32 - P['c_keep'] else ''} lds")
        seq.append(n)
        if n < 31:
            cb2, rg2 = c_pos(n+1)
            dm = (cb2-cb)*32768 + (rg2-rg)*1024; dg = (cb2-cb)*256 + (rg2-rg)*4096
            a("s_add_u32 m0, m0, s15" if dm == 32768 else (f"s_addk_i32 m0, {dm}" if -32768 <= dm < 32768 else f"s_add_u32 m0, m0, {dm & 0xffffffff}"))
            a(f"s_addk_i32 s10, {dg}")
        if n == P["q_at"] and not P["q_land"]: a("ds_write_b32 v125, v125")
    def c_wait(n): a(f"s_waitcnt vmcnt({len(seq) - 1 - seq.index(n)})")
    seq.append("pq")
    if not P["pk_late"]: seq.append("pk")
    if P["pk_late"] == "a":
        a(f"global_load_dword v127, v126, s[{SK}:{SK+1}]"); seq.append("pk")
    a("s_mov_b32 s15, 0x8000")
    if P["qmode"] == "dma": a("s_mov_b32 s33, 0xfffefffe")
    issued = 0
    for n in range(P["pf_ramp"][0]): c_load(n); issued += 1
    a(f"""s_lshl_b32 s16, s3, 11
    s_add_u32 s16, s16, {X}
    v_mov_b32 v125, s16
    v_mov_b32 v124, 0
    ds_write_b32 v125, v124""")
    ep_load()
    if P["zpf"]:
        a(f"""s_load_dwordx2 s[{SG}:{SG+1}], s[0:1], 40
        s_load_dwordx2 s[{SQ}:{SQ+1}], s[0:1], 72
        s_load_dwordx2 s[72:73], s[0:1], 32
        s_lshl2_add_u32 s19, s9, s3
        s_lshl_b32 s19, s19, 12
        s_lshl2_add_u32 s29, s7, s8
        s_lshl2_add_u32 s29, s29, s3
        s_lshl_b32 s29, s29, 13
        v_lshlrev_b32 v120, 7, v0""")
        srd(SG, 4 << 20); srd(SQ, 1792*512*2); srd(72, 4 << 20)
    stamp(1)
    a(f"""v_and_b32 v4, 3, v0
    v_lshrrev_b32 v1, 5, v0
    v_bfe_u32 v5, v0, 2, 1
    v_lshl_or_b32 v5, v4, 1, v5
    v_bfe_u32 v6, v0, 3, 1
    v_lshl_or_b32 v5, v5, 1, v6
    v_xor_b32 v5, v5, v1
    v_lshlrev_b32 v5, 4, v5
    v_bfe_u32 v6, v0, 2, 3
    v_lshl_add_u32 v5, v6, 10, v5
    v_lshl_add_u32 v5, v4, 8, v5
    v_add_u32 v8, s11, v5
    v_xor_b32 v5, v2, v1
    v_lshlrev_b32 v5, 4, v5
    v_and_b32 v4, 31, v0
    v_lshl_add_u32 v5, v4, 8, v5
    v_add_u32 v16, {X}, v5""")
    for x in range(1, 8): a(f"v_xor_b32 v{8+x}, {32*x}, v8\nv_xor_b32 v{16+x}, {32*x}, v16")
    for x in range(8): a(f"v_add_u32 v{24+x}, 0x10000, v{8+x}")
    a(f"""v_lshlrev_b32 v6, 4, v4
    v_add_u32 v96, {MX}, v6
    v_lshl_add_u32 v6, v1, 9, v6
    s_lshl2_add_u32 s13, s3, {MX}
    v_add_u32 v97, s13, v6
    s_lshl_b32 s13, s3, 11
    s_add_u32 s13, s13, {PX}
    v_lshl_add_u32 v99, v0, 4, s13
    s_waitcnt lgkmcnt(0)""")
    if P["pk_late"] == "ep" and not P["uk_first"]:
        a(f"global_load_dword v127, v126, s[{SK}:{SK+1}]"); seq.append("pk")
    tags(False)
    if P["mlp"] == "a":
        a(f"""s_load_dwordx4 s[72:75], s[0:1], 56
        s_load_dwordx2 s[{SQ}:{SQ+1}], s[0:1], 72
        v_lshlrev_b32 v4, 4, v0
        global_load_dwordx4 v[40:43], v4, s[40:41]""")
        seq.append("x")
    lq = []
    def lop(text, key): a(text); lq.append(key)
    def lwait(items):
        last = max([i for i, x in enumerate(lq) if x in items], default=-1)
        if last >= 0: a(f"s_waitcnt lgkmcnt({min(15, len(lq) - 1 - last)})")
        del lq[:last+1]
    def c_read1(t):
        cb = t >> 3
        lop(f"ds_read_b128 {vr(128+4*t)}, v{(8 if cb < 2 else 24) + (t&7)} offset:{32768*(cb&1)}", ("C", t))
    def c_read(cb):
        for t in range(8*cb, 8*cb+8): c_read1(t)
    def blk_done(b): return max(n for n in range(32) if c_pos(n)[0] == b) + 1 if b < 4 else 99
    for key, d in (("pq", P["pf_ramp"][1]), ("pk", P["pf_ramp"][2])):
        if key in seq: c_wait(key)
        while issued < d: c_load(issued); issued += 1
    if P["mlp"] == "a":
        c_wait("x")
        ln_stats(40, 44, 52)
        for i in range(8): a(f"v_sub_f32 v{44+i}, v{44+i}, v52")
        for i in range(4): a(f"v_cvt_pk_bf16_f32 v{116+i}, v{44+2*i}, v{45+2*i}")
        for i in range(4): unpack2(44+2*i, 116+i)
        for i in range(8): a(f"v_mul_f32 v{44+i}, v{44+i}, v53")
        for i in range(4): a(f"v_cvt_pk_bf16_f32 v{116+i}, v{44+2*i}, v{45+2*i}")
        a(f"""s_waitcnt lgkmcnt(0)
        s_mov_b64 s[{SK}:{SK+1}], s[74:75]
        s_sub_u32 s16, s4, {1 if P["nox"] == 0 else 0}
        s_lshl4_add_u32 s29, s16, s5
        s_lshl2_add_u32 s18, s8, s3
        s_mul_i32 s18, s18, {32*3584}
        s_lshr_b32 s16, s29, 2
        s_lshl_b32 s16, s16, 7
        s_add_u32 s18, s18, s16
        s_mul_i32 s19, s3, {128*3584}
        s_lshl_b32 s31, s29, 5
        s_add_u32 s19, s19, s31
        s_lshl_b32 s30, s29, 14
        s_lshl_b32 s16, s3, 8
        s_add_u32 s30, s30, s16
        v_mul_u32_u24 v112, 3584, v0
        v_lshlrev_b32 v113, 12, v3
        v_lshl_add_u32 v113, v2, 4, v113
        v_lshlrev_b32 v114, 1, v2""")
        srd(72, 512*1792*2); srd(SQ, 1792*512*2); srd(SK, 1792*2)
    W2R = [88, 100, 104, 108]
    def m_loads():
        a(f"""s_cmp_eq_u32 s4, {P["nox"]}
        s_cbranch_scc1 L_nom{m_loads.n}
        s_mov_b32 exec_hi, 0
        buffer_load_dword v121, v112, {sr(72)}, s18 offen
        s_mov_b64 exec, -1
        buffer_load_ushort v115, v114, {sr(SK)}, s31 offen""")
        for rq in range(4): a(f"buffer_load_dwordx4 {vr(W2R[rq])}, v113, {sr(SQ)}, s30 offen offset:{1024*rq} nt")
        a(f"L_nom{m_loads.n}:")
    m_loads.n = 0
    landed = 0; pre = 0
    while issued < 32:
        c_wait(landed); landed += 1
        while issued < 32 and issued - landed < P["pf_ramp"][2]:
            c_load(issued); issued += 1
        if landed == P["bi_at"]: a("s_barrier")
        if landed >= blk_done(pre) and pre < 4 - P["prog"]: c_read(pre); pre += 1
    stamp(2)
    if P["q_land"]:
        c_wait(P["q_land"] - 1)
        a("ds_write_b32 v125, v125")
    if P["zpf"]:
        a("s_barrier")
        if P["zpf"] & 1: a(f"buffer_load_dword v121, v120, {sr(SG)}, s29 offen"); seq.append("z1")
        if P["zpf"] & 2: a(f"s_mov_b32 exec_hi, 0\nbuffer_load_dword v122, v120, {sr(SQ)}, s19 offen\ns_mov_b64 exec, -1"); seq.append("z2")
        if P["zpf"] & 4: a(f"buffer_load_dword v123, v126, {sr(72)}, s18 offen"); seq.append("z4")
    while pre < 4 - P["prog"]:
        c_wait(blk_done(pre) - 1)
        if pre == 3 and P["tr_pre"]: a("s_barrier")
        c_read(pre); pre += 1
    if P["mlp"] == "a" and P["m_pf"] == "c": m_loads()
    a(f"s_setprio {P['qk_prio']}\ns_barrier")
    if P["mlp"] == "a" and P["m_pf"] == "b0": m_loads()
    stamp(3)
    NS = 8
    def q_read(t): lop(f"ds_read_b128 {vr(32+4*(t % NS))}, v{16+(t&7)} offset:{8192*(t>>3)}", ("Q", t))
    rd = 0
    for t in range(32):
        if t == P["b1_at"]:
            assert rd <= 16
            a("s_barrier")
            if P["mlp"] == "a" and P["m_pf"] == "b1": m_loads()
        while rd < min(32 if t >= P["b1_at"] else 16, t + P["q_ah"] + 1): q_read(rd); rd += 1
        for b_ in range(4 - P["prog"], 4):
            t0 = P["prog_at"][b_ - 2]
            if t == t0: c_wait(blk_done(b_) - 1)
            if t0 <= t < t0 + 4: c_read1(8*b_ + 2*(t - t0)); c_read1(8*b_ + 2*(t - t0) + 1)
            if b_ == 3 and t == t0 and P["mlp"] == "a" and P["m_pf"] == "cl": m_loads()
        if t == P["ba_at"]:
            assert rd == 32
            a("s_waitcnt lgkmcnt(0)"); del lq[:]
            stamp(4)
            a("s_barrier")
        def strip(x):
            for q in range(4): a(f"v_and_b32 v{32+4*(x % NS)+q}, s33, v{32+4*(x % NS)+q}")
        if P["qmode"] == "dma":
            if t == 0: lwait([("Q", 0)]); strip(0)
            lwait([("Q", t+1), ("C", t)])
        else: lwait([("Q", t), ("C", t)])
        a(f"v_mfma_f32_32x32x16_bf16 {vr(64,16)}, {vr(128+4*t)}, {vr(32+4*(t % NS))}, {'0' if t == 0 else vr(64,16)}")
        if P["qmode"] == "dma" and t < 31: strip(t+1)
    stamp(5); fs(1)
    a(f"""v_max3_f32 v4, v64, v65, v66
    v_max3_f32 v5, v67, v68, v69
    v_max3_f32 v6, v70, v71, v72
    v_max3_f32 v7, v73, v74, v75
    v_max3_f32 v4, v4, v76, v77
    v_max3_f32 v5, v5, v78, v79
    v_max3_f32 v4, v4, v5, v6
    v_max_f32 v20, v4, v7
    ds_write_b32 v97, v20""")
    fs(2)
    for r in range(0, 16, 2):
        a(f"v_pk_add_f32 {vr(64+r,2)}, {vr(64+r,2)}, v[20:21] op_sel_hi:[1,0] neg_lo:[0,1] neg_hi:[0,1]")
    for r in range(16):
        if r == P["bb_at"]:
            a("s_waitcnt lgkmcnt(0)"); fs(3)
            a("s_barrier"); fs(4)
            a("ds_read_b128 v[8:11], v96\nds_read_b128 v[12:15], v96 offset:512")
        a(f"v_exp_f32 v{64+r}, v{64+r}")
    a("s_waitcnt lgkmcnt(0)"); fs(5)
    a("""v_max3_f32 v4, v8, v9, v10
    v_max3_f32 v5, v11, v12, v13
    v_max3_f32 v4, v4, v14, v15
    v_max_f32 v8, v4, v5
    v_sub_f32 v20, v20, v8
    v_exp_f32 v20, v20""")
    if P["pw64"]:
        for x in range(4):
            for r in (4*x, 4*x+2): a(f"v_pk_mul_f32 {vr(64+r,2)}, {vr(64+r,2)}, v[20:21] op_sel_hi:[1,0]")
            for r in (4*x, 4*x+2): a(f"v_cvt_pk_bf16_f32 v{80+r//2}, v{64+r}, v{65+r}")
            a(f"ds_write_b64 v99, {vr(80+2*x,2)} offset:{1024*(x>>1) + 8*(x&1)}")
    else:
        for hf in range(2):
            for r in range(8*hf, 8*hf+8, 2):
                a(f"v_pk_mul_f32 {vr(64+r,2)}, {vr(64+r,2)}, v[20:21] op_sel_hi:[1,0]")
            for r in range(8*hf, 8*hf+8, 2):
                a(f"v_cvt_pk_bf16_f32 v{80+r//2}, v{64+r}, v{65+r}")
            a(f"ds_write_b128 v99, {vr(80+4*hf)} offset:{1024*hf}")
    fs(6)
    a("""v_pk_add_f32 v[64:65], v[64:65], v[66:67]
    v_pk_add_f32 v[68:69], v[68:69], v[70:71]
    v_pk_add_f32 v[72:73], v[72:73], v[74:75]
    v_pk_add_f32 v[76:77], v[76:77], v[78:79]
    v_pk_add_f32 v[64:65], v[64:65], v[68:69]
    v_pk_add_f32 v[72:73], v[72:73], v[76:77]
    s_waitcnt lgkmcnt(0)""")
    fs(7)
    a("""s_setprio 0
    s_barrier""")
    stamp(6); fs(8)
    if P["mlp"] == "a" and P["m_pf"] == "bc": m_loads()
    a("""v_add_f32 v64, v64, v65
    v_add_f32 v72, v72, v73
    v_add_f32 v64, v64, v72
    ds_write_b32 v97, v64 offset:1024
    s_waitcnt lgkmcnt(0)
    s_barrier""")
    if P["mlp"] == "a" and P["m_pf"] == "bd": m_loads()
    a("s_setprio 0\ns_cmp_lg_u32 s3, 0\ns_cbranch_scc1 L_FIN")
    a(f"""ds_read_b128 v[32:35], v96 offset:1024
    ds_read_b128 v[36:39], v96 offset:1536
    v_lshlrev_b32 v5, 4, v0
    v_mov_b32 v9, s{sF}
    v_mov_b32 v11, s{sF}
    s_lshl_b32 s12, s9, 9
    s_add_u32 s12, s12, {ST}
    s_waitcnt lgkmcnt(0)
    v_add_f32 v32, v32, v33
    v_add_f32 v34, v34, v35
    v_add_f32 v36, v36, v37
    v_add_f32 v38, v38, v39
    v_add_f32 v32, v32, v34
    v_add_f32 v36, v36, v38
    v_add_f32 v10, v32, v36
    s_mov_b32 exec_hi, 0
    buffer_store_dwordx4 v[8:11], v5, {sr(SW)}, s12 offen sc1
    s_mov_b64 exec, -1""")
    stamp(7)

    sect[0] = "F"
    a("L_FIN:")
    if P["mlp"] == "a":
        W1L, XNL, HL = 0, 16384, 24576
        a(f"""s_cmp_eq_u32 s4, {P["nox"]}
        s_cbranch_scc1 L_FIN2""")
        delta_masks(32, 36)
        a(f"""s_lshl_b32 s16, s3, 10
        s_add_u32 s16, s16, {XNL}
        v_lshl_add_u32 v4, v0, 4, s16
        ds_write_b128 v4, v[116:119]
        s_lshl_b32 s17, s3, 8
        s_add_u32 s16, s16, s17
        v_lshl_add_u32 v4, v3, 4, s16
        v_lshrrev_b32 v5, 1, v0
        v_mul_u32_u24 v5, 3584, v5
        v_and_b32 v6, 1, v0
        v_lshl_add_u32 v5, v6, 4, v5
        s_lshl_b32 s16, s3, 12
        s_mov_b32 m0, s16
        v_lshlrev_b32 v6, 8, v3
        v_lshl_add_u32 v6, v2, 3, v6
        v_add_u32 v6, s16, v6
        v_lshl_add_u32 v7, v3, 2, v2
        v_and_b32 v7, 15, v7
        v_lshlrev_b32 v7, 4, v7
        v_add_u32 v7, {HL}, v7
        s_lshl2_add_u32 s16, s3, {HL}
        v_lshl_add_u32 v12, v2, 4, s16
        v_lshl_add_u32 v13, v3, 2, v2
        v_and_b32 v13, 15, v13
        v_lshlrev_b32 v13, 2, v13""")
        for t in range(4): a(f"ds_read_b128 {vr(64+4*t)}, v4 offset:{64*t}")
        if P["m_wait"] != "none": a("s_barrier")
        a("s_waitcnt vmcnt(4)")
        for q in range(4):
            a(f"buffer_load_dwordx4 v5, {sr(72)}, s19 offen lds")
            if q < 3: a(f"s_addk_i32 m0, 0x400\ns_add_u32 s19, s19, {32*3584}")
        a("ds_bpermute_b32 v115, v13, v115\ns_waitcnt vmcnt(0)")
        for t in range(4):
            a(f"ds_read_b64_tr_b16 {vr(128+4*t,2)}, v6 offset:{1024*t}\nds_read_b64_tr_b16 {vr(130+4*t,2)}, v6 offset:{1024*t+128}")
        a("s_waitcnt lgkmcnt(0)")
        for t in range(4):
            a(f"v_mfma_f32_16x16x32_bf16 v[16:19], {vr(64+4*t)}, {vr(128+4*t)}, {'0' if t == 0 else 'v[16:19]'}")
        a(f"""ds_write_b32 v12, v16
        s_lshl_b32 s12, s29, 11
        s_lshl_b32 s13, s3, 9
        s_add_u32 s12, s12, s13
        s_add_u32 s12, s12, {DP + 128*2048}
        v_mov_b32 v40, 0xff
        s_waitcnt lgkmcnt(0)
        s_barrier
        ds_read_b128 v[16:19], v7
        v_lshlrev_b32 v115, 16, v115
        s_waitcnt lgkmcnt(0)
        v_add_f32 v16, v16, v17
        v_add_f32 v18, v18, v19
        v_add_f32 v16, v16, v18""")
        rnd_bf16(20, 16)
        a("v_add_f32 v20, v20, v115")
        rnd_bf16(20, 20)
        a("v_max_f32 v20, 0, v20\nv_mul_f32 v20, v20, v20\nv_cvt_pk_bf16_f32 v20, v20, v20")
        for rq in range(4):
            for dw in range(4):
                a(f"v_and_b32_dpp v{64+4*rq+dw}, v20, v{32+dw} row_newbcast:{rq} {DPPM}")
        for rq in range(4):
            a(f"v_mfma_f32_16x16x32_bf16 v[96:99], {vr(64+4*rq)}, {vr(W2R[rq])}, {'0' if rq == 0 else 'v[96:99]'}")
        for r in range(0, 4, 4 // P["ntag"]): a(f"v_bfi_b32 v{96+r}, v40, s{sF+r}, v{96+r}")
        a(f"""v_lshlrev_b32 v4, 5, v2
        v_lshl_add_u32 v4, v3, 4, v4
        s_mov_b32 exec_hi, 0
        buffer_store_dwordx4 v[96:99], v4, {sr(SW)}, s12 offen sc1
        s_mov_b64 exec, -1""")
        stamp(1)
        a("L_FIN2:")
    if P["cyc"]: a("s_barrier")
    if P["fin"] == "old":
        a(f"""s_cmp_lt_u32 s5, 14
        s_cbranch_scc1 L_exit
        s_load_dwordx2 s[{SC}:{SC+1}], s[0:1], 80
        s_load_dwordx2 s[{SQ}:{SQ+1}], s[0:1], 88
        s_sub_u32 s10, s5, 14
        s_lshl1_add_u32 s10, s4, s10
        s_lshl_b32 s11, s10, 7
        s_lshl_b32 s12, s3, 16
        s_add_u32 s11, s11, s12
        s_add_u32 s11, s11, {DP}
        s_add_u32 s12, s11, 0x4000
        s_add_u32 s13, s11, 0x8000
        s_add_u32 s14, s11, 0xc000
        s_lshl_b32 s16, s10, 6
        v_lshrrev_b32 v4, 3, v0
        v_and_b32 v5, 7, v0
        v_lshlrev_b32 v4, 11, v4
        v_lshl_add_u32 v4, v5, 4, v4
        v_lshlrev_b32 v12, 4, v5
        v_add_u32 v12, {FX}, v12
        s_lshl_b32 s17, s3, 7
        v_add_u32 v13, s17, v12
        v_lshlrev_b32 v5, 3, v5
        v_mov_b32 v6, 0xff""")
        srd(SX, 1024); srd(SC, 1024); srd(SQ, 1024)
        a(f"""s_waitcnt lgkmcnt(0)
        buffer_load_dwordx2 v[14:15], v5, {sr(SX)}, s16 offen
        buffer_load_dwordx2 v[16:17], v5, {sr(SC)}, s16 offen""")
        if P["out_touch"]: a(f"buffer_load_dwordx2 v[30:31], v5, {sr(SQ)}, s16 offen {P['out_touch']}")
        a("s_waitcnt vmcnt(0)")
        unpack2(20, 14); unpack2(22, 15); unpack2(24, 16); unpack2(26, 17)
        a("v_pk_add_f32 v[20:21], v[20:21], v[24:25]\nv_pk_add_f32 v[22:23], v[22:23], v[26:27]")
        a("L_fin:")
        if P["fin_sleep"]: a(f"s_sleep {P['fin_sleep']}")
        for x in range(4): a(f"buffer_load_dwordx4 {vr(64+4*x)}, v4, {sr(SW)}, s{11+x} offen {P['fin_pol']}")
        for x in range(4):
            a(f"s_waitcnt vmcnt({3-x})")
            check(7, 64+4*x, 4, sF, x == 0)
            if x: a(f"v_pk_add_f32 v[64:65], v[64:65], {vr(64+4*x,2)}\nv_pk_add_f32 v[66:67], v[66:67], {vr(66+4*x,2)}")
        a("v_and_b32 v7, v6, v7\nv_cmp_ne_u32 vcc, 0, v7")
        spin("L_fin", "s_cbranch_vccnz")
        for q in range(4): a(f"v_add_f32_dpp v{64+q}, v{64+q}, v{64+q} row_ror:8 {DPPM}")
        for sw in ("v_permlane16_swap_b32", "v_permlane32_swap_b32"):
            for q in range(4): a(f"v_mov_b32 v{68+q}, v{64+q}")
            for q in range(4): a(f"{sw} v{68+q}, v{64+q}")
            a("v_pk_add_f32 v[64:65], v[64:65], v[68:69]\nv_pk_add_f32 v[66:67], v[66:67], v[70:71]")
        a(f"""s_mov_b64 exec, 0xff
        ds_write_b128 v13, v[64:67]
        s_waitcnt lgkmcnt(0)
        s_barrier
        s_cmp_lg_u32 s3, 0
        s_cbranch_scc1 L_exit""")
        for x in range(1, 4): a(f"ds_read_b128 {vr(64+4*x)}, v12 offset:{128*x}")
        a("v_pk_add_f32 v[20:21], v[20:21], v[64:65]\nv_pk_add_f32 v[22:23], v[22:23], v[66:67]\ns_waitcnt lgkmcnt(0)")
        stamp(8)
        a(f"""v_pk_add_f32 v[68:69], v[68:69], v[72:73]
        v_pk_add_f32 v[70:71], v[70:71], v[74:75]
        v_pk_add_f32 v[20:21], v[20:21], v[76:77]
        v_pk_add_f32 v[22:23], v[22:23], v[78:79]
        v_pk_add_f32 v[20:21], v[20:21], v[68:69]
        v_pk_add_f32 v[22:23], v[22:23], v[70:71]
        v_cvt_pk_bf16_f32 v12, v20, v21
        v_cvt_pk_bf16_f32 v13, v22, v23
        buffer_store_dwordx2 v[12:13], v5, {sr(SQ)}, s16 offen {P['out_pol']}
        s_cmp_lg_u32 s10, 0
        s_cbranch_scc1 L_fin_done
        s_mov_b64 exec, 1
        {"s_mov_b32 s88, 1" if P["probe"] else ""}
        v_mov_b32 v14, s{sF}
        buffer_store_dword v14, v5, {sr(SW)}, 0 offen offset:{EP} {P['out_pol']}
        L_fin_done:
        s_mov_b64 exec, -1""")
    else:
        nw = P["fin"]
        k0 = 16 - 4 // nw
        a(f"""s_cmp_lt_u32 s5, {k0}
        s_cbranch_scc1 L_exit
        s_sub_u32 s12, 3, s3
        s_cmp_ge_u32 s12, {nw}
        s_cbranch_scc1 L_exit
        s_load_dwordx2 s[{SC}:{SC+1}], s[0:1], 80
        s_load_dwordx2 s[{SQ}:{SQ+1}], s[0:1], 88
        s_sub_u32 s10, s5, {k0}
        s_mul_i32 s10, s10, {nw}
        s_add_u32 s10, s10, s12
        s_lshl2_add_u32 s10, s4, s10
        s_lshl_b32 s11, s10, {13 if P["dp_cm"] else 6}
        s_add_u32 s64, s11, {DP}""")
        for x in range(1, 8): a(f"s_add_u32 s{64+x}, s64, {(1024 if P['dp_cm'] else 0x8000)*x}")
        a(f"""s_lshl_b32 s16, s10, 5
        v_lshrrev_b32 v4, 2, v0
        v_and_b32 v5, 3, v0
        v_lshlrev_b32 v4, {6 if P["dp_cm"] else 11}, v4
        v_lshl_add_u32 v4, v5, 4, v4
        v_lshl_add_u32 v5, v5, 2, v3
        v_lshlrev_b32 v5, 1, v5
        v_mov_b32 v6, 0xff""")
        srd(SX, 1024); srd(SC, 1024); srd(SQ, 1024)
        if P["fin_wait"] and not P["cyc"]: a("s_barrier")
        a(f"""s_waitcnt lgkmcnt(0)
        buffer_load_ushort v14, v5, {sr(SX)}, s16 offen
        buffer_load_ushort v15, v5, {sr(SC)}, s16 offen""")
        if P["out_touch"]: a(f"buffer_load_ushort v30, v5, {sr(SQ)}, s16 offen {P['out_touch']}")
        a("""s_waitcnt vmcnt(0)
        v_lshlrev_b32 v14, 16, v14
        v_lshlrev_b32 v15, 16, v15
        v_add_f32 v14, v14, v15""")
        for q in range(4): a(f"s_and_b32 s{72+q}, s{sF+q}, 0xff")
        if P["mlp"] == "a":
            assert P["ntag"] == 2 and not P["dp_cm"]
            a(f"v_add_u32 v8, {128*2048}, v4\nL_finm:")
            for x in range(7): a(f"buffer_load_dwordx4 {vr(64+4*x)}, v8, {sr(SW)}, s{64+x} offen {P['fin_pol']}")
            for x in range(7):
                a(f"s_waitcnt vmcnt({6-x})")
                for q in (0, 2): a(f"v_xor_b32 v{64+4*x+q}, s{72+q}, v{64+4*x+q}")
                a(f"v_or3_b32 v7, {'0' if x == 0 else 'v7'}, v{64+4*x}, v{66+4*x}")
                if x: a(f"v_pk_add_f32 v[64:65], v[64:65], {vr(64+4*x,2)}\nv_pk_add_f32 v[66:67], v[66:67], {vr(66+4*x,2)}")
            a("v_and_b32 v7, v6, v7\nv_cmp_ne_u32 vcc, 0, v7\nv_permlane32_swap_b32 v64, v66\nv_permlane32_swap_b32 v65, v67")
            spin("L_finm", "s_cbranch_vccnz")
            a(f"""v_pk_add_f32 v[64:65], v[64:65], v[66:67]
            v_permlane16_swap_b32 v64, v65
            v_add_f32 v64, v64, v65
            v_add_f32_dpp v64, v64, v64 row_ror:4 {DPPM}
            v_add_f32_dpp v64, v64, v64 row_ror:8 {DPPM}
            v_add_f32 v14, v14, v64""")
            stamp(2)
        a("L_fin:")
        if P["fin_sleep"]: a(f"s_sleep {P['fin_sleep']}")
        if P["fin2"]:
            a("s_movk_i32 s17, 0xff\nv_mov_b32 v60, 0\nv_mov_b32 v61, 0\nv_mov_b32 v62, 0\nv_mov_b32 v63, 0\nL_fin2:")
            for x in range(8):
                a(f"s_bitcmp1_b32 s17, {x}\ns_cbranch_scc0 L_fa{x}\nbuffer_load_dwordx4 {vr(64+4*x)}, v4, {sr(SW)}, s{64+x} offen {P['fin_pol']}\nL_fa{x}:")
            a("s_waitcnt vmcnt(0)")
            for x in range(8):
                a(f"s_bitcmp1_b32 s17, {x}\ns_cbranch_scc0 L_fb{x}")
                for q in range(4): a(f"v_xor_b32 v{64+4*x+q}, s{72+q}, v{64+4*x+q}")
                a(f"""v_or3_b32 v7, v{64+4*x}, v{65+4*x}, v{66+4*x}
                v_or_b32 v7, v7, v{67+4*x}
                v_and_b32 v7, v6, v7
                v_cmp_ne_u32 vcc, 0, v7
                s_cbranch_vccnz L_fb{x}
                s_bitset0_b32 s17, {x}
                L_fb{x}:""")
            spin("L_fin2", "s_cbranch_scc1", "s_cmp_lg_u32 s17, 0")
            for st_ in (4, 8, 16):
                for x in range(0, 32, 2*st_):
                    a(f"v_pk_add_f32 {vr(64+x,2)}, {vr(64+x,2)}, {vr(64+x+st_,2)}\nv_pk_add_f32 {vr(66+x,2)}, {vr(66+x,2)}, {vr(66+x+st_,2)}")
            a("v_permlane32_swap_b32 v64, v66\nv_permlane32_swap_b32 v65, v67")
        else:
            for x in range(8): a(f"buffer_load_dwordx4 {vr(64+4*x)}, v4, {sr(SW)}, s{64+x} offen {P['fin_pol']}")
            for x in range(8):
                a(f"s_waitcnt vmcnt({7-x})")
                for q in range(0, 4, 4 // P["ntag"]): a(f"v_xor_b32 v{64+4*x+q}, s{72+q}, v{64+4*x+q}")
                z = '0' if x == 0 else 'v7'
                if P["ntag"] == 4: a(f"v_or3_b32 v7, {z}, v{64+4*x}, v{65+4*x}\nv_or3_b32 v7, v7, v{66+4*x}, v{67+4*x}")
                elif P["ntag"] == 2: a(f"v_or3_b32 v7, {z}, v{64+4*x}, v{66+4*x}")
                else: a(f"v_or_b32 v7, {z}, v{64+4*x}")
                if x: a(f"v_pk_add_f32 v[64:65], v[64:65], {vr(64+4*x,2)}\nv_pk_add_f32 v[66:67], v[66:67], {vr(66+4*x,2)}")
            a("v_and_b32 v7, v6, v7\nv_cmp_ne_u32 vcc, 0, v7")
            a("v_permlane32_swap_b32 v64, v66\nv_permlane32_swap_b32 v65, v67")
            spin("L_fin", "s_cbranch_vccnz")
        stamp(8)
        a(f"""v_pk_add_f32 v[64:65], v[64:65], v[66:67]
        v_permlane16_swap_b32 v64, v65
        v_add_f32 v64, v64, v65
        v_add_f32_dpp v64, v64, v64 row_ror:4 {DPPM}
        v_add_f32_dpp v64, v64, v64 row_ror:8 {DPPM}
        v_add_f32 v64, v64, v14
        v_cvt_pk_bf16_f32 v64, v64, v64
        s_mov_b32 exec_lo, 0x000f000f
        s_mov_b32 exec_hi, 0x000f000f
        buffer_store_short v64, v5, {sr(SQ)}, s16 offen {P['out_pol']}
        s_cmp_lg_u32 s10, 0
        s_cbranch_scc1 L_fin_done
        s_mov_b64 exec, 1
        {"s_mov_b32 s88, 1" if P["probe"] else ""}
        v_mov_b32 v14, s{sF}
        buffer_store_dword v14, v5, {sr(SW)}, 0 offen offset:{EP} {P['out_pol']}
        L_fin_done:
        s_mov_b64 exec, -1""")
    if P["lite"]:
        a(f"""s_waitcnt vmcnt(0)
        s_memrealtime s[82:83]
        s_lshl_b32 s10, s10, {4 if P["fin"] == "old" else 3}
        s_add_u32 s10, s10, {STAMP}
        s_waitcnt lgkmcnt(0)
        v_mov_b32 v4, 0
        v_mov_b32 v8, s80
        v_mov_b32 v9, s82
        v_mov_b32 v10, s80
        v_mov_b32 v11, s82
        {"buffer_store_dwordx4 v[8:11]" if P["fin"] == "old" else "buffer_store_dwordx2 v[8:9]"}, v4, {sr(SW)}, s10 offen""")
    if diag:
        a("s_waitcnt vmcnt(0)"); stamp(9)
    a("s_branch L_exit")

    sect[0] = "H"
    a("L_ATT_help:")
    decode()
    common()
    a("s_waitcnt lgkmcnt(0)")
    ep_load()
    QA_DMA = """v_lshlrev_b32 v4, 4, v0
    v_add_u32 v5, s13, v4
    v_xor_b32 v8, v2, v3
    v_xor_b32 v8, s14, v8
    v_lshlrev_b32 v8, 4, v8
    v_lshl_add_u32 v8, v3, 10, v8
    v_xor_b32 v9, 64, v8"""
    QA_REG = """v_lshlrev_b32 v5, 4, v2
    v_lshl_add_u32 v5, v3, 10, v5
    v_xor_b32 v8, v2, v3
    v_xor_b32 v8, s14, v8
    v_lshlrev_b32 v8, 4, v8
    v_lshl_add_u32 v8, v3, 8, v8
    v_add_u32 v8, s13, v8
    v_xor_b32 v9, 64, v8
    s_add_u32 s19, s12, 4096"""
    a(f"""s_lshl4_add_u32 s9, s4, s5
    s_sub_u32 s10, s3, 4
    s_lshl_b32 s11, s10, 13
    s_add_u32 s12, s11, {QL}
    s_lshl_b32 s11, s10, 11
    s_add_u32 s13, s11, {X}
    s_and_b32 s14, s10, 1
    s_lshl_b32 s14, s14, 3
    {QA_DMA if P["qmode"] == "dma" else QA_REG}
    v_mov_b32 v6, 0x10001""")
    a(f"""v_bfe_u32 v4, v0, 2, 2
    v_bfe_u32 v7, v0, 4, 1
    v_bfe_u32 v12, v0, 1, 1
    v_lshl_or_b32 v12, v7, 1, v12
    v_lshl_or_b32 v12, v4, 2, v12
    v_lshlrev_b32 v12, 4, v12
    v_lshl_add_u32 v12, v4, 8, v12
    v_lshl_add_u32 v12, v7, 10, v12
    v_lshrrev_b32 v13, 5, v0
    v_lshl_add_u32 v12, v13, 12, v12
    v_and_b32 v4, 1, v0
    v_lshl_add_u32 v12, v4, 3, v12
    s_lshl_b32 s14, s10, 15
    v_add_u32 v24, s14, v12
    v_lshlrev_b32 v4, 4, v2
    v_lshl_add_u32 v1, v3, 19, v4
    v_lshl_add_u32 v4, v7, 9, v4
    v_lshl_add_u32 v4, v13, 10, v4
    v_add_u32 v98, {PX}, v4
    s_lshl_b32 s15, s9, 8
    s_add_u32 s14, s14, s15
    s_add_u32 s14, s14, {BP}""")
    for n in range(8):
        if n: a(f"v_xor_b32 v{24+n}, {32*n}, v24")
        a(f"v_xor_b32 v{100+n}, {32*n + 16}, v24")
    for hh in range(2):
        for r in range(4):
            a(f"s_add_u32 s{64+4*hh+r}, s14, {(16*hh + r)*131072}")
    a("s_waitcnt lgkmcnt(0)")
    tags(True)
    if P["tlb"]:
        a(f"""v_lshlrev_b32 v4, 20, v0
        s_mov_b64 exec, 15
        buffer_load_dword v110, v4, {sr(SW)}, s64 offen nt
        s_mov_b64 exec, -1""")
    def spf():
        a(f"""s_lshl2_add_u32 s16, s9, s10
        s_lshl_b32 s16, s16, 15
        s_add_u32 s30, s42, s16
        s_addc_u32 s31, s43, 0""")
        offs = [32768 - P["spf_stride"]*(x+1) for x in range(P["spf"]*1024 // P["spf_stride"])]
        for x, o in enumerate(offs):
            a(f"s_load_dword s{72 + x % 4}, s[30:31], {o}")
            if x % P["spf_b"] == P["spf_b"] - 1: a("s_waitcnt lgkmcnt(0)")
        a("s_waitcnt lgkmcnt(0)")
    if P["spf"] and P["spf_early"]: spf()
    a("s_barrier")
    if P["spf"] and not P["spf_early"]: spf()
    a(f"""v_mov_b32 v16, s13
    L_qtrig:
    ds_read_b32 v17, v16
    s_waitcnt lgkmcnt(0)
    v_cmp_eq_u32 vcc, 0, v17
    s_sleep 1
    s_add_u32 s28, s28, 0x10000
    s_cbranch_scc1 L_exit
    s_cbranch_vccnz L_qtrig
    s_and_b32 s28, s28, 0xffff""")
    stamp(4)
    if P["q_prio"]: a("s_setprio 3")
    def qoff(r): return 1024*(r & 1) + 8192*(r >> 1)
    def q_ld(r): a(f"buffer_load_dwordx4 {vr(64+4*r)}, v5, {sr(SW)}, s{19 if r & 1 else 12} offen offset:{256*(r >> 1)} sc1")
    def q_dma(r): a(f"s_add_u32 m0, s13, {qoff(r)}\ns_add_u32 s15, s12, {4096*(r & 1) + 256*(r >> 1)}\nbuffer_load_dwordx4 v{8+(r&1)}, {sr(SW)}, s15 offen sc1 lds")
    for r in range(8): (q_dma if P["qmode"] == "dma" else q_ld)(r)
    fr = [(n, w) for n in range(8) for w in range(4)]
    def tr_read(n, w):
        for sec in range(2):
            a(f"ds_read_b64_tr_b16 {vr(128+16*n+4*w+2*sec,2)}, v{(100 if sec else 24)+n} offset:{8192*w + 2048*sec}")
    def q_valid(st):
        R = list(range(4*st, 4*st+4))
        def one(r):
            c = 32 + 4*r
            for q in range(4): a(f"v_xor_b32 v{c+q}, s{sB+q}, v{64+4*r+q}")
            a(f"ds_write_b128 v{8+(r&1)}, {vr(c)} offset:{qoff(r)}")
            a(f"v_or3_b32 v{12+(r&3)}, v{c}, v{c+1}, v{c+2}\nv_or_b32 v{12+(r&3)}, v{12+(r&3)}, v{c+3}")
        def allok():
            a("v_or3_b32 v7, v12, v13, v14\nv_or_b32 v7, v7, v15\nv_and_b32 v7, v6, v7\nv_cmp_ne_u32 vcc, 0, v7")
        for r in R:
            a(f"s_waitcnt vmcnt({7-r})"); one(r)
        allok()
        a(f"s_cbranch_vccz L_qok{st}\nL_qfetch{st}:")
        for r in R:
            a(f"v_and_b32 v7, v6, v{12+(r&3)}\nv_cmp_ne_u32 vcc, 0, v7\ns_cbranch_vccz L_qs{r}")
            q_ld(r)
            a(f"L_qs{r}:")
        a("s_waitcnt vmcnt(0) lgkmcnt(0)")
        for r in R: one(r)
        allok()
        spin(f"L_qfetch{st}", "s_cbranch_vccnz")
        a(f"L_qok{st}:\ns_waitcnt lgkmcnt(0)")
    def q_valid_dma(st):
        R = list(range(4*st, 4*st+4))
        for r in R:
            a(f"s_waitcnt vmcnt({7-r})\nds_read_b128 {vr(64+4*r)}, v5 offset:{qoff(r)}")
            if r > R[0]: a("s_waitcnt lgkmcnt(1)"); check(7, 64+4*(r-1), 4, sB, r == R[0]+1)
        a("s_waitcnt lgkmcnt(0)")
        check(7, 64+4*R[-1], 4, sB, False)
        a(f"v_and_b32 v7, v6, v7\nv_cmp_ne_u32 vcc, 0, v7\ns_cbranch_vccz L_qok{st}\ns_mov_b32 s16, 0")
        a(f"L_qfetch{st}:")
        for r in R:
            a(f"s_bitcmp1_b32 s16, {r}\ns_cbranch_scc0 L_qs{r}")
            q_dma(r)
            a(f"L_qs{r}:")
        a("s_waitcnt vmcnt(0)")
        for r in R: a(f"ds_read_b128 {vr(64+4*r)}, v5 offset:{qoff(r)}")
        a("s_mov_b32 s16, 0")
        for r in R:
            a(f"s_waitcnt lgkmcnt({R[-1]-r})")
            check(7, 64+4*r, 4, sB, True)
            a(f"v_and_b32 v7, v6, v7\nv_cmp_ne_u32 vcc, 0, v7\ns_cmp_lg_u64 vcc, 0\ns_cselect_b32 s17, {1<<r}, 0\ns_or_b32 s16, s16, s17")
        spin(f"L_qfetch{st}", "s_cbranch_scc1", "s_cmp_lg_u32 s16, 0")
        a(f"L_qok{st}:")
    if P["qmode"] == "dma": q_valid = q_valid_dma
    q_valid(0)
    stamp(5)
    a("s_barrier")
    q_valid(1)
    a(f"s_setprio {P['pv_prio']}")
    for (n, w) in fr[:P["tr_mid"]]: tr_read(n, w)
    a("s_barrier")
    P["tr_pre"] = P["tr_mid"]
    for i_, (n, w) in enumerate(fr):
        if i_ == P["tr_split"][0]: a("s_barrier")
        if i_ == P["tr_split"][1]: a("s_barrier")
        if i_ >= P["tr_pre"]: tr_read(n, w)
    if P["cyc"]: stamp(2)
    for x in P["tr_split"]:
        if x >= 32: a("s_barrier")
    a("s_setprio 0\ns_waitcnt lgkmcnt(0)\ns_barrier")
    stamp(6)
    del lq[:]
    def p_read(hh, w): lop(f"ds_read_b128 {vr(32+16*hh+4*w)}, v98 offset:{2048*w + 256*hh}", ("P", hh, w))
    for w in range(4): p_read(0, w)
    def outblk(hh, r): return (8 if hh == 0 else 64) + 4*r
    def pack(hh, q):
        L = []
        for r in range(4):
            o = outblk(hh, r) + q
            L += [f"v_cvt_pk_bf16_f32 v{o}, v{64+32*hh+8*q+r}, v{64+32*hh+8*q+4+r}", f"v_bfi_b32 v{o}, v6, s{sB+q}, v{o}"]
        return L
    def ostore(hh, r): return f"buffer_store_dwordx4 {vr(outblk(hh, r))}, v1, {sr(SW)}, s{64+4*hh+r} offen sc1"
    order = [(hh, n, w) for hh in range(2) for n in range(8) for w in range(4)]
    GAP = 3
    F = []
    for q in range(3): F += [(8*q + 7 + GAP, l) for l in pack(0, q)]
    for r in range(4):
        F += [(31 + GAP + P["st0"] + P["st_gap"]*r, l) for l in pack(0, 3)[2*r:2*r+2]] + [(0, ostore(0, r))]
    G2 = []
    for q in range(3): G2 += [(32 + 8*q + 7 + GAP, l) for l in pack(1, q)]
    for i_, (hh, n, w) in enumerate(order):
        lwait([("P", hh, w)])
        acc = 64 + 32*hh + 4*n
        a(f"v_mfma_f32_16x16x32_bf16 {vr(acc)}, {vr(32+16*hh+4*w)}, {vr(128+16*n+4*w)}, {'0' if w == 0 else vr(acc)}")
        if i_ == P["bd_at"]: a("s_barrier")
        if 3 <= i_ < 7: p_read(1, i_ - 3)
        if P["cyc"] and i_ == 31: stamp(1)
        used = 0
        while used < 2:
            if F and F[0][0] <= i_:
                l = F.pop(0)[1]; a(l); used += 0 if "store" in l else 1
            elif G2 and G2[0][0] <= i_ and not any("v64," in x[1] or True for x in F if "store" not in x[1] and x[0] <= 31 + GAP - 1):
                a(G2.pop(0)[1]); used += 1
            else: break
    stamp(7)
    for f in F + G2: a(f[1])
    pk = pack(1, 3)
    for r in range(4):
        a(pk[2*r]); a(pk[2*r+1]); a(ostore(1, r))
    if P["mlp"] == "a" and P["m_wait"] == "flag": a(f"s_cmp_eq_u32 s4, {P['nox']}\ns_cbranch_scc1 L_pvx\ns_barrier\nL_pvx:")
    stamp(8)
    if diag:
        a("s_waitcnt vmcnt(0)"); stamp(9)
    a("s_branch L_exit")

    sect[0] = "S"
    a("L_S1:")
    a(f"""s_load_dwordx2 s[{SG}:{SG+1}], s[0:1], 32
    s_load_dwordx2 s[{SX}:{SX+1}], s[0:1], 56
    s_load_dwordx2 s[{SQ}:{SQ+1}], s[0:1], 72
    s_load_dwordx2 s[{SK}:{SK+1}], s[0:1], 64""")
    srd(SX, 512*1792*2); srd(SQ, 1792*512*2); srd(SK, 1792*2)
    srd(SG, 4 << 20)
    a(f"""v_lshlrev_b32 v5, 17, v3
    v_lshlrev_b32 v6, 2, v3
    v_xor_b32 v6, v6, v2
    v_lshl_add_u32 v4, v6, 4, v5
    v_xor_b32 v26, 32, v4
    s_lshl_b32 s10, s8, 5
    s_add_u32 s10, s10, s3
    s_lshl_b32 s10, s10, 15
    s_lshl_b32 s11, s7, 8
    s_add_u32 s10, s10, s11
    s_lshl_b32 s11, s3, 13
    s_add_u32 s11, s11, {X}""")
    a(f"""v_bfe_u32 v6, v0, 2, 2
    v_bfe_u32 v7, v0, 4, 1
    v_bfe_u32 v5, v0, 1, 1
    v_lshl_or_b32 v7, v7, 1, v5
    v_lshl_or_b32 v7, v6, 2, v7
    s_lshl_b32 s12, s3, 2
    v_xor_b32 v7, s12, v7
    v_lshlrev_b32 v7, 4, v7
    v_lshlrev_b32 v6, 8, v6
    v_lshl_add_u32 v6, v3, 11, v6
    v_and_b32 v5, 1, v0
    v_lshl_add_u32 v6, v5, 3, v6
    v_add_u32 v6, {X}, v6
    v_add_u32 v8, v6, v7
    v_xor_b32 v9, 32, v8""")
    a(f"""v_and_b32 v5, 7, v0
    v_lshl_add_u32 v5, v5, 2, v3
    v_lshlrev_b32 v10, 9, v5
    v_lshlrev_b32 v11, 4, v0
    v_lshlrev_b32 v5, 4, v2
    v_lshl_add_u32 v5, v3, 3, v5
    s_lshl_b32 s12, s3, 6
    s_add_u32 s13, s12, s11
    v_add_u32 v12, s13, v5
    v_and_b32 v5, 3, v0
    v_mul_u32_u24 v5, {8192+64}, v5
    v_lshl_add_u32 v5, v3, 4, v5
    v_add_u32 v13, {X}, v5
    v_bfe_u32 v5, v0, 4, 1
    v_bfe_u32 v6, v0, 1, 1
    v_lshl_or_b32 v5, v5, 1, v6
    v_bfe_u32 v6, v0, 2, 2
    v_lshl_or_b32 v5, v5, 2, v6
    v_and_b32 v6, 1, v0
    v_lshl_or_b32 v5, v5, 1, v6
    s_add_u32 s13, s12, {X+2048}
    v_lshl_add_u32 v14, v5, 1, s13
    v_mov_b32 v15, s11
    v_mov_b32 v31, {X}
    v_mov_b32 v30, 0x10001
    v_bfe_u32 v5, v0, 4, 1
    v_cmp_eq_u32 s[18:19], 1, v5
    s_mov_b32 m0, s11
    s_nop 0""")
    a(f"""s_lshl2_add_u32 s15, s8, s3
    s_mul_i32 s15, s15, {32*3584}
    s_lshr_b32 s16, s5, 2
    s_sub_u32 s9, s4, {1 if P["nox"] == 0 else 0}
    s_lshl2_add_u32 s16, s9, s16
    s_lshl_b32 s16, s16, 7
    s_add_u32 s15, s15, s16
    v_mul_u32_u24 v20, 3584, v0
    s_lshl4_add_u32 s9, s9, s5
    s_waitcnt lgkmcnt(0)""")
    if P["tlb"]:
        a(f"""s_lshl2_add_u32 s12, s7, s8
        s_lshl_b32 s12, s12, 15
        s_add_u32 s12, s12, {BP + 3*256 + 128}
        s_lshl_b32 s13, s9, 14
        v_mov_b32 v21, 0
        s_mov_b64 exec, 1
        buffer_load_dword v237, v21, {sr(SG)}, s10 offen
        buffer_load_dword v237, v21, {sr(SQ)}, s13 offen
        buffer_load_dword v237, v21, {sr(SW)}, s12 offen nt
        s_mov_b64 exec, -1""")
    if P["w1pf_at"] == "1" and P["mlp"] != "a":
        a(f"""s_cmp_eq_u32 s4, {P["nox"]}
        s_cbranch_scc1 L_nw1
        s_mov_b32 exec_hi, 0
        buffer_load_dword v239, v20, {sr(SX)}, s15 offen
        s_mov_b64 exec, -1
        L_nw1:""")
    a("s_barrier")
    if P["h_touch"] and P["bhint"]:
        a(f"""s_lshl_b32 s12, s3, 13
        s_lshl2_add_u32 s13, s7, s8
        s_lshl_b32 s13, s13, 15
        s_add_u32 s13, s13, s12""")
        for rnd in range(P["brounds"]):
            for x in range(P["bhint"]):
                a(f"s_add_u32 s12, s13, {BP + ((32*x//P['bhint'] + 3 - rnd) % 32)*256 + 128}\ns_load_dword s{HINT+x}, s[{SW}:{SW+1}], s12 glc")
    for r in range(16): a(f"v_mov_b32 v{96+r}, 0")
    if P["uv_pf"]:
        a(f"""s_lshl2_add_u32 s12, s8, s3
        s_lshl_b32 s12, s12, 18
        s_lshl_b32 s13, s7, 8
        s_add_u32 s12, s12, s13
        v_lshrrev_b32 v21, 1, v0
        v_and_b32 v22, 1, v0
        v_lshlrev_b32 v22, 7, v22
        v_lshl_add_u32 v21, v21, 13, v22
        {"s_mov_b32 exec_hi, 0" if P["uv_pf"] == 1 else ""}
        buffer_load_dword v238, v21, {sr(SG)}, s12 offen
        s_mov_b64 exec, -1""")
    if P["mlp"] == "a": a("s_branch L_nomlp")
    a(f"""s_cmp_eq_u32 s4, {P["nox"]}
    s_cbranch_scc1 L_nomlp
    s_mov_b32 exec_hi, 0
    {"" if P["w1_att"] or P["w1pf_at"] != "b" else f"buffer_load_dword v239, v20, {sr(SX)}, s15 offen"}
    s_mov_b64 exec, -1
    s_cmp_lg_u32 s3, 3
    s_cbranch_scc1 L_nomlp
    s_lshl_b32 s15, s9, 5
    s_lshl_b32 s16, s9, 14
    v_lshlrev_b32 v21, 12, v3
    v_lshl_add_u32 v21, v2, 4, v21
    v_lshlrev_b32 v22, 1, v2
    buffer_load_ushort v48, v22, {sr(SK)}, s15 offen""")
    a(f"""v_mov_b32 v27, v21
    v_lshrrev_b32 v20, 1, v0
    v_mul_u32_u24 v20, 3584, v20
    v_and_b32 v21, 1, v0
    v_lshl_add_u32 v20, v21, 4, v20
    v_lshlrev_b32 v21, 4, v0
    v_add_u32 v21, {X}, v21
    ds_write_b128 v21, v[56:59]
    v_lshlrev_b32 v21, 4, v3
    v_add_u32 v21, {X}, v21
    v_lshlrev_b32 v22, 8, v3
    v_lshl_add_u32 v22, v2, 3, v22
    v_add_u32 v22, {X+16384}, v22
    v_lshl_add_u32 v23, v3, 2, v2
    v_and_b32 v23, 15, v23
    v_lshlrev_b32 v23, 2, v23
    s_mov_b32 m0, {X+16384}""")
    def w2_loads():
        for t in range(16): a(f"buffer_load_dwordx4 {vr(192+4*t)}, v27, {sr(SQ)}, s16 offen offset:{256*t} nt")
    if P["w2_early"]: w2_loads()
    for t in range(16): a(f"ds_read_b128 {vr(64+4*t)}, v21 offset:{64*t}")
    if not P["w1_att"]: a("s_waitcnt vmcnt(0)")
    if P["optx"]: a("s_barrier")
    for q in range(16):
        a(f"buffer_load_dwordx4 v20, {sr(SX)}, s15 offen lds")
        if q < 15: a(f"s_addk_i32 m0, 0x400\ns_add_u32 s15, s15, {32*3584}")
    if P["optx"]: a("s_waitcnt vmcnt(0)")
    else:
        a(f"s_waitcnt vmcnt({P['wo_gate']})\ns_barrier")
        if P["w2_early"] or P["w2_at"] == "u": a("s_waitcnt vmcnt(0)")
        else:
            w2_loads()
            a("s_waitcnt vmcnt(16)")
    stamp(8)
    for t in range(16):
        a(f"ds_read_b64_tr_b16 {vr(128+4*t,2)}, v22 offset:{1024*t}\nds_read_b64_tr_b16 {vr(130+4*t,2)}, v22 offset:{1024*t+128}")
    a("s_waitcnt lgkmcnt(0)")
    for t in range(16):
        a(f"v_mfma_f32_16x16x32_bf16 v[16:19], {vr(64+4*t)}, {vr(128+4*t)}, {'0' if t == 0 else 'v[16:19]'}")
    rnd_bf16(20, 16)
    a("v_lshlrev_b32 v48, 16, v48\nv_add_f32 v20, v20, v48")
    rnd_bf16(20, 20)
    a("""v_max_f32 v20, 0, v20
    v_mul_f32 v20, v20, v20
    v_cvt_pk_bf16_f32 v20, v20, v20
    ds_bpermute_b32 v21, v23, v20
    s_waitcnt lgkmcnt(0)""")
    for rq in range(4):
        for dw in range(4):
            a(f"v_and_b32_dpp v{64+4*rq+dw}, v21, v{32+dw} row_newbcast:{rq} {DPPM}")
    def wuv_loads():
        a("s_mov_b32 m0, s11\ns_barrier")
        stamp(1)
        for q in range(8):
            if 0 < q <= P["uv_slow"]: a("s_waitcnt vmcnt(0)")
            a(f"buffer_load_dwordx4 v{26 if (q>>1)&1 else 4}, {sr(SG)}, s10 offen nt lds")
            if q < 7: a(f"s_add_u32 m0, m0, 1024\ns_add_u32 s10, s10, {(64*8192 if q & 1 == 0 else (1-64)*8192) & 0xffffffff}")
    wuv_loads()
    if (P["optx"] and not P["w2_early"]) or P["w2_at"] == "u":
        w2_loads()
        a("s_waitcnt vmcnt(0)")
    else: a("s_waitcnt vmcnt(8)")
    for rq in range(4):
        for cb in range(4):
            a(f"v_mfma_f32_16x16x32_bf16 {vr(96+4*cb)}, {vr(64+4*rq)}, {vr(192+16*rq+4*cb)}, {'0' if rq == 0 else vr(96+4*cb)}")
    a("s_nop 7\ns_branch L_wuv_done\nL_nomlp:")
    if P["qgate"]:
        a("s_cmp_lg_u32 s3, 2\ns_cbranch_scc1 L_nogate")
        for x in range(P["qgate"]):
            grp = [0, 7, 5, 3][x]
            a(f"""s_mul_i32 s12, s8, {8 + P["hc"]}
            s_add_u32 s12, s12, {grp}
            s_and_b32 s12, s12, 7
            s_lshl3_add_u32 s12, s8, s12
            s_lshl3_add_u32 s12, s12, s4
            s_lshl_b32 s12, s12, 7
            s_add_u32 s{30+x}, s12, {QL}""")
        shint("L_gate", [30+x for x in range(P["qgate"])], 'b')
        a("L_nogate:")
    if P["uvg"]:
        a(f"""s_lshl1_add_u32 s12, s8, s3
        s_lshl_b32 s12, s12, 19
        s_lshl_b32 s13, s7, 8
        s_add_u32 s12, s12, s13
        s_cmp_lt_u32 s3, 2
        s_cselect_b32 s12, s12, 0x7ff00000
        s_add_u32 s13, s12, 0x40000
        v_lshrrev_b32 v21, 1, v0
        v_and_b32 v22, 1, v0
        v_lshlrev_b32 v22, 7, v22
        v_lshl_add_u32 v21, v21, 13, v22""")
    if P["wo_gate"] is not None: a("s_barrier")
    if P["uvg"]:
        for _ in range(P["uvg"] - 1): a("s_sleep 2")
        a(f"buffer_load_dword v235, v21, {sr(SG)}, s12 offen\nbuffer_load_dword v234, v21, {sr(SG)}, s13 offen")
    if P["dp_warm"]:
        a(f"""s_cmp_lg_u32 s3, 1
        s_cbranch_scc1 L_nowarm
        s_load_dwordx4 s[72:75], s[0:1], 80
        s_lshl_b32 s12, s5, 14
        s_lshl_b32 s13, s4, 8
        s_add_u32 s12, s12, s13
        s_add_u32 s12, s12, {DP}
        v_lshrrev_b32 v21, 1, v0
        v_and_b32 v22, 1, v0
        v_lshlrev_b32 v21, 11, v21
        v_lshl_add_u32 v21, v22, 7, v21
        s_mov_b64 exec, 0xffff
        buffer_load_dword v236, v21, {sr(SW)}, s12 offen sc1
        s_add_u32 s12, s12, {128*2048}
        {f"buffer_load_dword v236, v21, {sr(SW)}, s12 offen sc1" if P["mlp"] == "a" else ""}
        s_cmp_lg_u32 s5, 0
        s_cbranch_scc1 L_nowarm2
        s_mov_b64 exec, 1
        s_lshl_b32 s13, s4, 7
        v_mov_b32 v21, s13
        s_waitcnt lgkmcnt(0)
        global_load_dword v236, v21, s[72:73]
        global_load_dword v236, v21, s[74:75] sc1
        L_nowarm2:
        s_mov_b64 exec, -1
        L_nowarm:""")
    wuv_loads()
    a("L_wuv_done:")
    a(f"""s_lshl_b32 s12, s3, 13
    s_lshl2_add_u32 s16, s7, s8
    s_lshl_b32 s13, s16, 15
    s_add_u32 s13, s13, s12
    s_add_u32 s13, s13, {BP}
    s_lshl_b32 s12, s12, 1
    s_lshl4_add_u32 s12, s7, s12
    s_add_u32 s12, s12, {ST}""")
    if P["st_touch"]: a(f"buffer_load_dwordx4 v[16:19], v10, {sr(SW)}, s12 offen {P['st_pol']}")
    a("s_waitcnt vmcnt(0)")
    if P["hshift"]:
        a(f"s_cmp_ge_u32 s7, 16\ns_cselect_b32 s36, {16*131072 + 128}, 0\ns_sub_u32 s36, s13, s36\ns_add_u32 s36, s{SW}, s36\ns_addc_u32 s37, s{SW+1}, 0")
    else: a(f"s_add_u32 s36, s{SW}, s13\ns_addc_u32 s37, s{SW+1}, 0")
    boffs = [((32*x//P["bhint"] + 3) % 32)*256 + 128 for x in range(P["bhint"])]
    if P["hpipe"]:
        for x, o in enumerate(boffs): a(f"s_load_dwordx2 {sr(HINT+2*x,2)}, s[36:37], {o} glc")
    a("s_barrier")
    for n in range(2):
        for t in range(4):
            for sec in range(2):
                a(f"ds_read_b64_tr_b16 {vr(160+16*n+4*t+2*sec,2)}, v{8+n} offset:{8192*t + 1024*sec}")
    a("s_waitcnt lgkmcnt(0)\ns_barrier")
    a(f"""s_cmp_lg_u32 s3, 3
    s_cbranch_scc1 L_nomw
    v_add_u32 v20, {X+4096}, v41
    s_mov_b32 exec_hi, 0""")
    for cb in range(4): a(f"ds_write_b128 v20, {vr(96+4*cb)} offset:{512*cb}")
    a("s_mov_b64 exec, -1\nL_nomw:")
    stamp(2)
    nh = P["lhint"]
    shint("L_lhint", hint_offs(nh, 16, 31, 9, 12, 32//max(nh,1)), 't')
    def st_check():
        a(f"""v_xor_b32 v17, s{sF}, v17
        v_bitop3_b32 v17, v17, v19, s{sF} bitop3:0xf6""")
    def st_loop():
        if P["st_sleep"]: a(f"s_branch L_stp1\nL_stp:\ns_sleep {P['st_sleep']}\nL_stp1:")
        else: a("L_stp:")
        a(f"buffer_load_dwordx4 v[16:19], v10, {sr(SW)}, s12 offen {P['st_pol']}\ns_waitcnt vmcnt(0)")
        st_check()
        a("v_cmp_ne_u32 vcc, 0, v17")
        spin("L_stp", "s_cbranch_vccnz")
        stamp(4)
    def pl_load(t): a(f"buffer_load_dwordx4 {vr(64+4*t)}, v11, {sr(SW)}, s{13 + (t>>2)} offen offset:{1024*(t&3)} {P['pl_pol']}")
    def ops(between=None):
        a0 = len(a.lines)
        ops1()
        if between is not None:
            L = a.lines[a0:]; del a.lines[a0:]
            k = min(P["ops_split"], len(L))
            a.lines.extend(L[:k]); between(); a.lines.extend(L[k:])
    def ops1():
        a("v_mov_b32 v24, v16")
        allreduce("v_max_f32", 24, 20)
        a("""v_sub_f32 v16, v16, v24
        v_exp_f32 v16, v16
        v_cvt_pk_bf16_f32 v16, v16, v16""")
        for t in range(8):
            for dw in range(4):
                a(f"v_and_b32_dpp v{128+4*t+dw}, v16, v{32+dw} row_newbcast:{t} {DPPM}")
        a("v_and_b32 v25, 0xffff0000, v16\nv_mul_f32 v25, v25, v18")
        allreduce("v_add_f32", 25, 20)
        a("v_mul_f32 v25, 0.5, v25\nds_write_b64 v15, v[24:25] offset:1024")
    if P["st_first"]: st_loop()
    if P["s1mode"] != "a":
        a("s_add_u32 s14, s13, 4096")
        if P["hpipe"]: a("s_branch L_h1_chk")
        shint("L_h1", boffs[:1], 'c')
        a(f"buffer_load_dwordx4 v[16:19], v10, {sr(SW)}, s12 offen {P['st_pol']}")
        if P["s1mode"] == "b": shint("L_h2", boffs[1:], 'c')
        a("s_waitcnt vmcnt(0)")
        st_check()
        a("v_cmp_ne_u32 vcc, 0, v17\ns_cbranch_vccz L_stok2")
        st_loop()
        a("L_stok2:")
        stamp(3)
        def lds8():
            for t in range(8): pl_load(t)
        if P["s1mode"] == "b": ops(lds8)
        else:
            for x, o in enumerate(boffs[1:]): a(f"s_load_dwordx2 {sr(HINT+2*x,2)}, s[36:37], {o} glc")
            ops()
            a("s_branch L_h2_chk")
            shint("L_h2", boffs[1:], 'c')
            lds8()
        a("s_branch L_s1go")
    def mf(t):
        for q in range(4): a(f"v_xor_b32 v{96+4*t+q}, s{[sB, 38, sB+2, 39][q]}, v{64+4*t+q}")
        a(f"v_bitop3_b32 v{48+t}, v{96+4*t}, v{98+4*t}, v{97+4*t} bitop3:0xfd\nv_bitop3_b32 v{48+t}, v{48+t}, v{48+t}, v{99+4*t} bitop3:0xfd")
        a(f"v_mfma_f32_16x16x32_bf16 v[40:43], {vr(128+4*t)}, {vr(96+4*t)}, {'0' if t == 0 else 'v[40:43]'}")
    a(f"s_xor_b32 s38, s{sB+1}, 0x10001\ns_xor_b32 s39, s{sB+3}, 0x10001")
    if P['s1mode'] == 'a':
        nh = P["bhint"]
        if P["hpipe"]: a("s_branch L_bhint0_chk")
        for rnd in range(P["brounds"]):
            shint(f"L_bhint{rnd}", [((32*x//nh + 3 - rnd) % 32)*256 + 128 for x in range(nh)], 'c')
        stamp(3)
        a("s_add_u32 s14, s13, 4096")
        if P["late_fast"]:
            a("s_cmp_eq_u32 s28, 1\ns_cbranch_scc0 L_slow")
            a(f"buffer_load_dwordx4 v[16:19], v10, {sr(SW)}, s12 offen {P['st_pol']}")
            for t in range(8): pl_load(t)
            a("s_waitcnt vmcnt(8)")
            st_check()
            a("v_cmp_ne_u32 vcc, 0, v17\ns_cbranch_vccz L_ops\nL_slow:")
        if P["st_last"] and not P["st_first"]: st_loop()
        if not P["st_last"]: a(f"buffer_load_dwordx4 v[16:19], v10, {sr(SW)}, s12 offen {P['st_pol']}")
        for t in range(8): pl_load(t)
        if not P["st_last"]:
            a("s_waitcnt vmcnt(8)")
            stamp(4)
            st_check()
            a("v_cmp_ne_u32 vcc, 0, v17\ns_cbranch_vccz L_stok")
            a(f"L_stp:\nbuffer_load_dwordx4 v[16:19], v10, {sr(SW)}, s12 offen {P['st_pol']}\ns_waitcnt vmcnt(0)")
            st_check()
            a("v_cmp_ne_u32 vcc, 0, v17")
            spin("L_stp", "s_cbranch_vccnz")
            a("L_stok:")
        a("L_ops:")
        ops()
    a("L_s1go:")
    stamp(5)
    for t in range(8):
        a(f"s_waitcnt vmcnt({7-t})")
        mf(t)
        if t == 2: a("v_or3_b32 v7, v48, v49, v50")
        if t in (4, 6): a(f"v_or3_b32 v7, v7, v{47+t}, v{48+t}")
    a("v_or_b32 v7, v7, v55\nv_and_b32 v7, v30, v7\nv_cmp_ne_u32 vcc, 0, v7\ns_cbranch_vccz L_bok")
    a("L_bre:")
    if P["re_sleep"]: a(f"s_sleep {P['re_sleep']}")
    for t in range(8):
        a(f"v_and_b32 v7, v30, v{48+t}\nv_cmp_ne_u32 vcc, 0, v7\ns_cbranch_vccz L_br{t}")
        pl_load(t)
        a(f"L_br{t}:")
    a("s_waitcnt vmcnt(0)")
    for t in range(8):
        mf(t)
        if t == 2: a("v_or3_b32 v7, v48, v49, v50")
        if t in (4, 6): a(f"v_or3_b32 v7, v7, v{47+t}, v{48+t}")
    a("v_or_b32 v7, v7, v55\nv_and_b32 v7, v30, v7\nv_cmp_ne_u32 vcc, 0, v7")
    if diag: a("s_add_u32 s28, s28, 99")
    spin("L_bre", "s_cbranch_vccnz")
    a("L_bok:\ns_nop 3")
    stamp(6)
    a("""v_cvt_pk_bf16_f32 v44, v40, v41
    v_cvt_pk_bf16_f32 v45, v42, v43
    s_mov_b32 exec_hi, 0
    ds_write_b64 v12, v[44:45]
    s_mov_b64 exec, -1
    s_waitcnt lgkmcnt(0)
    s_setprio 2
    s_barrier""")
    a("ds_read_b128 v[64:67], v13")
    for u in range(2): a(f"ds_read2st64_b64 {vr(80+4*u)}, v31 offset0:{2 + 32*u} offset1:{18 + 32*u}")
    for t in range(1, 4): a(f"ds_read_b128 {vr(64+4*t)}, v13 offset:{64*t}")
    sm = """v_max3_f32 v4, v80, v82, v84
    v_max_f32 v4, v4, v86
    v_sub_f32 v80, v80, v4
    v_sub_f32 v82, v82, v4
    v_sub_f32 v84, v84, v4
    v_sub_f32 v86, v86, v4
    v_exp_f32 v80, v80
    v_exp_f32 v82, v82
    v_exp_f32 v84, v84
    v_exp_f32 v86, v86
    v_mul_f32 v5, v80, v81
    v_fmac_f32 v5, v82, v83
    v_fmac_f32 v5, v84, v85
    v_fmac_f32 v5, v86, v87
    v_rcp_f32 v5, v5
    v_mul_f32 v6, v40, v80
    v_fmac_f32 v6, v41, v82
    v_fmac_f32 v6, v42, v84
    v_fmac_f32 v6, v43, v86""".split("\n")
    fill = [0, 2, 2, 2, 1, 1, 1, 99]
    for x, (n, t) in enumerate([(n, t) for n in range(2) for t in range(4)]):
        if n == 0: a(f"s_waitcnt lgkmcnt({[5, 2, 1, 0][t]})")
        a(f"v_mfma_f32_16x16x32_bf16 {vr(40+4*n)}, {vr(64+4*t)}, {vr(160+16*n+4*t)}, {'0' if t == 0 else vr(40+4*n)}")
        for _ in range(min(fill[x], len(sm))): a(sm.pop(0))
    a("""v_mul_f32 v7, v44, v80
    v_fmac_f32 v7, v45, v82
    v_fmac_f32 v7, v46, v84
    v_fmac_f32 v7, v47, v86
    v_cndmask_b32 v6, v6, v7, s[18:19]
    v_mul_f32 v6, v6, v5
    v_cvt_pk_bf16_f32 v6, v6, v6
    ds_write_b16 v14, v6
    s_waitcnt lgkmcnt(0)""")
    stamp(7)
    a("s_barrier")
    if P["cyc"]: a("s_barrier")
    a("s_branch L_exit")

    sect[0] = "O"
    a("L_WO:")
    a(f"s_load_dwordx2 s[{SG}:{SG+1}], s[0:1], 40\ns_barrier\nL_WO1:")
    srd(SC, 16 << 20)
    a(f"""s_lshl4_add_u32 s14, s4, s5
    s_lshl2_add_u32 s14, s14, s3
    s_sub_u32 s14, s14, 4
    s_lshl_b32 s14, s14, 15
    v_lshrrev_b32 v5, 1, v0
    v_and_b32 v6, 1, v0
    v_lshlrev_b32 v5, 10, v5
    v_lshl_add_u32 v5, v6, 7, v5""")
    a("v_mov_b32 v44, v5\ns_mov_b32 s30, s14")
    def ckv_pf():
        for x in range(P["cpf"]):
            if x >= P["cpf_depth"]: a(f"s_waitcnt vmcnt({P['cpf_depth']-1})")
            if P["rgmajor"] == 2:
                a(f"""s_add_u32 s31, s30, {8192*(3-x) + 512}
                v_lshrrev_b32 v44, 2, v0
                v_and_b32 v45, 3, v0
                v_lshlrev_b32 v44, 10, v44
                v_lshl_add_u32 v44, v45, 7, v44
                s_mov_b32 exec_hi, 0
                buffer_load_dword v{110+x}, v44, {sr(SC)}, s31 offen
                s_mov_b64 exec, -1""")
            elif P["rgmajor"] == 4:
                a(f"""s_add_u32 s31, s30, {4096*(7-x)}
                v_lshlrev_b32 v44, 7, v0
                s_mov_b32 exec_hi, 0
                buffer_load_dword v{110+x}, v44, {sr(SC)}, s31 offen
                s_mov_b64 exec, -1""")
            else:
                a(f"""s_mov_b32 exec_{'lo' if x & 1 == 0 else 'hi'}, 0
                buffer_load_dword v{110+x}, v44, {sr(SC)}, s30 offen offset:{256*(3 - x//2)}
                s_mov_b64 exec, -1""")
    if P["nox_cpf"]:
        a(f"s_cmp_lg_u32 s4, {P['nox']}\ns_cbranch_scc1 L_nocpf")
        sv = P["cpf"]; P["cpf"] = P["nox_cpf"]; ckv_pf(); P["cpf"] = sv
        a(f"s_waitcnt vmcnt({P['cpf_tail']})\ns_branch L_nocpf2\nL_nocpf:")
    if not P["cpf_late"]: ckv_pf()
    if P["nox_cpf"]: a("L_nocpf2:")
    srd(SG, 4 << 20)
    a(f"""s_sub_u32 s9, s3, 4
    s_lshl_b32 s10, s7, 17
    s_lshl_b32 s11, s9, 8
    s_add_u32 s10, s10, s11
    s_lshl_b32 s11, s9, 15
    v_lshlrev_b32 v4, 2, v3
    v_xor_b32 v4, v4, v2
    v_lshlrev_b32 v4, 4, v4
    v_lshl_add_u32 v4, v3, 10, v4
    v_xor_b32 v5, 32, v4
    s_mov_b32 m0, s11""")
    if P["wo_rot"]:
        a("s_lshl_b32 s13, s8, 15\ns_add_u32 s10, s10, s13")
        for tau in range(3):
            a(f"s_cmp_eq_u32 s8, {3-tau}\ns_cselect_b32 s{36+tau}, -31, 1\ns_lshl_b32 s{36+tau}, s{36+tau}, 12")
    a(f"""v_bfe_u32 v6, v0, 2, 2
    v_bfe_u32 v7, v0, 4, 1
    v_bfe_u32 v16, v0, 1, 1
    v_lshl_or_b32 v7, v7, 1, v16
    v_lshl_or_b32 v7, v6, 2, v7
    v_lshlrev_b32 v7, 4, v7
    v_lshlrev_b32 v6, 8, v6
    v_lshl_add_u32 v6, v3, 11, v6
    v_and_b32 v16, 1, v0
    v_lshl_add_u32 v6, v16, 3, v6
    v_add_u32 v6, s11, v6""")
    for n in range(8):
        a(f"v_xor_b32 v16, {32*n}, v7\nv_add_u32 v{8+n}, v6, v16")
    a(f"""v_lshrrev_b32 v16, 1, v3
    v_add_u32 v16, s8, v16
    v_and_b32 v17, 1, v3
    v_and_b32 v18, 1, v0
    v_lshl_or_b32 v17, v17, 1, v18
    v_lshlrev_b32 v17, 4, v17
    v_add_u32 v17, {X+2048}, v17
    v_and_b32 v36, 3, v16
    v_lshl_add_u32 v36, v36, 6, v17
    v_xor_b32 v37, 0x80, v36
    v_mul_u32_u24 v38, 0xaaaa, v18
    v_add_u32 v38, 0x4444, v38
    v_lshlrev_b32 v17, 2, v0
    v_and_b32 v19, {4 // P["ntag"] - 1}, v0
    v_cmp_eq_u32 vcc, 0, v19
    v_mov_b32 v19, 0xff
    v_cndmask_b32 v18, 0, v19, vcc
    v_and_b32 v19, 3, v0
    v_add_u32 v19, s{sF}, v19
    s_lshl2_add_u32 s12, s7, s8
    s_lshl_b32 s12, s12, 11
    s_lshl_b32 s13, s9, 9
    s_add_u32 s12, s12, s13
    s_add_u32 s12, s12, {DP}
    s_add_u32 s13, s13, {X+4096}
    v_add_u32 v39, s13, v17""")
    if P["dp_cm"]:
        a(f"""s_lshl2_add_u32 s12, s7, s8
        s_lshl_b32 s12, s12, 6
        s_lshl_b32 s13, s9, 16
        s_add_u32 s12, s12, s13
        s_add_u32 s12, s12, {DP}
        s_add_u32 s33, s12, 0x8000
        v_lshlrev_b32 v17, 2, v2
        v_lshl_add_u32 v17, v3, 13, v17""")
    assert P["wo_rot"]
    for r in range(40): a(f"v_mov_b32 v{64+r}, 0")
    a("s_waitcnt lgkmcnt(0)")
    if P["tlb"]: a(f"v_mov_b32 v45, 0\ns_mov_b64 exec, 1\nbuffer_load_dword v110, v45, {sr(SG)}, s10 offen\ns_mov_b64 exec, -1")
    def wo_read(t):
        for n in range(8):
            for sec in range(2):
                a(f"ds_read_b64_tr_b16 {vr(128+16*n+4*t+2*sec,2)}, v{8+n} offset:{8192*t + 1024*sec}")
    nxt = 0
    for rg in range(32):
        if rg == 0 and P["cpf"] and not P["cpf_late"]: a(f"s_waitcnt vmcnt({P['cpf_tail']})")
        if rg == 0 and not P["optx"]: a("s_barrier")
        if rg == P["x_n"] and P["optx"]: a(f"s_waitcnt vmcnt({P['x_left']})\ns_barrier")
        if rg == 0 and P["cpf_late"]:
            ckv_pf()
            if P["cpf_wait"] is not None: a(f"s_waitcnt vmcnt({P['cpf_wait']})")
        if rg == 0:
            for x in P["wo_bar"]:
                if x < 0: a("s_barrier")
        if rg == 0 and not P["fine"]: stamp(1)
        wd = P["wo_edepth"] if rg < P["wo_early"] else (P["wo_depth0"] if rg < 8 + P["wo_depth0"] else P["wo_depth"])
        if rg >= wd:
            a(f"s_waitcnt vmcnt({wd-1})")
            landed = rg - wd + 1
            if landed >= 8*(nxt+1):
                if nxt == 0: stamp(5)
                if "noread" not in P["abl"]: wo_read(nxt)
                nxt += 1
        a(f"buffer_load_dwordx4 v{4+((rg>>1)&1)}, {sr(SG)}, s10 offen {P['first_pol'] if rg < 8 else P['wo_pol']} lds")
        if rg in P["wo_bar"]: a("s_barrier")
        if rg < 31:
            if P["wo_rot"] and rg & 7 == 7: a(f"s_add_u32 m0, m0, 1024\ns_add_u32 s10, s10, s{36+(rg>>3)}")
            else: a("s_add_u32 m0, m0, 1024\ns_add_u32 s10, s10, 4096")
    while nxt < 4 - P["b2_early"]:
        a(f"s_waitcnt vmcnt({24 - 8*nxt})")
        wo_read(nxt); nxt += 1
    for v_ in range(4):
        a(f"s_mov_b32 s{40+2*v_}, {0x00030003 << (4*v_)}\ns_mov_b32 s{41+2*v_}, {0x00030003 << (4*v_)}")
    for x in P["wo_bar"]:
        if x >= 32: a("s_barrier")
    stamp(6)
    if "bwait" in P["abl"]: a("s_barrier")
    a("s_barrier\nds_read_b32 v96, v39\nds_read_b32 v100, v39 offset:256")
    while nxt < 4:
        a(f"s_waitcnt vmcnt({24 - 8*nxt})")
        wo_read(nxt); nxt += 1
    a("s_mov_b64 exec, s[40:41]\ns_barrier")
    stamp(7)
    for v_ in range(4):
        if v_: a(f"s_mov_b64 exec, s[{40+2*v_}:{41+2*v_}]")
        for T in range(2): a(f"ds_read_b128 {vr(64+8*v_+4*T)}, v{36+T}")
    a("s_mov_b64 exec, -1")
    if P["s3ord"] == 0: o3 = [(H, v_, T) for H in range(2) for v_ in range(4) for T in range(2)]
    else: o3 = [(H, v_, T) for v_ in range(2) for T in range(2) for H in range(2)] + [(H, v_, T) for H in range(2) for v_ in range(2, 4) for T in range(2)]
    for (H, v_, T) in o3:
        if H == 0: a(f"s_waitcnt lgkmcnt({7 - 2*v_ - T})")
        a(f"v_smfmac_f32_16x16x64_bf16 {vr(96+4*H)}, {vr(64+8*v_+4*T)}, {vr(128+16*(4*H+v_)+8*T, 8)}, v38")
    a(f"""v_add_f32 v96, v96, v97
    v_bfi_b32 v96, v18, v19, v96
    buffer_store_dword v96, v17, {sr(SW)}, s12 offen sc1
    v_add_f32 v100, v100, v101
    v_bfi_b32 v100, v18, v19, v100
    buffer_store_dword v100, v17, {sr(SW)}, {"s33 offen" if P["dp_cm"] else "s12 offen offset:256"} sc1""")
    stamp(8)
    if diag:
        a("s_waitcnt vmcnt(0)"); stamp(9)

    a("L_exit:")
    if P["probe"]:
        if P["probe"][0].startswith("x"):
            a(f"s_waitcnt lgkmcnt(0)\ns_lshl_b32 s85, 1, s4\ns_and_b32 s85, s85, {int(P['probe'][0][1:], 16)}\ns_cselect_b32 s84, s80, 0\ns_cmp_eq_u32 s3, 0\ns_cselect_b32 s84, s84, 0")
        a(f"""s_load_dwordx2 s[86:87], s[0:1], 96
        s_mov_b64 exec, 1
        s_waitcnt lgkmcnt(0)
        v_mov_b32 v4, 0
        v_mov_b32 v5, s84
        s_cmp_eq_u32 s84, 0
        s_cbranch_scc1 L_pr1
        global_atomic_umax v4, v5, s[86:87] offset:128
        L_pr1:
        s_cmp_lg_u32 s3, 0
        s_cbranch_scc1 L_pr2
        v_mov_b32 v5, s80
        global_atomic_umax v4, v5, s[86:87]
        v_not_b32 v6, v5
        global_atomic_umax v4, v6, s[86:87] offset:4
        L_pr2:
        s_cmp_lg_u32 s88, 1
        s_cbranch_scc1 L_end
        s_add_u32 s90, s80, 3000
        L_pr3:
        s_memrealtime s[82:83]
        s_waitcnt lgkmcnt(0)
        s_sub_u32 s83, s82, s90
        s_cmp_lt_i32 s83, 0
        s_cbranch_scc1 L_pr3
        global_load_dwordx2 v[8:9], v4, s[86:87] sc1
        global_load_dword v10, v4, s[86:87] offset:128 sc1
        s_waitcnt vmcnt(0)
        v_readfirstlane_b32 s91, v8
        v_readfirstlane_b32 s92, v9
        v_readfirstlane_b32 s93, v10
        s_not_b32 s92, s92""")
        ref = "s92" if P["probe"][1] == "min" else "s91"
        val = {"maxstart": "s91", "none": ref}.get(P["probe"][0], "s93")
        amp = P["probe"][2] if len(P["probe"]) > 2 else 1
        a(f"""s_sub_u32 s94, {val}, {ref}
        s_mul_i32 s94, s94, {amp}
        s_min_u32 s94, s94, 6000
        s_add_u32 s90, s92, 4000
        s_add_u32 s90, s90, s94
        L_pr4:
        s_memrealtime s[82:83]
        s_waitcnt lgkmcnt(0)
        s_sub_u32 s83, s82, s90
        s_cmp_lt_i32 s83, 0
        s_cbranch_scc1 L_pr4""")
    if diag:
        a(f"""s_mov_b64 exec, -1
        s_waitcnt lgkmcnt(0)
        s_lshl3_add_u32 s10, s2, s3
        s_lshl_b32 s10, s10, 7
        s_add_u32 s10, s10, {STAMP}
        v_mov_b32 v4, 0""")
        for k in range(10):
            a(f"v_mov_b32 v5, s{80+2*k}\nbuffer_store_dword v5, v4, {sr(SW)}, s10 offen offset:{4*k}")
        a(f"v_mov_b32 v5, s28\nbuffer_store_dword v5, v4, {sr(SW)}, s10 offen offset:40")
        a(f"s_getreg_b32 s11, hwreg(HW_REG_XCC_ID)\nv_mov_b32 v5, s11\nbuffer_store_dword v5, v4, {sr(SW)}, s10 offen offset:44")
        a(f"s_getreg_b32 s11, hwreg(HW_REG_HW_ID)\nv_mov_b32 v5, s11\nbuffer_store_dword v5, v4, {sr(SW)}, s10 offen offset:48")
    a("L_end:\ns_endpgm\nL_codeend:")
    if P["align"] is not None:
        a(f"""L_align:
        s_memrealtime s[80:81]
        s_and_b32 s4, s2, 7
        s_mul_i32 s5, s4, 3
        s_cmp_eq_u32 s4, 0
        s_cselect_b32 s5, {P['align']}, s5
        s_waitcnt lgkmcnt(0)
        s_or_b32 s6, s80, 511
        s_add_u32 s6, s6, s5
        L_al:
        s_memrealtime s[80:81]
        s_waitcnt lgkmcnt(0)
        s_sub_u32 s7, s80, s6
        s_cmp_lt_i32 s7, 0
        s_cbranch_scc1 L_al
        s_branch L_back""")


    lines = a.lines
    if diag:
        pre = [f"s_mov_b32 s{80+2*k}, 0" for k in range(1, 10)]
        lines = lines[:1] + pre + lines[1:]
    lines, nins = insert_waits(lines)
    for b_ in check_edges(lines): print('EDGE HAZARD', b_, file=sys.stderr)
    b = Asm(); b.lines = lines
    head = f"""; fused MLA decode attention (absorbed form) + squared-relu MLP, one persistent launch, 256 workgroups
; @launch grid=(256,1,1) block=(512,1,1) lds=163840
.amdgcn_target "amdgcn-amd-amdhsa--gfx950"
.text
.globl {KNAME}
.p2align 8
.type {KNAME},@function
{KNAME}:
"""
    foot = f"""
.section .rodata,"a"
.p2align 6
.amdhsa_kernel {KNAME}
  .amdhsa_next_free_vgpr 256
  .amdhsa_next_free_sgpr 102
  .amdhsa_accum_offset 256
  .amdhsa_group_segment_fixed_size 0
  .amdhsa_kernarg_size 112
  .amdhsa_user_sgpr_count 2
  .amdhsa_user_sgpr_kernarg_segment_ptr 1
  .amdhsa_system_sgpr_workgroup_id_x 1
  .amdhsa_float_denorm_mode_32 3
.end_amdhsa_kernel
"""
    txt = b.text()
    if P["abl"]:
        L = txt.split("\n"); O = []
        for l in L:
            if "nowo" in P["abl"] and "s[60:63]" in l and "buffer_load" in l: continue
            if "nomlp" in P["abl"] and f"s_cmp_eq_u32 s4, {P['nox']}" in l: l = "    s_cmp_eq_u32 s4, s4"
            if "noqk" in P["abl"] and "32x32x16" in l and ", 0" not in l[-4:]: continue
            if "nopv" in P["abl"] and "16x16x32" in l and any(f"v[{x}:{x+3}], v[{y}" in l for x in (36, 40, 52, 56) for y in range(128, 256, 4)): continue
            if "noexp" in P["abl"] and "v_exp_f32 v7" in l: continue
            if "nos3" in P["abl"] and "16x16x32" in l and ("v[24:27]," in l or "v[28:31]," in l) and "v[32:35], v[" not in l: continue
            O.append(l)
        txt = "\n".join(O)
    if P["pol"] != "nt":
        txt = txt.replace(" nt lds", f" {P['pol']} lds").replace(" nt\n", f" {P['pol']}\n")
    return head + txt + foot

if __name__ == "__main__":
    import json
    kw = json.loads(sys.argv[2]) if len(sys.argv) > 2 else {}
    open(sys.argv[1], "w").write(gen(**kw))
```

```python
import sys, json, gen3
kw = json.loads(sys.argv[2]) if len(sys.argv) > 2 else {}
txt = gen3.gen(**kw)
ref = open("parallel_sum__compressed_kv_cla__dense_activation_squared_relu__decode.s.ref").read().split("\n")
hdr = [l for l in ref if l.startswith(";") and "@launch" not in l and "Override" not in l and "grid=ceil" not in l]
doc = """;
; One persistent launch, 256 workgroups (one per CU, all co-resident), 8 waves each.  Absorbed MLA:
;   Q[h,c]  = scale*log2e * sum_d q[h,d] w_uk[c,h,d],  q = LN(x) w_q          (WGT workgroups)
;   O_i     = exp2(Q c_kv_i^T - M_i) c_kv_i   for 128 tiles i of 128 keys      (ATT workgroups)
;   out     = x + b2 + sum_{h,j} ( (sum_i 2^(M_i-M) O_i / L)[h,slice j] w_uv w_o + MLP slice )
; id bit 3 = role (0 WGT: head h, latent slice j;  1 ATT: key tile i);  id&7 only groups workgroups that share L2 lines (speed).
; Hand-offs go through d_ws with write-through (sc1) stores and sc1 loads.  Every handed-off word group carries tag bits
; derived from the epoch word at d_ws+0 (+1 per launch), so a reader can tell this launch's data from older contents; it
; re-reads until the tags match and strips them before use, so the result does not depend on the epoch.
; d_ws: 0 epoch | 0x40000 Q (bf16) | 0x50000 {M,T,L,T} per tile,head | 0x80000 output partials (f32) | 0x100000 O partials (bf16)
; Scalar (glc) polls and dword "prefetch" loads only decide when to read / warm L2; they never carry data.
""".split("\n")[:-1]
notes = {
 "L_WGT:": "WGT, all waves: q partial over 64 rows of w_q per wave (MFMA with a one-hot x operand), w_uk slice -> LDS",
 "L_A2:": "WGT waves 5,6: sum q partials, Q slice = w_uk q, publish",
 "L_ATT:": "ATT waves 0-3: c_kv tile -> LDS, S^T = C Q^T, softmax with the tile's true max, P -> LDS, stats",
 "L_FIN:": "finalizer (32 waves): sum 128 output partials for 16 columns, add x and b2, store; wave 0 advances the epoch",
 "L_ATT_help:": "ATT waves 4-7: fetch/validate Q, O = P C for 128 latent columns, publish",
 "L_S1:": "WGT waves 0-3: MLP slice (wave 3), w_uv -> registers, combine the 128 tiles, ctx = ctx_lat w_uv",
 "L_WO:": "WGT waves 4-7: w_o[h] -> LDS -> registers, output partial = ctx w_o + MLP partial, publish",
}
L = txt.split("\n")
out = hdr + doc + [l for l in L if l.startswith("; @launch")]
for l in L:
    if l.startswith(";"): continue
    if l.strip() in notes: out.append("; ---- " + notes[l.strip()])
    out.append(l)
open(sys.argv[1], "w").write("\n".join(out))
```
